```python
import torch

def _softmax(x, axis=-1):
    return torch.softmax(x, dim=axis)

def _gelu(x):
    return torch.nn.functional.gelu(x, approximate='tanh')

def _silu(x):
    return torch.nn.functional.silu(x)

def _sigmoid(x):
    return torch.sigmoid(x)

def _layernorm(x, axis=-1, eps=1e-05):
    m = x.mean(dim=axis, keepdim=True)
    v = x.var(dim=axis, keepdim=True, unbiased=False)
    return (x - m) / torch.sqrt(v + eps)

def _scatter_add(tgt, idx, src, axis=0):
    return tgt.clone().index_add_(axis, idx, src)

def _segment_sum(src, seg, n):
    out = torch.zeros((n,) + src.shape[1:], dtype=src.dtype)
    return out.index_add_(0, seg, src)

def _pad(x, pw):
    flat = tuple((v for pair in reversed(pw) for v in pair))
    return torch.nn.functional.pad(x, flat)
kernel_name = 'interleave_layers__memory_aug_recurrent_mem_tr__glu_gated_swiglu__prompt'

def setup_inputs():

    _w = lambda a: (lambda t: t.to(torch.bfloat16) if t.is_floating_point() else t)(torch.as_tensor(a))

    def _A_setup():
        B, S, Dm = (1, 2048, 576)
        H, Dh = (32, 128)
        M, seg = (8, 32)
        seg = min(seg, S)
        S = S // seg * seg
        return {'x': _w((lambda *s: torch.randn(*s, dtype=torch.bfloat16) * 0.05)(B, S, Dm)), 'mem0': _w((lambda *s: torch.randn(*s, dtype=torch.bfloat16) * 0.2)(B, M, Dm)), 'Wq': _w((lambda *s: torch.randn(*s, dtype=torch.bfloat16) * 1.6)(Dm, H, Dh) * Dm ** (-0.5)), 'Wk': _w((lambda *s: torch.randn(*s, dtype=torch.bfloat16) * 1.6)(Dm, H, Dh) * Dm ** (-0.5)), 'Wv': _w((lambda *s: torch.randn(*s, dtype=torch.bfloat16) * 0.2)(Dm, H, Dh) * Dm ** (-0.5)), 'Wo': _w((lambda *s: torch.randn(*s, dtype=torch.bfloat16) * 0.2)(H, Dh, Dm) * (H * Dh) ** (-0.5)), 'seg_len': seg}
    _A_in = _A_setup()

    def _B_setup():
        B, S, D, F = (1, 2048, 576, 4608)
        return {'x': _w((lambda *s: torch.randn(*s, dtype=torch.bfloat16) * 0.05)(B, S, D)), 'w1': _w((lambda *s: torch.randn(*s, dtype=torch.bfloat16) * 0.2)(D, F) * (2.0 / D) ** 0.5), 'w3': _w((lambda *s: torch.randn(*s, dtype=torch.bfloat16) * 0.2)(D, F) * (2.0 / D) ** 0.5), 'w2': _w((lambda *s: torch.randn(*s, dtype=torch.bfloat16) * 0.2)(F, D) * (2.0 / F) ** 0.5)}
    _B_in = _B_setup()
    return {'A_x': _A_in['x'], 'A_mem0': _A_in['mem0'], 'A_Wq': _A_in['Wq'], 'A_Wk': _A_in['Wk'], 'A_Wv': _A_in['Wv'], 'A_Wo': _A_in['Wo'], 'A_seg_len': _A_in['seg_len'], 'B_x': _B_in['x'], 'B_w1': _B_in['w1'], 'B_w3': _B_in['w3'], 'B_w2': _B_in['w2']}

def reference(A_x, A_mem0, A_Wq, A_Wk, A_Wv, A_Wo, A_seg_len, B_x, B_w1, B_w3, B_w2):

    def _A_ref(x, mem0, Wq, Wk, Wv, Wo, seg_len):
        B, S, Dm = x.shape
        H, Dh = (Wq.shape[1], Wq.shape[2])
        M = mem0.shape[1]
        scale = Dh ** (-0.5)
        n_seg = S // seg_len
        L = M + seg_len
        idx = torch.arange(L)
        mask = (idx[:, None] < M) | (idx[:, None] >= idx[None, :])
        mem = mem0
        outs = []
        for s in range(n_seg):
            xs = x[:, s * seg_len:(s + 1) * seg_len, :].clone()
            h = torch.concatenate([mem, xs], axis=1)
            q = torch.einsum('btd,dhe->bhte', h, Wq)
            k = torch.einsum('btd,dhe->bhte', h, Wk)
            v = torch.einsum('btd,dhe->bhte', h, Wv)
            scores = torch.einsum('bhqe,bhke->bhqk', q, k) * scale
            scores = torch.where(mask[None, None], scores, -1000000000.0)
            p = _softmax(scores, axis=-1)
            o = torch.einsum('bhqk,bhke->bhqe', p, v)
            o = torch.einsum('bhte,hed->btd', o, Wo)
            mem = o[:, :M, :].clone()
            outs.append(o[:, M:, :])
        return torch.concatenate(outs, axis=1)

    def _B_ref(x, w1, w3, w2):
        gate = torch.einsum('bsd,df->bsf', x, w1)
        up = torch.einsum('bsd,df->bsf', x, w3)
        h = _silu(gate) * up
        out = torch.einsum('bsf,fd->bsd', h, w2)
        return out
    x = A_x
    x = x + _A_ref(_layernorm(x, axis=-1), A_mem0, A_Wq, A_Wk, A_Wv, A_Wo, A_seg_len)
    x = x + _B_ref(_layernorm(x, axis=-1), B_w1, B_w3, B_w2)
    x = x + _A_ref(_layernorm(x, axis=-1), A_mem0, A_Wq, A_Wk, A_Wv, A_Wo, A_seg_len)
    x = x + _B_ref(_layernorm(x, axis=-1), B_w1, B_w3, B_w2)
    return x
```

```python
class Asm:
    def __init__(self):
        self.lines = []
        self.nlab = 0
    def __call__(self, s):
        for ln in s.split('\n'):
            ln = ln.strip()
            if ln:
                self.lines.append(ln if ln.endswith(':') else ' ' + ln)
    def raw(self, s):
        self.lines.append(s)
    def lab(self, base='L'):
        self.nlab += 1
        return f'{base}_{self.nlab}'
    def label(self, name):
        self.lines.append(name + ':')
    def text(self):
        return '\n'.join(self.lines) + '\n'

def v(i, n=1):
    return f'v{i}' if n == 1 else f'v[{i}:{i+n-1}]'
def a(i, n=1):
    return f'a{i}' if n == 1 else f'a[{i}:{i+n-1}]'
def s(i, n=1):
    return f's{i}' if n == 1 else f's[{i}:{i+n-1}]'
def r(i, n=1):
    if i < 256:
        assert i + n <= 256, (i, n)
        return v(i, n)
    return a(i - 256, n)

HEADER = '''; Kernarg layout for this problem (112 bytes, ptrs only, base s[0:1]):
'''

def kernel_begin(A, name):
    A.raw(f'.globl {name}')
    A.raw('.p2align 8')
    A.raw(f'.type {name},@function')
    A.raw(f'{name}:')

def descriptor(name, vgpr=512, accum=256, sgpr=102):
    return f'''.amdhsa_kernel {name}
  .amdhsa_next_free_vgpr {vgpr}
  .amdhsa_next_free_sgpr {sgpr}
  .amdhsa_accum_offset {accum}
  .amdhsa_group_segment_fixed_size 0
  .amdhsa_kernarg_size 112
  .amdhsa_user_sgpr_count 2
  .amdhsa_user_sgpr_kernarg_segment_ptr 1
  .amdhsa_system_sgpr_workgroup_id_x 1
  .amdhsa_float_denorm_mode_32 3
.end_amdhsa_kernel
'''

def build_file(launches, body_text, descs):
    out = HEADER
    for (k, g, b, l) in launches:
        out += f'; @launch kernel={k} grid=({g},1,1) block=({b},1,1) lds={l}\n'
    out += '.amdgcn_target "amdgcn-amd-amdhsa--gfx950"\n.text\n'
    out += body_text
    out += '.section .rodata,"a"\n'
    for d in descs:
        out += '.p2align 6\n' + d
    return out
```

```python
NSEG = 64
XB = 0x240000
ZERO0 = 0; ZERO_BYTES = 0x200000
RING0 = 0x10000; RSLOT = 294912
ONES0 = 0x200000; ONES_BYTES = 0x40000
MEM0 = ONES0
XNA = 0x300000
XNF = XNA + 2 * XB
X1 = XNF + 2 * XB
X2 = X1 + 2 * XB
QKV = 0x1400000
KVM = 0x7400000
OB = 0x8400000
HB = 0xA400000
PW = 0xC800000
PD = 0xDA00000
DBG = 0xF000000
WS_BYTES = 0x10000000
F_XNA = 0x0000
F_XNF = 0x0100
F_WO = 0x0400
F_DN = 0x0800
F_UP = 0x1000
F_QKV = 0x3000
F_CH = 0x5000
F_ATT = 0x7000
LDS_BYTES = 163840
```

```python
import sys
from asm import *
from layout import *

KNAME = 'interleave_layers__memory_aug_recurrent_mem_tr__glu_gated_swiglu__prompt_kernel'
WS, SX, SOUT, SDBG, SMEM0, SWQ, SWK, SWV, SWO, SW1, SW3, SW2 = [f's[{8+4*i}:{11+4*i}]' for i in range(12)]
sX, sT, sW, sSLOW, sL, sI, sSPIN = 's56', 's57', 's58', 's59', 's60', 's61', 's62'
OOB = 0x7ffffff0
LOG2E = 1.4426950408889634

class Cfg:
    roles = None
    skip_init = False
    spin_limit = 400000
    lam = 14
    timing = False
    force_slow = False
cfg = Cfg()

def f2u(x):
    import struct
    return struct.unpack('<I', struct.pack('<f', x))[0]

def enabled(n):
    return cfg.roles is None or n in cfg.roles

def spin(A, vdst, vaddr, starget, code, soff='0'):
    l = A.lab('Lspin'); d = A.lab('Lspind')
    A(f'''
    s_mov_b32 {sSPIN}, 0
    {l}:
    buffer_load_dword {vdst}, {vaddr}, {WS}, {soff} offen sc1
    s_waitcnt vmcnt(0)
    v_cmp_gt_u32 vcc, {starget}, {vdst}
    s_cbranch_vccz {d}
    s_add_u32 {sSPIN}, {sSPIN}, 1
    s_cmp_lt_u32 {sSPIN}, {cfg.spin_limit}
    s_cbranch_scc1 {l}
    s_mov_b32 s63, {code}
    s_branch L_abort
    {d}:
    ''')

def validate(A):
    l = A.lab('Lval'); d = A.lab('Lvald'); ok = A.lab('Lvalok')
    A(f'''
    s_cmp_lg_u32 {sSLOW}, 0
    s_cbranch_scc1 {ok}
    v_mbcnt_lo_u32_b32 v1, -1, 0
    v_mbcnt_hi_u32_b32 v1, -1, v1
    v_and_b32 v1, 7, v1
    v_lshlrev_b32 v1, 2, v1
    v_mov_b32 v3, 64
    s_mov_b32 {sSPIN}, 0
    {l}:
    buffer_load_dword v2, v3, {SDBG}, 0 offen sc1
    s_waitcnt vmcnt(0)
    v_cmp_ne_u32 vcc, 0x100, v2
    s_cbranch_vccz {d}
    s_add_u32 {sSPIN}, {sSPIN}, 1
    s_cmp_lt_u32 {sSPIN}, {cfg.spin_limit}
    s_cbranch_scc1 {l}
    s_mov_b32 s63, 1
    s_branch L_abort
    {d}:
    buffer_load_dword v2, v1, {SDBG}, 0 offen sc1
    s_waitcnt vmcnt(0)
    v_cmp_ne_u32 vcc, {33 if cfg.force_slow else 32}, v2
    s_cbranch_vccnz L_goslow
    {ok}:
    ''')

def lane(A, dst):
    A(f'''v_mbcnt_lo_u32_b32 {dst}, -1, 0
    v_mbcnt_hi_u32_b32 {dst}, -1, {dst}''')

def stamp(A, slot_expr_sreg, idx):
    pass

def interleave(A, mains, fills, start=0, every=1):
    fi = 0
    for i, m in enumerate(mains):
        A(m)
        if i >= start and (i - start) % every == 0 and fi < len(fills):
            A(fills[fi]); fi += 1
    assert fi == len(fills), (fi, len(fills))

def prologue(A):
    A(f'''
    s_cmp_ge_u32 s2, 256
    s_cbranch_scc1 L_end
    s_load_dwordx16 s[64:79], s[0:1], 0
    s_load_dwordx8 s[80:87], s[0:1], 64
    s_load_dwordx4 s[88:91], s[0:1], 96
    s_getreg_b32 {sX}, hwreg(HW_REG_XCC_ID)
    v_lshrrev_b32 v1, 6, v0
    s_and_b32 {sX}, {sX}, 15
    v_readfirstlane_b32 {sW}, v1
    s_mov_b32 {sSLOW}, 0
    s_waitcnt lgkmcnt(0)
    ''')
    srds = [(8, 90, WS_BYTES), (12, 64, XB), (16, 86, XB), (20, 88, 256), (24, 66, 9216), (28, 68, 4718592),
            (32, 70, 4718592), (36, 72, 4718592), (40, 74, 4718592), (44, 80, 5308416), (48, 82, 5308416), (52, 84, 5308416)]
    for d, p, n in srds:
        A(f'''s_mov_b32 s{d}, s{p}
        s_mov_b32 s{d+1}, s{p+1}
        s_mov_b32 s{d+2}, {n}
        s_mov_b32 s{d+3}, 0x20000''')
    A(f'''
    s_lshl_b32 s63, {sX}, 2
    v_mov_b32 v1, s63
    v_mov_b32 v2, 1
    v_mov_b32 v3, 0
    v_cmp_eq_u32 vcc, 0, v0
    s_and_saveexec_b64 s[64:65], vcc
    s_cbranch_execz L_p1
    buffer_atomic_add v2, v1, {SDBG}, 0 offen sc0
    L_p1:
    s_mov_b64 exec, s[64:65]
    ''')
    if not cfg.skip_init:
        A(f'''
        v_mov_b32 v4, 0
        v_mov_b32 v5, 0
        v_mov_b32 v6, 0
        v_mov_b32 v7, 0
        v_mov_b32 v8, -1
        v_lshlrev_b32 v9, 4, v0
        v_lshlrev_b32 v10, 2, v0
        s_lshl_b32 s63, s2, 13
        s_add_u32 s66, s63, 4096
        s_lshl_b32 s67, s2, 10
        s_add_u32 s67, s67, {ONES0}
        buffer_store_dwordx4 v[4:7], v9, {WS}, s63 offen sc1
        buffer_store_dwordx4 v[4:7], v9, {WS}, s66 offen sc1
        buffer_store_dword v8, v10, {WS}, s67 offen sc1
        ''')
    A(f'''
    s_waitcnt vmcnt(0)
    s_and_saveexec_b64 s[64:65], vcc
    s_cbranch_execz L_p2
    ds_write_b32 v3, v2
    L_p2:
    s_mov_b64 exec, s[64:65]
    s_waitcnt lgkmcnt(0)
    s_barrier
    ds_read_b32 v2, v3
    v_mov_b32 v1, 64
    v_mov_b32 v4, 1
    s_and_saveexec_b64 s[64:65], vcc
    s_cbranch_execz L_p3
    buffer_atomic_add v4, v1, {SDBG}, 0 offen
    L_p3:
    s_mov_b64 exec, s[64:65]
    s_waitcnt lgkmcnt(0)
    v_readfirstlane_b32 {sT}, v2
    s_barrier
    s_cmp_ge_u32 {sT}, 32
    s_cbranch_scc1 L_norole
    s_cmp_ge_u32 {sX}, 8
    s_cbranch_scc1 L_norole
    L_dispatch:
    s_and_b32 {sL}, {sX}, 1
    s_lshr_b32 s63, {sX}, 1
    s_cmp_eq_u32 s63, 0
    s_cbranch_scc1 L_j_chain
    s_cmp_eq_u32 s63, 1
    s_cbranch_scc1 L_j_qkv
    s_cmp_eq_u32 s63, 2
    s_cbranch_scc1 L_j_rg
    s_cmp_lt_u32 {sT}, 24
    s_cbranch_scc1 L_j_up
    s_branch L_att
    L_j_chain:
    s_cmp_eq_u32 {sSLOW}, 0
    s_cbranch_scc1 L_j_chainf
    s_branch L_chain_s
    L_j_chainf:
    s_branch L_chain_f
    L_j_qkv:
    s_branch L_qkv
    L_j_up:
    s_branch L_up
    L_j_rg:
    s_cmp_ge_u32 {sT}, 24
    s_cbranch_scc1 L_j_red
    s_lshl_b32 s63, {sL}, 1
    s_add_u32 s63, s63, {sSLOW}
    s_cmp_eq_u32 s63, 0
    s_cbranch_scc1 L_j_wof
    s_cmp_eq_u32 s63, 1
    s_cbranch_scc1 L_j_wos
    s_cmp_eq_u32 s63, 2
    s_cbranch_scc1 L_j_dnf
    s_branch L_dn_s
    L_j_wof:
    s_branch L_wo_f
    L_j_wos:
    s_branch L_wo_s
    L_j_dnf:
    s_branch L_dn_f
    L_j_red:
    s_branch L_red
    L_norole:
    ''')
    validate(A)
    A(f'''
    s_mov_b32 s63, 2
    s_branch L_abort
    L_goslow:
    s_mov_b32 {sSLOW}, 1
    s_lshr_b32 {sX}, s2, 5
    s_and_b32 {sT}, s2, 31
    s_waitcnt vmcnt(0) lgkmcnt(0)
    s_barrier
    s_branch L_dispatch
    L_abort:
    s_lshl_b32 s64, {sX}, 8
    s_or_b32 s63, s63, s64
    s_lshl_b32 s64, {sI}, 16
    s_or_b32 s63, s63, s64
    s_or_b32 s63, s63, 0x80000000
    s_mov_b64 exec, 1
    v_mov_b32 v1, s63
    s_lshl_b32 s64, {sX}, 2
    s_add_u32 s64, s64, 128
    v_mov_b32 v2, s64
    buffer_store_dword v1, v2, {SDBG}, 0 offen
    s_waitcnt vmcnt(0)
    L_end:
    s_endpgm
    ''')

def simple_stream(A, name, nitems, loads, compute, stores, vpoll, vpaddr, tmul, vflag, vfaddr, fmul, code, haspoll=True, endlabel='L_end'):
    def flag(sval):
        if vflag is None: return
        if fmul == 1:
            A(f'v_mov_b32 {vflag}, {sval}')
        else:
            A(f's_mul_i32 s63, {sval}, {fmul}\n v_mov_b32 {vflag}, s63')
        A(f'buffer_store_dword {vflag}, {vfaddr}, {WS}, 0 offen sc1')
    A(f's_mov_b32 {sI}, 0')
    if haspoll:
        A(f's_mov_b32 s65, {tmul}')
        spin(A, vpoll, vpaddr, 's65', code)
    A('s_mov_b32 s64, 0')
    loads(0)
    for P in (0, 1):
        nl = A.lab('Lnl'); sl = A.lab('Lsl'); fin = A.lab('Lfin')
        A(f'{name}_top{P}:')
        A('s_waitcnt vmcnt(0)')
        flag(sI)
        A(f'''s_add_u32 s64, {sI}, 1
        s_mov_b32 s66, 0
        s_cmp_ge_u32 s64, {nitems}
        s_cbranch_scc1 {nl}''')
        if haspoll:
            A(f'''s_add_u32 s65, s64, 1
            s_mul_i32 s65, s65, {tmul}
            v_cmp_gt_u32 vcc, s65, {vpoll}
            s_cbranch_vccnz {nl}''')
        loads(1 - P)
        A(f's_mov_b32 s66, 1\n {nl}:')
        compute(P)
        if haspoll:
            A(f'buffer_load_dword {vpoll}, {vpaddr}, {WS}, 0 offen sc1')
        stores(P)
        A(f'''s_add_u32 {sI}, {sI}, 1
        s_cmp_lg_u32 s66, 0
        s_cbranch_scc1 {name}_top{1-P}
        s_waitcnt vmcnt(0)''')
        flag(sI)
        A(f'''s_cmp_ge_u32 {sI}, {nitems}
        s_cbranch_scc1 {name}_done''')
        if haspoll:
            A(f'''s_add_u32 s65, {sI}, 1
            s_mul_i32 s65, s65, {tmul}''')
            spin(A, vpoll, vpaddr, 's65', code)
        A(f's_mov_b32 s64, {sI}')
        loads(1 - P)
        if P == 1:
            A(f's_branch {name}_top0')
    A(f'{name}_done:')
    A('s_waitcnt vmcnt(0)')
    if endlabel:
        A(f's_branch {endlabel}')

def red_stream(A, name, npart, pbase, res_srd, res_base, xo_srd, xo_base, xn_base, fin, fout, code, endlabel):
    vROW, vXN, vMSK, vPA, vP, vFA, vF = 'v1', 'v2', 'v3', 'v4', 'v5', 'v6', 'v7'
    SET = [16, 80]
    ACC = 144
    PK = 168
    T = 180
    if fin is not None:
        A(f'''s_lshr_b32 s63, s70, 2
        s_lshl_b32 s63, s63, 7
        s_add_u32 s63, s63, {fin}''')
        lane(A, vPA)
        A(f'''v_min_u32 {vPA}, 23, {vPA}
        v_lshl_add_u32 {vPA}, {vPA}, 2, s63''')
    if fout is not None:
        A(f'''s_lshl_b32 s63, s70, 2
        s_add_u32 s63, s63, {fout}''')
        lane(A, vFA)
        A(f'''v_cmp_eq_u32 vcc, 0, {vFA}
        v_mov_b32 v8, s63
        v_mov_b32 {vFA}, {OOB}
        v_cndmask_b32 {vFA}, {vFA}, v8, vcc''')
    def loads(P):
        b = SET[P]
        A(f's_mul_i32 s67, s64, 36864')
        if res_base: A(f's_add_u32 s67, s67, {res_base}')
        for j in range(3):
            A(f'buffer_load_dwordx4 {v(b+4*j,4)}, {vROW}, {res_srd}, s67 offen offset:{384*j} sc1')
        if npart:
            A(f's_mul_i32 s67, s64, {4*36864}\n s_add_u32 s67, s67, {pbase}')
        for k in range(npart):
            for j in range(3):
                A(f'buffer_load_dwordx4 {v(b+12+12*k+4*j,4)}, {vROW}, {WS}, s67 offen offset:{384*j} sc1')
            if k + 1 < npart: A('s_add_u32 s67, s67, 36864')
    def halfsum(x, t):
        for m in ('quad_perm:[1,0,3,2]', 'quad_perm:[2,3,0,1]', 'row_half_mirror', 'row_mirror'):
            A(f's_nop 1\n v_add_f32_dpp {x}, {x}, {x} {m} row_mask:0xf bank_mask:0xf')
        A(f'''v_mov_b32 {t}, {x}
        s_nop 1
        v_permlane16_swap_b32 {x}, {t}
        s_nop 1
        v_add_f32 {x}, {x}, {t}''')
    def compute(P):
        b = SET[P]
        if npart:
            for d in range(12):
                A(f'v_lshlrev_b32 {v(ACC+2*d)}, 16, {v(b+d)}\n v_and_b32 {v(ACC+2*d+1)}, 0xffff0000, {v(b+d)}')
            for k in range(npart):
                for d in range(12):
                    A(f'v_dot2c_f32_bf16 {v(ACC+2*d)}, s72, {v(b+12+12*k+d)}')
                    A(f'v_dot2c_f32_bf16 {v(ACC+2*d+1)}, s73, {v(b+12+12*k+d)}')
            A('s_nop 2')
            for d in range(12):
                A(f'v_cvt_pk_bf16_f32 {v(PK+d)}, {v(ACC+2*d)}, {v(ACC+2*d+1)}')
            src = PK
        else:
            src = b
        if xn_base is None: return
        for d in range(12):
            A(f'v_lshlrev_b32 {v(ACC+2*d)}, 16, {v(src+d)}\n v_and_b32 {v(ACC+2*d+1)}, 0xffff0000, {v(src+d)}')
        A(f'v_pk_add_f32 {v(T,2)}, {v(ACC,2)}, {v(ACC+2,2)}\n v_pk_add_f32 {v(T+2,2)}, {v(ACC+4,2)}, {v(ACC+6,2)}')
        for d in range(4, 12, 2):
            A(f'v_pk_add_f32 {v(T,2)}, {v(T,2)}, {v(ACC+2*d,2)}\n v_pk_add_f32 {v(T+2,2)}, {v(T+2,2)}, {v(ACC+2*d+2,2)}')
        A(f'v_pk_add_f32 {v(T,2)}, {v(T,2)}, {v(T+2,2)}\n s_nop 0\n v_add_f32 {v(T)}, {v(T)}, {v(T+1)}')
        halfsum(v(T), v(T+1))
        A(f'v_mul_f32 {v(T)}, {vMSK}, {v(T)}\n s_nop 0\n v_sub_f32 {v(T)}, 0, {v(T)}\n s_nop 0\n v_mov_b32 {v(T+1)}, {v(T)}')
        for d in range(12):
            A(f'v_pk_add_f32 {v(ACC+2*d,2)}, {v(ACC+2*d,2)}, {v(T,2)}')
        A(f'v_pk_mul_f32 {v(T+2,2)}, {v(ACC,2)}, {v(ACC,2)}\n v_pk_mul_f32 {v(T+4,2)}, {v(ACC+2,2)}, {v(ACC+2,2)}')
        for d in range(2, 12, 2):
            A(f'v_pk_fma_f32 {v(T+2,2)}, {v(ACC+2*d,2)}, {v(ACC+2*d,2)}, {v(T+2,2)}')
            A(f'v_pk_fma_f32 {v(T+4,2)}, {v(ACC+2*d+2,2)}, {v(ACC+2*d+2,2)}, {v(T+4,2)}')
        A(f'v_pk_add_f32 {v(T+2,2)}, {v(T+2,2)}, {v(T+4,2)}\n s_nop 0\n v_add_f32 {v(T+2)}, {v(T+2)}, {v(T+3)}')
        halfsum(v(T+2), v(T+3))
        A(f'''v_mov_b32 {v(T+3)}, {f2u(1e-5):#x}
        v_fmac_f32 {v(T+3)}, {f2u(1.0/576):#x}, {v(T+2)}
        v_rsq_f32 {v(T+2)}, {v(T+3)}
        s_nop 0
        v_mov_b32 {v(T+3)}, {v(T+2)}''')
        for d in range(12):
            A(f'v_pk_mul_f32 {v(ACC+2*d,2)}, {v(ACC+2*d,2)}, {v(T+2,2)}')
        for d in range(12):
            A(f'v_cvt_pk_bf16_f32 {v(T+8+d)}, {v(ACC+2*d)}, {v(ACC+2*d+1)}')
    def stores(P):
        A(f's_mul_i32 s67, {sI}, 36864')
        if xn_base is not None:
            A(f's_add_u32 s68, s67, {xn_base}')
            for j in range(3):
                A(f'buffer_store_dwordx4 {v(T+8+4*j,4)}, {vXN}, {WS}, s68 offen offset:{384*j} sc1')
        if xo_srd is not None:
            if xo_base: A(f's_add_u32 s67, s67, {xo_base}')
            for j in range(3):
                A(f'buffer_store_dwordx4 {v(PK+4*j,4)}, {vROW}, {xo_srd}, s67 offen offset:{384*j} sc1')
    simple_stream(A, name, NSEG, loads, compute, stores, vP, vPA, 1, vF if fout is not None else None, vFA, 1, code,
                  haspoll=fin is not None, endlabel=endlabel)

def role_red(A):
    A('L_red:')
    if not enabled('red'):
        A('s_branch L_end'); return
    validate(A)
    A(f'''
    s_sub_u32 s63, {sT}, 24
    s_lshr_b32 s71, s63, 2
    s_and_b32 s63, s63, 3
    s_lshl_b32 s70, s63, 2
    s_add_u32 s70, s70, {sW}
    s_mov_b32 s72, 0x00003f80
    s_mov_b32 s73, 0x3f800000
    ''')
    lane(A, 'v8')
    A(f'''
    v_lshrrev_b32 v9, 5, v8
    v_and_b32 v10, 31, v8
    s_lshl_b32 s63, s70, 1
    v_add_u32 v9, s63, v9
    v_mul_u32_u24 v11, 1152, v9
    v_lshl_add_u32 v1, v10, 4, v11
    s_and_b32 s63, s70, 7
    v_xor_b32 v12, s63, v10
    v_lshl_add_u32 v2, v12, 4, v11
    v_cmp_gt_u32 vcc, 24, v10
    v_mov_b32 v13, {OOB}
    v_mov_b32 v14, {f2u(1.0/576):#x}
    v_cndmask_b32 v1, v13, v1, vcc
    v_cndmask_b32 v2, v13, v2, vcc
    v_cndmask_b32 v3, 0, v14, vcc
    s_lshl_b32 s63, {sL}, 1
    s_add_u32 s63, s63, s71
    s_cmp_eq_u32 s63, 1
    s_cbranch_scc1 L_red_1
    s_cmp_eq_u32 s63, 2
    s_cbranch_scc1 L_red_2
    s_cmp_eq_u32 s63, 3
    s_cbranch_scc1 L_red_3
    ''')
    PS = 64 * 4 * 36864
    red_stream(A, 'L_r10', 4, PW, SX, 0, WS, X1, XNF, F_WO, F_XNF, 10, 'L_end')
    A('L_red_1:')
    red_stream(A, 'L_r11', 4, PW + PS, WS, X2, WS, X1 + XB, XNF + XB, F_WO + 512, F_XNF + 128, 11, 'L_end')
    A('L_red_2:')
    red_stream(A, 'L_r20', 4, PD, WS, X1, WS, X2, XNA + XB, F_DN, F_XNA + 128, 12, 'L_end')
    A('L_red_3:')
    red_stream(A, 'L_ln0', 0, 0, SX, 0, None, 0, XNA, None, F_XNA, 13, None)
    red_stream(A, 'L_r21', 4, PD + PS, WS, X1 + XB, SOUT, 0, None, F_DN + 512, None, 14, 'L_end')

XACC = [0, 16]; XFR = 32; XCV = 48; XT = 56
XLA = 64; XDV = 68; XSV = 71; XPA = 72; XP = 73; XFV = 74; XFA = 75
def xw(t, ks): return 80 + (t * 36 + ks) * 4
XBUF = 36864

def xs_stream(A, name, xn_base, fin, swap, epi, kvsig, fmul, out_base, out_lstride, out_sstride, code, G0, chance3):
    lane(A, 'v1')
    A(f'''
    v_and_b32 v2, 31, v1
    v_lshrrev_b32 v3, 5, v1
    v_lshrrev_b32 v4, 1, v2
    v_and_b32 v4, 7, v4
    v_mul_u32_u24 v5, 1152, v2
    ''')
    for q in range(4):
        A(f'''v_add_u32 v6, {2*q}, v3
        v_xor_b32 v6, v6, v4
        v_lshl_add_u32 {v(XLA+q)}, v6, 4, v5''')
    A(f's_mul_i32 s63, {sW}, 9216')
    for gq in range(3):
        A(f'''s_add_u32 s{70+gq}, s63, {3072*gq}
        s_add_u32 s{73+gq}, s{70+gq}, {XBUF}
        v_lshl_add_u32 {v(XDV+gq)}, v1, 4, s{70+gq}''')
    A(f'''
    s_lshl_b32 s63, {sL}, 7
    s_add_u32 s63, s63, {fin}
    v_and_b32 v2, 15, v1
    v_lshl_add_u32 {v(XPA)}, v2, 2, s63
    s_mul_i32 s80, {sL}, {XB}
    s_add_u32 s80, s80, {xn_base}
    s_mul_i32 s77, {sL}, {out_lstride}
    s_add_u32 s77, s77, {out_base}
    s_mov_b32 {sI}, 0
    ''')
    def rd(P, ks, slot):
        return f'ds_read_b128 {v(XFR+4*slot,4)}, {v(XLA+(ks&3))} offset:{P*XBUF + 128*(ks>>2)}'
    def mf(t, ks, acc, slot):
        w = r(xw(t, ks), 4); f = v(XFR + 4 * slot, 4)
        c = '0' if ks == 0 else v(acc, 16)
        a_, b_ = (f, w) if swap[t] else (w, f)
        return f'v_mfma_f32_32x32x16_bf16 {v(acc,16)}, {a_}, {b_}, {c}'
    def dma(P, k):
        s_ = ''
        if k % 3 == 0:
            s_ += f's_mov_b32 m0, s{70 + 3*P + k//3}\n s_nop 0\n'
        return s_ + f'buffer_load_dwordx4 {v(XDV + k//3)}, {WS}, s76 offen offset:{1024*(k%3)} sc1 lds'
    def sig(val_s):
        A(f'v_mov_b32 {v(XFV)}, {val_s}\n buffer_store_dword {v(XFV)}, {v(XFA)}, {WS}, 0 offen sc1')
    def action(sigcode, chance):
        l = A.lab('Lb')
        t = 's_waitcnt vmcnt(0)\n'
        if sigcode:
            t += sigcode + f'\n v_mov_b32 {v(XFV)}, s63\n buffer_store_dword {v(XFV)}, {v(XFA)}, {WS}, 0 offen sc1\n'
        if chance:
            t += f'''
            s_add_u32 s64, {sI}, 2
            v_cmp_gt_u32 vcc, s64, {v(XP)}
            s_mov_b32 s65, 0
            s_cbranch_vccnz {l}
            s_xor_b32 s65, s79, 1
            s_mov_b32 s79, 1
            {l}:
            s_cmp_lg_u32 s65, 0
            '''
        return t
    def tile(P, t, acc, ep, sigcode, chance, n=36):
        gaps = [[] for _ in range(36)]
        g = 4
        fills, sts = ep
        for f in fills:
            gaps[g].append(f); g += 1
        assert g <= G0
        gaps[G0].append(action(sigcode, chance))
        g = G0
        for f in sts:
            gaps[g].append(f); g += 1
        gaps[g].append(f'buffer_load_dword {v(XP)}, {v(XPA)}, {WS}, 0 offen sc1')
        g = G0 + 2
        if chance:
            for k in range(9):
                l = A.lab('Ld')
                gaps[g].append(f's_cbranch_scc0 {l}\n {dma(1-P, k)}\n {l}:'); g += 1
        assert g <= n
        for i in range(n):
            A(f's_waitcnt lgkmcnt(2)')
            A(mf(t, i, acc, i & 3))
            if i + 3 < 36 or t < 2:
                A(rd(P, (i + 3) % 36, (i + 3) & 3))
            for x in gaps[i]: A(x)
    def fetch_blocking(P):
        A(f's_add_u32 s64, {sI}, 1')
        spin(A, v(XP), v(XPA), 's64', code)
        A(f's_mul_i32 s76, {sI}, 36864\n s_add_u32 s76, s76, s80')
        for k in range(9): A(dma(P, k))
        A(f'''s_add_u32 s76, s76, 36864
        s_mov_b32 s79, 0
        s_waitcnt vmcnt(0)
        s_barrier''')
        for i in range(3): A(rd(P, i, i))
    fetch_blocking(0)
    A(f's_branch {name}_slow0')
    for P in (0, 1):
        a0 = XACC[P]; a1 = XACC[1 - P]
        A(f'{name}_fast{P}:')
        tile(P, 0, a0, epi(2, a1, 's78'), f's_lshl_b32 s63, {sI}, 1\n s_sub_u32 s63, s63, 1' if kvsig else None, True)
        A(f's_branch {name}_t1_{P}')
        A(f'{name}_slow{P}:')
        tile(P, 0, a0, ([], []), None, True)
        A(f'{name}_t1_{P}:')
        tile(P, 1, a1, epi(0, a0, 's77'), f's_mul_i32 s63, {sI}, {fmul}', True)
        tile(P, 2, a0, epi(1, a1, 's77'), None, chance3, n=33)
        if chance3:
            l = A.lab('Lc')
            A(f's_cbranch_scc0 {l}\n s_waitcnt vmcnt(0)\n {l}:')
        A(f'''s_cmp_eq_u32 s79, 0
        s_cbranch_scc1 {name}_tail{P}
        s_waitcnt lgkmcnt(0)
        s_barrier''')
        A(mf(2, 33, a0, 33 & 3)); A(rd(1 - P, 0, 0))
        A(mf(2, 34, a0, 34 & 3)); A(rd(1 - P, 1, 1))
        A(f'''s_mov_b32 s78, s77
        s_add_u32 s77, s77, {out_sstride}
        s_add_u32 s76, s76, 36864
        s_add_u32 {sI}, {sI}, 1
        s_mov_b32 s79, 0''')
        A(mf(2, 35, a0, 35 & 3)); A(rd(1 - P, 2, 2))
        A(f's_branch {name}_fast{1-P}')
        A(f'{name}_tail{P}:')
        A('s_waitcnt lgkmcnt(0)')
        for i in (33, 34, 35): A(mf(2, i, a0, i & 3))
        if kvsig:
            A(f's_waitcnt vmcnt(0)\n s_lshl_b32 s63, {sI}, 1\n s_add_u32 s63, s63, 1'); sig('s63')
        A('s_nop 11')
        fl, st = epi(2, a0, 's77')
        for f in fl + st: A(f); A('s_nop 0')
        A(f'''s_add_u32 {sI}, {sI}, 1
        s_add_u32 s77, s77, {out_sstride}
        s_mul_i32 s63, {sI}, {fmul}
        s_waitcnt vmcnt(0)''')
        sig('s63')
        A(f'''s_cmp_ge_u32 {sI}, {NSEG}
        s_cbranch_scc1 {name}_done''')
        fetch_blocking(1 - P)
        A(f's_branch {name}_slow{1-P}')
    A(f'{name}_done:\n s_waitcnt vmcnt(0)\n s_branch L_end')

def flag_addr(A, dst, sval):
    lane(A, 'v1')
    A(f'''v_cmp_eq_u32 vcc, 0, v1
    v_mov_b32 v2, {sval}
    v_mov_b32 {dst}, {OOB}
    v_cndmask_b32 {dst}, {dst}, v2, vcc''')

def role_qkv(A):
    A('L_qkv:')
    if not enabled('qkv'):
        A('s_branch L_end'); return
    lane(A, 'v1')
    A(f'''
    v_lshrrev_b32 v2, 4, v1
    v_bfe_u32 v3, v1, 2, 2
    v_xor_b32 v3, v3, v2
    v_and_b32 v4, 3, v1
    v_lshl_add_u32 v3, v3, 2, v4
    v_lshlrev_b32 v3, 4, v3
    v_lshl_add_u32 v10, v2, 13, v3
    v_lshrrev_b32 v2, 5, v1
    v_bfe_u32 v3, v1, 2, 2
    v_lshl_add_u32 v5, v2, 3, v3
    v_lshlrev_b32 v5, 8, v5
    v_xor_b32 v3, {sW}, v3
    v_lshl_add_u32 v5, v3, 6, v5
    v_bfe_u32 v3, v1, 4, 1
    v_lshl_add_u32 v5, v3, 5, v5
    v_lshl_add_u32 v11, v4, 3, v5
    v_add_u32 v12, 49152, v11
    v_add_u32 v13, 98304, v11
    ''')
    for t, srd in enumerate((SWK, SWV, SWQ)):
        l = A.lab('Lw')
        A(f'''
        s_mul_i32 s64, {sW}, 36864
        s_mul_i32 s65, {sW}, {36*4*8192}
        s_lshl_b32 s63, {sT}, 8
        s_add_u32 s65, s65, s63
        s_mov_b32 s66, 0
        {l}:
        s_mov_b32 m0, s64
        s_add_u32 s64, s64, 1024
        buffer_load_dwordx4 v10, {srd}, s65 offen lds
        s_add_u32 s65, s65, 32768
        s_add_u32 s66, s66, 1
        s_cmp_lt_u32 s66, 36
        s_cbranch_scc1 {l}
        s_waitcnt vmcnt(0)
        s_barrier
        ''')
        for ks in range(36):
            for i in range(2):
                A(f'ds_read_b64_tr_b16 {r(xw(t,ks)+2*i,2)}, v{11+ks//12} offset:{((ks%12)*16+4*i)*256}')
        A('s_waitcnt lgkmcnt(0)\n s_barrier')
    validate(A)
    A(f'''s_lshl_b32 s63, {sL}, 5
    s_add_u32 s63, s63, {sT}
    s_lshl_b32 s63, s63, 7
    s_lshl_b32 s64, {sW}, 2
    s_add_u32 s63, s63, s64
    s_add_u32 s63, s63, {F_QKV}''')
    flag_addr(A, v(XFA), 's63')
    A(f'''s_mul_i32 s63, {sT}, 24576
    s_lshl_b32 s64, {sW}, 11
    s_add_u32 s63, s63, s64
    v_lshl_add_u32 {v(XSV)}, v1, 4, s63
    v_add_u32 v76, 8192, {v(XSV)}
    v_add_u32 v77, 16384, {v(XSV)}''')
    sv = ['v76', 'v77', v(XSV)]
    def epi(t, acc, soff):
        f = []; st = []
        for p in range(2):
            f.append('\n'.join(f'v_cvt_pk_bf16_f32 {v(XCV+4*p+d)}, {v(acc+8*p+2*d)}, {v(acc+8*p+2*d+1)}' for d in range(2)))
            f.append('\n'.join(f'v_cvt_pk_bf16_f32 {v(XCV+4*p+d)}, {v(acc+8*p+2*d)}, {v(acc+8*p+2*d+1)}' for d in range(2, 4)))
            st.append(f'buffer_store_dwordx4 {v(XCV+4*p,4)}, {sv[t]}, {WS}, {soff} offen offset:{1024*p} sc1')
        return f, st
    xs_stream(A, 'L_q', XNA, F_XNA, [False, True, False], epi, True, 2, QKV, 64 * 32 * 24576, 32 * 24576, 20, 8, True)

def role_up(A):
    A('L_up:')
    if not enabled('up'):
        A('s_branch L_end'); return
    W3OFF = 73728 + 64
    lane(A, 'v1')
    for j in range(3):
        A(f'''v_add_u32 v2, {64*j}, v1
        v_mul_u32_u24 v3, 2731, v2
        v_lshrrev_b32 v3, 16, v3
        v_mul_u32_u24 v4, 24, v3
        v_sub_u32 v4, v2, v4
        v_mul_u32_u24 v3, 9216, v3
        v_lshl_add_u32 v{10+j}, v4, 4, v3''')
    A(f'''
    v_lshrrev_b32 v2, 5, v1
    v_bfe_u32 v3, v1, 2, 2
    v_lshl_add_u32 v2, v2, 3, v3
    v_mul_u32_u24 v2, 384, v2
    v_bfe_u32 v3, v1, 1, 1
    v_mul_u32_u24 v3, {W3OFF}, v3
    v_add_u32 v2, v2, v3
    v_bfe_u32 v3, v1, 4, 1
    v_lshl_add_u32 v2, v3, 4, v2
    v_and_b32 v3, 1, v1
    v_lshl_add_u32 v2, v3, 3, v2
    s_mul_i32 s63, {sW}, 96
    v_add_u32 v13, s63, v2
    v_add_u32 v14, 36864, v13
    ''')
    for rd_ in range(3):
        l = A.lab('Lw')
        A(f'''
        s_mul_i32 s64, {sW}, {6*3072}
        s_mul_i32 s65, {sW}, {48*9216}
        s_mul_i32 s63, {sT}, 384
        s_add_u32 s65, s65, s63
        s_add_u32 s65, s65, {rd_*192*9216}
        s_mov_b32 s66, 0
        {l}:''')
        for j in range(3):
            A(f'''s_add_u32 m0, s64, {1024*j}
            s_nop 0
            buffer_load_dwordx4 v{10+j}, {SW1}, s65 offen lds
            s_add_u32 m0, s64, {1024*j + W3OFF}
            s_nop 0
            buffer_load_dwordx4 v{10+j}, {SW3}, s65 offen lds''')
        A(f'''
        s_add_u32 s64, s64, 3072
        s_add_u32 s65, s65, {8*9216}
        s_add_u32 s66, s66, 1
        s_cmp_lt_u32 s66, 6
        s_cbranch_scc1 {l}
        s_waitcnt vmcnt(0)
        s_barrier
        ''')
        for t in range(3):
            for kl in range(12):
                for i in range(2):
                    A(f'ds_read_b64_tr_b16 {r(xw(t,rd_*12+kl)+2*i,2)}, v{13+kl//6} offset:{((kl%6)*16+4*i)*384+t*32}')
        A('s_waitcnt lgkmcnt(0)\n s_barrier')
    validate(A)
    A(f'''s_lshl_b32 s63, {sL}, 5
    s_add_u32 s63, s63, {sT}
    s_lshl_b32 s63, s63, 7
    s_lshl_b32 s64, {sW}, 2
    s_add_u32 s63, s63, s64
    s_add_u32 s63, s63, {F_UP}''')
    flag_addr(A, v(XFA), 's63')
    A(f'''s_mul_i32 s63, {sT}, {12*1024}
    s_mul_i32 s64, {sW}, 3072
    s_add_u32 s63, s63, s64
    v_lshl_add_u32 {v(XSV)}, v1, 4, s63
    s_mov_b32 s81, {f2u(-LOG2E):#x}''')
    def epi(t, acc, soff):
        f = []
        G = [acc + j for j in range(4)] + [acc + 8 + j for j in range(4)]
        U = [g + 4 for g in G]
        T = [XT + j for j in range(8)]
        for j in range(0, 8, 2):
            f.append(f'v_mul_f32 {v(T[j])}, s81, {v(G[j])}\n v_mul_f32 {v(T[j+1])}, s81, {v(G[j+1])}')
            f.append(f'v_exp_f32 {v(T[j])}, {v(T[j])}\n v_exp_f32 {v(T[j+1])}, {v(T[j+1])}')
            f.append(f'v_mul_f32 {v(G[j])}, {v(G[j])}, {v(U[j])}\n v_add_f32 {v(T[j])}, 1.0, {v(T[j])}\n v_add_f32 {v(T[j+1])}, 1.0, {v(T[j+1])}')
            f.append(f'v_rcp_f32 {v(T[j])}, {v(T[j])}\n v_rcp_f32 {v(T[j+1])}, {v(T[j+1])}')
            f.append(f'v_mul_f32 {v(G[j+1])}, {v(G[j+1])}, {v(U[j+1])}\n v_mul_f32 {v(T[j])}, {v(T[j])}, {v(G[j])}\n v_mul_f32 {v(T[j+1])}, {v(T[j+1])}, {v(G[j+1])}\n v_cvt_pk_bf16_f32 {v(XCV+j//2)}, {v(T[j])}, {v(T[j+1])}')
        return f, [f'buffer_store_dwordx4 {v(XCV,4)}, {v(XSV)}, {WS}, {soff} offen offset:{1024*t} sc1']
    xs_stream(A, 'L_u', XNF, F_XNF, [False, False, False], epi, False, 1, HB, 64 * 294912, 294912, 21, 24, False)

def role_rg(A, name, key, n, wsrd, in_base, in_sstride, out_base, fout, code, slow):
    A(f'{name}:')
    if not enabled(key):
        A('s_branch L_end'); return
    loc = ' sc1' if slow else ''
    BS = [48, 120]; TM = 192
    vLD, vWA, vRA, vST, vPA, vP, vFA, vF = 240, 241, 242, 248, 251, 252, 253, 254
    LW = 24 * 528; LP = 4 * LW
    def w_(T, k): return 256 + (T * n + k) * 4
    A(f'''s_mul_i32 s87, {sT}, 43
    s_lshr_b32 s87, s87, 8
    s_mul_i32 s63, s87, 6
    s_sub_u32 s88, {sT}, s63''')
    lane(A, 'v1')
    for j in range(3):
        A(f'''v_add_u32 v2, {64*j}, v1
        v_mul_u32_u24 v3, 5462, v2
        v_lshrrev_b32 v3, 16, v3
        v_mul_u32_u24 v4, 12, v3
        v_sub_u32 v4, v2, v4
        v_mul_u32_u24 v3, 1152, v3
        v_lshl_add_u32 v{10+j}, v4, 4, v3''')
    A(f'''
    v_lshrrev_b32 v2, 5, v1
    v_bfe_u32 v3, v1, 2, 2
    v_lshl_add_u32 v2, v2, 2, v3
    v_mul_u32_u24 v2, 192, v2
    v_bfe_u32 v3, v1, 4, 1
    v_lshl_add_u32 v2, v3, 5, v2
    v_and_b32 v3, 3, v1
    v_lshl_add_u32 v2, v3, 3, v2
    s_mul_i32 s67, {sW}, 40960
    v_add_u32 v13, s67, v2
    s_lshl_b32 s65, s87, 2
    s_add_u32 s65, s65, {sW}
    s_mul_i32 s89, s65, {n*1024}
    s_mul_i32 s65, s65, {n*16*1152}
    s_mul_i32 s63, s88, 192
    s_add_u32 s65, s65, s63
    ''')
    h = n // 2
    for rd_ in range(2):
        l = A.lab('Lw')
        A(f'''s_mov_b32 s64, s67
        s_mov_b32 s66, 0
        {l}:''')
        for j in range(3):
            A(f'''s_add_u32 m0, s64, {1024*j}
            s_nop 0
            buffer_load_dwordx4 v{10+j}, {wsrd}, s65 offen lds''')
        A(f'''s_add_u32 s64, s64, 3072
        s_add_u32 s65, s65, {16*1152}
        s_add_u32 s66, s66, 1
        s_cmp_lt_u32 s66, {h}
        s_cbranch_scc1 {l}
        s_waitcnt vmcnt(0)''')
        for T in range(3):
            for kl in range(h):
                for i in range(2):
                    A(f'ds_read_b64_tr_b16 {r(w_(T, rd_*h+kl)+2*i,2)}, v13 offset:{kl*3072+i*1536+T*64}')
        A('s_waitcnt lgkmcnt(0)')
    A('s_barrier')
    validate(A)
    A(f'''s_lshl_b32 s63, {sW}, 7
    s_lshl_b32 s64, {sT}, 2
    s_add_u32 s63, s63, s64
    s_add_u32 s63, s63, {fout}''')
    flag_addr(A, v(vFA), 's63')
    A(f'''
    v_lshl_add_u32 {v(vLD)}, v1, 4, s89
    v_lshrrev_b32 v2, 5, v1
    v_and_b32 v3, 31, v1
    v_mad_u32_u24 v4, v2, 33, v3
    s_mul_i32 s63, {sW}, {LW}
    v_lshl_add_u32 {v(vWA)}, v4, 4, s63
    s_lshl_b32 s63, {sW}, 3
    s_mul_i32 s64, s88, 192
    ''')
    for j in range(3):
        A(f'''v_add_u32 v4, {64*j}, v1
        v_mul_u32_u24 v5, 2731, v4
        v_lshrrev_b32 v5, 16, v5
        v_mul_u32_u24 v6, 24, v5
        v_sub_u32 v6, v4, v6
        v_add_u32 v5, s63, v5
        v_mad_u32_u24 v7, v6, 33, v5
        v_lshlrev_b32 {v(vRA+j)}, 4, v7
        v_add_u32 {v(vRA+3+j)}, {LP}, {v(vRA+j)}
        v_mul_u32_u24 v5, 1152, v5
        v_lshl_add_u32 v5, v6, 3, v5
        v_add_u32 {v(vST+j)}, s64, v5''')
    A(f's_lshl_b32 s65, s87, 2\n s_add_u32 s65, s65, {sW}')
    if key == 'wo':
        A(f'''s_lshl_b32 s65, s65, 1
        v_and_b32 v4, 1, v3
        v_add_u32 v4, s65, v4
        v_lshlrev_b32 v4, 7, v4
        v_lshl_add_u32 v4, v2, 12, v4
        v_add_u32 {v(vPA)}, {F_ATT}, v4''')
    else:
        A(f'''s_mul_i32 s65, s65, 6
        v_min_u32 v4, 5, v3
        v_add_u32 v4, s65, v4
        v_lshrrev_b32 v5, 2, v4
        v_and_b32 v4, 3, v4
        v_lshlrev_b32 v4, 2, v4
        v_lshl_add_u32 v4, v5, 7, v4
        v_lshl_add_u32 v4, v2, 12, v4
        v_add_u32 {v(vPA)}, {F_UP}, v4''')
    A(f'''s_mov_b32 s74, 0
    s_mov_b32 s75, 0
    s_mov_b32 s80, 0
    s_mov_b32 s81, 0
    s_mov_b32 {sI}, 0
    s_mul_i32 s90, s87, 36864
    s_add_u32 s90, s90, {out_base}''')
    def pick_next():
        return f'''s_add_u32 s63, s75, {cfg.lam}
        s_cmp_lt_u32 s63, s74
        s_cselect_b32 s72, 1, 0
        s_cmp_ge_u32 s74, {NSEG}
        s_cselect_b32 s72, 1, s72
        s_cmp_eq_u32 s72, 0
        s_cselect_b32 s73, s74, s75
        s_cmp_lt_u32 s73, {NSEG}
        s_cselect_b32 s86, 1, 0
        s_add_u32 s75, s75, s72
        s_add_u32 s74, s74, 1
        s_sub_u32 s74, s74, s72
        s_lshl_b32 s63, s72, 6
        s_add_u32 s63, s63, s73
        s_mul_i32 s76, s63, {in_sstride}
        s_add_u32 s76, s76, {in_base}'''
    def advance():
        return f'''s_mov_b32 s78, s77
        s_mov_b32 s84, s82
        s_mov_b32 s85, s83
        s_lshl_b32 s63, s72, 6
        s_add_u32 s63, s63, s73
        s_mul_i32 s77, s63, {4*36864}
        s_add_u32 s77, s77, s90
        s_lshl_b32 s82, s72, 9
        s_add_u32 s83, s73, 1
        s_add_u32 {sI}, {sI}, 1'''
    def check():
        return f'''s_add_u32 s64, s73, 1
        v_cmp_gt_u32 vcc, s64, {v(vP)}
        s_cmp_eq_u32 s72, 0
        s_cselect_b32 s63, vcc_lo, vcc_hi
        s_cmp_eq_u32 s63, 0
        s_cselect_b32 s79, s86, 0
        s_cmp_lg_u32 s79, 0'''
    def ld(P, k):
        return f'buffer_load_dwordx4 {v(BS[P]+4*k,4)}, {v(vLD)}, {WS}, s{91+k//4} offen offset:{1024*(k%4)} sc1'
    def ldprep():
        return '\n'.join(f's_add_u32 s{91+q}, s76, {4096*q}' for q in range((n + 3) // 4))
    def flag():
        return f'v_mov_b32 {v(vF)}, s81\n buffer_store_dword {v(vF)}, {v(vFA)}, {WS}, s80 offen{loc}'
    def wr(par, T):
        return [f'ds_write_b128 {v(vWA)}, {v(16*T+4*q,4)} offset:{par*LP+(8*T+2*q)*528}' for q in range(4)]
    def red(par, soff):
        f = []
        for j in range(3):
            for src in range(4):
                f.append(f'ds_read_b128 {v(TM+16*j+4*src,4)}, {v(vRA+3*par+j)} offset:{src*LW}')
        g = []
        for j in range(3):
            b = TM + 16 * j
            g.append(f's_waitcnt lgkmcnt({8-4*j})\n' + '\n'.join(f'v_add_f32 {v(b+e)}, {v(b+e)}, {v(b+4+e)}' for e in range(4)))
            g.append('\n'.join(f'v_add_f32 {v(b+8+e)}, {v(b+8+e)}, {v(b+12+e)}' for e in range(4)))
            g.append('\n'.join(f'v_add_f32 {v(b+e)}, {v(b+e)}, {v(b+8+e)}' for e in range(4)))
            g.append(f'v_cvt_pk_bf16_f32 {v(b+4)}, {v(b)}, {v(b+1)}\n v_cvt_pk_bf16_f32 {v(b+5)}, {v(b+2)}, {v(b+3)}\n'
                     f'buffer_store_dwordx2 {v(b+4,2)}, {v(vST+j)}, {WS}, {soff} offen{loc}')
        return f, g
    def blocking(P):
        l = A.lab('Lsp'); d = A.lab('Lspd')
        A(f'''s_mov_b32 {sSPIN}, 0
        {l}:
        buffer_load_dword {v(vP)}, {v(vPA)}, {WS}, 0 offen sc1
        s_waitcnt vmcnt(0)''')
        A(check())
        A(f'''s_cbranch_scc1 {d}
        s_add_u32 {sSPIN}, {sSPIN}, 1
        s_cmp_lt_u32 {sSPIN}, {cfg.spin_limit}
        s_cbranch_scc1 {l}
        s_mov_b32 s63, {code}
        s_branch L_abort
        {d}:''')
        A(ldprep())
        for k in range(n): A(ld(P, k))
        A(advance())
    def body(P, fast):
        N = 3 * n
        gaps = [[] for _ in range(N)]
        for k in range(n):
            l = A.lab('Ld')
            gaps[k].append(f's_cbranch_scc0 {l}\n {ld(1-P, k)}\n {l}:')
        if fast:
            for q, x in enumerate(wr(1 - P, 2)): gaps[1 + q].append(x)
            gaps[6].append('s_waitcnt lgkmcnt(0)\n s_barrier')
            f, g = red(1 - P, 's78')
            for q, x in enumerate(f): gaps[7 + q // 2].append(x)
            for q, x in enumerate(g): gaps[14 + q].append(x)
        w0 = max(n + 6, 26)
        for q, x in enumerate(wr(P, 0)): gaps[w0 + q].append(x)
        for q, x in enumerate(wr(P, 1)): gaps[2 * n + 6 + q].append(x)
        gaps[N - 8].append(f'buffer_load_dword {v(vP)}, {v(vPA)}, {WS}, 0 offen sc1')
        A('s_waitcnt vmcnt(0)')
        A(flag())
        if fast: A('s_mov_b32 s80, s84\n s_mov_b32 s81, s85')
        A(pick_next()); A(ldprep()); A(check())
        for i in range(N):
            T, k = divmod(i, n)
            c = '0' if k == 0 else v(16 * T, 16)
            A(f'v_mfma_f32_32x32x16_bf16 {v(16*T,16)}, {r(w_(T,k),4)}, {v(BS[P]+4*k,4)}, {c}')
            if not gaps[i] and k < 6: A('s_nop 0')
            for x in gaps[i]: A(x)
    A(pick_next())
    blocking(0)
    A(f's_branch {name}_slow0')
    for P in (0, 1):
        A(f'{name}_fast{P}:')
        body(P, True)
        A(f's_branch {name}_e{P}')
        A(f'{name}_slow{P}:')
        body(P, False)
        A(f'''{name}_e{P}:
        s_cmp_eq_u32 s79, 0
        s_cbranch_scc1 {name}_tail{P}''')
        A(advance())
        A(f's_branch {name}_fast{1-P}')
        A(f'{name}_tail{P}:')
        A('s_waitcnt vmcnt(0)')
        A(flag())
        A('s_mov_b32 s80, s82\n s_mov_b32 s81, s83\n s_nop 7')
        for x in wr(P, 2): A(x)
        A('s_waitcnt lgkmcnt(0)\n s_barrier')
        f, g = red(P, 's77')
        for x in f + g: A(x)
        A('s_waitcnt vmcnt(0)')
        A(flag())
        A(f's_cmp_eq_u32 s86, 0\n s_cbranch_scc1 {name}_done')
        blocking(1 - P)
        A(f's_branch {name}_slow{1-P}')
    A(f'{name}_done:\n s_waitcnt vmcnt(0)\n s_branch L_end')

def wr_reg(A, i, val):
    A(f'v_mov_b32 {r(i)}, {val}' if i < 256 else f'v_accvgpr_write_b32 {r(i)}, {val}')

def role_att(A):
    A('L_att:')
    if not enabled('att'):
        A('s_branch L_end'); return
    validate(A)
    SET = [224, 368]
    BI, SX_, SM, PP, PM, OA, OP, T = 16, 32, 48, 64, 72, 80, 144, 176
    vLD, vKM, vVM, vPA, vP, vFA, vF = 'v4', 'v5', 'v6', 'v7', 'v8', 'v9', 'v10'
    A(f'''s_sub_u32 s70, {sT}, 24
    s_lshl_b32 s70, s70, 2
    s_add_u32 s70, s70, {sW}
    s_lshl_b32 s71, {sL}, 5
    s_add_u32 s71, s71, s70
    s_lshl_b32 s71, s71, 7
    s_add_u32 s63, s71, {F_ATT}''')
    flag_addr(A, vFA, 's63')
    A(f'''
    v_lshlrev_b32 {vLD}, 4, v1
    v_and_b32 v2, 31, v1
    v_lshrrev_b32 v3, 5, v1
    v_lshlrev_b32 {vKM}, 4, v2
    v_lshl_add_u32 {vKM}, v3, 7, {vKM}
    v_lshlrev_b32 {vVM}, 3, v1
    v_and_b32 v11, 3, v1
    v_lshlrev_b32 v11, 2, v11
    s_add_u32 s63, s71, {F_QKV}
    v_add_u32 v11, s63, v11
    s_add_u32 s63, s71, {F_CH}
    v_mov_b32 v12, s63
    v_cmp_gt_u32 vcc, 4, v1
    s_nop 1
    v_cndmask_b32 {vPA}, v12, v11, vcc
    v_lshlrev_b32 v3, 2, v3
    v_sub_u32 v2, v2, v3
    v_mov_b32 v12, {f2u(-1e30):#x}
    s_mul_i32 s72, {sL}, {64*32}
    s_add_u32 s72, s72, s70
    s_mul_i32 s73, s72, 4096
    s_add_u32 s73, s73, {KVM}
    s_mul_i32 s72, s72, 24576
    s_add_u32 s72, s72, {QKV}
    s_mul_i32 s74, {sL}, {64*262144}
    s_lshl_b32 s63, s70, 13
    s_add_u32 s74, s74, s63
    s_add_u32 s74, s74, {OB}
    s_mov_b32 s75, {f2u(128**-0.5*LOG2E):#x}
    s_mov_b32 s76, 0xff
    s_mov_b32 s77, 0xff
    ''')
    for rr in range(16):
        A(f'''v_cmp_le_i32 vcc, {8*(rr>>2)+(rr&3)}, v2
        s_nop 1
        v_cndmask_b32 {v(BI+rr)}, v12, 0, vcc''')
    for P in (0, 1):
        for i in range(96, 144): wr_reg(A, SET[P] + i, 0)
    A(f'v_mov_b32 {v(PM+2)}, 0\n v_mov_b32 {v(PM+3)}, 0')
    def loads(P):
        b = SET[P]
        A(f's_mul_i32 s67, s64, {32*24576}\n s_add_u32 s67, s67, s72')
        for k in range(24):
            A(f'buffer_load_dwordx4 {r(b+4*k,4)}, {vLD}, {WS}, s67 offen offset:{1024*(k%4)} sc1')
            if k % 4 == 3 and k < 23: A('s_add_u32 s67, s67, 4096')
        A(f's_mul_i32 s67, s64, {32*4096}\n s_add_u32 s67, s67, s73')
        for t in range(4):
            A(f'buffer_load_dwordx2 {r(b+128+4*t,2)}, {vVM}, {WS}, s67 offen offset:{2048+512*t} sc1')
        A('s_mov_b64 exec, s[76:77]')
        for k in range(8):
            A(f'buffer_load_dwordx4 {r(b+96+4*k,4)}, {vKM}, {WS}, s67 offen offset:{256*k} sc1')
        A('s_mov_b64 exec, -1')
    def allred(op, x, t):
        A(f'''v_mov_b32 {t}, {x}
        s_nop 1
        v_permlane32_swap_b32 {x}, {t}
        s_nop 1
        {op} {x}, {x}, {t}''')
    def compute(P):
        b = SET[P]
        for k in range(8):
            A(f'v_mfma_f32_32x32x16_bf16 {v(SM,16)}, {r(b+96+4*k,4)}, {r(b+4*k,4)}, {"0" if k==0 else v(SM,16)}')
        for k in range(8):
            A(f'v_mfma_f32_32x32x16_bf16 {v(SX_,16)}, {r(b+32+4*k,4)}, {r(b+4*k,4)}, {v(BI,16) if k==0 else v(SX_,16)}')
        A('s_nop 3')
        A(f'v_max_f32 {v(T)}, {v(SM)}, {v(SM+1)}\n v_max3_f32 {v(T)}, {v(T)}, {v(SM+2)}, {v(SM+3)}')
        A('s_nop 5')
        for q in range(0, 16, 2):
            A(f'v_max3_f32 {v(T)}, {v(T)}, {v(SX_+q)}, {v(SX_+q+1)}')
        allred('v_max_f32', v(T), v(T+1))
        A(f'v_mul_f32 {v(T)}, s75, {v(T)}')
        S = [SX_ + q for q in range(16)] + [SM + q for q in range(4)]
        for x in S: A(f'v_fma_f32 {v(x)}, {v(x)}, s75, -{v(T)}')
        for x in S: A(f'v_exp_f32 {v(x)}, {v(x)}')
        A(f'v_add_f32 {v(T)}, {v(S[0])}, {v(S[1])}\n v_add_f32 {v(T+1)}, {v(S[2])}, {v(S[3])}')
        for q in range(4, 20, 2):
            A(f'v_add_f32 {v(T)}, {v(T)}, {v(S[q])}\n v_add_f32 {v(T+1)}, {v(T+1)}, {v(S[q+1])}')
        A(f'v_add_f32 {v(T)}, {v(T)}, {v(T+1)}')
        allred('v_add_f32', v(T), v(T+1))
        A(f'v_rcp_f32 {v(T)}, {v(T)}\n s_nop 0')
        for x in S: A(f'v_mul_f32 {v(x)}, {v(x)}, {v(T)}')
        for d in range(8): A(f'v_cvt_pk_bf16_f32 {v(PP+d)}, {v(SX_+2*d)}, {v(SX_+2*d+1)}')
        for d in range(2): A(f'v_cvt_pk_bf16_f32 {v(PM+d)}, {v(SM+2*d)}, {v(SM+2*d+1)}')
        A('s_nop 1')
        for t in range(4):
            o = v(OA + 16 * t, 16)
            A(f'v_mfma_f32_32x32x16_bf16 {o}, {r(b+64+8*t,4)}, {v(PP,4)}, 0')
            A(f'v_mfma_f32_32x32x16_bf16 {o}, {r(b+64+8*t+4,4)}, {v(PP+4,4)}, {o}')
            A(f'v_mfma_f32_32x32x16_bf16 {o}, {r(b+128+4*t,4)}, {v(PM,4)}, {o}')
        A('s_nop 2')
        for d in range(32):
            A(f'v_cvt_pk_bf16_f32 {v(OP+d)}, {v(OA+2*d)}, {v(OA+2*d+1)}')
    def stores(P):
        A(f's_mul_i32 s67, {sI}, 262144\n s_add_u32 s67, s67, s74')
        for k in range(8):
            A(f'buffer_store_dwordx4 {v(OP+4*k,4)}, {vLD}, {WS}, s67 offen offset:{1024*(k%4)} sc1')
            if k == 3: A('s_add_u32 s67, s67, 4096')
    simple_stream(A, 'L_a', NSEG, loads, compute, stores, vP, vPA, 2, vF, vFA, 1, 30)

L_MEM = 147456; L_QK = L_MEM + 9216; L_O = L_QK + 4096; L_SM = L_O + 2048
def cwq(T, c): return 80 + (T * 9 + c) * 8
def cwk(T, c): return 80 + 144 + (T * 9 + c) * 8
def cwo(t, c2): return 80 + 288 + (t * 2 + c2) * 8

def chain_init(A):
    lane(A, 'v1')
    A(f'''
    v_lshrrev_b32 v2, 4, v1
    v_bfe_u32 v3, v1, 1, 3
    v_and_b32 v4, 1, v1
    v_lshrrev_b32 v5, 1, v2
    v_and_b32 v6, 1, v2
    ''')
    for par in range(2):
        A(f'''v_add_u32 v7, {4*par}, v2
        v_xor_b32 v7, v7, v3
        v_lshlrev_b32 v7, 5, v7
        v_lshl_add_u32 v7, v4, 4, v7
        v_lshlrev_b32 v8, 4, v6
        v_lshl_add_u32 v8, v5, 1, v8
        v_lshl_add_u32 v{10+par}, v8, 13, v7
        v_lshl_add_u32 v8, v5, 3, v6
        v_lshl_add_u32 v{12+par}, v8, 13, v7
        v_lshl_add_u32 v8, v5, 5, v6
        v_mul_u32_u24 v8, 1152, v8
        v_add_u32 v{14+par}, v8, v7''')
    A(f'''
    v_bfe_u32 v2, v1, 3, 1
    v_bfe_u32 v3, v1, 4, 1
    v_lshrrev_b32 v4, 5, v1
    v_lshl_add_u32 v8, v3, 5, v2
    v_lshl_add_u32 v8, v4, 4, v8
    v_mul_u32_u24 v8, 1152, v8
    v_and_b32 v7, 7, v1
    v_lshl_add_u32 v16, v7, 4, v8
    ''')
    A(f'''
    v_lshrrev_b32 v2, 2, v1
    v_lshlrev_b32 v20, 8, v2
    v_and_b32 v21, 7, v2
    v_and_b32 v22, 3, v1
    s_lshl_b32 s63, {sW}, 1
    v_lshrrev_b32 v3, 1, v22
    v_add_u32 v3, s63, v3
    v_xor_b32 v3, v3, v21
    v_lshl_add_u32 v3, v3, 5, v20
    v_and_b32 v4, 1, v22
    v_lshl_add_u32 v23, v4, 3, v3
    v_add_u32 v24, 65536, v23
    v_add_u32 v25, 131072, v23
    ''')
    def stage_qkv(srd):
        A(f'''s_lshr_b32 s63, {sW}, 1
        s_and_b32 s64, {sW}, 1
        s_lshl_b32 s65, s63, 2
        s_add_u32 s65, s65, s64
        s_lshl_b32 s65, s65, 13
        s_mul_i32 s66, s63, 144
        s_lshl_b32 s67, s64, 2
        s_add_u32 s66, s66, s67
        s_lshl_b32 s66, s66, 13
        s_lshl_b32 s67, {sT}, 8
        s_add_u32 s65, s65, s67
        s_add_u32 s66, s66, s67
        s_lshl_b32 s68, {sW}, 10
        s_cmp_eq_u32 s64, 0
        s_cselect_b64 vcc, -1, 0
        s_nop 1
        v_cndmask_b32 v17, v11, v10, vcc
        v_cndmask_b32 v18, v13, v12, vcc''')
        for c in range(9):
            for tau in range(4):
                pi, jh = tau & 1, tau >> 1
                if c < 8:
                    row = 144 * (c >> 1) + 64 * (c & 1) + 32 * pi + 8 * jh; sb = 's65'; vo = 'v17'
                else:
                    row = 288 * jh + 128 + 2 * pi; sb = 's66'; vo = 'v18'
                A(f'''s_add_u32 m0, s68, {(c*16+tau*4)*1024}
                s_add_u32 s69, {sb}, {row*8192}
                buffer_load_dwordx4 {vo}, {srd}, s69 offen lds''')
        A('s_waitcnt vmcnt(0)\n s_barrier')
    for srd, reg in ((SWQ, cwq), (SWK, cwk)):
        stage_qkv(srd)
        for T in range(2):
            for c in range(9):
                for tau in range(4):
                    A(f'ds_read_b64_tr_b16 {r(reg(T,c)+2*tau,2)}, v{23+c//4} offset:{(c%4)*16384+tau*4096+T*16}')
        A('s_waitcnt lgkmcnt(0)\n s_barrier')
    A(f'''s_lshr_b32 s63, {sW}, 1
    s_and_b32 s64, {sW}, 1
    s_lshl_b32 s65, s63, 2
    s_lshl_b32 s66, s64, 4
    s_add_u32 s65, s65, s66
    s_mul_i32 s65, s65, 1152
    s_mul_i32 s67, {sT}, 147456
    s_add_u32 s65, s65, s67
    s_lshl_b32 s68, {sW}, 10
    s_cmp_eq_u32 s64, 0
    s_cselect_b64 vcc, -1, 0
    s_nop 1
    v_cndmask_b32 v17, v15, v14, vcc''')
    for beta in range(4):
        for c2 in range(2):
            for tau in range(4):
                pi, jh = tau & 1, tau >> 1
                row = 64 * c2 + 8 * jh + 2 * pi
                A(f'''s_add_u32 m0, s68, {beta*32768+(c2*16+tau*4)*1024}
                s_add_u32 s69, s65, {row*1152+beta*256}
                buffer_load_dwordx4 v17, {SWO}, s69 offen lds''')
    A(f'''s_lshl_b32 s65, s63, 6
    s_lshl_b32 s66, s64, 2
    s_add_u32 s65, s65, s66
    s_mul_i32 s65, s65, 1152
    s_add_u32 s65, s65, s67
    s_lshl_b32 s68, s63, 13
    s_lshl_b32 s66, s64, 10
    s_add_u32 s68, s68, s66''')
    for tau in range(4):
        pi, jh = tau & 1, tau >> 1
        A(f'''s_add_u32 m0, s68, {131072+tau*2048}
        s_add_u32 s69, s65, {(8*jh+2*pi)*1152+1024}
        buffer_load_dwordx4 v16, {SWO}, s69 offen lds''')
    A('s_waitcnt vmcnt(0)\n s_barrier')
    for t in range(9):
        lh = A.lab('Lh'); le = A.lab('Le')
        A(f'''s_mul_i32 s63, {sW}, 9
        s_add_u32 s63, s63, {t}
        s_and_b32 s64, s63, 7
        s_lshr_b32 s65, s63, 3
        s_cmp_eq_u32 s65, 4
        s_cbranch_scc1 {lh}
        s_lshl_b32 s65, s65, 15
        v_xor_b32 v3, s64, v21
        v_lshl_add_u32 v3, v3, 5, v20
        v_lshl_add_u32 v3, v22, 3, v3
        v_add_u32 v3, s65, v3''')
        for c2 in range(2):
            for tau in range(4):
                A(f'ds_read_b64_tr_b16 {r(cwo(t,c2)+2*tau,2)}, v3 offset:{c2*16384+tau*4096}')
        A(f'''s_branch {le}
        {lh}:
        s_lshl_b32 s64, s64, 5
        s_add_u32 s64, s64, 131072
        v_lshrrev_b32 v3, 1, v20
        v_lshl_add_u32 v3, v22, 3, v3
        v_add_u32 v3, s64, v3''')
        for c2 in range(2):
            for tau in range(4):
                A(f'ds_read_b64_tr_b16 {r(cwo(t,c2)+2*tau,2)}, v3 offset:{c2*8192+tau*2048}')
        A(f'{le}:\n s_waitcnt lgkmcnt(0)')
    A('s_barrier')
    stage_qkv(SWV)
    A(f'''
    v_lshrrev_b32 v2, 3, v1
    v_bfe_u32 v3, v1, 1, 2
    v_and_b32 v4, 1, v1
    v_mul_u32_u24 v2, 1152, v2
    s_lshl_b32 s63, {sW}, 2
    v_add_u32 v5, s63, v3
    v_lshl_add_u32 v5, v4, 5, v5
    v_lshl_add_u32 v5, v5, 1, v2
    s_mul_i32 s63, {sW}, 144
    s_add_u32 s63, s63, 128
    v_lshl_add_u32 v6, v3, 2, s63
    v_lshl_add_u32 v6, v4, 1, v6
    v_lshl_add_u32 v6, v6, 1, v2
    s_lshl_b32 s63, {sW}, 8
    s_add_u32 s63, s63, {L_MEM}
    v_lshl_add_u32 v7, v1, 2, s63
    ''')
    for c in range(8):
        o = (144 * (c >> 1) + 64 * (c & 1)) * 2
        A(f'buffer_load_ushort v{30+c}, v5, {SMEM0}, 0 offen offset:{o}')
        A(f'buffer_load_ushort v{40+c}, v5, {SMEM0}, 0 offen offset:{o+32}')
    A(f'buffer_load_dword v38, v6, {SMEM0}, 0 offen\n s_waitcnt vmcnt(0)')
    for c in range(8):
        A(f'v_lshl_or_b32 v{30+c}, v{40+c}, 16, v{30+c}')
    for c in range(9):
        A(f'ds_write_b32 v7, v{30+c} offset:{c*1024}')
    A('s_waitcnt lgkmcnt(0)')

def role_chain(A, name, slow):
    A(f'{name}:')
    if not enabled('chain'):
        A('s_branch L_end'); return
    loc = ' sc1' if slow else ''
    chain_init(A)
    validate(A)
    (vL16, vL4, vWV0, vWV1, vIDX, vQW, vQR, vKR, vOW, vKL, vVL, vKMS, vVMS, vPS, vPS8, vRS, vMW, vMW8, vLM, vZ) = [f'v{60+i}' for i in range(20)]
    lane(A, 'v1')
    A(f'''
    v_lshlrev_b32 {vL16}, 4, v1
    v_add_u32 {vLM}, {L_MEM}, {vL16}
    v_lshlrev_b32 {vL4}, 2, v1
    v_add_u32 {vL4}, {L_SM}, {vL4}
    v_and_b32 v2, 15, v1
    v_lshrrev_b32 v3, 4, v1
    s_lshl_b32 s63, {sW}, 1
    v_xor_b32 v4, s63, v21
    v_lshl_add_u32 v4, v4, 5, v20
    v_lshl_add_u32 {vWV0}, v22, 3, v4
    v_xor_b32 {vWV1}, 32, {vWV0}
    v_and_b32 v4, 1, v1
    v_cmp_eq_u32 vcc, 0, v4
    v_mov_b32 v5, 0x4444
    v_mov_b32 v6, 0xeeee
    v_cndmask_b32 {vIDX}, v6, v5, vcc
    s_lshl_b32 s70, {sW}, 10
    s_add_u32 s63, s70, {L_QK}
    v_lshrrev_b32 v4, 2, v2
    v_lshlrev_b32 v4, 7, v4
    v_lshl_add_u32 v4, v3, 5, v4
    v_lshl_add_u32 v4, v22, 1, v4
    v_add_u32 {vQW}, s63, v4
    v_and_b32 v4, 7, v2
    v_lshlrev_b32 v4, 4, v4
    v_lshl_add_u32 v4, v3, 7, v4
    v_add_u32 {vQR}, s63, v4
    v_lshrrev_b32 v4, 2, v2
    v_and_b32 v5, 1, v2
    v_lshl_add_u32 v4, v4, 1, v5
    v_lshlrev_b32 v4, 4, v4
    v_lshl_add_u32 v4, v3, 7, v4
    v_add_u32 {vKR}, s63, v4
    s_lshl_b32 s64, {sW}, 9
    v_add_u32 v4, s64, v4
    v_and_b32 v5, 2, v2
    v_cmp_eq_u32 vcc, 0, v5
    v_mov_b32 v6, {OOB}
    s_nop 0
    v_cndmask_b32 {vKMS}, v6, v4, vcc
    s_lshr_b32 s63, {sW}, 1
    s_lshl_b32 s63, s63, 10
    s_and_b32 s64, {sW}, 1
    s_lshl_b32 s64, s64, 4
    s_add_u32 s63, s63, s64
    s_add_u32 s63, s63, {L_O}
    v_lshlrev_b32 v4, 5, v2
    v_lshl_add_u32 v4, v3, 8, v4
    v_add_u32 {vOW}, s63, v4
    v_lshrrev_b32 v4, 1, v3
    v_lshlrev_b32 v4, 10, v4
    v_and_b32 v5, 1, v3
    v_lshl_add_u32 v4, v5, 9, v4
    s_lshl_b32 s63, {sW}, 11
    v_add_u32 v4, s63, v4
    v_lshl_add_u32 {vVL}, v2, 4, v4
    v_add_u32 {vVL}, 16384, {vVL}
    v_lshrrev_b32 v5, 3, v2
    v_lshl_add_u32 v4, v5, 8, v4
    v_and_b32 v5, 7, v2
    v_lshl_add_u32 {vKL}, v5, 4, v4
    v_add_u32 {vKL}, 8192, {vKL}
    v_lshrrev_b32 v4, 1, v3
    v_lshl_add_u32 v4, v4, 5, v2
    v_lshlrev_b32 v4, 3, v4
    v_and_b32 v5, 1, v3
    v_lshl_add_u32 v4, v5, 2, v4
    s_lshl_b32 s63, {sW}, 9
    s_add_u32 s63, s63, 2048
    v_add_u32 {vVMS}, s63, v4
    v_lshrrev_b32 v4, 3, v1
    v_and_b32 v5, 7, v1
    v_lshlrev_b32 v5, 4, v5
    v_lshl_add_u32 {vPS}, v4, 12, v5
    v_lshl_add_u32 v5, v3, 2, v5
    v_and_b32 v4, 8, v1
    v_cmp_eq_u32 vcc, 0, v4
    v_lshrrev_b32 v4, 5, v1
    v_and_b32 v7, 31, v1
    v_cndmask_b32 {vRS}, v6, v5, vcc
    v_lshlrev_b32 v7, 2, v7
    v_lshl_add_u32 {vPS8}, v4, 12, v7
    s_mul_i32 s63, {sW}, 3072
    s_add_u32 s63, s63, {L_MEM}
    v_lshrrev_b32 v4, 2, v2
    v_lshlrev_b32 v5, 8, v4
    v_lshl_add_u32 v5, v3, 6, v5
    v_lshl_add_u32 v5, v22, 3, v5
    v_add_u32 {vMW}, s63, v5
    v_lshlrev_b32 v5, 6, v4
    v_lshl_add_u32 v5, v3, 8, v5
    v_lshl_add_u32 v5, v22, 3, v5
    v_add_u32 v5, s63, v5
    s_cmp_eq_u32 {sW}, 2
    s_cselect_b64 vcc, -1, 0
    s_nop 1
    v_cndmask_b32 {vMW8}, {vMW}, v5, vcc
    v_add_u32 {vMW8}, 2048, {vMW8}
    v_mov_b32 {vZ}, 0
    ''')
    l3 = A.lab('Lw3')
    A(f'''
    s_lshl_b32 s63, {sL}, 5
    s_add_u32 s63, s63, {sT}
    s_lshl_b32 s63, s63, 7
    s_cmp_lg_u32 {sW}, 3
    s_cbranch_scc1 {l3}
    s_add_u32 s64, s63, {F_QKV}
    v_lshl_add_u32 {vMW}, v22, 2, s64
    s_add_u32 s64, s63, {F_CH}
    v_cmp_eq_u32 vcc, 0, v1
    v_mov_b32 v4, s64
    v_lshlrev_b32 {vRS}, 7, v1
    v_cndmask_b32 {vMW8}, v6, v4, vcc
    {l3}:
    s_mul_i32 s71, {sL}, {64*32}
    s_add_u32 s71, s71, {sT}
    s_mul_i32 s72, s71, 4096
    s_add_u32 s72, s72, {KVM}
    s_mul_i32 s71, s71, 24576
    s_add_u32 s71, s71, {QKV}
    s_mul_i32 s73, {sL}, {2*RSLOT}
    s_add_u32 s73, s73, {RING0}
    s_lshl_b32 s74, {sW}, 5
    s_add_u32 s74, s74, {sT}
    s_cmp_lt_u32 {sW}, 3
    s_cselect_b32 s74, s74, 1000
    s_mul_i32 s75, {sL}, {3*9216}
    s_add_u32 s75, s75, {MEM0}
    s_mov_b32 s76, 0
    s_mov_b32 s77, {f2u(128**-0.5*LOG2E):#x}
    s_mov_b32 s78, 0x00ff00ff
    s_mov_b32 s79, 0x00ff00ff
    s_mov_b32 s80, 0x00003f80
    s_mov_b32 s81, 0x3f800000
    s_mov_b32 {sI}, 0
    ''')
    KX, AQ, AK, AV, AR, BX, BY = 0, 8, 16, 24, [32, 36], 40, 48
    VX = 40; VM = [56, 58]
    sm = 'v_smfmac_f32_16x16x64_bf16'
    A('v_mov_b32 v57, 0\n v_mov_b32 v59, 0')
    def wvrd(buf, T, c):
        return '\n'.join(f'ds_read_b64_tr_b16 {v(buf+2*tau,2)}, {(vWV0,vWV1)[T]} offset:{(c%4)*16384+tau*4096}' for tau in range(4))
    def pre_step():
        for i in range(8, 32): A(f'v_mov_b32 v{i}, 0')
        A(wvrd(BX, 0, 0)); A(wvrd(BY, 1, 0))
    pre_step()
    A(f's_mov_b32 s82, 0')
    A(f'{name}_top:')
    lb1 = A.lab('Lb1')
    A(f'''s_waitcnt vmcnt(0) lgkmcnt(0)
    s_barrier
    s_cmp_lg_u32 {sW}, 3
    s_cbranch_scc1 {lb1}
    s_lshl_b32 s63, {sI}, 1
    v_mov_b32 v0, s63
    buffer_store_dword v0, {vMW8}, {WS}, 0 offen sc1
    s_cmp_lg_u32 s82, 0
    s_cbranch_scc1 {lb1}
    s_add_u32 s64, s63, 1''')
    spin(A, 'v1', vMW, 's64', 40)
    A(f'''{lb1}:
    s_barrier
    ds_read_b128 {v(AR[0],4)}, {vLM}
    buffer_load_dwordx4 {v(KX,4)}, {vKL}, {WS}, s71 offen sc1
    buffer_load_dwordx4 {v(KX+4,4)}, {vKL}, {WS}, s71 offen offset:128 sc1''')
    for c in range(9):
        a_ = v(AR[c & 1], 4)
        A(f's_waitcnt lgkmcnt({0 if c == 0 else 8})')
        if c < 8: A(f'ds_read_b128 {v(AR[(c+1)&1],4)}, {vLM} offset:{(c+1)*1024}')
        for T in range(2): A(f'{sm} {v(AQ+4*T,4)}, {a_}, {r(cwq(T,c),8)}, {vIDX}')
        for T in range(2): A(f'{sm} {v(AK+4*T,4)}, {a_}, {r(cwk(T,c),8)}, {vIDX}')
        if c in (3, 7): A(f'v_add_u32 {vWV0}, 0x10000, {vWV0}\n v_add_u32 {vWV1}, 0x10000, {vWV1}')
        A(f's_waitcnt lgkmcnt({5 if c < 8 else 4})')
        A(f'{sm} {v(AV,4)}, {a_}, {v(BX,8)}, {vIDX}')
        if c < 8: A(wvrd(BX, 0, c + 1))
        A(f's_waitcnt lgkmcnt({5 if c < 8 else 0})')
        A(f'{sm} {v(AV+4,4)}, {a_}, {v(BY,8)}, {vIDX}')
        if c < 8: A(wvrd(BY, 1, c + 1))
    A(f'''v_add_u32 {vWV0}, 0xfffe0000, {vWV0}
    v_add_u32 {vWV1}, 0xfffe0000, {vWV1}
    buffer_load_dwordx4 {v(VX,4)}, {vVL}, {WS}, s71 offen sc1
    buffer_load_dwordx4 {v(VX+4,4)}, {vVL}, {WS}, s71 offen offset:256 sc1''')
    def halves(b, dst):
        return f'''v_add_f32 {v(b)}, {v(b)}, {v(b+1)}
        v_add_f32 {v(b+2)}, {v(b+2)}, {v(b+3)}
        v_cvt_pk_bf16_f32 {v(dst)}, {v(b)}, {v(b+2)}'''
    for mi, b in enumerate((AQ, AK)):
        for T in range(2):
            d = 36 + 2 * mi + T
            A(halves(b + 4 * T, d))
            A(f'ds_write_b16 {vQW}, {v(d)} offset:{512*mi+8*T}\n ds_write_b16_d16_hi {vQW}, {v(d)} offset:{512*mi+8*T+16}')
    A(f'ds_read_b128 v[8:11], {vQR}\n ds_read_b128 v[12:15], {vKR} offset:512')
    for T in range(2):
        A(halves(AV + 4 * T, VM[T]))
    for T in range(2):
        A(f'buffer_store_dword {v(VM[T])}, {vVMS}, {WS}, s72 offen offset:{128*T} sc1')
    A(f'''s_waitcnt lgkmcnt(0)
    buffer_store_dwordx4 v[12:15], {vKMS}, {WS}, s72 offen sc1
    s_cmp_eq_u32 {sI}, {NSEG-1}
    s_cbranch_scc1 {name}_fin
    s_waitcnt vmcnt(5)
    v_mfma_f32_16x16x32_bf16 v[16:19], {v(KX,4)}, v[8:11], 0
    v_mfma_f32_16x16x32_bf16 v[20:23], {v(KX+4,4)}, v[8:11], 0
    v_mfma_f32_16x16x32_bf16 v[36:39], v[12:15], v[8:11], 0
    s_mov_b64 vcc, s[78:79]
    v_add_u32 v53, s70, {vL16}
    s_lshl_b32 s63, {sW}, 8
    v_add_u32 v54, s63, {vL4}
    s_nop 3
    v_cndmask_b32 v32, v20, v16, vcc
    v_cndmask_b32 v33, v21, v17, vcc
    v_cndmask_b32 v34, v22, v18, vcc
    v_cndmask_b32 v35, v23, v19, vcc
    v_cndmask_b32 v48, v37, v36, vcc
    v_add_u32 v53, {L_QK}, v53
    ds_write_b128 v53, v[32:35]
    ds_write_b32 v54, v48
    s_waitcnt lgkmcnt(0)
    s_barrier''')
    for w in range(4):
        A(f'ds_read_b128 {v(8+4*w,4)}, {vLM} offset:{L_QK-L_MEM+1024*w}')
    for w in range(4):
        A(f'ds_read_b32 {v(49+w)}, {vL4} offset:{256*w}')
    A('s_waitcnt lgkmcnt(4)')
    A('''v_pk_add_f32 v[8:9], v[8:9], v[12:13]
    v_pk_add_f32 v[10:11], v[10:11], v[14:15]
    v_pk_add_f32 v[16:17], v[16:17], v[20:21]
    v_pk_add_f32 v[18:19], v[18:19], v[22:23]
    s_waitcnt lgkmcnt(0)
    v_add_f32 v49, v49, v50
    v_add_f32 v51, v51, v52
    v_pk_add_f32 v[8:9], v[8:9], v[16:17]
    v_pk_add_f32 v[10:11], v[10:11], v[18:19]
    v_add_f32 v49, v49, v51
    v_max3_f32 v24, v8, v9, v10
    v_max3_f32 v24, v24, v11, v49''')
    def allred(op, x, t):
        A(f'''s_nop 1
        {op}_dpp {x}, {x}, {x} row_ror:8 row_mask:0xf bank_mask:0xf
        s_nop 0
        v_mov_b32 {t}, {x}
        s_nop 1
        v_permlane16_swap_b32 {x}, {t}
        s_nop 0
        {op} {x}, {x}, {t}
        s_nop 0
        v_mov_b32 {t}, {x}
        s_nop 1
        v_permlane32_swap_b32 {x}, {t}
        s_nop 0
        {op} {x}, {x}, {t}''')
    allred('v_max_f32', 'v24', 'v25')
    A('v_mul_f32 v24, s77, v24')
    X = [8, 9, 10, 11, 49]
    for x in X: A(f'v_fma_f32 v{x}, v{x}, s77, -v24')
    for x in X: A(f'v_exp_f32 v{x}, v{x}')
    A(f'''v_cvt_pk_bf16_f32 v12, v8, v9
    v_cvt_pk_bf16_f32 v13, v10, v11
    v_mov_b32_dpp v50, v49 row_ror:8 row_mask:0xf bank_mask:0xf
    v_mov_b32 v53, 0
    v_mov_b32_dpp v14, v12 row_ror:8 row_mask:0xf bank_mask:0xf
    v_mov_b32_dpp v15, v13 row_ror:8 row_mask:0xf bank_mask:0xf
    v_cvt_pk_bf16_f32 v52, v49, v50
    v_add_f32 v24, v8, v9
    s_waitcnt vmcnt(3)
    v_mfma_f32_16x16x32_bf16 v[16:19], {v(VX,4)}, v[12:15], 0
    v_mfma_f32_16x16x32_bf16 v[20:23], {v(VX+4,4)}, v[12:15], 0
    v_add_f32 v25, v10, v11
    v_add_f32 v24, v24, v49
    v_add_f32 v24, v24, v25
    s_nop 1
    v_mfma_f32_16x16x16_bf16 v[16:19], v[56:57], v[52:53], v[16:19]
    v_mfma_f32_16x16x16_bf16 v[20:23], v[58:59], v[52:53], v[20:23]''')
    allred('v_add_f32', 'v24', 'v25')
    A('v_rcp_f32 v24, v24\n s_nop 0')
    for i in range(16, 24): A(f'v_mul_f32 v{i}, v{i}, v24')
    for d in range(4): A(f'v_cvt_pk_bf16_f32 v{48+d}, v{16+2*d}, v{17+2*d}')
    A(f'''s_mov_b64 exec, s[78:79]
    ds_write_b128 {vOW}, v[48:51]
    s_mov_b64 exec, -1''')
    for i in range(8, 26): A(f'v_mov_b32 v{i}, 0')
    A(f'''s_waitcnt lgkmcnt(0)
    s_barrier
    ds_read_b128 v[0:3], {vLM} offset:{L_O-L_MEM}
    ds_read_b128 v[4:7], {vLM} offset:{L_O-L_MEM+1024}''')
    for i in range(26, 44): A(f'v_mov_b32 v{i}, 0')
    A(f'''s_and_b32 s63, {sI}, 1
    s_mul_i32 s83, s63, {RSLOT}
    s_add_u32 s83, s83, s73
    s_lshr_b32 s84, {sI}, 1
    s_add_u32 s84, s84, 1
    s_and_b32 s84, s84, 1
    s_lshl_b32 s63, {sT}, 7
    s_add_u32 s63, s63, s83
    s_lshl_b32 s64, {sW}, 16
    s_add_u32 s85, s63, s64
    s_add_u32 s86, s85, 32768
    s_lshl_b32 s64, {sW}, 13
    s_add_u32 s87, s63, s64
    s_add_u32 s87, s87, {64*4096}
    s_waitcnt lgkmcnt(0)''')
    def gran(qq, G, soff):
        o = []
        for t in range(4 * qq, 4 * qq + 4):
            b = 8 + 4 * t
            o.append(f'v_add_f32 v{b}, v{b}, v{b+1}\n v_add_f32 v{b+2}, v{b+2}, v{b+3}')
        b = 8 + 16 * qq
        o.append(f'v_cvt_pk_bf16_f32 v{G}, v{b}, v{b+4}\n v_cvt_pk_bf16_f32 v{G+1}, v{b+8}, v{b+12}')
        o.append(f'v_cvt_pk_bf16_f32 v{G+2}, v{b+2}, v{b+6}\n v_cvt_pk_bf16_f32 v{G+3}, v{b+10}, v{b+14}')
        o.append(f'v_and_or_b32 v{G}, v{G}, -2, s84\n buffer_store_dwordx4 {v(G,4)}, {vPS}, {WS}, {soff} offen{loc}')
        return o
    mains = []
    for t in range(9):
        for c2 in range(2):
            mains.append(f'{sm} {v(8+4*t,4)}, {v(4*c2,4)}, {r(cwo(t,c2),8)}, {vIDX}')
    interleave(A, mains, gran(0, 44, 's85'), start=11)
    A('s_nop 1')
    for x in gran(1, 48, 's86'): A(x)
    A(f'''v_add_f32 v40, v40, v41
    v_add_f32 v42, v42, v43
    v_cvt_pk_bf16_f32 v52, v40, v42
    v_and_or_b32 v52, v52, -2, s84
    buffer_store_dword v52, {vPS8}, {WS}, s87 offen{loc}''')
    A(f'''s_add_u32 s71, s71, {32*24576}
    s_add_u32 s72, s72, {32*4096}
    s_mul_i32 s88, s76, 9216
    s_add_u32 s88, s88, s75
    s_add_u32 s76, s76, 1
    s_cmp_eq_u32 s76, 3
    s_cselect_b32 s76, 0, s76
    s_mul_i32 s89, s76, 9216
    s_add_u32 s89, s89, s75
    s_add_u32 {sI}, {sI}, 1
    s_cmp_eq_u32 {sW}, 3
    s_cbranch_scc1 {name}_w3
    s_cmp_ge_u32 s74, 72
    s_cbranch_scc1 {name}_poll
    s_lshl_b32 s63, s74, 12
    s_add_u32 s83, s83, s63
    s_lshl_b32 s63, s74, 7
    s_add_u32 s88, s88, s63
    s_add_u32 s90, s89, s63
    s_mov_b32 {sSPIN}, 0
    s_waitcnt vmcnt(0)
    s_cmp_eq_u32 {sW}, 2
    s_cbranch_scc1 {name}_g8''')
    for typ in (0, 1):
        lg = f'{name}_g8' if typ else f'{name}_g0'
        ok = A.lab('Lgok')
        A(f'{lg}:')
        for i in range(4):
            A(f'buffer_load_dwordx4 {v(8+4*i,4)}, {vL16}, {WS}, s83 offen offset:{1024*i} sc1')
        A('s_waitcnt vmcnt(0)')
        chk = [8, 12, 16, 20] if not typ else list(range(8, 24))
        A(f'v_xor_b32 v32, s84, v{chk[0]}')
        for x in chk[1:]:
            A(f'v_xor_b32 v33, s84, v{x}\n v_or_b32 v32, v32, v33')
        A(f'''v_and_b32 v32, 1, v32
        v_cmp_ne_u32 vcc, 0, v32
        s_cbranch_vccz {ok}
        s_add_u32 {sSPIN}, {sSPIN}, 1
        s_cmp_lt_u32 {sSPIN}, {cfg.spin_limit}
        s_cbranch_scc1 {lg}
        s_mov_b32 s63, 41
        s_branch L_abort
        {ok}:''')
        E = (lambda d, hi: 24 + 2 * d + hi) if not typ else (lambda d, hi: 24 + d + 4 * hi)
        for d in range(4):
            A(f'v_lshlrev_b32 v{E(d,0)}, 16, v{8+d}\n v_and_b32 v{E(d,1)}, 0xffff0000, v{8+d}')
        for i in range(1, 4):
            for d in range(4):
                A(f'v_dot2c_f32_bf16 v{E(d,0)}, s80, v{8+4*i+d}\n v_dot2c_f32_bf16 v{E(d,1)}, s81, v{8+4*i+d}')
        if not typ: A(f's_branch {name}_tree')
    A(f'''{name}_tree:
    s_nop 2
    v_permlane32_swap_b32 v24, v28
    v_permlane32_swap_b32 v25, v29
    v_permlane32_swap_b32 v26, v30
    v_permlane32_swap_b32 v27, v31
    v_add_f32 v24, v24, v28
    v_add_f32 v25, v25, v29
    v_add_f32 v26, v26, v30
    v_add_f32 v27, v27, v31
    s_nop 0
    v_permlane16_swap_b32 v24, v26
    v_permlane16_swap_b32 v25, v27
    s_nop 0
    v_add_f32 v24, v24, v26
    v_add_f32 v25, v25, v27
    v_mov_b32 v33, -1
    v_add_f32_dpp v24, v24, v24 row_ror:8 row_mask:0xf bank_mask:0xf
    v_add_f32_dpp v25, v25, v25 row_ror:8 row_mask:0xf bank_mask:0xf
    v_cvt_pk_bf16_f32 v32, v24, v25
    v_min_u32 v32, -2, v32
    buffer_store_dword v32, {vRS}, {WS}, s90 offen{loc}
    buffer_store_dword v33, {vRS}, {WS}, s88 offen{loc}
    {name}_poll:''')
    pre_step()
    lp = A.lab('Lp'); ok = A.lab('Lpok')
    A(f'''s_mul_i32 s63, {sW}, 3072
    s_add_u32 s89, s89, s63
    s_mov_b32 {sSPIN}, 0
    {lp}:
    buffer_load_dwordx4 v[32:35], {vL16}, {WS}, s89 offen sc1
    buffer_load_dwordx4 v[36:39], {vL16}, {WS}, s89 offen offset:1024 sc1
    buffer_load_dwordx4 v[0:3], {vL16}, {WS}, s89 offen offset:2048 sc1
    s_waitcnt vmcnt(0)
    v_max3_u32 v4, v32, v33, v34
    v_max3_u32 v5, v35, v36, v37
    v_max3_u32 v6, v38, v39, v0
    v_max3_u32 v7, v1, v2, v3
    v_max3_u32 v4, v4, v5, v6
    v_max_u32 v4, v4, v7
    v_cmp_eq_u32 vcc, -1, v4
    s_cbranch_vccz {ok}
    s_add_u32 {sSPIN}, {sSPIN}, 1
    s_cmp_lt_u32 {sSPIN}, {cfg.spin_limit}
    s_cbranch_scc1 {lp}
    s_mov_b32 s63, 42
    s_branch L_abort
    {ok}:
    ds_write2_b64 {vMW}, v[32:33], v[34:35] offset0:0 offset1:4
    ds_write2_b64 {vMW}, v[36:37], v[38:39] offset0:128 offset1:132
    ds_write2_b64 {vMW8}, v[0:1], v[2:3] offset0:0 offset1:4
    s_branch {name}_top
    {name}_w3:''')
    pre_step()
    l = A.lab('Lw3p'); d = A.lab('Lw3d')
    A(f'''s_lshl_b32 s64, {sI}, 1
    s_add_u32 s64, s64, 1
    s_mov_b32 s82, 0
    s_mov_b32 s65, 0
    {l}:
    buffer_load_dword v1, {vMW}, {WS}, 0 offen sc1
    s_waitcnt vmcnt(0)
    v_cmp_gt_u32 vcc, s64, v1
    s_cbranch_vccz {d}
    s_add_u32 s65, s65, 1
    s_cmp_lt_u32 s65, 2
    s_cbranch_scc1 {l}
    s_branch {name}_top
    {d}:
    s_mov_b32 s82, 1
    s_add_u32 s63, s71, 8192
    s_add_u32 s64, s71, 16384
    buffer_load_dword v2, {vRS}, {WS}, s63 offen sc1
    buffer_load_dword v3, {vRS}, {WS}, s64 offen sc1
    s_branch {name}_top
    {name}_fin:
    s_waitcnt vmcnt(0)
    s_barrier
    s_cmp_lg_u32 {sW}, 3
    s_cbranch_scc1 L_end
    v_mov_b32 v0, {2*NSEG}
    buffer_store_dword v0, {vMW8}, {WS}, 0 offen sc1
    s_waitcnt vmcnt(0)
    s_branch L_end''')

def build():
    A = Asm()
    kernel_begin(A, KNAME)
    prologue(A)
    role_chain(A, 'L_chain_f', False)
    role_qkv(A)
    role_up(A)
    role_rg(A, 'L_wo_f', 'wo', 16, SWO, OB, 262144, PW, F_WO, 50, False)
    role_rg(A, 'L_dn_f', 'dn', 18, SW2, HB, 294912, PD, F_DN, 51, False)
    role_att(A)
    role_red(A)
    role_chain(A, 'L_chain_s', True)
    role_rg(A, 'L_wo_s', 'wo', 16, SWO, OB, 262144, PW, F_WO, 50, True)
    role_rg(A, 'L_dn_s', 'dn', 18, SW2, HB, 294912, PD, F_DN, 51, True)
    A('s_endpgm')
    return build_file([(KNAME, 256, 256, LDS_BYTES)], A.text(), [descriptor(KNAME)])

if __name__ == '__main__':
    out = sys.argv[1] if len(sys.argv) > 1 else 'interleave_layers__memory_aug_recurrent_mem_tr__glu_gated_swiglu__prompt.s'
    open(out, 'w').write(build())
```

```python
import sys
from asm import *
from layout import *

KNAME = 'interleave_layers__memory_aug_recurrent_mem_tr__glu_gated_swiglu__prompt_kernel'
WS, SX, SOUT, SDBG, SMEM0, SWQ, SWK, SWV, SWO, SW1, SW3, SW2 = [f's[{8+4*i}:{11+4*i}]' for i in range(12)]
sX, sT, sW, sSLOW, sL, sI, sSPIN = 's56', 's57', 's58', 's59', 's60', 's61', 's62'
OOB = 0x7ffffff0
LOG2E = 1.4426950408889634

class Cfg:
    roles = None
    skip_init = False
    spin_limit = 400000
    lam = 14
    timing = False
    force_slow = False
    force_rank = False
    codepf = True
    xmap = 0x76354210
cfg = Cfg()

def f2u(x):
    import struct
    return struct.unpack('<I', struct.pack('<f', x))[0]

def enabled(n):
    return cfg.roles is None or n in cfg.roles

def pollops(vdst, vaddr):
    if isinstance(vdst, tuple):
        n = vdst[0]
        fix = f'v_min_u32 v{n}, v{n}, v{n+1}\n v_lshrrev_b32 v{n+1}, 6, v{n}\n v_or_b32 v{n+1}, v{n+1}, {vdst[1]}\n v_add3_u32 v{n}, v{n}, v{n+1}, -1\n v_max_i32 v{n}, 0, v{n}'
        return f'buffer_load_dwordx2 v[{n}:{n+1}], {vaddr}, {WS}, 0 offen sc1', fix, f'v{n}'
    return f'buffer_load_dword {vdst}, {vaddr}, {WS}, 0 offen sc1', '', vdst

def spin(A, vdst, vaddr, starget, code):
    l = A.lab('Lspin'); d = A.lab('Lspind')
    ld, fix, vdst = pollops(vdst, vaddr)
    A(f'''
    s_mov_b32 {sSPIN}, 0
    {l}:
    {ld}
    s_waitcnt vmcnt(0)
    {fix}
    v_cmp_gt_u32 vcc, {starget}, {vdst}
    s_cbranch_vccz {d}
    s_add_u32 {sSPIN}, {sSPIN}, 1
    s_cmp_lt_u32 {sSPIN}, {cfg.spin_limit}
    s_cbranch_scc1 {l}
    s_mov_b32 s63, {code}
    s_branch L_abort
    {d}:
    ''')

def validate(A):
    l = A.lab('Lval'); d = A.lab('Lvald'); ok = A.lab('Lvalok')
    A(f'''
    s_cmp_lg_u32 s7, 0
    s_cbranch_scc1 {ok}
    v_mbcnt_lo_u32_b32 v1, -1, 0
    v_mbcnt_hi_u32_b32 v1, -1, v1
    v_lshlrev_b32 v1, 2, v1
    s_mov_b32 {sSPIN}, 0
    s_mov_b32 s63, 0x80808080
    s_cmp_lg_u32 {sW}, 0
    s_cbranch_scc1 {d}
    {l}:
    buffer_load_dword v2, v1, {SDBG}, 0 offen sc1
    s_waitcnt vmcnt(0)
    v_and_b32 v3, s63, v2
    v_cmp_ne_u32 vcc, s63, v3
    s_cbranch_vccz {d}
    s_add_u32 {sSPIN}, {sSPIN}, 1
    s_cmp_lt_u32 {sSPIN}, {cfg.spin_limit}
    s_cbranch_scc1 {l}
    {d}:
    s_barrier
    buffer_load_dword v2, v1, {SDBG}, 0 offen sc1
    s_waitcnt vmcnt(0)
    v_and_b32 v3, s63, v2
    v_cmp_ne_u32 vcc, s63, v3
    s_mov_b32 s63, 1
    s_cbranch_vccnz L_abort
    v_lshlrev_b32 v3, v2, 1
    v_lshrrev_b32 v4, 8, v2
    v_lshl_or_b32 v3, 1, v4, v3
    v_lshrrev_b32 v4, 16, v2
    v_lshl_or_b32 v3, 1, v4, v3
    v_lshrrev_b32 v4, 24, v2
    v_lshl_or_b32 v3, 1, v4, v3
    s_nop 1
    v_or_b32_dpp v3, v3, v3 quad_perm:[1,0,3,2] row_mask:0xf bank_mask:0xf
    v_cmp_ne_u32 vcc, {0x1ff if (cfg.force_slow or cfg.force_rank) else 0xff}, v3
    s_cbranch_vccnz L_rerank
    s_mov_b32 s7, 1
    {ok}:
    ''')
    stamp_s(A, 's99')
    if cfg.timing: A('s_memtime s[96:97]\n s_waitcnt lgkmcnt(0)\n s_mov_b32 s101, s96')

def ln0_hook(A, younger, finish=True):
    l = A.lab('Lln')
    ACC = 52; T = 20
    def halfsum(x, t):
        for m in ('quad_perm:[1,0,3,2]', 'quad_perm:[2,3,0,1]', 'row_half_mirror', 'row_mirror'):
            A(f's_nop 1\n v_add_f32_dpp {x}, {x}, {x} {m} row_mask:0xf bank_mask:0xf')
        A(f'v_mov_b32 {t}, {x}\n s_nop 1\n v_permlane16_swap_b32 {x}, {t}\n v_add_f32 {x}, {x}, {t}')
    A(f's_cmp_lg_u32 s7, 0\n s_cbranch_scc1 {l}\n s_waitcnt vmcnt({min(63, younger + (0 if cfg.skip_init else 3))})')
    for d in range(12):
        A(f'v_lshlrev_b32 {v(ACC+2*d)}, 16, {v(40+d)}\n v_and_b32 {v(ACC+2*d+1)}, 0xffff0000, {v(40+d)}')
    A(f'v_pk_add_f32 {v(T,2)}, {v(ACC,2)}, {v(ACC+2,2)}')
    for d in range(2, 12): A(f'v_pk_add_f32 {v(T,2)}, {v(T,2)}, {v(ACC+2*d,2)}')
    A(f'v_add_f32 {v(T)}, {v(T)}, {v(T+1)}')
    halfsum(v(T), v(T+1))
    A(f'v_mul_f32 {v(T)}, v78, {v(T)}')
    for d in range(12): A(f'v_pk_add_f32 {v(ACC+2*d,2)}, {v(ACC+2*d,2)}, {v(T,2)} op_sel_hi:[1,0]')
    A(f'v_pk_mul_f32 {v(T+2,2)}, {v(ACC,2)}, {v(ACC,2)}')
    for d in range(1, 12): A(f'v_pk_fma_f32 {v(T+2,2)}, {v(ACC+2*d,2)}, {v(ACC+2*d,2)}, {v(T+2,2)}')
    A(f'v_add_f32 {v(T+2)}, {v(T+2)}, {v(T+3)}')
    halfsum(v(T+2), v(T+3))
    A(f'''v_mov_b32 {v(T+3)}, {f2u(1e-5):#x}
    v_fmac_f32 {v(T+3)}, {f2u(1.0/576):#x}, {v(T+2)}
    v_rsq_f32 {v(T+2)}, {v(T+3)}
    s_add_u32 s63, s3, {XNA}''')
    for d in range(12): A(f'v_pk_mul_f32 {v(ACC+2*d,2)}, {v(ACC+2*d,2)}, {v(T+2,2)} op_sel_hi:[1,0]')
    for d in range(12): A(f'v_cvt_pk_bf16_f32 {v(40+d)}, {v(ACC+2*d)}, {v(ACC+2*d+1)}')
    for j in range(3): A(f'buffer_store_dwordx4 {v(40+4*j,4)}, v77, {WS}, s63 offen offset:{384*j} sc1')
    A(f'{l}:')
    if finish:
        A('s_waitcnt vmcnt(0)'); arrive(A)

def arrive(A):
    l = A.lab('Lar')
    A(f'''s_cmp_lg_u32 s7, 0
    s_cbranch_scc1 {l}
    s_or_b32 s63, s6, 0x80
    v_mov_b32 v20, s63
    s_barrier
    buffer_store_byte v20, v79, {SDBG}, 0 offen sc1
    {l}:''')

def lane(A, dst):
    A(f'''v_mbcnt_lo_u32_b32 {dst}, -1, 0
    v_mbcnt_hi_u32_b32 {dst}, -1, {dst}''')

def stamp(A, vreg, sidx):
    if not cfg.timing or cfg.timing >= 3: return
    A(f'''s_memrealtime s[96:97]
    s_and_b32 m0, {sidx}, 63
    s_waitcnt lgkmcnt(0)
    v_writelane_b32 {vreg}, s96, m0''')

def stamp_s(A, sreg):
    if not cfg.timing: return
    A(f's_memrealtime s[96:97]\n s_waitcnt lgkmcnt(0)\n s_mov_b32 {sreg}, s96')

def dump(A, vregs):
    if not cfg.timing: return
    stamp_s(A, 's100')
    A(f'''s_lshl_b32 s63, {sX}, 5
    s_add_u32 s63, s63, {sT}
    s_lshl_b32 s63, s63, 2
    s_add_u32 s63, s63, {sW}
    s_lshl_b32 s63, s63, 11
    s_add_u32 s63, s63, {DBG}
    v_mbcnt_lo_u32_b32 v1, -1, 0
    v_mbcnt_hi_u32_b32 v1, -1, v1
    v_lshlrev_b32 v1, 2, v1
    v_mov_b32 v2, s98
    v_writelane_b32 v2, s99, 1
    v_writelane_b32 v2, s100, 2
    s_memtime s[96:97]
    s_waitcnt lgkmcnt(0)
    s_sub_u32 s101, s96, s101
    v_writelane_b32 v2, s101, 3
    buffer_store_dword v2, v1, {WS}, s63 offen''')
    for i, x in enumerate(vregs):
        A(f'buffer_store_dword {x}, v1, {WS}, s63 offen offset:{256*(i+1)}')
    A('s_waitcnt vmcnt(0)')

def interleave(A, mains, fills, start=0, every=1):
    fi = 0
    for i, m in enumerate(mains):
        A(m)
        if i >= start and (i - start) % every == 0 and fi < len(fills):
            A(fills[fi]); fi += 1
    assert fi == len(fills), (fi, len(fills))

def prologue(A):
    A(f'''
    s_cmp_ge_u32 s2, 256
    s_cbranch_scc1 L_end
    s_load_dwordx16 s[64:79], s[0:1], 0
    s_load_dwordx8 s[80:87], s[0:1], 64
    s_load_dwordx4 s[88:91], s[0:1], 96
    s_getreg_b32 {sX}, hwreg(HW_REG_XCC_ID)
    v_lshrrev_b32 v1, 6, v0
    s_and_b32 {sX}, {sX}, 15
    v_readfirstlane_b32 {sW}, v1
    s_mov_b32 {sSLOW}, 0
    s_mov_b32 s6, {sX}
    ''')
    if cfg.codepf:
        A('''s_getpc_b64 s[92:93]
        L_pc:
        s_lshr_b32 s63, s2, 3
        s_lshl_b32 s63, s63, 8
        v_add_u32 v2, s63, v0
        v_lshlrev_b32 v2, 4, v2
        v_min_u32 v2, L_code_end-L_pc-4, v2
        v_and_b32 v3, 7, v0
        v_cmp_eq_u32 vcc, 0, v3
        s_and_saveexec_b64 s[94:95], vcc
        global_load_dword v75, v2, s[92:93]
        s_mov_b64 exec, s[94:95]''')
    A('s_waitcnt lgkmcnt(0)')
    stamp_s(A, 's98')
    srds = [(8, 90, WS_BYTES), (12, 64, XB), (16, 86, XB), (20, 88, 256), (24, 66, 9216), (28, 68, 4718592),
            (32, 70, 4718592), (36, 72, 4718592), (40, 74, 4718592), (44, 80, 5308416), (48, 82, 5308416), (52, 84, 5308416)]
    for d, p, n in srds:
        A(f'''s_mov_b32 s{d}, s{p}
        s_mov_b32 s{d+1}, s{p+1}
        s_mov_b32 s{d+2}, {n}
        s_mov_b32 s{d+3}, 0x20000''')
    A(f'''
    v_and_b32 v1, 31, v0
    v_lshrrev_b32 v2, 5, v0
    v_mul_u32_u24 v3, 1152, v2
    v_lshl_add_u32 v76, v1, 4, v3
    s_and_b32 s63, s2, 1
    s_lshl_b32 s63, s63, 2
    s_add_u32 s63, s63, {sW}
    v_xor_b32 v4, s63, v1
    v_lshl_add_u32 v77, v4, 4, v3
    v_cmp_gt_u32 vcc, 24, v1
    v_mov_b32 v3, {OOB}
    v_mov_b32 v4, {f2u(-1.0/576):#x}
    v_cndmask_b32 v76, v3, v76, vcc
    v_cndmask_b32 v77, v3, v77, vcc
    v_cndmask_b32 v78, 0, v4, vcc
    s_mul_i32 s3, s2, 9216
    buffer_load_dwordx4 v[40:43], v76, {SX}, s3 offen
    buffer_load_dwordx4 v[44:47], v76, {SX}, s3 offen offset:384
    buffer_load_dwordx4 v[48:51], v76, {SX}, s3 offen offset:768
    ''')
    if not cfg.skip_init:
        A(f'''
        s_cmp_eq_u32 s2, 0
        s_cselect_b32 s63, {NSEG}, 0
        v_cmp_eq_u32 vcc, 0, v0
        v_mov_b32 v8, s63
        v_mov_b64 v[12:13], 0
        v_cndmask_b32 v4, 0, v8, vcc
        v_mov_b64 v[14:15], 0
        v_mov_b32 v5, v4
        v_mov_b32 v6, v4
        v_mov_b32 v7, v4
        v_mov_b32 v8, -1
        v_lshlrev_b32 v9, 4, v0
        v_lshlrev_b32 v10, 2, v0
        s_lshl_b32 s63, s2, 13
        s_add_u32 s66, s63, 4096
        s_lshl_b32 s67, s2, 10
        s_add_u32 s67, s67, {ONES0}
        buffer_store_dwordx4 v[4:7], v9, {WS}, s63 offen sc1
        buffer_store_dwordx4 v[12:15], v9, {WS}, s66 offen sc1
        buffer_store_dword v8, v10, {WS}, s67 offen sc1
        ''')
    A(f'''
    v_mov_b32 v2, s2
    v_cmp_eq_u32 vcc, 0, v0
    s_lshr_b32 {sT}, s2, 3
    s_mov_b32 s7, 0
    v_cndmask_b32 v79, v3, v2, vcc
    s_cmp_ge_u32 {sX}, 8
    s_cbranch_scc1 L_norole
    L_dispatch:
    s_lshl_b32 s63, {sX}, 2
    s_lshr_b32 {sX}, {cfg.xmap:#x}, s63
    s_and_b32 {sX}, {sX}, 7
    s_and_b32 {sL}, {sX}, 1
    s_lshr_b32 s63, {sX}, 1
    s_cmp_eq_u32 s63, 0
    s_cbranch_scc1 L_chain
    s_cmp_eq_u32 s63, 1
    s_cbranch_scc1 L_qkv
    s_cmp_eq_u32 s63, 2
    s_cbranch_scc1 L_j_rg
    s_cmp_lt_u32 {sT}, 24
    s_cbranch_scc1 L_up
    s_branch L_att
    L_j_rg:
    s_cmp_ge_u32 {sT}, 24
    s_cbranch_scc1 L_red
    s_cmp_eq_u32 {sL}, 0
    s_cbranch_scc1 L_wo
    s_branch L_dn
    L_norole:
    ''')
    ln0_hook(A, 0)
    validate(A)
    A(f'''
    s_mov_b32 s63, 2
    s_branch L_abort
    L_rerank:
    s_mov_b32 s7, 1
    s_mov_b32 s64, 0
    L_rr1:
    s_mov_b32 s65, 0
    s_mov_b32 s66, 0
    v_bfe_u32 v3, v2, 0, 7
    v_cmp_eq_u32 vcc, s64, v3
    v_add_u32 v4, 0, v1
    v_cmp_gt_u32 s[68:69], s2, v4
    s_bcnt1_i32_b64 s63, vcc
    s_add_u32 s65, s65, s63
    s_and_b64 s[68:69], s[68:69], vcc
    s_bcnt1_i32_b64 s63, s[68:69]
    s_add_u32 s66, s66, s63
    v_bfe_u32 v3, v2, 8, 7
    v_cmp_eq_u32 vcc, s64, v3
    v_add_u32 v4, 1, v1
    v_cmp_gt_u32 s[68:69], s2, v4
    s_bcnt1_i32_b64 s63, vcc
    s_add_u32 s65, s65, s63
    s_and_b64 s[68:69], s[68:69], vcc
    s_bcnt1_i32_b64 s63, s[68:69]
    s_add_u32 s66, s66, s63
    v_bfe_u32 v3, v2, 16, 7
    v_cmp_eq_u32 vcc, s64, v3
    v_add_u32 v4, 2, v1
    v_cmp_gt_u32 s[68:69], s2, v4
    s_bcnt1_i32_b64 s63, vcc
    s_add_u32 s65, s65, s63
    s_and_b64 s[68:69], s[68:69], vcc
    s_bcnt1_i32_b64 s63, s[68:69]
    s_add_u32 s66, s66, s63
    v_bfe_u32 v3, v2, 24, 7
    v_cmp_eq_u32 vcc, s64, v3
    v_add_u32 v4, 3, v1
    v_cmp_gt_u32 s[68:69], s2, v4
    s_bcnt1_i32_b64 s63, vcc
    s_add_u32 s65, s65, s63
    s_and_b64 s[68:69], s[68:69], vcc
    s_bcnt1_i32_b64 s63, s[68:69]
    s_add_u32 s66, s66, s63
    s_cmp_eq_u32 s64, s6
    s_cselect_b32 {sT}, s66, {sT}
    s_cmp_lg_u32 s65, {33 if cfg.force_slow else 32}
    s_cselect_b32 {sSLOW}, 1, {sSLOW}
    s_add_u32 s64, s64, 1
    s_cmp_lt_u32 s64, 8
    s_cbranch_scc1 L_rr1
    s_mov_b32 {sX}, s6
    s_cmp_eq_u32 {sSLOW}, 0
    s_cbranch_scc1 L_rr2
    s_lshr_b32 {sX}, s2, 5
    s_and_b32 {sT}, s2, 31
    L_rr2:
    s_waitcnt vmcnt(0) lgkmcnt(0)
    s_barrier
    s_branch L_dispatch
    L_abort:
    s_lshl_b32 s64, {sX}, 8
    s_or_b32 s63, s63, s64
    s_lshl_b32 s64, {sI}, 16
    s_or_b32 s63, s63, s64
    s_or_b32 s63, s63, 0x80000000
    s_mov_b64 exec, 1
    v_mov_b32 v1, s63
    s_lshl_b32 s64, {sX}, 2
    s_add_u32 s64, s64, {DBG - 4096}
    v_mov_b32 v2, s64
    buffer_store_dword v1, v2, {WS}, 0 offen
    s_waitcnt vmcnt(0)
    L_end:
    s_endpgm
    ''')

def capture(A, fn):
    n0 = len(A.lines); fn(); ls = A.lines[n0:]; del A.lines[n0:]
    return ls

M16 = 'v_mfma_f32_16x16x32_bf16'
def red_stream(A, name, pbase, res_ext, res_base, out_ext, xo_base, xn_base, fin, fout, code, fres, fcon, fpub):
    vPL, vG, vL, vNW, vCP, vSW, vSR, vMK = 'v1', 'v3', 'v4', 12, 'v17', 'v19', 'v20', 'v21'
    vPA, vP, vFA, vF, vCA = 'v22', 'v10', 'v6', 'v7', 'v9'
    SA, SB = 24, 28
    PL = 32; RS = 104; ACC = 116; PK = 136; T = 148; CO = 168; SH = 164; NX = 192
    IMN, IMR = 16384, 49152
    ln = xn_base is not None
    lane(A, vPA)
    A(f'''v_min_u32 {vPA}, 23, {vPA}
    v_lshlrev_b32 {vPA}, 2, {vPA}
    v_add_u32 {vPA}, {fin}, {vPA}
    s_lshl_b32 s63, s70, 2
    s_add_u32 s64, s63, {fres or 0}
    v_mov_b32 v162, s64
    s_add_u32 s64, s63, {fout or 0}
    v_mov_b32 {vFA}, s64
    s_add_u32 s63, s63, {fcon}
    s_cmp_eq_u32 {sW}, 0
    s_cselect_b32 s63, s63, {OOB}''')
    lane(A, vCA)
    A(f'''v_cmp_eq_u32 vcc, 0, {vCA}
    v_mov_b32 v8, s63
    v_mov_b32 {vCA}, {OOB}
    v_cndmask_b32 {vCA}, {vCA}, v8, vcc
    s_mov_b32 s78, 0
    s_mov_b32 s77, 0''')
    poll = f'buffer_load_dword {vP}, {vPA}, {WS}, 0 offen sc1'
    def flag():
        if fout is None: return
        l = A.lab('Lf')
        A(f'''s_mov_b64 exec, 1
        ds_add_rtn_u32 {vF}, v11, v23
        s_waitcnt lgkmcnt(0)
        v_readfirstlane_b32 s63, {vF}
        v_mov_b32 {vF}, {sI}
        s_and_b32 s63, s63, 3
        s_cmp_lg_u32 s63, 3
        s_cbranch_scc1 {l}
        buffer_store_dword {vF}, {vFA}, {WS}, 0 offen sc1
        {l}:
        s_mov_b64 exec, -1''')
    def need_res(add):
        if fres is None: return
        l = A.lab('Lr')
        A(f'''s_add_u32 s79, {sI}, {add + 1}
        s_min_u32 s79, s79, {NSEG}
        s_cmp_ge_u32 s78, s79
        s_cbranch_scc1 {l}''')
        spin(A, 'v161', 'v162', 's79', code + 100)
        A(f'v_readfirstlane_b32 s78, v161\n {l}:')
    def resid(add):
        if res_ext:
            A(f'''s_mul_i32 s67, {sI}, 36864
            s_add_u32 s67, s67, s72
            s_add_u32 s67, s67, {36864 * add}
            s_mov_b32 m0, s75
            s_xor_b32 s75, s75, 0x10000
            buffer_load_dwordx4 {vG}, {SX}, s67 offen lds
            buffer_load_dwordx4 {vG}, {SX}, s67 offen offset:1024 lds
            s_mov_b64 exec, 0xffff
            buffer_load_dwordx4 {vG}, {SX}, s67 offen offset:2048 lds
            s_mov_b64 exec, -1''')
        else:
            A(f'''s_mul_i32 s67, {sI}, 40960
            s_add_u32 s67, s67, s76
            s_add_u32 s67, s67, {res_base + 40960 * add}
            buffer_load_dwordx4 {v(RS,4)}, {vL}, {WS}, s67 offen sc1
            buffer_load_dwordx4 {v(RS+4,4)}, {vL}, {WS}, s67 offen offset:1024 sc1
            buffer_load_dwordx2 {v(RS+8,2)}, v5, {WS}, s67 offen offset:2048 sc1''')
    def ldlist(sreg):
        pre = f's_and_b32 s67, {sreg}, {PRING-1}\n s_mul_i32 s67, s67, {8*36864}\n s_add_u32 s67, s67, {pbase}\n s_add_u32 s68, s67, s74\n s_add_u32 s67, s67, s73'
        o = []
        for a_ in range(9):
            pw, pp = divmod(a_, 3)
            for kh in range(2):
                o.append(f's_add_u32 s69, {"s67" if pp < 2 else "s68"}, {kh*4*36864 + pw*3072}\n'
                         f'buffer_load_dwordx4 {v(PL+8*a_+4*kh,4)}, {vPL}, {WS}, s69 offen offset:{512*pp if pp < 2 else 0} sc1')
        return pre, o
    def rowsum(xs):
        A('s_nop 1' if len(xs) == 1 else 's_nop 0')
        for x, t in xs: A(f'v_add_f32_dpp {x}, {x}, {x} row_ror:8 row_mask:0xf bank_mask:0xf')
        for sw in ('v_permlane16_swap_b32', 'v_permlane32_swap_b32'):
            for x, t in xs: A(f'v_mov_b32 {t}, {x}')
            A('s_nop 1' if len(xs) == 1 else 's_nop 0')
            for x, t in xs: A(f'{sw} {x}, {t}')
            for x, t in xs: A(f'v_add_f32 {x}, {x}, {t}')
    def prep():
        if res_ext:
            for j in range(5): A(f'v_add_u32 {v(T+j)}, s77, {v(vNW+j)}')
            A('s_xor_b32 s77, s77, 0x10000\n s_barrier')
            for j in range(5): A(f'ds_read_b64 {v(RS+2*j,2)}, {v(T+j)} offset:{IMR}')
            A('s_waitcnt lgkmcnt(0)')
        for d in range(10):
            A(f'v_lshlrev_b32 {v(ACC+2*d)}, 16, {v(RS+d)}\n v_and_b32 {v(ACC+2*d+1)}, 0xffff0000, {v(RS+d)}')
        if ln:
            A(f'v_pk_add_f32 {v(T,2)}, {v(ACC,2)}, {v(ACC+2,2)}')
            for d in range(2, 10): A(f'v_pk_add_f32 {v(T,2)}, {v(T,2)}, {v(ACC+2*d,2)}')
            A(f'v_add_f32 {v(T)}, {v(T)}, {v(T+1)}')
            rowsum([(v(T), v(T+1))])
            A(f'v_mul_f32 {v(SH)}, {f2u(1.0/144):#x}, {v(T)}\n v_mul_f32 {v(SH+2)}, {v(SH)}, {vMK}')
            for d in range(10):
                A(f'v_pk_add_f32 {v(ACC+2*d,2)}, {v(ACC+2*d,2)}, {v(SH if d < 8 else SH+2,2)} op_sel_hi:[1,0] neg_lo:[0,1] neg_hi:[0,1]')
            A(f'v_mov_b64 {v(T,2)}, 0\n v_mov_b64 {v(T+2,2)}, 0')
    def stat(j):
        if not ln: return
        for h in (0, 2):
            x = v(ACC + 4 * j + h, 2)
            A(f'v_pk_add_f32 {v(T,2)}, {v(T,2)}, {x}\n v_pk_fma_f32 {v(T+2,2)}, {x}, {x}, {v(T+2,2)}')
    def local_store(vd, va, so):
        l1 = A.lab('Lc'); l2 = A.lab('Lc')
        A(f'''s_cmp_lg_u32 {sSLOW}, 0
        s_cbranch_scc1 {l1}
        buffer_store_dword {vd}, {va}, {WS}, {so} offen
        s_branch {l2}
        {l1}:
        buffer_store_dword {vd}, {va}, {WS}, {so} offen sc1
        {l2}:''')
    def respub():
        if fpub is None: return
        A(f'v_mov_b32 v163, {sI}\n s_mov_b32 s63, {fpub - fcon}\n buffer_store_dword v163, {vCA}, {WS}, s63 offen sc1')
    def st3(srd, va, soff):
        for q in range(3):
            A(f's_waitcnt lgkmcnt({2-q})')
            if q == 2: A('s_mov_b64 exec, 0xffff')
            A(f'buffer_store_dwordx4 {v(CO+4*q,4)}, {va}, {srd}, {soff} offen offset:{1024*q} sc1')
        A('s_mov_b64 exec, -1')
    A(f's_mov_b32 {sI}, 0\n s_mov_b32 s65, 1\n s_mov_b32 s66, 0')
    l = A.lab('Lpt')
    A(f'{l}:'); pre, lds_ = ldlist('s66'); A(pre)
    for x in lds_: A(x)
    A(f's_add_u32 s66, s66, 1\n s_cmp_lt_u32 s66, {PRING}\n s_cbranch_scc1 {l}\n s_mov_b32 s66, 0')
    need_res(0); resid(0)
    A('s_waitcnt vmcnt(0)')
    prep(); need_res(1)
    A(f'{name}_spin:')
    spin(A, vP, vPA, 's65', code)
    A(f'{name}_ld:')
    stamp(A, 'v220', sI)
    pre, lds_ = ldlist('s65'); A(pre)
    LEAD = 8
    for x in lds_[:LEAD]: A(x)
    if fout is not None:
        l = A.lab('Lnf')
        A(f's_cmp_eq_u32 s66, 0\n s_cbranch_scc1 {l}\n s_waitcnt vmcnt({LEAD})'); flag(); A(f'{l}:')
    for i in range(18):
        if i + LEAD < 18: A(lds_[i + LEAD]); y = LEAD
        else: y = 17 - i
        A(f's_waitcnt vmcnt({y})')
        d = v(ACC + 4 * (i >> 2), 4)
        A(f'{M16} {d}, {v(SB if (i >> 1) & 1 else SA,4)}, {v(PL+4*i,4)}, {d}')
        if i in (7, 11, 15): stat((i >> 2) - 1)
    resid(1)
    A(f's_mul_i32 s67, {sI}, 36864\n s_add_u32 s67, s67, s72\n v_mov_b32 v8, s65')
    if ln:
        stat(3); stat(4)
        A(f'v_add_f32 {v(T)}, {v(T)}, {v(T+1)}\n v_add_f32 {v(T+2)}, {v(T+2)}, {v(T+3)}')
        rowsum([(v(T), v(T+1)), (v(T+2), v(T+3))])
        A(f'''v_mul_f32 {v(T+4)}, {f2u(1.0/144):#x}, {v(T)}
        v_fma_f32 {v(T+1)}, -{v(T+4)}, {v(T)}, {v(T+2)}
        v_add_f32 {v(T)}, {v(T+4)}, {v(SH)}
        ds_write_b64 {vSW}, {v(T,2)}
        s_add_u32 s68, s67, {xn_base}
        s_waitcnt lgkmcnt(0)
        s_barrier
        ds_read_b128 {v(T+4,4)}, {vSR}
        ds_read_b128 {v(T+8,4)}, {vSR} offset:16''')
        local_store('v8', vCA, '0')
        A(f'''s_waitcnt lgkmcnt(0)
        v_pk_add_f32 {v(T+2,2)}, {v(T+4,2)}, {v(T+6,2)}
        v_pk_add_f32 {v(T,2)}, {v(T+8,2)}, {v(T+10,2)}
        v_mov_b32 {v(T+7)}, {f2u(1e-5):#x}
        v_pk_add_f32 {v(T+2,2)}, {v(T+2,2)}, {v(T,2)}
        v_fmac_f32 {v(T+7)}, {f2u(1.0/576):#x}, {v(T+3)}
        v_mul_f32 {v(T+2)}, 0.25, {v(T+2)}
        v_sub_f32 {v(T+4)}, {v(T+4)}, {v(T+2)}
        v_sub_f32 {v(T+5)}, {v(T+6)}, {v(T+2)}
        v_sub_f32 {v(T+8)}, {v(T+8)}, {v(T+2)}
        v_sub_f32 {v(T+9)}, {v(T+10)}, {v(T+2)}
        v_pk_mul_f32 {v(T+4,2)}, {v(T+4,2)}, {v(T+4,2)}
        v_pk_fma_f32 {v(T+4,2)}, {v(T+8,2)}, {v(T+8,2)}, {v(T+4,2)}
        v_add_f32 {v(T+4)}, {v(T+4)}, {v(T+5)}
        v_fmac_f32 {v(T+7)}, 0x3e800000, {v(T+4)}
        v_rsq_f32 {v(T+4)}, {v(T+7)}
        v_sub_f32 {v(T+2)}, {v(SH)}, {v(T+2)}
        v_mul_f32 {v(T+6)}, {v(T+2)}, {v(T+4)}''')
        for j in range(5):
            for h in (0, 2): A(f'v_pk_fma_f32 {v(NX+4*j+h,2)}, {v(ACC+4*j+h,2)}, {v(T+4,2)}, {v(T+6,2)} op_sel_hi:[1,0,0]')
            for h in (0, 1): A(f'v_cvt_pk_bf16_f32 {v(NX+4*j+h)}, {v(NX+4*j+2*h)}, {v(NX+4*j+2*h+1)}')
            A(f'ds_write_b64 {v(vNW+j)}, {v(NX+4*j,2)} offset:{IMN}')
        for d in range(10):
            A(f'v_pk_add_f32 {v(ACC+2*d,2)}, {v(ACC+2*d,2)}, {v(SH if d < 8 else SH+2,2)} op_sel_hi:[1,0]')
        A('s_waitcnt lgkmcnt(0)\n s_barrier')
        for q in range(3): A(f'ds_read_b128 {v(CO+4*q,4)}, {vCP} offset:{IMN+1024*q}')
        A(poll)
        for d in range(10): A(f'v_cvt_pk_bf16_f32 {v(PK+d)}, {v(ACC+2*d)}, {v(ACC+2*d+1)}')
        st3(WS, vCP, 's68')
        respub()
        A(f'''s_mul_i32 s67, {sI}, 40960
        s_add_u32 s67, s67, s76
        s_add_u32 s67, s67, {xo_base}
        buffer_store_dwordx4 {v(PK,4)}, {vL}, {WS}, s67 offen sc1
        buffer_store_dwordx4 {v(PK+4,4)}, {vL}, {WS}, s67 offen offset:1024 sc1
        buffer_store_dwordx2 {v(PK+8,2)}, v5, {WS}, s67 offen offset:2048 sc1''')
        n1, n2 = 3, 4
    else:
        A('s_barrier')
        for j in range(5):
            for h in (0, 1): A(f'v_cvt_pk_bf16_f32 {v(PK+2*j+h)}, {v(ACC+4*j+2*h)}, {v(ACC+4*j+2*h+1)}')
            A(f'ds_write_b64 {v(vNW+j)}, {v(PK+2*j,2)} offset:{IMN}')
        local_store('v8', vCA, '0')
        A('s_waitcnt lgkmcnt(0)\n s_barrier')
        for q in range(3): A(f'ds_read_b128 {v(CO+4*q,4)}, {vCP} offset:{IMN+1024*q}')
        A(poll)
        st3(SOUT, vG, 's67')
        n1, n2 = 3, 0
    stamp(A, 'v221', sI)
    A(f'''s_add_u32 {sI}, {sI}, 1
    s_add_u32 s65, {sI}, 1
    s_cmp_ge_u32 {sI}, {NSEG}
    s_cbranch_scc1 {name}_done
    s_waitcnt vmcnt({n1 + n2})''')
    prep(); need_res(1)
    A(f'''s_mov_b32 s66, 1
    v_cmp_gt_u32 vcc, s65, {vP}
    s_cbranch_vccz {name}_ld
    s_mov_b32 s66, 0
    s_waitcnt vmcnt({n2})''')
    flag()
    A(f's_branch {name}_spin')
    A(f'{name}_done:\n s_waitcnt vmcnt({n2})')
    flag()
    if fpub is not None:
        A('s_waitcnt vmcnt(0)\n s_barrier'); respub()
    A('s_waitcnt vmcnt(0)')
    dump(A, ['v220', 'v221'])
    A('s_endpgm')

def role_red(A):
    A('L_red:')
    if not enabled('red'):
        ln0_hook(A, 0); A('s_endpgm'); return
    ln0_hook(A, 0)
    validate(A)
    A(f'''
    s_sub_u32 s63, {sT}, 24
    s_lshr_b32 s71, s63, 2
    s_and_b32 s70, s63, 3
    s_mul_i32 s72, s70, 9216
    s_lshr_b32 s63, s70, 1
    s_lshl_b32 s73, s63, 10
    s_lshl_b32 s74, s63, 9
    s_add_u32 s74, s74, 2048
    ''')
    lane(A, 'v8')
    A(f'''
    v_and_b32 v9, 7, v8
    v_bfe_u32 v10, v8, 3, 1
    v_lshrrev_b32 v11, 4, v8
    v_mul_u32_u24 v1, 36864, v11
    v_lshl_add_u32 v1, v10, 8, v1
    v_lshl_add_u32 v1, v9, 4, v1
    s_mul_i32 s63, {sW}, 9216
    s_and_b32 s64, s70, 1
    s_lshl_b32 s64, s64, 7
    s_add_u32 s63, s63, s64
    v_add_u32 v1, s63, v1
    v_lshrrev_b32 v22, 5, v8
    v_lshl_add_u32 v23, v22, 1, v10
    s_mul_i32 s63, {sW}, 18
    v_add_u32 v23, s63, v23
    v_mul_u32_u24 v32, 1152, v9
    v_and_b32 v33, 1, v11
    v_lshl_add_u32 v32, v33, 3, v32
    v_cmp_eq_u32 vcc, 0, v22
    v_mov_b32 v34, {OOB}
    v_mov_b32 v35, 12288
    v_mov_b64 v[40:41], 0
    ds_write_b64 v35, v[40:41] offset:49152
    v_add_u32 v38, 0x10000, v35
    ds_write_b64 v38, v[40:41] offset:49152
    v_cndmask_b32 v21, 0, 1.0, vcc
    s_and_b32 s63, s70, 1
    s_lshl_b32 s63, s63, 2
    v_lshrrev_b32 v36, 1, v9
    v_add_u32 v36, s63, v36
    ''')
    for j in range(5):
        A(f'''v_add_u32 v37, {4*j}, v23
        v_xor_b32 v37, v37, v36
        v_lshl_add_u32 v{12+j}, v37, 4, v32''')
    A(f'''
    v_cndmask_b32 v16, v35, v16, vcc
    s_mul_i32 s63, {sW}, 2304
    s_add_u32 s75, s63, 49152
    v_lshl_add_u32 v17, v8, 4, s63
    v_cmp_gt_u32 vcc, 16, v8
    v_lshlrev_b32 v20, 5, v9
    v_add_u32 v20, 32768, v20
    v_cndmask_b32 v18, v34, v17, vcc
    s_and_b32 s63, s70, 1
    s_lshl_b32 s63, s63, 2
    s_add_u32 s63, s63, {sW}
    s_lshl_b32 s63, s63, 4
    v_xor_b32 v3, s63, v17
    v_lshlrev_b32 v4, 4, v8
    v_lshlrev_b32 v5, 3, v8
    s_lshl_b32 s76, s70, 2
    s_add_u32 s76, s76, {sW}
    s_mul_i32 s76, s76, 2560
    s_lshl_b32 s63, {sW}, 3
    v_add_u32 v19, s63, v20
    v_and_b32 v33, 1, v8
    v_cmp_eq_u32 vcc, 0, v33
    v_mov_b32 v34, 0x3f80
    v_mov_b32 v35, 0x3f800000
    v_cndmask_b32 v34, v35, v34, vcc
    v_bfe_u32 v33, v8, 1, 3
    ''')
    for d in range(8):
        A(f'v_cmp_eq_u32 vcc, {d}, v33\n s_nop 1\n v_cndmask_b32 v{24+d}, 0, v34, vcc')
    A(f'''
    v_mov_b32 v11, 36864
    v_mov_b32 v23, 1
    ds_write_b32 v11, v40
    s_waitcnt lgkmcnt(0)
    s_barrier
    s_lshl_b32 s80, {sL}, 1
    s_add_u32 s80, s80, s71
    ''')
    A('''s_cmp_eq_u32 s80, 1
    s_cbranch_scc1 L_red_1
    s_cmp_eq_u32 s80, 2
    s_cbranch_scc1 L_red_2
    s_cmp_eq_u32 s80, 3
    s_cbranch_scc1 L_red_3
    ''')
    red_stream(A, 'L_r10', PW, True, 0, False, X1, XNF, F_WO, F_XNF, 10, None, F_CON, F_RES)
    A('L_red_1:')
    red_stream(A, 'L_r11', PW + PRING * 294912, False, X2, False, X1 + XL, XNF + XB, F_WO + 512, F_XNF + 128, 11, F_RES + 256, F_CON + 128, F_RES + 128)
    A('L_red_2:')
    red_stream(A, 'L_r20', PD, False, X1, False, X2, XNA + XB, F_DN, F_XNA + 128, 12, F_RES, F_CON + 256, F_RES + 256)
    A('L_red_3:')
    red_stream(A, 'L_r21', PD + PRING * 294912, False, X1 + XL, True, 0, None, F_DN + 512, None, 14, F_RES + 128, F_CON + 384, None)
```

```python
import re, sys
TRANS = ('v_exp_f32', 'v_log_f32', 'v_rcp_f32', 'v_rsq_f32', 'v_sqrt_f32')
def regs(tok):
    tok = tok.strip().lstrip('-')
    m = re.fullmatch(r'([vas])(\d+)', tok)
    if m: k, lo, hi = m.group(1), int(m.group(2)), int(m.group(2))
    else:
        m = re.fullmatch(r'([vas])\[(\d+):(\d+)\]', tok)
        if m: k, lo, hi = m.group(1), int(m.group(2)), int(m.group(3))
        elif tok in ('vcc', 'vcc_lo', 'vcc_hi'): return {'vcc'}
        elif tok in ('m0', 'exec'): return {tok}
        else: return set()
    return {f'{k}{i}' for i in range(lo, hi + 1)}
class I:
    def __init__(s, text, ln):
        s.text = text; s.ln = ln
        p = text.split(None, 1); s.op = p[0]
        rest = p[1] if len(p) > 1 else ''
        ops = [o.strip() for o in rest.split(',')] if rest else []
        if ops:
            last = ops[-1].split(); ops[-1] = last[0] if last else ''; s.mods = last[1:]
        else: s.mods = []
        s.ops = ops; R = [regs(o) for o in ops]
        op = s.op; s.w = set(); s.r = set(); s.c = set(); s.ab = set(); s.kind = 'o'; s.n = 1; s.data = set()
        U = lambda xs: set().union(*xs) if xs else set()
        if op == 's_nop': s.n = int(ops[0]) + 1
        elif op.startswith('v_mfma') or op.startswith('v_smfmac'):
            s.kind = 'm'; s.w = R[0]; s.p = 8 if '32x32' in op else 4
            if 'smfmac' in op: s.c = R[0]; s.ab = R[1] | R[2] | R[3]
            else: s.c = R[3]; s.ab = R[1] | R[2]
            s.r = s.c | s.ab
        elif op.startswith('v_'):
            s.kind = 'v'; s.w = R[0]; s.r = U(R[1:])
            if 'permlane' in op: s.w = R[0] | R[1]; s.r = R[0] | R[1]
            if op.startswith(('v_fmac', 'v_dot2c', 'v_writelane')): s.r |= R[0]
            if op.startswith('v_cndmask') and len(ops) == 3: s.r |= {'vcc'}
        elif op.startswith('ds_read'): s.kind = 'd'; s.w = R[0]; s.r = U(R[1:])
        elif op.startswith('ds_write'): s.kind = 'd'; s.r = U(R)
        elif op.startswith('buffer_load'):
            s.kind = 'b'
            if 'lds' in s.mods: s.r = U(R) | {'m0'}
            else: s.w = R[0]; s.r = U(R[1:])
        elif op.startswith('buffer_store') or op.startswith('buffer_atomic'):
            s.kind = 'b'; s.r = U(R)
            if 'x4' in op or 'x3' in op: s.data = R[0]
            if op.startswith('buffer_atomic') and 'sc0' in s.mods: s.w = R[0]
        elif op.startswith('s_'):
            s.kind = 's'
            if not op.startswith(('s_cmp', 's_cbranch', 's_branch', 's_waitcnt', 's_barrier', 's_endpgm', 's_setprio', 's_sleep', 's_bitcmp')) and R:
                s.w = R[0]; s.r = U(R[1:])
def isvec(x): return x[0] in 'va' and x != 'vcc'
def need(a, b):
    n = 0; why = ''
    def up(k, w):
        nonlocal n, why
        if k > n: n = k; why = w
    if a.kind == 'v':
        vw = {x for x in a.w if isvec(x)}; sw = a.w - vw
        dot = a.op.startswith('v_dot')
        if b.kind == 'm' and vw & b.r: up(3 if dot else 2, 'valu->mfma')
        if b.kind == 'v':
            if ('_dpp' in b.op) and vw & b.r: up(2, 'valu->dpp')
            if 'permlane' in b.op and vw & b.r: up(2, 'valu->permlane')
            if b.op.startswith(('v_readlane', 'v_readfirstlane')) and vw & b.r: up(1, 'valu->readlane')
            if a.op in TRANS and b.op not in TRANS and vw & b.r: up(1, 'trans')
            if sw & b.r: up(4 if b.op.startswith(('v_readlane', 'v_writelane')) else 2, 'valu sgpr->valu')
            if dot and b.op != a.op and vw & (b.r | b.w): up(3, 'dot')
            if dot and b.op == a.op and vw & (b.r - b.w): up(3, 'dot ab')
        if dot and b.kind in 'bd' and vw & b.r: up(3, 'dot->mem')
        if b.kind == 'b' and sw & b.r: up(5, 'valu sgpr->vmem')
    if a.kind == 'm':
        big = 12 if a.p == 8 else 8
        if b.kind == 'm':
            if a.w & b.ab: up(big, 'mfma->ab')
            if a.w & b.c and not (a.w == b.c and a.p == b.p and a.op == b.op): up(10 if a.p == 8 else 6, 'mfma->c overlap')
        elif b.kind in 'vbd' and a.w & (b.r | b.w): up(big, 'mfma->use')
        if b.kind == 'v' and a.c & b.w: up(7 if a.p == 8 else 3, 'mfma c war')
    if a.data and a.data & b.w: up(2 if b.kind == 'v' else 1, 'store data war')
    if a.kind == 's' and 'm0' in a.w and b.kind == 'b' and 'm0' in b.r: up(1, 'm0')
    return n, why
def check(text):
    ins = []; labels = {}
    for ln, l in enumerate(text.split('\n'), 1):
        l = l.split(';')[0].strip()
        if not l or l.startswith('.'): continue
        if l.endswith(':'): labels[l[:-1]] = len(ins); continue
        ins.append(I(l, ln))
    bad = set()
    def walk(i0):
        a = ins[i0]
        if a.kind not in 'vmbs': return
        st = [(i0, 0)]; seen = set()
        while st:
            i, d = st.pop()
            x = ins[i]
            nxt = []
            if x.op == 's_endpgm': continue
            if x.op == 's_branch' or x.op.startswith('s_cbranch'):
                t = labels.get(x.ops[0])
                if t is not None: nxt.append(t)
            if x.op != 's_branch': nxt.append(i + 1)
            for j in nxt:
                if j >= len(ins) or (j, d) in seen: continue
                seen.add((j, d))
                n, why = need(a, ins[j])
                if n > d: bad.add((a.ln, ins[j].ln, n, d, why, a.text, ins[j].text))
                d2 = d + ins[j].n
                if d2 < 12: st.append((j, d2))
    for i in range(len(ins)): walk(i)
    return sorted(bad)
if __name__ == '__main__':
    b = check(open(sys.argv[1]).read())
    for x in b[:40]: print(x)
    print(len(b), 'hazards')
```

```python
NSEG = 64
XB = 0x240000
ZERO0 = 0; ZERO_BYTES = 0x200000
RING0 = 0x30000; RSLOT = 294912
ONES0 = 0x200000; ONES_BYTES = 0x40000
MEM0 = ONES0
XNA = 0x300000
XNF = XNA + 2 * XB
XL = 64 * 16 * 2560
X1 = XNF + 2 * XB
X2 = X1 + 2 * XL
QKV = 0x1400000
KVM = 0x7400000
OB = 0x8400000
HB = 0xA400000
PW = 0xC800000
PD = 0xDA00000
DBG = 0xF000000
WS_BYTES = 0x10000000
F_XNA = 0x0000
F_XNF = 0x0100
F_WO = 0x0400
F_DN = 0x0800
F_UP = 0x1000
F_QKV = 0x3000
F_CH = 0x5000
F_ATT = 0x7000
LDS_BYTES = 163840
PR0 = 4; PR1 = 4
F_CON = 0x0200
F_RES = 0x0c00
ST = X1
```

```python
from base import *
import base

class Sched:
    def __init__(s, mains):
        s.mains = mains; s.gaps = [[] for _ in mains]; s.stmin = 0; s.lastst = 0; s.avoid = False
    def put(s, g, text):
        for l in text.split('\n'):
            if l.strip(): s.gaps[g].append(l.strip())
    def seq(s, g, items, step=1, cap=1, share=False):
        last = -99
        for it in items:
            while len([x for x in s.gaps[g] if (x.startswith('v_') if share else not x.startswith('@mark'))]) >= cap: g += 1
            if it.startswith('buffer_store'):
                gs = max(g, last + 8, s.stmin)
                busy = lambda q: any(x.startswith('buffer_') for y in s.gaps[max(q - 2, 0):q + 3] for x in y)
                while s.avoid and busy(gs): gs += 1
                s.put(gs, it); last = gs; s.lastst = gs
                continue
            s.put(g, it); g += step
        return g
    def emit(s, A, pre=()):
        vm = 0; marks = {'entry': 0}; ds = list(pre)
        for m, gp in zip(s.mains, s.gaps):
            for l in m.split('\n') + gp:
                l = l.strip()
                if not l: continue
                if l.startswith('@mark'): marks[l.split()[1]] = vm; continue
                if l in cfg.x_drop: continue
                if l.startswith('@wait'):
                    w = f's_waitcnt vmcnt({vm - marks[l.split()[1]]})'
                    if cfg.timing == 4:
                        k = 12 + ['poll', 'st', 'entry', 'p1'].index(l.split()[1])
                        w = f's_memtime s[28:29]\n {w}\n s_memtime s[30:31]\n s_waitcnt lgkmcnt(0)\n s_sub_u32 s30, s30, s28\n s_add_u32 s{k}, s{k}, s30'
                    A(w); continue
                if l == 's_barrier' and cfg.timing == 4:
                    A('s_memtime s[28:29]\n s_barrier\n s_memtime s[30:31]\n s_waitcnt lgkmcnt(0)\n s_sub_u32 s30, s30, s28\n s_add_u32 s16, s16, s30'); continue
                if l.startswith('@lw'):
                    t = l.split()[1]
                    if t in ds:
                        k = len(ds) - 1 - ds.index(t); A(f's_waitcnt lgkmcnt({k})'); ds = ds[len(ds) - k:]
                    continue
                tag = None
                if '#' in l: l, tag = [x.strip() for x in l.split('#')]
                if any(k in l for k in cfg.x_drop): continue
                if l.startswith('buffer_'): vm += 1
                if l.startswith('ds_'): ds.append(tag)
                A(l)
        return ds
def lines(t): return [l.strip() for l in t.split('\n') if l.strip()]

def flag_addr(A, dst, sval):
    lane(A, 'v1')
    A(f'''v_cmp_eq_u32 vcc, 0, v1
    v_mov_b32 v2, {sval}
    v_mov_b32 {dst}, {OOB}
    v_cndmask_b32 {dst}, {dst}, v2, vcc''')

M16 = 'v_mfma_f32_16x16x32_bf16'
XPK = 60; XT = 66; XLA = 70; XDV = 72; XSV = 73; XPA = 74; XP = 75; XFV = 76; XFA = 77
XBUF = 36864; XB0 = 8192
def gs_stream(A, name, NCT, NK, wreg, swap, rows, XFR, RING, epi, in_base, in_lstride, in_sstride, out_lstride, out_sstride,
              flag_lstride, stride, code, sig0, sig1, dma0, dstep, poll0, poll1, share, local, ringmask=255, prio=0, lowlate=False):
    RA = RING - 1
    ND = (2 * NK) // 4
    NH = (NK + 3) // 4
    AW = 4 * NCT
    lane(A, 'v1')
    if rows:
        A(f'''v_and_b32 v2, 15, v1
        v_lshrrev_b32 v3, 4, v1
        v_lshrrev_b32 v4, 1, v2
        v_mul_u32_u24 v5, 1152, v2
        v_add_u32 v5, {XB0 + 2 * XBUF}, v5
        v_xor_b32 v6, v3, v4
        v_lshl_add_u32 {v(XLA)}, v6, 4, v5
        v_xor_b32 v6, 4, v6
        v_lshl_add_u32 {v(XLA+1)}, v6, 4, v5''')
    else:
        A(f'v_lshlrev_b32 {v(XLA)}, 4, v1\n v_add_u32 {v(XLA)}, {XB0 + 2 * XBUF}, {v(XLA)}')
    lw0 = A.lab('Lw0')
    A(f'''s_lshl_b32 s70, {sW}, 10
    v_lshl_add_u32 {v(XDV)}, v1, 4, s70
    s_add_u32 s70, s70, {XB0}
    s_mov_b32 s85, {-2 * XBUF}
    s_mov_b32 s4, {XBUF}
    s_mov_b32 s5, {XBUF}
    s_mov_b32 {sI}, 0
    s_mov_b32 s77, 0
    s_mov_b32 s78, 0
    s_mov_b32 s79, 0
    s_mov_b32 s92, {OOB}
    s_mov_b32 s93, 0
    s_cmp_eq_u32 {sW}, 0
    s_cbranch_scc1 {lw0}
    v_mov_b32 {v(XPA)}, {OOB}
    v_mov_b32 {v(XFA)}, {OOB}
    {lw0}:''')
    def rd(f):
        f %= 2 * NK; th, ks = divmod(f, NK)
        if rows: return f'ds_read_b128 {v(XFR+4*(f%RING),4)}, {v(XLA+(ks&1))} offset:{th*18432 + 128*(ks>>1)}'
        return f'ds_read_b128 {v(XFR+4*(f%RING),4)}, {v(XLA)} offset:{f*1024}'
    def pre(f): return [f'f{(f + i) % (2 * NK)}' for i in range(RA)]
    def mains(th, k0, k1, reads=True):
        m = []
        for ks in range(k0, k1):
            f = th * NK + ks
            for ct in range(NCT):
                d = v(AW * th + 4 * ct, 4); w = r(wreg(ks, ct), 4); x = v(XFR + 4 * (f % RING), 4)
                a_, b_ = (x, w) if swap[ct] else (w, x)
                t = f'{M16} {d}, {a_}, {b_}, {"0" if ks == 0 else d}'
                if ct == 0: t = f'@lw f{f}\n' + t
                m.append(t)
        S = Sched(m)
        if reads:
            for ks in range(k0, k1): S.put((ks - k0) * NCT, rd(th * NK + ks + RA) + f' #f{(th * NK + ks + RA) % (2 * NK)}')
        return S
    def dma(q): return [f's_add_u32 m0, s70, {4096*q}\n s_add_u32 s76, {"s90" if cfg.x_same else "s73"}, {4096*q}', f'buffer_load_dwordx4 {v(XDV)}, {WS}, s76 offen sc1{" nt" if (local and cfg.nt) else ""} lds']
    poll = f'buffer_load_dword {v(XP)}, {v(XPA)}, {WS}, 0 offen sc1'
    def flagst(so): return f'buffer_store_dword {v(XFV)}, {v(XFA)}, {WS}, {so} offen{loc[0]}'
    loc = ['' if local else ' sc1']
    def sig(S, g, mark):
        S.put(g, f'v_mov_b32 {v(XFV)}, s95')
        S.put(g + 1, f'@wait {mark}\n s_barrier\n' + flagst('s94'))
    XQ = 64 if local else XP
    decide = lines(f'''v_cmp_gt_u32 vcc, s74, {v(XQ)}
        v_cmp_gt_u32 s[66:67], s75, {v(XQ)}
        s_cmp_eq_u32 {'s67' if prio == 0 else 'vcc_lo'}, 0
        s_cselect_b32 s72, {2 - prio}, 0
        s_cmp_eq_u32 {'vcc_lo' if prio == 0 else 's67'}, 0
        s_cselect_b32 s72, {1 + prio}, s72
        v_mov_b32 {v(XFV)}, s72''')
    if local: decide[0] = f'v_add_u32 v64, v65, {v(XP)}\n' + decide[0]
    soff = lambda site: 4 * site if site < 4 else 4096
    def dwr(site): return f'ds_write_b32 {v(XDV)}, {v(XFV)} offset:{soff(site)}'
    def drd(site): return f'ds_read_b32 {v(XFV)}, {v(XSV)} offset:{soff(site)}'
    dget = [f'v_readfirstlane_b32 s72, {v(XFV)}', 's_cmp_lg_u32 s72, 0']
    pick = lines(f'''s_sub_u32 s68, s72, 1
        s_cmp_eq_u32 s68, 0
        s_cselect_b32 s69, s74, s75
        s_cselect_b32 s63, {stride}, 0
        s_cselect_b32 s64, 0, {stride}
        s_add_u32 s74, s74, s63
        s_add_u32 s75, s75, s64
        s_mul_i32 s73, s69, {in_sstride}
        s_mul_i32 s63, s68, {in_lstride}
        s_add_u32 s73, s73, s63
        s_add_u32 s73, s73, s90''')
    tog = [f'v_add_u32 {v(XLA+q)}, s5, {v(XLA+q)}' for q in range(2 if rows else 1)]
    advance = lines(f'''s_mov_b32 s63, s85
        s_mov_b32 s85, s4
        s_mov_b32 s4, s5
        s_mov_b32 s5, s63
        s_add_u32 s70, s70, s85
        s_mov_b32 s81, s77
        s_mov_b32 s82, s78
        s_mov_b32 s83, s79
        s_mov_b32 s94, s92
        s_mov_b32 s95, s93
        s_and_b32 s63, s69, {ringmask}
        s_mul_i32 s63, s63, {out_sstride}
        s_mul_i32 s64, s68, {out_lstride}
        s_add_u32 s63, s63, s64
        s_add_u32 s77, s63, s87
        s_add_u32 s78, s63, s88
        s_add_u32 s79, s63, s89
        s_mul_i32 s92, s68, {flag_lstride}
        s_add_u32 s93, s69, {stride - 1}
        s_add_u32 {sI}, {sI}, 1''')
    A(f's_add_u32 s90, s90, {in_base - in_sstride}')
    if ringmask == 255:
        for q in range(3): A(f's_sub_u32 s{87+q}, s{87+q}, {out_sstride}')
    GX = (NK - RA) * NCT; GN = NK * NCT
    def put_dma(S, g0, pollmark):
        g = S.seq(1, pick, step=0, cap=3 if g0 < 8 else 2)
        g0 = max(g0, g + 2)
        for q in range(ND):
            d = dma(q); gg = g0 + dstep * q
            S.put(gg - 1, d[0]); S.put(gg, d[1])
            if pollmark and q == NH - 1: S.put(gg + 2, poll + '\n @mark poll')
        return g0 + dstep * (ND - 1)
    hi_only = decide[:2] + ['s_mov_b32 s72, 0'] + decide[4:] if lowlate else decide
    def put_decide(S, site, o=0, far=False):
        S.put(o + GX - 13, '@wait poll\n' + decide[0]); S.put(o + GX - 12, decide[1]); S.put(o + GX - 9, '\n'.join((hi_only if far else decide)[2:-1]))
        S.put(o + GX - 8, decide[6]); S.put(o + GX - 7, dwr(site) + ' #dw')
    def tstamp():
        if cfg.timing and cfg.timing < 3:
            l1 = A.lab('Lt'); l2 = A.lab('Lt')
            A(f's_sub_u32 s63, s93, {stride}\n s_cmp_eq_u32 s92, 0\n s_cbranch_scc0 {l1}')
            stamp(A, 'v78', 's63'); A(f's_branch {l2}\n {l1}:'); stamp(A, 'v79', 's63'); A(f'{l2}:')
    def fill1(S, o, lastdma=None):
        if sig1 is not None:
            S.put(o, '@mark p1'); sig(S, o + sig1, 'p1')
        put_decide(S, 1, o, lastdma is not None)
        if o: S.stmin = lastdma + 4
        S.seq(o + 4, epi(0, 77, loc=loc[0]), share=share)
        if lastdma is not None:
            g = max(lastdma, S.lastst, o + (sig1 or 0) + 1) + 1
            lim = o + GX - 10
            if g + 12 <= lim: g2 = S.seq(g, advance, step=0, cap=2 if g + 22 > lim else 2); assert g2 <= lim, (g2, lim)
            else: S.seq(o + GX - 6, advance, step=0, cap=5)
        S.put(o + GX - 1, '@lw dw')
    def phase0(E, D):
        S = mains(0, 0, NK)
        if D:
            S1 = mains(1, 0, NK - RA); S.mains += S1.mains; S.gaps += S1.gaps
            ld_ = put_dma(S, dma0 if E else 3, local)
            if not local: S.put(GN + poll1, poll + '\n @mark poll')
        else:
            S.put(poll0, poll + '\n @mark poll'); put_decide(S, 0)
        here = (not E) or sig0
        if here: S.put(GX - 2, f'v_mov_b32 {v(XFV)}, s95')
        if E:
            g = S.seq(4, epi(1, 81, loc=loc[0]), share=share)
            assert g <= GN
        S.put(GX - 1, f'@wait {"st" if (E and sig0) else "entry"}\n @lw dw\n s_barrier')
        if here: S.put(GX - 1, flagst('s94'))
        if not D:
            S.put(GX - 1, drd(0) + ' #dr')
            S.put(GN - 4, '@lw dr\n' + dget[0]); S.put(GN - 1, dget[1])
        else: fill1(S, GN, ld_)
        tstamp()
        S.emit(A, pre(0))
        if D: A(f's_branch {name}_fe')
        else: A(f's_cbranch_scc1 {name}_p1d\n s_branch {name}_p1n')
    def phase1(D):
        S = mains(1, 0, NK - RA)
        ld_ = None
        if D: ld_ = put_dma(S, 3, True)
        else: S.put(poll1, poll + '\n @mark poll')
        fill1(S, 0, ld_)
        S.emit(A, pre(NK))
    def burst():
        for x in pick: A(x)
        if cfg.timing and local:
            l1 = A.lab('Lt')
            A(f's_sub_u32 s63, s69, 1\n s_cmp_eq_u32 s68, 0\n s_cbranch_scc0 {l1}'); stamp(A, 'v67', 's63'); A(f'{l1}:')
        for q in range(ND):
            for x in dma(q): A(x)
    def start(nyoung, early=False):
        if early:
            A(f'v_mov_b32 {v(XFV)}, s93\n s_waitcnt vmcnt({ND})\n s_barrier\n {flagst("s92")}'); nyoung += 1
        for x in advance + tog + hi_only + [dwr(3)]: A(x)
        A(f's_waitcnt vmcnt({nyoung}) lgkmcnt(0)\n s_barrier\n {drd(3)}')
        for f in range(RA): A(rd(f))
        A(f's_waitcnt lgkmcnt({RA})')
        for x in dget: A(x)
    def alone():
        A('s_nop 7'); n = 0
        for x in epi(1, 77, True, loc=loc[0]):
            for l in lines(x):
                if not l.startswith('@'): A(l)
                if l.startswith('buffer_'): n += 1
        return n
    def idle():
        l = A.lab('Lsp'); d = A.lab('Lspd')
        A(f'''s_cmp_lg_u32 {sW}, 0
        s_cbranch_scc1 {d}
        s_mov_b32 {sSPIN}, 0
        {l}:
        {poll}
        s_waitcnt vmcnt(0)''')
        for x in decide: A(x)
        A(f'''{dwr(4)}
        s_cmp_lg_u32 s72, 0
        s_cbranch_scc1 {d}
        s_add_u32 {sSPIN}, {sSPIN}, 1
        s_cmp_lt_u32 {sSPIN}, {cfg.spin_limit}
        s_cbranch_scc1 {l}
        {d}:
        s_waitcnt lgkmcnt(0)
        s_barrier
        {drd(4)}
        s_waitcnt lgkmcnt(0)
        {dget[0]}
        s_mov_b32 s63, {code}
        s_cmp_eq_u32 s72, 0
        s_cbranch_scc1 L_abort''')
    def flush():
        A(f'v_mov_b32 {v(XFV)}, s93\n s_waitcnt vmcnt(0)\n s_barrier\n {flagst("s92")}')
        if cfg.timing and local:
            l1 = A.lab('Lt')
            A(f's_sub_u32 s63, s93, 1\n s_cmp_eq_u32 s92, 0\n s_cbranch_scc0 {l1}'); stamp(A, 'v66', 's63'); A(f'{l1}:')
        A(f's_cmp_eq_u32 {sI}, s91\n s_cbranch_scc1 {name}_done')
    if cfg.timing and local: A('v_mov_b32 v66, 0\n v_mov_b32 v67, 0')
    if cfg.timing == 4:
        for k in range(12, 28):
            if k not in (20, 21, 22, 23): A(f's_mov_b32 s{k}, 0')
    def cnt(k):
        if cfg.timing == 4: A(f's_addk_i32 s{k}, 1')
    if local: A(f's_cmp_lg_u32 {sSLOW}, 0\n s_cbranch_scc1 {name}_sl')
    A(f'{name}_idle:')
    idle(); burst(); start(ND - NH)
    A(f'{name}_slow:\n s_cbranch_scc1 {name}_p0d')
    phase0(False, False)
    A(f'{name}_p0d:'); phase0(False, True)
    A(f'{name}_p0e:'); cnt(18); phase0(True, False)
    A(f'{name}_p1d:'); cnt(19); phase1(True)
    A(f's_branch {name}_fe')
    A(f'{name}_p0ed:'); cnt(17); phase0(True, True)
    del A.lines[-1]
    A(f'{name}_fe:')
    A(f's_barrier\n {drd(1)}')
    S = mains(1, NK - RA, NK)
    S.gaps[0] = tog + S.gaps[0]
    S.put(RA * NCT - 4, '@lw dr\n' + dget[0]); S.put(RA * NCT - 1, dget[1])
    S.emit(A, pre(2 * NK - RA) + ['dr'])
    A(f's_cbranch_scc1 {name}_p0ed\n s_branch {name}_p0e')
    A(f'{name}_p1n:'); cnt(24); phase1(False)
    A(f's_barrier\n {drd(1)}')
    S = mains(1, NK - RA, NK, reads=False)
    S.put(RA * NCT - 4, '@lw dr\n' + dget[0]); S.put(RA * NCT - 1, dget[1])
    S.emit(A, pre(2 * NK - RA) + ['dr'])
    A(f's_cbranch_scc0 {name}_t2')
    if local:
        alone(); burst(); start(ND - NH, True)
    else:
        burst(); n = alone(); start(ND - NH + n)
    A(f's_branch {name}_slow')
    A(f'{name}_t2:'); cnt(25)
    alone(); flush()
    A(f's_branch {name}_idle')
    if local:
        loc[0] = ' sc1'
        A(f'{name}_sl:')
        idle(); burst()
        for x in advance + tog: A(x)
        A('s_waitcnt vmcnt(0)\n s_barrier')
        for f in range(RA): A(rd(f))
        mains(0, 0, NK).emit(A, pre(0))
        S = mains(1, 0, NK - RA); S.seq(4, epi(0, 77, loc=loc[0]), share=share); S.emit(A, pre(NK))
        mains(1, NK - RA, NK, reads=False).emit(A, pre(2 * NK - RA))
        alone(); flush()
        A(f's_branch {name}_sl')
    A(f'{name}_done:\n s_waitcnt vmcnt(0)')
    if cfg.timing == 4:
        for i, k in enumerate((12, 13, 14, 15, 16, 17, 18, 19, 24, 25)): A(f'v_writelane_b32 v66, s{k}, {i}')
    dump(A, ['v78', 'v79', 'v66', 'v67'])
    A('s_endpgm')

def xw(ks, ct): return 80 + (ks * 6 + ct) * 4

def xs_setup(A, fbase, fin, shared):
    if shared:
        A(f'''s_lshl_b32 s63, {sT}, 7
        s_lshl_b32 s64, {sL}, 2
        s_add_u32 s63, s63, s64
        s_add_u32 s74, {sL}, 1
        s_add_u32 s75, {sL}, 1''')
    else:
        A(f'''s_lshl_b32 s63, {sT}, 7
        s_cmp_eq_u32 {sL}, 0
        s_cselect_b32 s74, 1, 1000
        s_cselect_b32 s75, 1000, 1''')
    A(f's_add_u32 s63, s63, {fbase}')
    flag_addr(A, v(XFA), 's63')
    A(f'''v_and_b32 v2, 3, v1
    v_lshrrev_b32 v3, 5, v1
        v_lshlrev_b32 v2, 2, v2
    v_lshl_add_u32 v2, v3, 7, v2
    v_add_u32 {v(XPA)}, {fin}, v2
    {'' if shared else f'v_cmp_eq_u32 vcc, {sL}, v3'}
    v_mov_b32 v2, {OOB}
    s_nop 0
    {'' if shared else f'v_cndmask_b32 {v(XPA)}, v2, {v(XPA)}, vcc'}
    s_mov_b32 s90, 0
    s_mov_b32 s91, {NSEG}''')
    if shared:
        A(f'''v_mov_b32 v2, {sL}
        s_mov_b32 s63, 4096
        buffer_store_dword v2, {v(XFA)}, {WS}, 0 offen sc1
        buffer_store_dword v2, {v(XFA)}, {WS}, s63 offen sc1''')

def warm_sweep(A, grp_s, only_l1=False, then_wait=False):
    if not cfg.delay1: return
    l = A.lab('Ld1')
    if only_l1: A(f's_cmp_eq_u32 {sL}, 0\n s_cbranch_scc1 {l}')
    A(f's_cmp_lg_u32 s7, 0\n s_cbranch_scc1 {l}')
    NW = 128 * 4
    lane(A, 'v1')
    A(grp_s)
    A(f'''s_add_u32 s63, s63, {sT}
    s_lshl_b32 s63, s63, 2
    s_add_u32 s63, s63, {sW}
    s_lshl_b32 s63, s63, 10
    v_lshl_add_u32 v10, v1, 4, s63
    s_lshl_b32 s64, {sW}, 10
    s_mov_b32 m0, s64''')
    def sweep(srds, i0, i1):
        for i in range(i0, i1):
            A(f's_mov_b32 s65, {i*NW*1024}')
            for srd in srds: A(f'buffer_load_dwordx4 v10, {srd}, s65 offen lds')
    sweep([SWK, SWQ], 0, 4)
    ln0_hook(A, 8, False)
    sweep([SWK, SWQ], 4, 7)
    A('s_waitcnt vmcnt(6)'); arrive(A)
    sweep([SWK, SWQ], 7, 9)
    sweep([SWV, SWO], 0, 9)
    A('s_waitcnt vmcnt(0)')
    validate(A)
    if then_wait:
        A(f's_lshl_b32 s63, {sT}, 7\n s_add_u32 s63, s63, {F_CH}\n v_mov_b32 v1, s63\n s_mov_b32 s64, 1')
        spin(A, 'v2', 'v1', 's64', 60)
    A(f'{l}:')

def staged(A, units, nslot, slot_bytes, region_s):
    cnt = []
    def issue(i):
        ls = units[i][0]((i % nslot) * slot_bytes)
        cnt.append(sum(1 for x in ls if x.startswith('buffer_')))
        for x in ls: A(x)
    def ist(k):
        if cfg.timing == 5: A(f's_memrealtime s[96:97]\n s_waitcnt lgkmcnt(0)\n v_writelane_b32 v19, s96, {k}')
    ist(0)
    n0, n1 = cfg.pre0, cfg.pre0 + cfg.pre1
    for i in range(n0): issue(i)
    ln0_hook(A, sum(cnt), False)
    ist(1)
    for i in range(n0, n1): issue(i)
    A(f's_waitcnt vmcnt({sum(cnt[n0:])})')
    arrive(A)
    ist(2)
    for i in range(n1, min(nslot, len(units))): issue(i)
    ist(3)
    for i in range(len(units)):
        younger = sum(cnt[i + 1:])
        A(f's_waitcnt vmcnt({min(younger, 63)})')
        ist(4 + i)
        for x in units[i][1]((i % nslot) * slot_bytes): A(x)
        if i + nslot < len(units):
            A('s_waitcnt lgkmcnt(0)')
            issue(i + nslot)
    A('s_waitcnt lgkmcnt(0)')
    if cfg.timing == 5:
        ist(60); A('s_mov_b32 s99, 0\n s_mov_b32 s101, 0'); dump(A, ['v19']); A('s_endpgm')

def role_qkv(A):
    A('L_qkv:')
    if not enabled('qkv'):
        ln0_hook(A, 0); A('s_endpgm'); return
    lane(A, 'v1')
    A(f'''
    v_lshrrev_b32 v2, 2, v1
    v_and_b32 v4, 3, v1
    v_lshlrev_b32 v3, 4, v4
    v_lshl_add_u32 v10, v2, 13, v3
    v_lshrrev_b32 v5, 4, v1
    v_and_b32 v2, 3, v2
    v_lshl_add_u32 v5, v5, 3, v2
    s_mul_i32 s67, {sW}, 36864
    v_lshl_add_u32 v5, v5, 6, v3
    v_add_u32 v11, s67, v5
    s_lshl_b32 s65, {sT}, 8
    s_lshl_b32 s63, {sW}, 6
    s_add_u32 s65, s65, s63
    ''')
    units = []
    for mi, srd in enumerate((SWK, SWV, SWQ)):
        for c in range(9):
            def dma(o, srd=srd, c=c):
                l = []
                for q in range(4):
                    l += [f's_add_u32 m0, s67, {o+1024*q}', f's_add_u32 s69, s65, {(64*c+16*q)*8192}', f'buffer_load_dwordx4 v10, {srd}, s69 offen lds']
                return l
            def rdf(o, mi=mi, c=c):
                return [f'ds_read_b64_tr_b16 {r(xw(2*c+kk, 2*mi+ch)+2*i,2)}, v11 offset:{o+kk*2048+i*256+ch*8}' for kk in range(2) for ch in range(2) for i in range(2)]
            units.append((dma, rdf))
    staged(A, units, 9, 4096, 's67')
    A('s_barrier')
    validate(A)
    xs_setup(A, F_QKV, F_XNA, cfg.shq)
    A(f'''s_mul_i32 s63, {sT}, 24576
    s_lshl_b32 s64, {sW}, 11
    s_add_u32 s63, s63, s64
    v_lshlrev_b32 {v(XSV)}, 4, v1
    s_add_u32 s87, s63, {QKV}
    s_add_u32 s88, s87, 8192
    s_add_u32 s89, s87, 16384''')
    def epi(th, sb, alone=False, loc=None):
        a_ = 24 * th; f = []
        def piece(b, soff):
            return [f'v_cvt_pk_bf16_f32 {v(b+d)}, {v(b+2*d)}, {v(b+2*d+1)}' for d in range(4)] + \
                   [f'buffer_store_dwordx4 {v(b,4)}, {v(XSV)}, {WS}, {soff} offen offset:{1024*th} sc1']
        f += piece(a_, f's{sb+1}')
        for ch in range(2):
            b = a_ + 8 + 4 * ch
            if th == 0:
                f += [f'v_cvt_pk_bf16_f32 {v(XPK+2*ch+d)}, {v(b+2*d)}, {v(b+2*d+1)}' for d in range(2)]
            else:
                f += [f'v_cvt_pk_bf16_f32 {v(b+3)}, {v(b+2)}, {v(b+3)}', f'v_cvt_pk_bf16_f32 {v(b+2)}, {v(b)}, {v(b+1)}',
                      f'v_mov_b64 {v(b,2)}, {v(XPK+2*ch,2)}',
                      f'buffer_store_dwordx4 {v(b,4)}, {v(XSV)}, {WS}, s{sb+2} offen offset:{1024*ch} sc1']
        f += piece(a_ + 16, f's{sb}')
        f[-1] += '\n @mark st'
        return f
    gs_stream(A, 'L_q', 6, 18, xw, [0, 0, 1, 1, 0, 0], True, 48, 3, epi, XNA, XB, 36864, 64 * 32 * 24576, 32 * 24576,
              4096, 2 if cfg.shq else 1, 20, True, None, 45, 6, 44, 44, False, False, prio=1, lowlate=cfg.shq and 'q' in cfg.lowlate)

def role_up(A):
    A('L_up:')
    if not enabled('up'):
        ln0_hook(A, 0); A('s_endpgm'); return
    warm_sweep(A, f's_mul_i32 s63, {sL}, 24\n s_add_u32 s63, s63, 32')
    lane(A, 'v1')
    for j in range(3):
        A(f'''v_add_u32 v2, {64*j}, v1
        v_mul_u32_u24 v3, 10923, v2
        v_lshrrev_b32 v3, 16, v3
        v_mul_u32_u24 v4, 6, v3
        v_sub_u32 v4, v2, v4
        v_mul_u32_u24 v3, 9216, v3
        v_lshl_add_u32 v{10+j}, v4, 4, v3''')
    A(f'''
    v_lshrrev_b32 v2, 4, v1
    v_bfe_u32 v3, v1, 2, 2
    v_lshl_add_u32 v2, v2, 3, v3
    v_mul_u32_u24 v2, 96, v2
    v_and_b32 v3, 1, v1
    v_lshl_add_u32 v2, v3, 4, v2
    v_bfe_u32 v3, v1, 1, 1
    v_lshl_add_u32 v2, v3, 3, v2
    s_mul_i32 s67, {sW}, 36864
    v_add_u32 v13, s67, v2
    s_mul_i32 s65, {sT}, 384
    s_mul_i32 s63, {sW}, 96
    s_add_u32 s65, s65, s63
    ''')
    units = []
    for ks in range(18):
        def dma(o, ks=ks):
            l = [f's_add_u32 s69, s65, {32*ks*9216}']
            for mat, srd in enumerate((SW1, SW3)):
                for j in range(3):
                    l += [f's_add_u32 m0, s67, {o+3072*mat+1024*j}', 's_nop 0', f'buffer_load_dwordx4 v{10+j}, {srd}, s69 offen lds']
            return l
        def rdf(o, ks=ks):
            return [f'ds_read_b64_tr_b16 {r(xw(ks, 2*t+mat)+2*i,2)}, v13 offset:{o+3072*mat+i*384+t*32}' for t in range(3) for mat in range(2) for i in range(2)]
        units.append((dma, rdf))
    staged(A, units, 6, 6144, 's67')
    A('s_barrier')
    validate(A)
    xs_setup(A, F_UP, F_XNF, cfg.shu)
    A(f'''v_lshrrev_b32 v2, 5, v1
    v_and_b32 v3, 31, v1
    v_lshlrev_b32 v3, 4, v3
    v_mul_u32_u24 v2, 18432, v2
    v_add_u32 {v(XSV)}, v2, v3
    s_mul_i32 s63, {sT}, 12
    s_mul_i32 s64, {sW}, 3
    s_add_u32 s63, s63, s64
    s_mul_i32 s66, {sT}, 86
    s_lshr_b32 s66, s66, 8
    s_mul_i32 s66, s66, 18432
    s_add_u32 s66, s66, {HB}
    s_mov_b32 s86, {f2u(-LOG2E):#x}''')
    for t in range(3):
        A(f'''s_add_u32 s64, s63, {t}
        s_lshl_b32 s64, s64, 9
        s_add_u32 s{87+t}, s64, s66''')
    def epi(th, sb, alone=False, loc=None):
        f = []
        if alone:
            B = [24 + 8 * t for t in range(3)]
            for t in range(3): f += [f'v_mul_f32 {v(4*t+j)}, s86, {v(B[t]+j)}' for j in range(4)]
            f += [f'v_exp_f32 {v(j)}, {v(j)}' for j in range(12)]
            for t in range(3): f += [f'v_pk_mul_f32 {v(B[t]+4+j,2)}, {v(B[t]+j,2)}, {v(B[t]+4+j,2)}' for j in (0, 2)]
            f += [f'v_pk_add_f32 {v(j,2)}, {v(j,2)}, 1.0 op_sel_hi:[1,0]' for j in range(0, 12, 2)]
            f += [f'v_rcp_f32 {v(j)}, {v(j)}' for j in range(12)]
            f += [f'v_mov_b64 {v(B[t],2)}, {v(XPK+2*t,2)}' for t in range(3)]
            for t in range(3): f += [f'v_pk_mul_f32 {v(B[t]+4+j,2)}, {v(4*t+j,2)}, {v(B[t]+4+j,2)}' for j in (0, 2)]
            for t in range(3): f += [f'v_cvt_pk_bf16_f32 {v(B[t]+2+d)}, {v(B[t]+4+2*d)}, {v(B[t]+5+2*d)}' for d in range(2)]
            for t in range(3):
                f += [f'v_permlane32_swap_b32 {v(B[t])}, {v(B[t]+2)}', f'v_permlane32_swap_b32 {v(B[t]+1)}, {v(B[t]+3)}',
                      f'buffer_store_dwordx4 {v(B[t],4)}, {v(XSV)}, {WS}, s{sb+t} offen sc1']
            return f
        T = [v(XT + j) for j in range(4)]
        for t in range(3):
            b = 24 * th + 8 * t
            G = [v(b + j) for j in range(4)]; U = [v(b + 4 + j) for j in range(4)]
            f += [f'v_mul_f32 {T[j]}, s86, {G[j]}' for j in range(4)]
            for j in range(4): f += [f'v_exp_f32 {T[j]}, {T[j]}', f'v_mul_f32 {U[j]}, {G[j]}, {U[j]}']
            f += [f'v_add_f32 {T[j]}, 1.0, {T[j]}' for j in range(4)]
            f += [f'v_rcp_f32 {T[j]}, {T[j]}' for j in range(4)]
            f += [f'v_mul_f32 {U[j]}, {T[j]}, {U[j]}' for j in range(4)]
            if th == 0:
                f += [f'v_cvt_pk_bf16_f32 {v(XPK+2*t+d)}, {U[2*d]}, {U[2*d+1]}' for d in range(2)]
            else:
                f += [f'v_mov_b64 {v(b,2)}, {v(XPK+2*t,2)}\n v_cvt_pk_bf16_f32 {v(b+2)}, {U[0]}, {U[1]}', f'v_cvt_pk_bf16_f32 {v(b+3)}, {U[2]}, {U[3]}\n s_nop 0',
                      f'v_permlane32_swap_b32 {v(b)}, {v(b+2)}', f'v_permlane32_swap_b32 {v(b+1)}, {v(b+3)}',
                      f'buffer_store_dwordx4 {v(b,4)}, {v(XSV)}, {WS}, s{sb+t} offen sc1']
        return f
    gs_stream(A, 'L_u', 6, 18, xw, [0] * 6, True, 48, 3, epi, XNF, XB, 36864, 64 * 294912, 294912,
              4096, 2 if cfg.shu else 1, 21, False, 38, 3, 6, 44, 33, True, False, lowlate=cfg.shu and 'u' in cfg.lowlate)

def role_rg(A, name, key, NK, wsrd, in_base, in_sstride, out_base, fout, code):
    A(f'{name}:')
    if not enabled(key):
        ln0_hook(A, 0); A('s_endpgm'); return
    def w_(k, ct): return 256 + (k * 3 + ct) * 4
    warm_sweep(A, f's_mov_b32 s63, {80 if key == "wo" else 104}')
    A(f'''s_mul_i32 s86, {sT}, 86
    s_lshr_b32 s86, s86, 8
    s_mul_i32 s63, s86, 3
    s_sub_u32 s80, {sT}, s63''')
    lane(A, 'v1')
    for j in range(3):
        A(f'''v_add_u32 v2, {64*j}, v1
        v_mul_u32_u24 v3, 10923, v2
        v_lshrrev_b32 v3, 16, v3
        v_mul_u32_u24 v4, 6, v3
        v_sub_u32 v4, v2, v4
        v_mul_u32_u24 v3, 1152, v3
        v_lshl_add_u32 v{10+j}, v4, 4, v3''')
    A(f'''
    v_lshrrev_b32 v2, 4, v1
    v_bfe_u32 v3, v1, 2, 2
    v_lshl_add_u32 v2, v2, 3, v3
    v_mul_u32_u24 v2, 96, v2
    s_mul_i32 s67, {sW}, 36864
    v_add_u32 v2, s67, v2
    v_and_b32 v3, 3, v1
    v_lshl_add_u32 v13, v3, 4, v2
    v_and_b32 v3, 1, v1
    v_lshl_add_u32 v2, v3, 4, v2
    v_bfe_u32 v3, v1, 1, 1
    v_lshl_add_u32 v14, v3, 3, v2
    s_mul_i32 s71, s80, 384
    s_mul_i32 s63, {sW}, 96
    s_add_u32 s71, s71, s63
    s_mul_i32 s65, s86, {NK*32*1152}
    s_add_u32 s65, s65, s71
    ''')
    units = []
    for k in range(NK):
        def dma(o, k=k):
            l = [f's_add_u32 s69, s65, {32*k*1152}']
            for j in range(3):
                l += [f's_add_u32 m0, s67, {o+1024*j}', 's_nop 0', f'buffer_load_dwordx4 v{10+j}, {wsrd}, s69 offen lds']
            return l
        def rdf(o, k=k):
            return [f'ds_read_b64_tr_b16 {r(w_(k,ct)+2*i,2)}, {"v13" if ct < 2 else "v14"} offset:{o+i*384+(ct*8 if ct < 2 else 64)}' for ct in range(3) for i in range(2)]
        units.append((dma, rdf))
    staged(A, units, 12, 3072, 's67')
    A('s_barrier')
    validate(A)
    A(f's_lshl_b32 s63, {sT}, 2\n s_add_u32 s63, s63, {fout}')
    flag_addr(A, v(XFA), 's63')
    A(f'''v_lshlrev_b32 {v(XSV)}, 4, v1
    s_lshl_b32 s87, {sT}, 2
    s_add_u32 s87, s87, {sW}
    s_mul_i32 s87, s87, 3072
    s_add_u32 s87, s87, {out_base}
    s_mov_b32 s88, s87
    s_mov_b32 s89, s87
    s_mul_i32 s90, s86, {NK*2048}
    s_mov_b32 s91, {2*NSEG}
    s_mov_b32 s74, 1
    s_mov_b32 s75, 1
    v_lshrrev_b32 v2, 5, v1
    v_and_b32 v3, 31, v1''')
    if key == 'wo':
        A(f'''s_lshl_b32 s65, s86, 7
        v_and_b32 v4, 3, v3
        v_lshl_add_u32 v4, v4, 2, s65
        v_lshl_add_u32 v4, v2, 12, v4
        v_add_u32 {v(XPA)}, {F_ATT}, v4''')
    else:
        A(f'''s_mul_i32 s65, s86, 3
        v_lshrrev_b32 v5, 1, v3
        v_min_u32 v5, 2, v5
        v_add_u32 v5, s65, v5
        v_and_b32 v4, {1 if cfg.shu else 0}, v3
        v_lshlrev_b32 v4, 2, v4
        v_lshl_add_u32 v4, v5, 7, v4
        v_lshl_add_u32 v4, v2, 12, v4
        v_add_u32 {v(XPA)}, {F_UP}, v4''')
    A(f'''v_and_b32 v4, 3, v3
    v_lshlrev_b32 v4, 2, v4
    v_lshl_add_u32 v4, v2, 7, v4
    v_add_u32 v4, {F_CON + (0 if key == 'wo' else 256)}, v4
    v_cmp_gt_u32 vcc, 16, v3
    v_mov_b64 v[8:9], 0
    v_mov_b64 v[10:11], 0
    v_cndmask_b32 {v(XPA)}, v4, {v(XPA)}, vcc
    v_cndmask_b32 v65, {PRING}, 0, vcc''')
    def epi(th, sb, alone=False, loc=''):
        b = 12 * th; o = 48 + 4 * th
        f = [f'v_cvt_pk_bf16_f32 {v(o+d)}, {v(b+2*d)}, {v(b+2*d+1)}' for d in range(4)]
        f.append(f'buffer_store_dwordx4 {v(o,4)}, {v(XSV)}, {WS}, s{sb} offen offset:{1024*th}{loc}')
        f += [f'v_cvt_pk_bf16_f32 {v(56+2*th+d)}, {v(b+8+2*d)}, {v(b+9+2*d)}' for d in range(2)]
        if th == 1:
            f = f[5:] + f[:5]
            f += ['v_permlane32_swap_b32 v56, v58', 'v_permlane32_swap_b32 v57, v59',
                  f'buffer_store_dwordx4 v[56:59], {v(XSV)}, {WS}, s{sb} offen offset:2048{loc}\n @mark st']
        return f
    GX = (NK - 3) * 3
    gs_stream(A, name, 3, NK, w_, [0] * 3, False, 32, 4, epi, in_base, 64 * in_sstride, in_sstride, PRING * 294912, 294912,
              512, 1, code, True, None, 25, 4, 2, 10, True, True, PRING - 1, lowlate='r' in cfg.lowlate)

def wr_reg(A, i, val):
    A(f'v_mov_b32 {r(i)}, {val}' if i < 256 else f'v_accvgpr_write_b32 {r(i)}, {val}')

def role_att(A):
    A('L_att:')
    if not enabled('att'):
        ln0_hook(A, 0); A('s_endpgm'); return
    ln0_hook(A, 0)
    validate(A)
    SET = [256, 384]
    BI, SA, PP, PM, OA, OP, T = 16, 20, 40, 48, 64, 128, 160
    vLD, vKM, vVM, vPA, vP, vFA, vF = 'v4', 'v5', 'v6', 'v7', 'v8', 'v9', 'v10'
    A(f'''s_sub_u32 s70, {sT}, 24
    s_lshl_b32 s70, s70, 2
    s_add_u32 s70, s70, {sW}
    s_lshl_b32 s71, {sL}, 5
    s_add_u32 s71, s71, s70
    s_lshl_b32 s71, s71, 7
    s_sub_u32 s63, {sT}, 24
    s_lshl_b32 s63, s63, 7
    s_lshl_b32 s64, {sL}, 12
    s_add_u32 s63, s63, s64
    s_lshl_b32 s64, {sW}, 2
    s_add_u32 s63, s63, s64
    s_add_u32 s63, s63, {F_ATT}''')
    flag_addr(A, vFA, 's63')
    A(f'''
    v_lshlrev_b32 {vLD}, 4, v1
    v_and_b32 v2, 15, v1
    v_lshrrev_b32 v3, 4, v1
    v_lshrrev_b32 v11, 2, v2
    v_and_b32 v12, 1, v2
    v_lshl_add_u32 v11, v11, 1, v12
    v_lshlrev_b32 v11, 4, v11
    v_lshl_add_u32 {vKM}, v3, 7, v11
    v_lshlrev_b32 {vVM}, 3, v1
    v_and_b32 v11, {1 if cfg.shq else 0}, v1
    v_lshlrev_b32 v11, 2, v11
    s_add_u32 s63, s71, {F_QKV}
    v_add_u32 v11, s63, v11
    s_add_u32 s63, s71, {F_CH}
    v_mov_b32 v12, s63
    v_cmp_gt_u32 vcc, 8, v1
    s_nop 1
    v_cndmask_b32 {vPA}, v12, v11, vcc
    v_lshlrev_b32 v3, 2, v3
    v_sub_u32 v2, v2, v3
    v_mov_b32 v12, {f2u(-1e30):#x}
    s_mul_i32 s72, {sL}, {64*32}
    s_add_u32 s72, s72, s70
    s_mul_i32 s73, s72, 4096
    s_add_u32 s73, s73, {KVM}
    s_mul_i32 s72, s72, 24576
    s_add_u32 s72, s72, {QKV}
    s_mul_i32 s74, {sL}, {64*262144}
    s_lshr_b32 s63, s70, 2
    s_lshl_b32 s63, s63, 15
    s_add_u32 s74, s74, s63
    s_and_b32 s63, s70, 3
    s_lshl_b32 s63, s63, 12
    s_add_u32 s74, s74, s63
    s_add_u32 s74, s74, {OB}
    s_mov_b32 s75, {f2u(128**-0.5*LOG2E):#x}
    ''')
    for rr in range(4):
        A(f'''v_cmp_le_i32 vcc, {rr}, v2
        s_nop 1
        v_cndmask_b32 {v(BI+rr)}, v12, 0, vcc''')
    for i in (PP + 2, PP + 3, PM + 1, PM + 2, PM + 5, PM + 6): A(f'v_mov_b32 {v(i)}, 0')
    def ld_qkv(P):
        b = SET[P]
        A(f's_mul_i32 s67, s64, {32*24576}\n s_add_u32 s67, s67, s72')
        for k in range(24):
            if k % 4 == 0 and k: A('s_add_u32 s67, s67, 4096')
            A(f'buffer_load_dwordx4 {r(b+4*k,4)}, {vLD}, {WS}, s67 offen offset:{1024*(k%4)} {cfg.attld}')
    def ld_m(P, sreg=sI):
        b = SET[P]
        A(f's_mul_i32 s68, {sreg}, {32*4096}\n s_add_u32 s68, s68, s73')
        for u in range(4):
            A(f'buffer_load_dwordx4 {r(b+96+4*u,4)}, {vKM}, {WS}, s68 offen offset:{512*u} sc1')
        for u in range(4):
            A(f'buffer_load_dwordx2 {r(b+112+2*u,2)}, {vVM}, {WS}, s68 offen offset:{2048+512*u} sc1')
    def allred2(op):
        x0, x1, t0, t1 = v(T), v(T+1), v(T+2), v(T+3)
        for sw in ('v_permlane16_swap_b32', 'v_permlane32_swap_b32'):
            A(f'''v_mov_b32 {t0}, {x0}
            v_mov_b32 {t1}, {x1}
            s_nop 0
            {sw} {x0}, {t0}
            {sw} {x1}, {t1}
            {op} {x0}, {x0}, {t0}
            {op} {x1}, {x1}, {t1}''')
    def compute(P):
        b = SET[P]
        Q = lambda u, th: r(b + 4 * (2 * u + th), 4)
        K = lambda u, th: r(b + 32 + 4 * (2 * u + th), 4)
        for u in range(4):
            for ai, (a_, qh, c0) in enumerate(((K(u,0), 0, v(BI,4)), (r(b+96+4*u,4), 0, '0'), (K(u,0), 1, '0'), (K(u,1), 1, v(BI,4)), (r(b+96+4*u,4), 1, '0'))):
                d = v(SA + 4 * ai, 4)
                A(f'{M16} {d}, {a_}, {Q(u,qh)}, {c0 if u == 0 else d}')
        S0 = [SA + i for i in range(4)] + [SA + 4, SA + 5]
        S1 = [SA + 8 + i for i in range(8)] + [SA + 16, SA + 17]
        A('s_nop 4')
        A(f'v_max3_f32 {v(T)}, {v(S0[0])}, {v(S0[1])}, {v(S0[2])}\n v_max3_f32 {v(T)}, {v(T)}, {v(S0[3])}, {v(S0[4])}\n v_max_f32 {v(T)}, {v(T)}, {v(S0[5])}')
        A(f'v_max_f32 {v(T+1)}, {v(S1[0])}, {v(S1[1])}')
        for q in range(2, 10, 2): A(f'v_max3_f32 {v(T+1)}, {v(T+1)}, {v(S1[q])}, {v(S1[q+1])}')
        allred2('v_max_f32')
        A(f'v_mul_f32 {v(T)}, s75, {v(T)}\n v_mul_f32 {v(T+1)}, s75, {v(T+1)}')
        for qh, S in enumerate((S0, S1)):
            for x in S: A(f'v_fma_f32 {v(x)}, {v(x)}, s75, -{v(T+qh)}')
        for x in S0 + S1: A(f'v_exp_f32 {v(x)}, {v(x)}')
        for qh, S in enumerate((S0, S1)):
            A(f'v_add_f32 {v(T+qh)}, {v(S[0])}, {v(S[1])}')
            for x in S[2:]: A(f'v_add_f32 {v(T+qh)}, {v(T+qh)}, {v(x)}')
        allred2('v_add_f32')
        A(f'v_rcp_f32 {v(T)}, {v(T)}\n v_rcp_f32 {v(T+1)}, {v(T+1)}')
        for qh, S in enumerate((S0, S1)):
            for x in S: A(f'v_mul_f32 {v(x)}, {v(x)}, {v(T+qh)}')
        for d in range(2): A(f'v_cvt_pk_bf16_f32 {v(PP+d)}, {v(S0[2*d])}, {v(S0[2*d+1])}')
        for d in range(4): A(f'v_cvt_pk_bf16_f32 {v(PP+4+d)}, {v(S1[2*d])}, {v(S1[2*d+1])}')
        for qh, S in enumerate((S0, S1)):
            for o in (0, 3): A(f'v_cvt_pk_bf16_f32 {v(PM+4*qh+o)}, {v(S[-2])}, {v(S[-1])}')
        od = lambda u, qh, ch: v(OA + 32 * qh + 8 * u + 4 * ch, 4)
        for qh in range(2):
            for u in range(4):
                for ch in range(2):
                    A(f'{M16} {od(u,qh,ch)}, {r(b+64+4*(2*u+ch),4)}, {v(PP+4*qh,4)}, 0')
        for qh in range(2):
            for u in range(4):
                for ch in range(2):
                    A(f'v_mfma_f32_16x16x16_bf16 {od(u,qh,ch)}, {r(b+112+2*u,2)}, {v(PM+4*qh+2*ch,2)}, {od(u,qh,ch)}')
    def pack():
        for d in range(32):
            A(f'v_cvt_pk_bf16_f32 {v(OP+d)}, {v(OA+2*d)}, {v(OA+2*d+1)}')
    def stores():
        A(f's_mul_i32 s67, {sI}, 262144\n s_add_u32 s67, s67, s74')
        for k in range(8):
            A(f'buffer_store_dwordx4 {v(OP+4*k,4)}, {vLD}, {WS}, s67 offen offset:{1024*(k%4)} {cfg.attst}')
            if k == 3: A('s_add_u32 s67, s67, 16384')
    poll = f'buffer_load_dword {vP}, {vPA}, {WS}, 0 offen sc1'
    def flag(): A(f'v_mov_b32 {vF}, {sI}\n buffer_store_dword {vF}, {vFA}, {WS}, 0 offen sc1')
    for P in (0, 1):
        for i in range(96, 112): wr_reg(A, SET[P] + i, 0)
    A(f's_mov_b32 s76, 0x33333333\n s_mov_b32 s77, 0x33333333\n s_mov_b32 {sI}, 0\n s_mov_b32 s66, 0\n s_branch L_a_wait0')
    for P in (0, 1):
        l1 = A.lab('La'); l2 = A.lab('La')
        A(f'''L_a_wait{P}:
        s_mov_b32 {sSPIN}, 0
        L_a_spin{P}:
        {poll}
        s_waitcnt vmcnt(0)
        L_a_chk{P}:
        v_cmp_ge_u32 vcc, {sI}, {vP}
        s_bitcmp1_b32 s66, 1
        s_cbranch_scc1 {l1}
        s_cmp_lg_u32 vcc_hi, 0
        s_cbranch_scc1 {l1}''')
        ld_m(P)
        A(f'''s_or_b32 s66, s66, 2
        {l1}:
        s_bitcmp1_b32 s66, 0
        s_cbranch_scc1 {l2}
        s_and_b32 s63, vcc_lo, 0xff
        s_cbranch_scc1 {l2}
        s_mov_b32 s64, {sI}''')
        ld_qkv(P)
        A(f'''s_or_b32 s66, s66, 1
        {l2}:
        s_cmp_eq_u32 s66, 3
        s_cbranch_scc1 L_a_top{P}
        s_add_u32 {sSPIN}, {sSPIN}, 1
        s_cmp_lt_u32 {sSPIN}, {cfg.spin_limit}
        s_cbranch_scc1 L_a_spin{P}
        s_mov_b32 s63, 30
        s_branch L_abort
        L_a_topf{P}:
        s_waitcnt vmcnt(8)''')
        flag()
        A(f'''s_waitcnt vmcnt(1)
        s_branch L_a_top2{P}
        L_a_top{P}:
        s_waitcnt vmcnt(0)
        L_a_top2{P}:
        s_add_u32 s64, {sI}, 1
        v_cmp_ge_u32 vcc, s64, {vP}''')
        stamp(A, 'v220', sI)
        def variant(ldf, gapc):
            body = capture(A, lambda: compute(P)); ld = capture(A, ldf)
            groups = []; cur = []
            for l in ld:
                cur.append(l)
                if l.strip().startswith('buffer_'): groups.append(cur); cur = []
            k = 0; cost = 0; tot = 0; fl = False
            for l in body:
                A.lines.append(l); c_ = 16 if 'mfma' in l else 6; cost += c_; tot += c_
                if cost >= gapc and k < len(groups): A.lines += groups[k]; k += 1; cost = 0
                if tot > 700 and not fl and l.strip().startswith('v_add_f32'):
                    A(f's_waitcnt vmcnt({k})'); flag(); fl = True
            assert k == len(groups) and fl, (k, len(groups))
        A(f'''s_and_b32 s63, vcc_lo, 0xff
        s_cbranch_scc0 L_a_w{P}
        s_mov_b32 s66, 0''')
        variant(lambda: None, 1)
        A(f's_branch L_a_e{P}\n L_a_w{P}:\n s_cmp_eq_u32 vcc_hi, 0\n s_cbranch_scc1 L_a_ww{P}\n s_mov_b32 s66, 1')
        variant(lambda: ld_qkv(1 - P), 56)
        A(f's_branch L_a_e{P}\n L_a_ww{P}:\n s_mov_b32 s66, 3')
        variant(lambda: (ld_qkv(1 - P), ld_m(1 - P, 's64')), 42)
        A(f'L_a_e{P}:\n {poll}')
        pack()
        stores()
        stamp(A, 'v221', sI)
        A(f'''s_add_u32 {sI}, {sI}, 1
        s_waitcnt vmcnt(8)
        v_cmp_ge_u32 vcc, {sI}, {vP}
        s_cmp_eq_u32 s66, 3
        s_cbranch_scc1 L_a_top2{1-P}
        s_cmp_eq_u32 s66, 0
        s_cbranch_scc1 L_a_idle{P}
        s_cmp_lg_u32 vcc_hi, 0
        s_cbranch_scc1 L_a_idle{P}''')
        ld_m(1 - P)
        A(f'''s_branch L_a_topf{1-P}
        L_a_idle{P}:
        {poll}
        s_waitcnt vmcnt(0)''')
        flag()
        A(f'''s_cmp_ge_u32 {sI}, {NSEG}
        s_cbranch_scc1 L_a_done
        s_mov_b32 {sSPIN}, 0
        s_branch L_a_chk{1-P}''')
    A('L_a_done:\n s_waitcnt vmcnt(0)')
    dump(A, ['v220', 'v221'])
    A('s_endpgm')

L_MEM = 147456; L_QK = L_MEM + 9216; L_O = L_QK + 4096; L_SM = L_O + 2048
def cwq(T, c): return 80 + (T * 9 + c) * 8
def cwk(T, c): return 80 + 144 + (T * 9 + c) * 8
def cwo(t, c2): return 80 + 288 + (t * 2 + c2) * 8

def chain_init(A):
    lane(A, 'v1')
    A(f'''
    v_lshrrev_b32 v2, 5, v1
    v_bfe_u32 v3, v1, 4, 1
    v_bfe_u32 v4, v1, 3, 1
    v_bfe_u32 v5, v1, 2, 1
    v_and_b32 v6, 3, v1
    v_lshlrev_b32 v7, 4, v6
    v_lshl_add_u32 v8, v2, 2, v3
    v_lshl_add_u32 v8, v5, 4, v8
    v_lshl_add_u32 v8, v4, 1, v8
    v_lshl_add_u32 v10, v8, 13, v7
    v_mul_u32_u24 v8, 144, v2
    v_lshl_add_u32 v8, v3, 2, v8
    v_lshl_add_u32 v8, v4, 3, v8
    v_add_u32 v8, v8, v5
    v_lshl_add_u32 v11, v8, 13, v7
    v_bfe_u32 v8, v1, 3, 2
    v_lshlrev_b32 v8, 2, v8
    v_lshl_add_u32 v8, v2, 1, v8
    v_lshl_add_u32 v8, v5, 5, v8
    v_bfe_u32 v9, v1, 1, 1
    v_add_u32 v8, v8, v9
    v_mul_u32_u24 v8, 1152, v8
    v_and_b32 v9, 1, v1
    v_lshl_add_u32 v12, v9, 4, v8
    v_mul_u32_u24 v8, {32*1152 - 32}, v5
    v_sub_u32 v17, v12, v8
    s_mul_i32 s67, {sW}, 36864
    v_lshrrev_b32 v8, 2, v1
    v_lshl_add_u32 v9, v8, 6, s67
    v_lshl_add_u32 v13, v6, 3, v9
    v_lshl_add_u32 v14, v6, 4, v9
    v_lshl_add_u32 v9, v8, 5, s67
    v_lshl_add_u32 v15, v6, 3, v9
    v_lshl_add_u32 v16, v1, 4, s67
    s_lshl_b32 s65, {sT}, 8
    s_lshl_b32 s63, {sW}, 6
    s_add_u32 s65, s65, s63
    s_mul_i32 s66, {sT}, 147456
    s_mul_i32 s63, {sW}, 288
    s_add_u32 s66, s66, s63
    ''')
    def dqkv(srd, c):
        def f(o):
            l = []
            for tau in range(4):
                pi, jh = tau & 1, tau >> 1
                row = 144 * (c >> 1) + 64 * (c & 1) + 32 * pi + 8 * jh if c < 8 else 288 * jh + 128 + 2 * pi
                l += [f's_add_u32 m0, s67, {o+1024*tau}', f's_add_u32 s69, s65, {row*8192}', f'buffer_load_dwordx4 {"v10" if c < 8 else "v11"}, {srd}, s69 offen lds']
            return l
        return f
    units = []
    for srd, reg in ((SWQ, cwq), (SWK, cwk)):
        for c in range(9):
            units.append((dqkv(srd, c), lambda o, reg=reg, c=c: [f'ds_read_b64_tr_b16 {r(reg(T,c)+2*tau,2)}, v13 offset:{o+1024*tau+32*T}' for T in range(2) for tau in range(4)]))
    for t in range(9):
        def d(o, t=t):
            l = []
            for q in range(4):
                so = (64*(q>>1)+16*(q&1))*1152+32*t if t == 8 else (32*(2*(t&1)+(q>>1))+16*(q&1))*1152+64*(t>>1)
                l += [f's_add_u32 m0, s67, {o+1024*q}', f's_add_u32 s69, s66, {so}', f'buffer_load_dwordx4 {"v12" if t == 8 else "v17"}, {SWO}, s69 offen lds']
            return l
        units.append((d, lambda o, t=t: [f'ds_read_b64_tr_b16 {r(cwo(t,c2)+2*tau,2)}, v15 offset:{o+2048*c2+512*tau}' for c2 in range(2) for tau in range(4)]))
    for c in range(9):
        def rv(o):
            l = [f'ds_read_b64_tr_b16 {v(32+8*ch+2*tau,2)}, v14 offset:{o+1024*tau+8*ch}' for ch in range(2) for tau in range(4)]
            l += ['s_waitcnt lgkmcnt(0)'] + [f'ds_write_b128 v16, {v(32+4*q,4)} offset:{o+1024*q}' for q in range(4)]
            return l
        units.append((dqkv(SWV, c), rv))
    staged(A, units, 9, 4096, 's67')
    A(f'''
    v_lshrrev_b32 v2, 4, v1
    v_bfe_u32 v3, v1, 2, 1
    v_lshl_add_u32 v2, v2, 1, v3
    v_mul_u32_u24 v2, 1152, v2
    v_bfe_u32 v3, v1, 3, 1
    v_bfe_u32 v4, v1, 1, 1
    v_lshl_add_u32 v3, v3, 1, v4
    v_and_b32 v4, 1, v1
    s_lshl_b32 s63, {sW}, 2
    v_add_u32 v5, s63, v3
    v_lshl_add_u32 v5, v4, 5, v5
    v_lshl_add_u32 v5, v5, 1, v2
    s_mul_i32 s63, {sW}, 144
    s_add_u32 s63, s63, 128
    v_lshl_add_u32 v6, v3, 2, s63
    v_lshl_add_u32 v6, v4, 1, v6
    v_lshl_add_u32 v6, v6, 1, v2
    s_lshl_b32 s63, {sW}, 8
    s_add_u32 s63, s63, {L_MEM}
    v_lshl_add_u32 v7, v1, 2, s63
    ''')
    for c in range(8):
        o = (144 * (c >> 1) + 64 * (c & 1)) * 2
        A(f'buffer_load_ushort v{30+c}, v5, {SMEM0}, 0 offen offset:{o}')
        A(f'buffer_load_ushort v{40+c}, v5, {SMEM0}, 0 offen offset:{o+32}')
    A(f'buffer_load_dword v38, v6, {SMEM0}, 0 offen\n s_waitcnt vmcnt(0)')
    for c in range(8): A(f'v_lshl_or_b32 v{30+c}, v{40+c}, 16, v{30+c}')
    for c in range(9): A(f'ds_write_b32 v7, v{30+c} offset:{c*1024}')
    A('s_waitcnt lgkmcnt(0)')

(vLM, vWV, vIDX, vQW, vQR, vKR, vSM, vSA, vSB, vOW, vKMS, vVMS, vPS, vPS8, vRS, vZ) = [f'v{60+i}' for i in range(16)]
SEL = 76; vKP = 'v59'
def role_chain(A):
    A('L_chain:')
    if not enabled('chain'):
        ln0_hook(A, 0); A('s_endpgm'); return
    warm_sweep(A, 's_mov_b32 s63, 0', True, cfg.ch1wait)
    chain_init(A)
    validate(A)
    lane(A, 'v1')
    A(f'''
    v_and_b32 v2, 15, v1
    v_lshrrev_b32 v3, 4, v1
    v_and_b32 v8, 3, v1
    v_mov_b32 v6, {OOB}
    v_lshlrev_b32 v4, 4, v1
    v_add_u32 {vLM}, {L_MEM}, v4
    s_mul_i32 s63, {sW}, 36864
    v_add_u32 {vWV}, s63, v4
    s_lshl_b32 s63, {sW}, 10
    s_add_u32 s63, s63, {L_QK}
    v_add_u32 {vSA}, s63, v4
    v_lshlrev_b32 v4, 2, v1
    v_add_u32 {vSM}, {L_SM}, v4
    s_lshl_b32 s64, {sW}, 8
    v_add_u32 {vSB}, s64, {vSM}
    v_and_b32 v4, 2, v1
    v_cmp_eq_u32 vcc, 0, v4
    v_mov_b32 v5, 0x4444
    v_mov_b32 v7, 0xeeee
    v_cndmask_b32 {vIDX}, v7, v5, vcc
    v_lshlrev_b32 v4, 4, v2
    v_lshl_add_u32 v4, v3, 2, v4
    v_add_u32 {vQW}, s63, v4
    v_bfe_u32 v4, v1, 2, 2
    v_lshl_add_u32 v4, v3, 3, v4
    v_lshl_add_u32 v4, v4, 4, s63
    v_and_b32 v5, 1, v1
    v_lshl_add_u32 {vQR}, v5, 3, v4
    v_bfe_u32 v5, v1, 1, 1
    v_lshl_add_u32 {vKR}, v5, 3, v4
    v_lshrrev_b32 v4, 3, v2
    v_lshl_add_u32 v4, v4, 2, v8
    v_lshlrev_b32 v4, 4, v4
    v_lshl_add_u32 v4, v3, 7, v4
    s_lshl_b32 s64, {sW}, 9
    v_add_u32 v4, s64, v4
    v_and_b32 v5, 4, v1
    v_cmp_eq_u32 vcc, 0, v5
    s_add_u32 s64, s64, 2048
    v_lshl_add_u32 {vVMS}, v1, 3, s64
    v_cndmask_b32 {vKMS}, v6, v4, vcc
    s_lshr_b32 s63, {sW}, 1
    s_lshl_b32 s63, s63, 10
    s_and_b32 s64, {sW}, 1
    s_lshl_b32 s64, s64, 5
    s_add_u32 s63, s63, s64
    s_add_u32 s63, s63, {L_O}
    v_lshrrev_b32 v4, 1, v2
    v_lshlrev_b32 v4, 6, v4
    v_and_b32 v5, 1, v1
    v_lshl_add_u32 v4, v5, 4, v4
    v_lshl_add_u32 v4, v3, 8, v4
    v_add_u32 {vOW}, s63, v4
    v_lshrrev_b32 v4, 2, v2
    v_lshrrev_b32 v5, 5, v1
    v_lshl_add_u32 v4, v4, 1, v5
    v_and_b32 v7, 1, v3
    v_lshl_add_u32 v7, v7, 2, v8
    v_lshlrev_b32 v7, 4, v7
    v_lshl_add_u32 {vPS}, v4, 12, v7
    v_and_b32 v7, 31, v1
    v_lshlrev_b32 v7, 2, v7
    v_lshl_add_u32 {vPS8}, v5, 12, v7
    v_bfe_u32 v4, v1, 1, 2
    v_lshlrev_b32 v4, 5, v4
    v_and_b32 v7, 1, v1
    v_lshl_add_u32 v4, v7, 3, v4
    v_lshl_add_u32 v4, v5, 4, v4
    v_and_b32 v7, 1, v3
    v_lshl_add_u32 v4, v7, 2, v4
    v_and_b32 v7, 8, v1
    v_cmp_eq_u32 vcc, 0, v7
    v_bfe_u32 v9, v1, 2, 1
    v_lshl_add_u32 v9, v9, 1, v8
    v_cndmask_b32 {vRS}, v6, v4, vcc
    v_mov_b32 v4, 0x3f80
    v_mov_b32 v5, 0x3f800000
    v_cndmask_b32 v4, v5, v4, vcc
    v_and_b32 v7, 2, v1
    v_cmp_eq_u32 vcc, 0, v7
    s_nop 1
    v_cndmask_b32 v4, 0, v4, vcc
    ''')
    for d in range(4):
        A(f'v_cmp_eq_u32 vcc, {d}, v9\n s_nop 1\n v_cndmask_b32 {v(SEL+d)}, 0, v4, vcc')
    l3 = A.lab('Lw3')
    A(f'''
    s_lshl_b32 s63, {sL}, 5
    s_add_u32 s63, s63, {sT}
    s_lshl_b32 s63, s63, 7
    v_mov_b32 {vKP}, {OOB}
    s_cmp_lg_u32 {sW}, 3
    s_cbranch_scc1 {l3}
    s_add_u32 s64, s63, {F_QKV}
    v_and_b32 v4, {1 if cfg.shq else 0}, v1
    v_lshl_add_u32 {vKP}, v4, 2, s64
    v_lshlrev_b32 v4, 8, v8
    v_add_u32 {v(SEL)}, {L_SM}, v4
    s_add_u32 s64, s63, {F_CH}
    v_cmp_eq_u32 vcc, 0, v1
    v_mov_b32 v4, s64
    v_lshlrev_b32 {vRS}, 7, v1
    v_cndmask_b32 {v(SEL+1)}, v6, v4, vcc
    {l3}:
    s_mul_i32 s71, {sL}, {64*32}
    s_add_u32 s71, s71, {sT}
    s_mul_i32 s72, s71, 4096
    s_add_u32 s72, s72, {KVM}
    s_mul_i32 s71, s71, 24576
    s_add_u32 s94, s71, {QKV + 8192}
    s_lshl_b32 s63, {sW}, 11
    s_add_u32 s71, s71, s63
    s_add_u32 s71, s71, {QKV + 8192 - L_MEM}
    s_add_u32 s70, s71, 8192
    s_mul_i32 s73, {sL}, {2*RSLOT}
    s_add_u32 s73, s73, {RING0}
    s_lshl_b32 s74, {sW}, 5
    s_add_u32 s74, s74, {sT}
    s_lshl_b32 s63, {sT}, 7
    s_add_u32 s63, s63, s73
    s_lshl_b32 s64, {sW}, 16
    s_add_u32 s85, s63, s64
    s_add_u32 s86, s85, 32768
    s_lshl_b32 s64, {sW}, 13
    s_add_u32 s87, s63, s64
    s_add_u32 s87, s87, {64*4096}
    s_lshl_b32 s83, s74, 12
    s_add_u32 s83, s83, s73
    s_sub_u32 s83, s83, {L_MEM}
    s_mov_b32 s82, {RSLOT}
    s_mul_i32 s75, {sL}, {3*9216}
    s_add_u32 s75, s75, {MEM0}
    s_lshl_b32 s63, s74, 7
    s_add_u32 s88, s75, s63
    s_add_u32 s89, s88, 9216
    s_add_u32 s90, s88, 18432
    s_mul_i32 s91, {sW}, 3072
    s_sub_u32 s91, s91, s63
    s_sub_u32 s91, s91, {L_MEM}
    s_mov_b32 s77, {f2u(128**-0.5*LOG2E):#x}
    s_mov_b32 s78, 0x00ff00ff
    s_mov_b32 s79, 0x00ff00ff
    s_mov_b32 s92, 0x0000ffff
    s_mov_b32 s93, 0x0000ffff
    s_mov_b32 s84, 1
    s_mov_b32 {sI}, 0
    ''')
    A(f's_cmp_lg_u32 {sSLOW}, 0\n s_cbranch_scc1 L_chs')
    chain_loop(A, 'L_chf', '')
    A('L_chs:')
    chain_loop(A, 'L_chs', ' sc1')

def chain_loop(A, name, loc):
    KX, AQ, AK, AV, AR, BX, BY = 0, 8, 16, 24, [32, 36], 40, 48
    VX = 40
    sm = 'v_smfmac_f32_16x16x64_bf16'
    ACCS = [12, 13, 14, 15, 16, 17, 18, 19, 24, 25, 26, 27]
    NPS = 12
    def ps(k):
        if cfg.timing == True: A(f's_memtime s[{28+2*k}:{29+2*k}]')
    if cfg.timing:
        for k in range(NPS): A(f's_mov_b32 s{ACCS[k]}, 0\n s_mov_b32 s{28+2*k}, 0')
        A('s_mov_b32 s52, 0')
    def wvrd(buf, ch, c, hb): return f'ds_read_b128 {v(buf+4*hb,4)}, {vWV} offset:{c*4096+(2*ch+hb)*1024}'
    def pre_step():
        for ch, buf in enumerate((BX, BY)):
            for hb in range(2): A(wvrd(buf, ch, 0, hb))
        for i in range(8, 32, 2): A(f'v_mov_b64 {v(i,2)}, 0')
    pre_step()
    A(f'v_mov_b32 v0, 0\n ds_write_b32 {vSB}, v0')
    A(f'{name}_top:')
    ps(11)
    A(f's_waitcnt lgkmcnt(0)\n s_barrier\n {name}_top2:')
    if cfg.timing == True:
        ls = A.lab('Lts')
        A(f's_memtime s[52:53]\n s_waitcnt lgkmcnt(0)\n s_cmp_lt_u32 {sI}, 8\n s_cbranch_scc1 {ls}')
        for k in range(NPS):
            A(f's_sub_u32 s63, s{30+2*k}, s{28+2*k}\n s_add_u32 s{ACCS[k]}, s{ACCS[k]}, s63')
        A(f'{ls}:')
    stamp(A, vZ, sI)
    ps(0)
    kld = [f'buffer_load_dwordx4 {v(KX,4)}, {vLM}, {WS}, s71 offen sc1', f'buffer_load_dwordx4 {v(KX+4,4)}, {vLM}, {WS}, s71 offen offset:1024 sc1']
    vld = [f'buffer_load_dwordx4 {v(VX,4)}, {vLM}, {WS}, s70 offen sc1', f'buffer_load_dwordx4 {v(VX+4,4)}, {vLM}, {WS}, s70 offen offset:1024 sc1']
    A(f'''ds_read_b32 v58, {vSB}
    ds_read_b128 {v(AR[0],4)}, {vLM}
    ds_read_b128 {v(AR[1],4)}, {vLM} offset:1024
    s_waitcnt lgkmcnt(1)
    v_readfirstlane_b32 s76, v58''')
    for c in range(9):
        a_ = v(AR[c & 1], 4)
        if c > 0: A(f's_waitcnt lgkmcnt({3 if c < 8 else 2})')
        A(f'{sm} {v(AV,4)}, {a_}, {v(BX,8)}, {vIDX}')
        if c < 8: A(wvrd(BX, 0, c + 1, 0))
        else: A(vld[0].replace('s70', 's81'))
        A(f'{sm} {v(AQ,4)}, {a_}, {r(cwq(0,c),8)}, {vIDX}')
        if c < 8: A(wvrd(BX, 0, c + 1, 1))
        else: A(vld[1].replace('s70', 's81'))
        A(f'{sm} {v(AQ+4,4)}, {a_}, {r(cwq(1,c),8)}, {vIDX}')
        if c == 0: A(f's_cmp_lg_u32 s76, 0\n s_cselect_b32 s80, s71, {OOB}\n s_cselect_b32 s81, s70, {OOB}')
        if c < 8:
            if c > 0: A(f's_waitcnt lgkmcnt(3)')
            A(f'{sm} {v(AV+4,4)}, {a_}, {v(BY,8)}, {vIDX}')
            A(wvrd(BY, 1, c + 1, 0))
        else: A('s_mov_b64 vcc, s[78:79]')
        A(f'{sm} {v(AK,4)}, {a_}, {r(cwk(0,c),8)}, {vIDX}')
        if c < 8: A(wvrd(BY, 1, c + 1, 1))
        else: A(f's_cmp_eq_u32 {sI}, {NSEG-1}\n s_cselect_b32 s76, 0, s76')
        A(f'{sm} {v(AK+4,4)}, {a_}, {r(cwk(1,c),8)}, {vIDX}')
        if c < 7: A(f'ds_read_b128 {v(AR[c&1],4)}, {vLM} offset:{(c+2)*1024}')
        if c < 2: A(kld[c].replace('s71', 's80'))
        if c == 1 and cfg.vtouch: A(f'v_lshlrev_b32 v57, 3, {vLM}\n s_sub_u32 s63, s81, {7*L_MEM}')
        if c == 2 and cfg.vtouch: A(f's_mov_b64 exec, 0xffff\n buffer_load_dword v58, v57, {WS}, s63 offen sc1\n s_mov_b64 exec, -1')
        if c == 8: A(f's_waitcnt lgkmcnt(0)\n {sm} {v(AV+4,4)}, {a_}, {v(BY,8)}, {vIDX}')
    ps(1)
    pk = lambda b: f'v_pk_add_f32 {v(b,2)}, {v(b,2)}, {v(b+2,2)}'
    ad = lambda b: f'v_add_f32 {v(b)}, {v(b)}, {v(b+2)}\n v_add_f32 {v(b+1)}, {v(b+1)}, {v(b+3)}'
    cv = lambda d, b: f'v_cvt_pk_bf16_f32 {v(d)}, {v(b)}, {v(b+1)}'
    A(f'''{ad(AQ)}
    {pk(AQ+4)}
    {cv(36, AQ)}
    {pk(AK)}
    {cv(37, AQ+4)}
    {pk(AK+4)}
    ds_write2_b32 {vQW}, v36, v37 offset0:0 offset1:64
    {cv(38, AK)}
    {cv(39, AK+4)}
    ds_read_b64_tr_b16 v[8:9], {vQR}
    ds_write2_b32 {vQW}, v38, v39 offset0:128 offset1:192
    ds_read_b64_tr_b16 v[10:11], {vQR} offset:64
    ds_read_b64_tr_b16 v[12:13], {vKR} offset:512
    ds_read_b64_tr_b16 v[14:15], {vKR} offset:576
    {pk(AV)}
    {pk(AV+4)}
    {cv(56, AV)}
    {cv(57, AV+4)}
    buffer_store_dwordx2 v[56:57], {vVMS}, {WS}, s72 offen sc1
    v_mov_b64 v[52:53], 0
    v_mov_b64 v[54:55], 0
    s_cmp_eq_u32 s76, 0
    s_cbranch_scc1 {name}_late''')
    ps(2)
    A(f's_waitcnt vmcnt({4 if cfg.vtouch else 3}) lgkmcnt(2)')
    ps(3)
    A(f'''{M16} v[16:19], {v(KX,4)}, v[8:11], 0
    {M16} v[20:23], {v(KX+4,4)}, v[8:11], 0
    s_waitcnt lgkmcnt(0)
    {M16} v[36:39], v[12:15], v[8:11], 0
    buffer_store_dwordx4 v[12:15], {vKMS}, {WS}, s72 offen sc1
    {name}_join:
    s_nop 4
    v_cndmask_b32 v32, v20, v16, vcc
    v_cndmask_b32 v33, v21, v17, vcc
    v_cndmask_b32 v34, v22, v18, vcc
    v_cndmask_b32 v35, v23, v19, vcc
    ds_write_b128 {vSA}, v[32:35]
    v_cndmask_b32 v36, v37, v36, vcc
    v_cndmask_b32 v38, v39, v38, vcc
    v_cndmask_b32 v48, v38, v36, s[92:93]
    ds_write_b32 {vSB}, v48
    s_waitcnt lgkmcnt(0)
    s_barrier''')
    ps(4)
    for w in range(4):
        A(f'ds_read_b128 {v(8+4*w,4)}, {vLM} offset:{L_QK-L_MEM+1024*w}')
    A(f'ds_read2st64_b32 v[48:49], {vSM} offset0:0 offset1:1\n ds_read2st64_b32 v[50:51], {vSM} offset0:2 offset1:3')
    A(f'buffer_load_dword v58, {vKP}, {WS}, 0 offen sc1')
    for i in range(28, 40, 2): A(f'v_mov_b64 {v(i,2)}, 0')
    A('''s_waitcnt lgkmcnt(4)
    v_pk_add_f32 v[8:9], v[8:9], v[12:13]
    v_pk_add_f32 v[10:11], v[10:11], v[14:15]
    s_waitcnt lgkmcnt(2)
    v_pk_add_f32 v[16:17], v[16:17], v[20:21]
    v_pk_add_f32 v[18:19], v[18:19], v[22:23]
    s_waitcnt lgkmcnt(0)
    v_pk_add_f32 v[48:49], v[48:49], v[50:51]
    v_pk_add_f32 v[8:9], v[8:9], v[16:17]
    v_pk_add_f32 v[10:11], v[10:11], v[18:19]
    v_add_f32 v49, v48, v49
    v_max3_f32 v24, v8, v9, v10
    v_max3_f32 v24, v24, v11, v49''')
    def allred(op, x, t):
        return lines(f'''s_nop 1
        {op}_dpp {x}, {x}, {x} row_ror:8 row_mask:0xf bank_mask:0xf
        v_mov_b32 {t}, {x}
        s_nop 1
        v_permlane16_swap_b32 {x}, {t}
        {op} {x}, {x}, {t}
        v_mov_b32 {t}, {x}
        s_nop 1
        v_permlane32_swap_b32 {x}, {t}
        {op} {x}, {x}, {t}''')
    for x in allred('v_max_f32', 'v24', 'v25'): A(x)
    A('v_mul_f32 v24, s77, v24')
    X = [49, 8, 9, 10, 11]
    for x in X: A(f'v_fma_f32 v{x}, v{x}, s77, -v24')
    for x in X: A(f'v_exp_f32 v{x}, v{x}')
    A(f'''v_cvt_pk_bf16_f32 v12, v8, v9
    v_cvt_pk_bf16_f32 v13, v10, v11
    v_mov_b32_dpp v50, v49 row_ror:8 row_mask:0xf bank_mask:0xf
    v_mov_b32_dpp v14, v12 row_ror:8 row_mask:0xf bank_mask:0xf
    v_mov_b32_dpp v15, v13 row_ror:8 row_mask:0xf bank_mask:0xf
    v_cvt_pk_bf16_f32 v52, v49, v50''')
    ps(5)
    A('s_waitcnt vmcnt(3)')
    ps(6)
    ar = allred('v_add_f32', 'v24', 'v25')
    A(f'''{M16} v[16:19], {v(VX,4)}, v[12:15], 0
    v_cvt_pk_bf16_f32 v55, v49, v50
    {M16} v[20:23], {v(VX+4,4)}, v[12:15], 0
    v_add_f32 v24, v8, v9
    v_add_f32 v25, v10, v11
    v_add_f32 v24, v24, v49
    v_add_f32 v24, v24, v25
    v_mfma_f32_16x16x16_bf16 v[16:19], v[56:57], v[52:53], v[16:19]
    v_and_b32 v26, 0xffffffdf, {vLM}
    v_mfma_f32_16x16x16_bf16 v[20:23], v[56:57], v[54:55], v[20:23]''')
    for x in ar[1:]: A(x)
    A('''v_rcp_f32 v24, v24
    v_mov_b64 v[40:41], 0
    v_pk_mul_f32 v[16:17], v[16:17], v[24:25] op_sel_hi:[1,0]
    v_pk_mul_f32 v[18:19], v[18:19], v[24:25] op_sel_hi:[1,0]
    v_pk_mul_f32 v[20:21], v[20:21], v[24:25] op_sel_hi:[1,0]
    v_pk_mul_f32 v[22:23], v[22:23], v[24:25] op_sel_hi:[1,0]''')
    for d in range(4): A(f'v_cvt_pk_bf16_f32 v{48+d}, v{16+2*d}, v{17+2*d}')
    A(f'''s_mov_b64 exec, s[78:79]
    ds_write_b128 {vOW}, v[48:51]
    s_mov_b64 exec, -1
    v_mov_b64 v[42:43], 0
    v_mov_b64 v[44:45], 0
    v_mov_b64 v[46:47], 0
    s_waitcnt {'' if cfg.lateflag else 'vmcnt(1) '}lgkmcnt(0)
    s_barrier''')
    for u in range(4): A(f'ds_read_b128 {v(4*u,4)}, v26 offset:{L_O-L_MEM+1024*(u>>1)+32*(u&1)}')
    for c2 in range(2): A(f'ds_read_b128 {v(16+4*c2,4)}, {vLM} offset:{L_O-L_MEM+1024*c2}')
    for x in [f's_add_u32 s71, s71, {32*24576}', f's_add_u32 s70, s70, {32*24576}', f's_add_u32 s72, s72, {32*4096}', f's_add_u32 {sI}, {sI}, 1',
              's_add_u32 s95, s89, s91', f's_mov_b32 {sSPIN}, 0', f's_cmp_eq_u32 {sW}, 3']: A(x)
    ps(7)
    pm = lambda p, u: f'{sm} {v(28+4*p,4)}, {v(4*u,4)}, {r(cwo(2*p+(u>>1),u&1),8)}, {vIDX}'
    mains = []
    for u in range(4):
        mains += [f's_waitcnt lgkmcnt({5-u})\n' + pm(0, u), pm(1, u)]
    mains += [f's_waitcnt lgkmcnt(0)\n {sm} v[44:47], v[16:19], {r(cwo(8,0),8)}, {vIDX}', f'{sm} v[44:47], v[20:23], {r(cwo(8,1),8)}, {vIDX}']
    mains += [pm(2, u) for u in range(4)] + [pm(3, u) for u in range(4)]
    S = Sched(mains)
    for g in (7, 8, 9, 10): S.put(g, 's_nop 0')
    S.put(11, cv(48, 28) + '\n' + cv(49, 30)); S.put(12, cv(50, 32) + '\n' + cv(51, 34))
    S.put(13, f'v_and_or_b32 v48, v48, -2, s84\n buffer_store_dwordx4 v[48:51], {vPS}, {WS}, s85 offen{loc}')
    S.put(14, ad(44)); S.put(15, cv(24, 44)); S.put(16, 'v_and_or_b32 v24, v24, -2, s84')
    S.put(17, f'buffer_store_dword v24, {vPS8}, {WS}, s87 offen{loc}')
    S.emit(A)
    A(f'''{cv(52, 36)}
    {cv(53, 38)}
    v_and_or_b32 v52, v52, -2, s84
    s_nop 3
    {cv(54, 40)}
    {cv(55, 42)}
    buffer_store_dwordx4 v[52:55], {vPS}, {WS}, s86 offen{loc}''')
    ps(8); ps(9); ps(10)
    A(f'''s_cbranch_scc1 {name}_w3
    s_cmp_ge_u32 s74, 72''')
    if cfg.w1 == 2: A('s_waitcnt vmcnt(0)')
    pre_step()
    A(f's_cbranch_scc1 {name}_poll')
    if cfg.w1 == 1: A('s_waitcnt vmcnt(0)')
    for i in range(cfg.d1): A('s_nop 7')
    ps(9)
    lg = A.lab('Lg'); rt = A.lab('Lgr')
    GR = [0, 4, 32, 36]
    A(f'{lg}:')
    for i in range(4):
        A(f'buffer_load_dwordx4 {v(GR[i],4)}, {vLM}, {WS}, s83 offen offset:{1024*i} sc1')
    A(f'''s_waitcnt vmcnt(2)
    v_xor_b32 v56, s84, v0
    v_bitop3_b32 v56, v56, v4, s84 bitop3:0xf6
    {M16} v[0:3], {v(SEL,4)}, {v(GR[0],4)}, 0
    {M16} v[0:3], {v(SEL,4)}, {v(GR[1],4)}, v[0:3]
    s_waitcnt vmcnt(1)
    {M16} v[0:3], {v(SEL,4)}, {v(GR[2],4)}, v[0:3]
    v_bitop3_b32 v56, v56, v32, s84 bitop3:0xf6
    s_waitcnt vmcnt(0)
    {M16} v[0:3], {v(SEL,4)}, {v(GR[3],4)}, v[0:3]
    v_bitop3_b32 v56, v56, v36, s84 bitop3:0xf6
    v_and_b32 v56, 1, v56
    v_cmp_ne_u32 vcc, 0, v56
    v_mov_b32 v57, -1
    s_nop 3
    v_add_f32_dpp v0, v0, v0 row_ror:8 row_mask:0xf bank_mask:0xf
    v_add_f32_dpp v1, v1, v1 row_ror:8 row_mask:0xf bank_mask:0xf
    v_cvt_pk_bf16_f32 v56, v0, v1
    v_min_u32 v56, -2, v56
    s_cbranch_vccnz {rt}
    buffer_store_dword v56, {vRS}, {WS}, s89 offen{loc}
    buffer_store_dword v57, {vRS}, {WS}, s88 offen{loc}''')
    ps(10)
    rot = lines(f'''s_mov_b32 s63, s88
    s_mov_b32 s88, s89
    s_mov_b32 s89, s90
    s_mov_b32 s90, s63
    s_add_u32 s85, s85, s82
    s_add_u32 s86, s86, s82
    s_add_u32 s87, s87, s82
    s_add_u32 s83, s83, s82
    s_sub_u32 s82, 0, s82
    s_bfe_u32 s84, {sI}, 0x10001
    s_xor_b32 s84, s84, 1''')
    lp = A.lab('Lp')
    A(f'{name}_poll:')
    for x in rot: A(x)
    A(f'''s_mul_i32 s63, {sW}, 3072
    {'s_waitcnt vmcnt(%d)' % (cfg.w3 - 1) if cfg.w3 else ''}
    v_add_u32 v58, s63, {vLM}
    {chr(10).join(['s_nop 7'] * cfg.d3)}
    {lp}:
    buffer_load_dwordx4 v[32:35], {vLM}, {WS}, s95 offen sc1
    buffer_load_dwordx4 v[36:39], {vLM}, {WS}, s95 offen offset:1024 sc1
    buffer_load_dwordx4 v[4:7], {vLM}, {WS}, s95 offen offset:2048 sc1
    s_waitcnt vmcnt(2)
    ds_write_b128 v58, v[32:35]
    v_max3_u32 v0, v32, v33, v34
    s_waitcnt vmcnt(1)
    ds_write_b128 v58, v[36:39] offset:1024
    v_max3_u32 v0, v0, v35, v36
    v_max3_u32 v1, v37, v38, v39
    s_waitcnt vmcnt(0)
    v_max3_u32 v0, v0, v4, v5
    v_max3_u32 v1, v1, v6, v7
    v_max_u32 v0, v0, v1
    v_cmp_eq_u32 vcc, -1, v0
    ds_write_b128 v58, v[4:7] offset:2048
    s_cbranch_vccz {name}_top
    s_add_u32 {sSPIN}, {sSPIN}, 1
    s_cmp_lt_u32 {sSPIN}, {cfg.spin_limit}
    s_cbranch_scc1 {lp}
    s_mov_b32 s63, 42
    s_branch L_abort
    {rt}:
    s_add_u32 {sSPIN}, {sSPIN}, 1
    s_cmp_lt_u32 {sSPIN}, {cfg.spin_limit}
    s_cbranch_scc1 {lg}
    s_mov_b32 s63, 41
    s_branch L_abort
    {name}_w3:
    v_mov_b32 {v(SEL+2)}, {sI}
    {'' if cfg.lateflag else f'buffer_store_dword {v(SEL+2)}, {v(SEL+1)}, {WS}, 0 offen sc1'}''')
    pre_step()
    for x in rot: A(x)
    A(f'''s_waitcnt vmcnt({3 if cfg.lateflag else 4})
    v_cmp_ge_u32 vcc, {sI}, v58
    s_cmp_eq_u64 vcc, 0
    s_cselect_b32 s63, 1, 0
    v_mov_b32 v1, s63
    ds_write_b32 {v(SEL)}, v1''')
    if cfg.lateflag:
        ps(11)
        A(f's_waitcnt lgkmcnt(0)\n s_barrier\n buffer_store_dword {v(SEL+2)}, {v(SEL+1)}, {WS}, 0 offen sc1\n s_branch {name}_top2')
    A(f'''s_branch {name}_top
    {name}_late:
    s_waitcnt lgkmcnt(0)
    buffer_store_dwordx4 v[12:15], {vKMS}, {WS}, s72 offen sc1
    s_add_u32 s64, {sI}, 1
    s_waitcnt vmcnt(0)
    s_barrier
    s_cmp_lg_u32 {sW}, 3
    s_cbranch_scc1 {name}_l2
    v_mov_b32 v0, s64
    buffer_store_dword v0, {v(SEL+1)}, {WS}, 0 offen sc1
    s_cmp_eq_u32 s64, {NSEG}
    s_cbranch_scc1 {name}_l2''')
    spin(A, 'v1', vKP, 's64', 40)
    A(f'''{name}_l2:
    s_cmp_eq_u32 s64, {NSEG}
    s_cbranch_scc1 {name}_fin
    s_barrier
    {kld[0]}
    {kld[1]}
    {vld[0]}
    {vld[1]}
    s_mov_b64 vcc, s[78:79]
    s_waitcnt vmcnt(0)
    {M16} v[16:19], {v(KX,4)}, v[8:11], 0
    {M16} v[20:23], {v(KX+4,4)}, v[8:11], 0
    {M16} v[36:39], v[12:15], v[8:11], 0
    s_nop 0
    s_branch {name}_join
    {name}_fin:
    s_waitcnt vmcnt(0)''')
    if cfg.timing:
        for k in range(NPS): A(f'v_writelane_b32 v10, s{ACCS[k]}, {k}')
    dump(A, [vZ, 'v10'])
    A('s_endpgm')

cfg.x_nospin = cfg.x_nopf = cfg.x_latereset = False
cfg.x_drop = []; cfg.nt = False; cfg.x_nost = 0; cfg.x_same = False; cfg.x_nopf = True; cfg.attld = 'sc1'; cfg.attst = 'sc1'; cfg.shq = True; cfg.shu = True; cfg.lowlate = 'qu'
cfg.d1 = 0; cfg.d2 = 0; cfg.d3 = 0; cfg.delay1 = True; cfg.ch1wait = True; cfg.pre0 = 2; cfg.pre1 = 2; cfg.vtouch = True; cfg.lateflag = True; cfg.w1 = 2; cfg.w3 = 1
def build():
    A = Asm()
    kernel_begin(A, KNAME)
    prologue(A)
    role_chain(A)
    role_qkv(A)
    role_up(A)
    role_rg(A, 'L_wo', 'wo', 16, SWO, OB, 262144, PW, F_WO, 50)
    role_rg(A, 'L_dn', 'dn', 18, SW2, HB, 294912, PD, F_DN, 51)
    role_att(A)
    role_red(A)
    A('s_endpgm\n L_code_end:')
    return build_file([(KNAME, 256, 256, LDS_BYTES)], A.text(), [descriptor(KNAME)])

if __name__ == '__main__':
    out = sys.argv[1] if len(sys.argv) > 1 else 'interleave_layers__memory_aug_recurrent_mem_tr__glu_gated_swiglu__prompt.s'
    open(out, 'w').write(build())
```

```python
import sys
from asm import *
from layout import *

KNAME = 'interleave_layers__memory_aug_recurrent_mem_tr__glu_gated_swiglu__prompt_kernel'
WS, SX, SOUT, SDBG, SMEM0, SWQ, SWK, SWV, SWO, SW1, SW3, SW2 = [f's[{8+4*i}:{11+4*i}]' for i in range(12)]
sX, sT, sW, sSLOW, sL, sI, sSPIN = 's56', 's57', 's58', 's59', 's60', 's61', 's62'
OOB = 0x7ffffff0
LOG2E = 1.4426950408889634

class Cfg:
    roles = None
    skip_init = False
    spin_limit = 400000
    lam = 14
    timing = False
    force_slow = False
cfg = Cfg()

def f2u(x):
    import struct
    return struct.unpack('<I', struct.pack('<f', x))[0]

def enabled(n):
    return cfg.roles is None or n in cfg.roles

def pollops(vdst, vaddr):
    if isinstance(vdst, tuple):
        n = vdst[0]
        fix = f'v_min_u32 v{n}, v{n}, v{n+1}\n v_lshrrev_b32 v{n+1}, 6, v{n}\n v_or_b32 v{n+1}, v{n+1}, {vdst[1]}\n v_add3_u32 v{n}, v{n}, v{n+1}, -1\n v_max_i32 v{n}, 0, v{n}'
        return f'buffer_load_dwordx2 v[{n}:{n+1}], {vaddr}, {WS}, 0 offen sc1', fix, f'v{n}'
    return f'buffer_load_dword {vdst}, {vaddr}, {WS}, 0 offen sc1', '', vdst

def spin(A, vdst, vaddr, starget, code):
    l = A.lab('Lspin'); d = A.lab('Lspind')
    ld, fix, vdst = pollops(vdst, vaddr)
    A(f'''
    s_mov_b32 {sSPIN}, 0
    {l}:
    {ld}
    s_waitcnt vmcnt(0)
    {fix}
    v_cmp_gt_u32 vcc, {starget}, {vdst}
    s_cbranch_vccz {d}
    s_add_u32 {sSPIN}, {sSPIN}, 1
    s_cmp_lt_u32 {sSPIN}, {cfg.spin_limit}
    s_cbranch_scc1 {l}
    s_mov_b32 s63, {code}
    s_branch L_abort
    {d}:
    ''')

def validate(A):
    l = A.lab('Lval'); d = A.lab('Lvald'); ok = A.lab('Lvalok')
    A(f'''
    s_cmp_lg_u32 {sSLOW}, 0
    s_cbranch_scc1 {ok}
    v_mbcnt_lo_u32_b32 v1, -1, 0
    v_mbcnt_hi_u32_b32 v1, -1, v1
    v_and_b32 v1, 7, v1
    v_lshlrev_b32 v1, 2, v1
    v_mov_b32 v3, 64
    s_mov_b32 {sSPIN}, 0
    {l}:
    buffer_load_dword v2, v3, {SDBG}, 0 offen sc1
    s_waitcnt vmcnt(0)
    v_cmp_ne_u32 vcc, 0x100, v2
    s_cbranch_vccz {d}
    s_add_u32 {sSPIN}, {sSPIN}, 1
    s_cmp_lt_u32 {sSPIN}, {cfg.spin_limit}
    s_cbranch_scc1 {l}
    s_mov_b32 s63, 1
    s_branch L_abort
    {d}:
    buffer_load_dword v2, v1, {SDBG}, 0 offen sc1
    s_waitcnt vmcnt(0)
    v_cmp_ne_u32 vcc, {33 if cfg.force_slow else 32}, v2
    s_cbranch_vccnz L_goslow
    {ok}:
    ''')
    stamp_s(A, 's99')
    if cfg.timing: A('s_memtime s[96:97]\n s_waitcnt lgkmcnt(0)\n s_mov_b32 s101, s96')

def lane(A, dst):
    A(f'''v_mbcnt_lo_u32_b32 {dst}, -1, 0
    v_mbcnt_hi_u32_b32 {dst}, -1, {dst}''')

def stamp(A, vreg, sidx):
    if not cfg.timing or cfg.timing == 3: return
    A(f'''s_memrealtime s[96:97]
    s_and_b32 m0, {sidx}, 63
    s_waitcnt lgkmcnt(0)
    v_writelane_b32 {vreg}, s96, m0''')

def stamp_s(A, sreg):
    if not cfg.timing: return
    A(f's_memrealtime s[96:97]\n s_waitcnt lgkmcnt(0)\n s_mov_b32 {sreg}, s96')

def dump(A, vregs):
    if not cfg.timing: return
    stamp_s(A, 's100')
    A(f'''s_lshl_b32 s63, {sX}, 5
    s_add_u32 s63, s63, {sT}
    s_lshl_b32 s63, s63, 2
    s_add_u32 s63, s63, {sW}
    s_lshl_b32 s63, s63, 11
    s_add_u32 s63, s63, {DBG}
    v_mbcnt_lo_u32_b32 v1, -1, 0
    v_mbcnt_hi_u32_b32 v1, -1, v1
    v_lshlrev_b32 v1, 2, v1
    v_mov_b32 v2, s98
    v_writelane_b32 v2, s99, 1
    v_writelane_b32 v2, s100, 2
    s_memtime s[96:97]
    s_waitcnt lgkmcnt(0)
    s_sub_u32 s101, s96, s101
    v_writelane_b32 v2, s101, 3
    buffer_store_dword v2, v1, {WS}, s63 offen''')
    for i, x in enumerate(vregs):
        A(f'buffer_store_dword {x}, v1, {WS}, s63 offen offset:{256*(i+1)}')
    A('s_waitcnt vmcnt(0)')

def interleave(A, mains, fills, start=0, every=1):
    fi = 0
    for i, m in enumerate(mains):
        A(m)
        if i >= start and (i - start) % every == 0 and fi < len(fills):
            A(fills[fi]); fi += 1
    assert fi == len(fills), (fi, len(fills))

def prologue(A):
    A(f'''
    s_cmp_ge_u32 s2, 256
    s_cbranch_scc1 L_end
    s_load_dwordx16 s[64:79], s[0:1], 0
    s_load_dwordx8 s[80:87], s[0:1], 64
    s_load_dwordx4 s[88:91], s[0:1], 96
    s_getreg_b32 {sX}, hwreg(HW_REG_XCC_ID)
    v_lshrrev_b32 v1, 6, v0
    s_and_b32 {sX}, {sX}, 15
    v_readfirstlane_b32 {sW}, v1
    s_mov_b32 {sSLOW}, 0
    s_waitcnt lgkmcnt(0)
    ''')
    stamp_s(A, 's98')
    srds = [(8, 90, WS_BYTES), (12, 64, XB), (16, 86, XB), (20, 88, 256), (24, 66, 9216), (28, 68, 4718592),
            (32, 70, 4718592), (36, 72, 4718592), (40, 74, 4718592), (44, 80, 5308416), (48, 82, 5308416), (52, 84, 5308416)]
    for d, p, n in srds:
        A(f'''s_mov_b32 s{d}, s{p}
        s_mov_b32 s{d+1}, s{p+1}
        s_mov_b32 s{d+2}, {n}
        s_mov_b32 s{d+3}, 0x20000''')
    A(f'''
    s_lshl_b32 s63, {sX}, 2
    v_mov_b32 v1, s63
    v_mov_b32 v2, 1
    v_mov_b32 v3, 0
    v_cmp_eq_u32 vcc, 0, v0
    s_and_saveexec_b64 s[64:65], vcc
    s_cbranch_execz L_p1
    buffer_atomic_add v2, v1, {SDBG}, 0 offen sc0
    L_p1:
    s_mov_b64 exec, s[64:65]
    ''')
    if not cfg.skip_init:
        A(f'''
        v_mov_b32 v4, 0
        v_mov_b32 v5, 0
        v_mov_b32 v6, 0
        v_mov_b32 v7, 0
        v_mov_b32 v8, -1
        v_lshlrev_b32 v9, 4, v0
        v_lshlrev_b32 v10, 2, v0
        s_lshl_b32 s63, s2, 13
        s_add_u32 s66, s63, 4096
        s_lshl_b32 s67, s2, 10
        s_add_u32 s67, s67, {ONES0}
        buffer_store_dwordx4 v[4:7], v9, {WS}, s63 offen sc1
        buffer_store_dwordx4 v[4:7], v9, {WS}, s66 offen sc1
        buffer_store_dword v8, v10, {WS}, s67 offen sc1
        ''')
    A(f'''
    s_waitcnt vmcnt(0)
    s_and_saveexec_b64 s[64:65], vcc
    s_cbranch_execz L_p2
    ds_write_b32 v3, v2
    L_p2:
    s_mov_b64 exec, s[64:65]
    s_waitcnt lgkmcnt(0)
    s_barrier
    ds_read_b32 v2, v3
    v_mov_b32 v1, 64
    v_mov_b32 v4, 1
    s_and_saveexec_b64 s[64:65], vcc
    s_cbranch_execz L_p3
    buffer_atomic_add v4, v1, {SDBG}, 0 offen
    L_p3:
    s_mov_b64 exec, s[64:65]
    s_waitcnt lgkmcnt(0)
    v_readfirstlane_b32 {sT}, v2
    s_barrier
    s_cmp_ge_u32 {sT}, 32
    s_cbranch_scc1 L_norole
    s_cmp_ge_u32 {sX}, 8
    s_cbranch_scc1 L_norole
    L_dispatch:
    s_and_b32 {sL}, {sX}, 1
    s_lshr_b32 s63, {sX}, 1
    s_cmp_eq_u32 s63, 0
    s_cbranch_scc1 L_chain
    s_cmp_eq_u32 s63, 1
    s_cbranch_scc1 L_qkv
    s_cmp_eq_u32 s63, 2
    s_cbranch_scc1 L_j_rg
    s_cmp_lt_u32 {sT}, 24
    s_cbranch_scc1 L_up
    s_branch L_att
    L_j_rg:
    s_cmp_ge_u32 {sT}, 24
    s_cbranch_scc1 L_red
    s_cmp_eq_u32 {sL}, 0
    s_cbranch_scc1 L_wo
    s_branch L_dn
    L_norole:
    ''')
    validate(A)
    A(f'''
    s_mov_b32 s63, 2
    s_branch L_abort
    L_goslow:
    s_mov_b32 {sSLOW}, 1
    s_lshr_b32 {sX}, s2, 5
    s_and_b32 {sT}, s2, 31
    s_waitcnt vmcnt(0) lgkmcnt(0)
    s_barrier
    s_branch L_dispatch
    L_abort:
    s_lshl_b32 s64, {sX}, 8
    s_or_b32 s63, s63, s64
    s_lshl_b32 s64, {sI}, 16
    s_or_b32 s63, s63, s64
    s_or_b32 s63, s63, 0x80000000
    s_mov_b64 exec, 1
    v_mov_b32 v1, s63
    s_lshl_b32 s64, {sX}, 2
    s_add_u32 s64, s64, 128
    v_mov_b32 v2, s64
    buffer_store_dword v1, v2, {SDBG}, 0 offen
    s_waitcnt vmcnt(0)
    L_end:
    s_endpgm
    ''')

def capture(A, fn):
    n0 = len(A.lines); fn(); ls = A.lines[n0:]; del A.lines[n0:]
    return ls

def simple_stream(A, name, nitems, first, prep, need, loads, late, nlate, part1, part2, nmid, stores1, stores2, n1, n2, vpoll, vpaddr, vflag, vfaddr, code, fin,
                  haspoll=True, endlabel='L_end', start='0', step=1):
    poll, fix, vval = pollops(vpoll, vpaddr)
    def flag():
        if vflag is None: return
        l = A.lab('Lf')
        A(f'''s_mov_b64 exec, 1
        ds_add_rtn_u32 {vflag}, v11, v23
        s_waitcnt lgkmcnt(0)
        v_readfirstlane_b32 s63, {vflag}
        v_mov_b32 {vflag}, {sI}
        s_and_b32 s63, s63, 3
        s_cmp_lg_u32 s63, 3
        s_cbranch_scc1 {l}
        buffer_store_dword {vflag}, {vfaddr}, {WS}, 0 offen sc1
        {l}:
        s_mov_b64 exec, -1''')
    hp = 1 if haspoll else 0
    A(f's_mov_b32 {sI}, {start}\n s_mov_b32 s65, 1')
    first()
    A('s_waitcnt vmcnt(0)')
    prep()
    A(f'{name}_spin:')
    if haspoll: spin(A, vpoll, vpaddr, 's65', code)
    A(f'{name}_ld:')
    stamp(A, 'v220', sI)
    need(1); loads('s65')
    if haspoll: A(poll)
    late()
    part1(nlate + hp)
    A(f's_waitcnt vmcnt({nlate})')
    A(f'{name}_mid:')
    if haspoll:
        A(f's_add_u32 s66, {sI}, 2\n v_cmp_gt_u32 vcc, s66, {vval}\n s_cbranch_vccz {name}_ov')
    part2()
    stores1(); stores2()
    stamp(A, 'v221', sI)
    A(f'''s_add_u32 {sI}, {sI}, {step}
    s_add_u32 s65, {sI}, 1
    s_cmp_ge_u32 {sI}, {nitems}
    s_cbranch_scc1 {name}_done
    s_waitcnt vmcnt({n1 + n2})''')
    prep()
    A(f's_waitcnt vmcnt({n2})')
    flag()
    if haspoll:
        A(f's_branch {name}_spin')
    else:
        A(f's_branch {name}_ld')
    if haspoll:
        A(f'{name}_ov:')
        p2 = capture(A, part2)
        ld = capture(A, lambda: loads('s66'))
        groups = []; cur = []
        for l in ld:
            cur.append(l)
            if l.strip().startswith('buffer_'): groups.append(cur); cur = []
        k = 0; since = 99
        for l in p2:
            A.lines.append(l); since += 1
            if l.strip().startswith('v_') and since >= 5 and k < len(groups) and not l.strip().startswith(('v_mov_b32 v8', 'v_rsq')):
                A.lines += groups[k]; k += 1; since = 0
        for g in groups[k:]: A.lines += g
        stores1(); stores2()
        stamp(A, 'v221', sI)
        A(f'''s_add_u32 {sI}, {sI}, 1
        s_add_u32 s65, {sI}, 1
        {poll}
        s_waitcnt vmcnt({n1 + n2 + 1})''')
        prep()
        stamp(A, 'v220', sI)
        part1(None)
        A(f's_waitcnt vmcnt(0)')
        flag()
        need(1); late()
        A(f's_branch {name}_mid')
    A(f'{name}_done:')
    A(f's_mov_b32 {sI}, {nitems}\n s_waitcnt vmcnt(0)')
    flag()
    fin()
    A('s_waitcnt vmcnt(0)')
    if endlabel:
        dump(A, ['v220', 'v221'])
        A('s_endpgm')

def after_stream(A, name, nitems, loads, compute, stores, vpoll, vpaddr, vflag, vfaddr, code):
    poll, fix, vval = pollops(vpoll, vpaddr)
    def flag(): A(f'v_mov_b32 {vflag}, {sI}\n buffer_store_dword {vflag}, {vfaddr}, {WS}, 0 offen sc1')
    A(f's_mov_b32 {sI}, 0')
    A(f'{name}_spin:\n s_add_u32 s65, {sI}, 1')
    spin(A, vpoll, vpaddr, 's65', code)
    A(f'{name}_ld:\n s_mov_b32 s64, {sI}')
    loads(None)
    A(f'{name}_top:')
    stamp(A, 'v220', sI)
    compute(lambda: A(poll))
    A('s_waitcnt vmcnt(0)')
    stores()
    stamp(A, 'v221', sI)
    A(f'''s_add_u32 {sI}, {sI}, 1
    s_cmp_ge_u32 {sI}, {nitems}
    s_cbranch_scc1 {name}_done
    s_add_u32 s65, {sI}, 1
    {fix}
    v_cmp_gt_u32 vcc, s65, {vval}
    s_cbranch_vccnz {name}_idle
    s_mov_b32 s64, {sI}''')
    loads(flag)
    A(f's_branch {name}_top')
    A(f'{name}_idle:\n {poll}\n s_waitcnt vmcnt(0)')
    A(f'{fix}\n v_cmp_gt_u32 vcc, s65, {vval}')
    flag()
    A(f's_cbranch_vccz {name}_ld\n s_branch {name}_spin')
    A(f'{name}_done:\n s_waitcnt vmcnt(0)')
    flag()
    A('s_waitcnt vmcnt(0)')
    dump(A, ['v220', 'v221'])
    A('s_endpgm')

M16 = 'v_mfma_f32_16x16x32_bf16'
def red_stream(A, name, part, pbase, res_srd, res_base, xo_srd, xo_base, xn_base, fin, fout, code, endlabel, fres=None, fcon=None, fpub=None, step=1):
    vPL, vRL, vRL4, vXW, vXW4, vNW, vCP, vCP3, vSW, vSR, vMK = 'v1', 'v2', 'v3', 'v4', 'v5', 12, 'v17', 'v18', 'v19', 'v20', 'v21'
    vPA, vP, vFA, vF, vCA = 'v22', 'v10', 'v6', 'v7', 'v9'
    SA, SB = 24, 28
    PL = 32
    RS = 104
    ACC = 116
    PK = 136
    T = 148
    CO = 164
    IMX, IMN, STAT, IMR = 0, 16384, 32768, 49152
    if fin is not None:
        lane(A, vPA)
        A(f'''v_min_u32 {vPA}, 23, {vPA}
        v_lshlrev_b32 {vPA}, 2, {vPA}
        v_add_u32 {vPA}, {fin}, {vPA}
        s_lshl_b32 s63, s70, 2
        s_add_u32 s64, s63, {fres or 0}
        v_mov_b32 v162, s64
        s_add_u32 s63, s63, {fcon}
        s_cmp_eq_u32 {sW}, 0
        s_cselect_b32 s63, s63, {OOB}''')
        lane(A, vCA)
        A(f'''v_cmp_eq_u32 vcc, 0, {vCA}
        v_mov_b32 v8, s63
        v_mov_b32 {vCA}, {OOB}
        v_cndmask_b32 {vCA}, {vCA}, v8, vcc
        s_mov_b32 s78, 0''')
    if fout is not None:
        A(f's_lshl_b32 s63, s70, 2\n s_add_u32 s63, s63, {fout}')
        if step > 1: A('s_lshl_b32 s64, s80, 4\n s_add_u32 s63, s63, s64')
        A(f'v_mov_b32 {vFA}, s63')
        if step > 1: A(f'v_mov_b32 {vF}, s80\n s_mov_b64 exec, 1\n buffer_store_dword {vF}, {vFA}, {WS}, 0 offen sc1\n s_mov_b64 exec, -1')
    def need_res(add):
        if fres is None: return
        l = A.lab('Lr')
        A(f'''s_add_u32 s79, {sI}, {add + 1}
        s_min_u32 s79, s79, {NSEG}
        s_cmp_ge_u32 s78, s79
        s_cbranch_scc1 {l}''')
        spin(A, 'v161', 'v162', 's79', code + 100)
        A(f'v_readfirstlane_b32 s78, v161\n {l}:')
    def gaddr(srd, q):
        return (vCP if q < 2 else vCP3) if srd == WS else f'v{3+q}'
    def resid(add):
        A(f's_mul_i32 s67, {sI}, 36864\n s_add_u32 s67, s67, s72\n s_add_u32 s67, s67, {res_base + add}')
        A(f'''s_mov_b32 m0, s75
        s_nop 0
        buffer_load_dwordx4 {gaddr(res_srd,0)}, {res_srd}, s67 offen sc1 lds
        buffer_load_dwordx4 {gaddr(res_srd,1)}, {res_srd}, s67 offen offset:1024 sc1 lds
        s_mov_b64 exec, 0xffff
        buffer_load_dwordx4 {gaddr(res_srd,2)}, {res_srd}, s67 offen offset:2048 sc1 lds
        s_mov_b64 exec, -1
        s_xor_b32 s75, s75, 0x10000''')
    def first():
        A('s_and_b32 s75, s75, 0xffff\n s_mov_b32 s77, 0\n s_barrier')
        if part:
            l = A.lab('Lpt')
            A(f's_mov_b32 s66, 0\n {l}:')
            loads('s66')
            A(f's_add_u32 s66, s66, 1\n s_cmp_lt_u32 s66, {PRING}\n s_cbranch_scc1 {l}')
        need_res(0); resid(0)
    def late(): resid(36864 * step)
    def loads(sreg):
        if part:
            A(f's_and_b32 s67, {sreg}, {PRING-1}\n s_mul_i32 s67, s67, {8*36864}\n s_add_u32 s67, s67, {pbase}\n s_add_u32 s68, s67, s74\n s_add_u32 s67, s67, s73')
            for a_ in range(9):
                pw, pp = divmod(a_, 3)
                for kh in range(2):
                    A(f's_add_u32 s69, {"s67" if pp < 2 else "s68"}, {kh*4*36864 + pw*3072}')
                    A(f'buffer_load_dwordx4 {v(PL+8*a_+4*kh,4)}, {vPL}, {WS}, s69 offen offset:{512*pp if pp < 2 else 0} sc1')
    def unpack(src):
        for d in range(10):
            A(f'v_lshlrev_b32 {v(ACC+2*d)}, 16, {v(src+d)}\n v_and_b32 {v(ACC+2*d+1)}, 0xffff0000, {v(src+d)}')
    def rowsum(x, t):
        A(f'''s_nop 1
        v_add_f32_dpp {x}, {x}, {x} row_ror:8 row_mask:0xf bank_mask:0xf
        v_mov_b32 {t}, {x}
        s_nop 1
        v_permlane16_swap_b32 {x}, {t}
        v_add_f32 {x}, {x}, {t}
        v_mov_b32 {t}, {x}
        s_nop 1
        v_permlane32_swap_b32 {x}, {t}
        v_add_f32 {x}, {x}, {t}''')
    def prep():
        for j in range(5): A(f'v_add_u32 {v(T+j)}, s77, {v(vNW+j)}')
        A('s_xor_b32 s77, s77, 0x10000\n s_barrier')
        for j in range(5): A(f'ds_read_b64 {v(RS+2*j,2)}, {v(T+j)} offset:{IMR}')
        A('s_waitcnt lgkmcnt(0)')
        unpack(RS)
    def part1(extra):
        if part:
            for a_ in range(9):
                for kh in range(2):
                    if extra is not None: A(f's_waitcnt vmcnt({extra + 17 - 2*a_ - kh})')
                    d = v(ACC + 4 * (a_ >> 1), 4)
                    A(f'{M16} {d}, {v(SB if a_ & 1 else SA,4)}, {v(PL+8*a_+4*kh,4)}, {d}')
    def consumed():
        if not part: return
        l1 = A.lab('Lc'); l2 = A.lab('Lc')
        A(f'''s_add_u32 s63, {sI}, 1
        v_mov_b32 v8, s63
        s_cmp_lg_u32 {sSLOW}, 0
        s_cbranch_scc1 {l1}
        buffer_store_dword v8, {vCA}, {WS}, 0 offen
        s_branch {l2}
        {l1}:
        buffer_store_dword v8, {vCA}, {WS}, 0 offen sc1
        {l2}:''')
        respub()
    def respub():
        if fpub is None: return
        A(f'v_mov_b32 v163, {sI}\n s_mov_b32 s63, {fpub - fcon}\n buffer_store_dword v163, {vCA}, {WS}, s63 offen sc1')
    def fin_():
        if fpub is None: return
        A('s_barrier'); respub()
    def part2():
        src = PK
        if part:
            A('s_nop 3')
            for d in range(10):
                A(f'v_cvt_pk_bf16_f32 {v(PK+d)}, {v(ACC+2*d)}, {v(ACC+2*d+1)}')
        if xo_srd is not None:
            for j in range(5): A(f'ds_write_b64 {v(vNW+j)}, {v(src+2*j,2)} offset:{IMX}')
        if xn_base is not None:
            A(f'v_pk_add_f32 {v(T,2)}, {v(ACC,2)}, {v(ACC+2,2)}\n v_pk_add_f32 {v(T+2,2)}, {v(ACC+4,2)}, {v(ACC+6,2)}')
            for d in range(4, 10, 2):
                A(f'v_pk_add_f32 {v(T,2)}, {v(T,2)}, {v(ACC+2*d,2)}\n v_pk_add_f32 {v(T+2,2)}, {v(T+2,2)}, {v(ACC+2*d+2,2)}')
            A(f'v_pk_add_f32 {v(T,2)}, {v(T,2)}, {v(T+2,2)}\n v_add_f32 {v(T)}, {v(T)}, {v(T+1)}')
            rowsum(v(T), v(T+1))
            A(f'v_mul_f32 {v(T)}, {f2u(-1.0/144):#x}, {v(T)}\n v_mul_f32 {v(T+2)}, {v(T)}, {vMK}')
            for d in range(10):
                A(f'v_pk_add_f32 {v(ACC+2*d,2)}, {v(ACC+2*d,2)}, {v(T if d < 8 else T+2,2)} op_sel_hi:[1,0]')
            A(f'v_pk_mul_f32 {v(T+4,2)}, {v(ACC,2)}, {v(ACC,2)}\n v_pk_mul_f32 {v(T+6,2)}, {v(ACC+2,2)}, {v(ACC+2,2)}')
            for d in range(2, 10, 2):
                A(f'v_pk_fma_f32 {v(T+4,2)}, {v(ACC+2*d,2)}, {v(ACC+2*d,2)}, {v(T+4,2)}')
                A(f'v_pk_fma_f32 {v(T+6,2)}, {v(ACC+2*d+2,2)}, {v(ACC+2*d+2,2)}, {v(T+6,2)}')
            A(f'v_pk_add_f32 {v(T+4,2)}, {v(T+4,2)}, {v(T+6,2)}\n v_add_f32 {v(T+1)}, {v(T+4)}, {v(T+5)}')
            rowsum(v(T+1), v(T+3))
            A(f'''ds_write_b64 {vSW}, {v(T,2)}
            s_waitcnt lgkmcnt(0)
            s_barrier
            ds_read_b128 {v(T+4,4)}, {vSR}
            ds_read_b128 {v(T+8,4)}, {vSR} offset:16''')
            consumed()
            A(f'''s_waitcnt lgkmcnt(0)
            v_pk_add_f32 {v(T+2,2)}, {v(T+4,2)}, {v(T+6,2)}
            v_pk_add_f32 {v(CO,2)}, {v(T+8,2)}, {v(T+10,2)}
            v_pk_add_f32 {v(T+2,2)}, {v(T+2,2)}, {v(CO,2)}
            v_mul_f32 {v(T+2)}, 0.25, {v(T+2)}
            v_sub_f32 {v(T+4)}, {v(T+4)}, {v(T+2)}
            v_sub_f32 {v(T+6)}, {v(T+6)}, {v(T+2)}
            v_sub_f32 {v(T+8)}, {v(T+8)}, {v(T+2)}
            v_sub_f32 {v(T+10)}, {v(T+10)}, {v(T+2)}
            v_mul_f32 {v(T+5)}, {v(T+4)}, {v(T+4)}
            v_fmac_f32 {v(T+5)}, {v(T+6)}, {v(T+6)}
            v_fmac_f32 {v(T+5)}, {v(T+8)}, {v(T+8)}
            v_fmac_f32 {v(T+5)}, {v(T+10)}, {v(T+10)}
            v_mov_b32 {v(T+7)}, {f2u(1e-5):#x}
            v_fmac_f32 {v(T+7)}, {f2u(1.0/576):#x}, {v(T+3)}
            v_fmac_f32 {v(T+7)}, 0x3e800000, {v(T+5)}
            v_rsq_f32 {v(T+4)}, {v(T+7)}
            v_sub_f32 {v(T+2)}, {v(T+2)}, {v(T)}
            v_mul_f32 {v(T+6)}, {v(T+2)}, {v(T+4)}''')
            for d in range(10):
                A(f'v_pk_fma_f32 {v(ACC+2*d,2)}, {v(ACC+2*d,2)}, {v(T+4,2)}, {v(T+6,2)} op_sel_hi:[1,0,0]')
            for d in range(10):
                A(f'v_cvt_pk_bf16_f32 {v(CO+d)}, {v(ACC+2*d)}, {v(ACC+2*d+1)}')
            for j in range(5): A(f'ds_write_b64 {v(vNW+j)}, {v(CO+2*j,2)} offset:{IMN}')
        A('s_waitcnt lgkmcnt(0)\n s_barrier')
        if xn_base is not None:
            for q in range(3): A(f'ds_read_b128 {v(CO+4*q,4)}, {vCP} offset:{IMN+1024*q}')
        if xo_srd is not None:
            for q in range(3): A(f'ds_read_b128 {v(CO+12+4*q,4)}, {vCP} offset:{IMX+1024*q}')
        if xn_base is None: consumed()
    def st3(reg, srd, soff):
        for q in range(3):
            if q == 2: A('s_mov_b64 exec, 0xffff')
            A(f'buffer_store_dwordx4 {v(reg+4*q,4)}, {gaddr(srd,0)}, {srd}, {soff} offen offset:{1024*q} sc1')
        A('s_mov_b64 exec, -1')
    def stores1():
        A(f's_mul_i32 s67, {sI}, 36864\n s_add_u32 s67, s67, s72')
        if xn_base is not None:
            A(f's_add_u32 s68, s67, {xn_base}\n s_waitcnt lgkmcnt({3 if xo_srd is not None else 0})')
            st3(CO, WS, 's68')
    def stores2():
        if xo_srd is not None:
            if xo_base: A(f's_add_u32 s67, s67, {xo_base}')
            A('s_waitcnt lgkmcnt(0)')
            st3(CO + 12, xo_srd, 's67')
    simple_stream(A, name, NSEG, first, prep, need_res, loads, late, 3, part1, part2, 0, stores1, stores2,
                  3 if xn_base is not None else 0, 3 if xo_srd is not None else 0, vP, vPA, vF if fout is not None else None, vFA, code, fin_,
                  haspoll=fin is not None, endlabel=endlabel, start='s80' if step > 1 else '0', step=step)

def role_red(A):
    A('L_red:')
    if not enabled('red'):
        A('s_endpgm'); return
    validate(A)
    A(f'''
    s_sub_u32 s63, {sT}, 24
    s_lshr_b32 s71, s63, 2
    s_and_b32 s70, s63, 3
    s_mul_i32 s72, s70, 9216
    s_lshr_b32 s63, s70, 1
    s_lshl_b32 s73, s63, 10
    s_lshl_b32 s74, s63, 9
    s_add_u32 s74, s74, 2048
    ''')
    lane(A, 'v8')
    A(f'''
    v_and_b32 v9, 7, v8
    v_bfe_u32 v10, v8, 3, 1
    v_lshrrev_b32 v11, 4, v8
    v_mul_u32_u24 v1, 36864, v11
    v_lshl_add_u32 v1, v10, 8, v1
    v_lshl_add_u32 v1, v9, 4, v1
    s_mul_i32 s63, {sW}, 9216
    s_and_b32 s64, s70, 1
    s_lshl_b32 s64, s64, 7
    s_add_u32 s63, s63, s64
    v_add_u32 v1, s63, v1
    v_lshrrev_b32 v22, 5, v8
    v_lshl_add_u32 v23, v22, 1, v10
    s_mul_i32 s63, {sW}, 18
    v_add_u32 v23, s63, v23
    v_mul_u32_u24 v32, 1152, v9
    v_and_b32 v33, 1, v11
    v_lshl_add_u32 v32, v33, 3, v32
    v_cmp_eq_u32 vcc, 0, v22
    v_mov_b32 v34, {OOB}
    v_mov_b32 v35, 12288
    v_mov_b64 v[40:41], 0
    ds_write_b64 v35, v[40:41] offset:49152
    v_add_u32 v38, 0x10000, v35
    ds_write_b64 v38, v[40:41] offset:49152
    v_cndmask_b32 v21, 0, 1.0, vcc
    s_and_b32 s63, s70, 1
    s_lshl_b32 s63, s63, 2
    v_lshrrev_b32 v36, 1, v9
    v_add_u32 v36, s63, v36
    ''')
    for j in range(5):
        A(f'''v_add_u32 v37, {4*j}, v23
        v_xor_b32 v37, v37, v36
        v_lshl_add_u32 v{12+j}, v37, 4, v32''')
    A(f'''
    v_cndmask_b32 v16, v35, v16, vcc
    s_mul_i32 s63, {sW}, 2304
    s_add_u32 s75, s63, 49152
    v_lshl_add_u32 v17, v8, 4, s63
    v_cmp_gt_u32 vcc, 16, v8
    v_lshlrev_b32 v20, 5, v9
    v_add_u32 v20, 32768, v20
    v_cndmask_b32 v18, v34, v17, vcc
    s_and_b32 s63, s70, 1
    s_lshl_b32 s63, s63, 2
    s_add_u32 s63, s63, {sW}
    s_lshl_b32 s63, s63, 4
    v_xor_b32 v3, s63, v17
    v_mov_b32 v4, v3
    v_cndmask_b32 v5, v34, v3, vcc
    s_lshl_b32 s63, {sW}, 3
    v_add_u32 v19, s63, v20
    v_and_b32 v33, 1, v8
    v_cmp_eq_u32 vcc, 0, v33
    v_mov_b32 v34, 0x3f80
    v_mov_b32 v35, 0x3f800000
    v_cndmask_b32 v34, v35, v34, vcc
    v_bfe_u32 v33, v8, 1, 3
    ''')
    for d in range(8):
        A(f'v_cmp_eq_u32 vcc, {d}, v33\n s_nop 1\n v_cndmask_b32 v{24+d}, 0, v34, vcc')
    A(f'''
    v_mov_b32 v11, 36864
    v_mov_b32 v23, 1
    ds_write_b32 v11, v40
    s_waitcnt lgkmcnt(0)
    s_lshl_b32 s80, {sL}, 1
    s_add_u32 s80, s80, s71
    ''')
    red_stream(A, 'L_ln0', False, 0, SX, 0, None, 0, XNA, None, F_XNA, 13, None, step=4)
    A('''s_cmp_eq_u32 s80, 1
    s_cbranch_scc1 L_red_1
    s_cmp_eq_u32 s80, 2
    s_cbranch_scc1 L_red_2
    s_cmp_eq_u32 s80, 3
    s_cbranch_scc1 L_red_3
    ''')
    red_stream(A, 'L_r10', True, PW, SX, 0, WS, X1, XNF, F_WO, F_XNF, 10, 'L_end', None, F_CON, F_RES)
    A('L_red_1:')
    red_stream(A, 'L_r11', True, PW + PRING * 294912, WS, X2, WS, X1 + XB, XNF + XB, F_WO + 512, F_XNF + 128, 11, 'L_end', F_RES + 256, F_CON + 128, F_RES + 128)
    A('L_red_2:')
    red_stream(A, 'L_r20', True, PD, WS, X1, WS, X2, XNA + XB, F_DN, F_XNA + 128, 12, 'L_end', F_RES, F_CON + 256, F_RES + 256)
    A('L_red_3:')
    red_stream(A, 'L_r21', True, PD + PRING * 294912, WS, X1 + XB, SOUT, 0, None, F_DN + 512, None, 14, 'L_end', F_RES + 128, F_CON + 384)
```

```python
NSEG = 64
XB = 0x240000
ZERO0 = 0; ZERO_BYTES = 0x200000
RING0 = 0x30000; RSLOT = 294912
ONES0 = 0x200000; ONES_BYTES = 0x40000
MEM0 = ONES0
XNA = 0x300000
XNF = XNA + 2 * XB
X1 = XNF + 2 * XB
X2 = X1 + 2 * XB
QKV = 0x1400000
KVM = 0x7400000
OB = 0x8400000
HB = 0xA400000
PW = 0xC800000
PD = 0xDA00000
DBG = 0xF000000
WS_BYTES = 0x10000000
F_XNA = 0x0000
F_XNF = 0x0100
F_WO = 0x0400
F_DN = 0x0800
F_UP = 0x1000
F_QKV = 0x3000
F_CH = 0x5000
F_ATT = 0x7000
LDS_BYTES = 163840
PRING = 4
F_CON = 0x0200
F_RES = 0x0c00
```

```python
import sys, mk2, base, haz
cfg = mk2.cfg
def setg(**kw):
    for k, v in kw.items(): setattr(base, k, v); setattr(mk2, k, v)
exec(sys.argv[2] if len(sys.argv) > 2 else 'pass')
t = mk2.build()
assert not haz.check(t)
open(f'tmpk/{sys.argv[1]}.s', 'w').write(t)
```

```python
import sys
from asm import *
from layout import *

KNAME = 'interleave_layers__memory_aug_recurrent_mem_tr__glu_gated_swiglu__prompt_kernel'
WS, SX, SOUT, SDBG, SMEM0, SWQ, SWK, SWV, SWO, SW1, SW3, SW2 = [f's[{8+4*i}:{11+4*i}]' for i in range(12)]
sX, sT, sW, sSLOW, sL, sI, sSPIN = 's56', 's57', 's58', 's59', 's60', 's61', 's62'
OOB = 0x7ffffff0
LOG2E = 1.4426950408889634

class Cfg:
    roles = None
    skip_init = False
    spin_limit = 400000
    lam = 14
    timing = False
    force_slow = False
    force_rank = False
    codepf = True
    xmap = 0x73416250
cfg = Cfg()

def f2u(x):
    import struct
    return struct.unpack('<I', struct.pack('<f', x))[0]

def enabled(n):
    return cfg.roles is None or n in cfg.roles

def pollops(vdst, vaddr):
    if isinstance(vdst, tuple):
        n = vdst[0]
        fix = f'v_min_u32 v{n}, v{n}, v{n+1}\n v_lshrrev_b32 v{n+1}, 6, v{n}\n v_or_b32 v{n+1}, v{n+1}, {vdst[1]}\n v_add3_u32 v{n}, v{n}, v{n+1}, -1\n v_max_i32 v{n}, 0, v{n}'
        return f'buffer_load_dwordx2 v[{n}:{n+1}], {vaddr}, {WS}, 0 offen sc1', fix, f'v{n}'
    return f'buffer_load_dword {vdst}, {vaddr}, {WS}, 0 offen sc1', '', vdst

def spin(A, vdst, vaddr, starget, code):
    l = A.lab('Lspin'); d = A.lab('Lspind')
    ld, fix, vdst = pollops(vdst, vaddr)
    A(f'''
    s_mov_b32 {sSPIN}, 0
    {l}:
    {ld}
    s_waitcnt vmcnt(0)
    {fix}
    v_cmp_gt_u32 vcc, {starget}, {vdst}
    s_cbranch_vccz {d}
    s_add_u32 {sSPIN}, {sSPIN}, 1
    s_cmp_lt_u32 {sSPIN}, {cfg.spin_limit}
    s_cbranch_scc1 {l}
    s_mov_b32 s63, {code}
    s_branch L_abort
    {d}:
    ''')

def validate(A, early=False):
    l = A.lab('Lval'); d = A.lab('Lvald'); ok = A.lab('Lvalok')
    A(f'''
    s_cmp_eq_u32 s7, 1
    s_cbranch_scc1 {ok}
    v_mbcnt_lo_u32_b32 v1, -1, 0
    v_mbcnt_hi_u32_b32 v1, -1, v1
    v_lshlrev_b32 v1, 2, v1
    s_mov_b32 {sSPIN}, 0
    s_mov_b32 s63, 0x80808080
    {'s_cmp_lg_u32 %s, 0' % sW if early else ''}
    {'s_cbranch_scc1 ' + d if early else ''}
    {l}:
    buffer_load_dword v2, v1, {SDBG}, 0 offen sc1
    s_waitcnt vmcnt(0)
    v_and_b32 v3, s63, v2
    v_cmp_ne_u32 vcc, s63, v3
    s_cbranch_vccz {d}
    s_add_u32 {sSPIN}, {sSPIN}, 1
    s_cmp_lt_u32 {sSPIN}, {cfg.spin_limit}
    s_cbranch_scc1 {l}
    {d}:''')
    if early: A(f'''s_barrier
    buffer_load_dword v2, v1, {SDBG}, 0 offen sc1
    s_waitcnt vmcnt(0)
    v_and_b32 v3, s63, v2
    v_cmp_ne_u32 vcc, s63, v3''')
    A(f'''s_mov_b32 s63, 1
    s_cbranch_vccnz L_abort
    v_lshlrev_b32 v3, v2, 1
    v_lshrrev_b32 v4, 8, v2
    v_lshl_or_b32 v3, 1, v4, v3
    v_lshrrev_b32 v4, 16, v2
    v_lshl_or_b32 v3, 1, v4, v3
    v_lshrrev_b32 v4, 24, v2
    v_lshl_or_b32 v3, 1, v4, v3
    s_nop 1
    v_or_b32_dpp v3, v3, v3 quad_perm:[1,0,3,2] row_mask:0xf bank_mask:0xf
    v_cmp_ne_u32 vcc, {0x1ff if (cfg.force_slow or cfg.force_rank) else 0xff}, v3
    s_cbranch_vccnz L_rerank
    s_mov_b32 s7, 1
    {ok}:
    ''')
    stamp_s(A, 's99')
    if cfg.timing: A('s_memtime s[96:97]\n s_waitcnt lgkmcnt(0)\n s_mov_b32 s101, s96')

def ln0_hook(A, younger, finish=True):
    l = A.lab('Lln')
    ACC = 52; T = 20
    def halfsum(x, t):
        for m in ('quad_perm:[1,0,3,2]', 'quad_perm:[2,3,0,1]', 'row_half_mirror', 'row_mirror'):
            A(f's_nop 1\n v_add_f32_dpp {x}, {x}, {x} {m} row_mask:0xf bank_mask:0xf')
        A(f'v_mov_b32 {t}, {x}\n s_nop 1\n v_permlane16_swap_b32 {x}, {t}\n v_add_f32 {x}, {x}, {t}')
    A(f's_cmp_lg_u32 s7, 0\n s_cbranch_scc1 {l}\n s_waitcnt vmcnt({min(63, younger + (0 if cfg.skip_init else 3))})')
    for d in range(12):
        A(f'v_lshlrev_b32 {v(ACC+2*d)}, 16, {v(40+d)}\n v_and_b32 {v(ACC+2*d+1)}, 0xffff0000, {v(40+d)}')
    A(f'v_pk_add_f32 {v(T,2)}, {v(ACC,2)}, {v(ACC+2,2)}')
    for d in range(2, 12): A(f'v_pk_add_f32 {v(T,2)}, {v(T,2)}, {v(ACC+2*d,2)}')
    A(f'v_add_f32 {v(T)}, {v(T)}, {v(T+1)}')
    halfsum(v(T), v(T+1))
    A(f'v_mul_f32 {v(T)}, v78, {v(T)}')
    for d in range(12): A(f'v_pk_add_f32 {v(ACC+2*d,2)}, {v(ACC+2*d,2)}, {v(T,2)} op_sel_hi:[1,0]')
    A(f'v_pk_mul_f32 {v(T+2,2)}, {v(ACC,2)}, {v(ACC,2)}')
    for d in range(1, 12): A(f'v_pk_fma_f32 {v(T+2,2)}, {v(ACC+2*d,2)}, {v(ACC+2*d,2)}, {v(T+2,2)}')
    A(f'v_add_f32 {v(T+2)}, {v(T+2)}, {v(T+3)}')
    halfsum(v(T+2), v(T+3))
    A(f'''v_mov_b32 {v(T+3)}, {f2u(1e-5):#x}
    v_fmac_f32 {v(T+3)}, {f2u(1.0/576):#x}, {v(T+2)}
    v_rsq_f32 {v(T+2)}, {v(T+3)}
    s_add_u32 s63, s3, {XNA}''')
    for d in range(12): A(f'v_pk_mul_f32 {v(ACC+2*d,2)}, {v(ACC+2*d,2)}, {v(T+2,2)} op_sel_hi:[1,0]')
    for d in range(12): A(f'v_cvt_pk_bf16_f32 {v(40+d)}, {v(ACC+2*d)}, {v(ACC+2*d+1)}')
    for j in range(3): A(f'buffer_store_dwordx4 {v(40+4*j,4)}, v77, {WS}, s63 offen offset:{384*j} sc1')
    A(f'{l}:')
    if finish:
        A('s_waitcnt vmcnt(0)'); arrive(A)

def arrive(A):
    l = A.lab('Lar')
    A(f'''s_cmp_lg_u32 s7, 0
    s_cbranch_scc1 {l}
    s_or_b32 s63, s6, 0x80
    v_mov_b32 v20, s63
    s_barrier
    buffer_store_byte v20, v79, {SDBG}, 0 offen sc1
    {l}:''')

def lane(A, dst):
    A(f'''v_mbcnt_lo_u32_b32 {dst}, -1, 0
    v_mbcnt_hi_u32_b32 {dst}, -1, {dst}''')

def stamp(A, vreg, sidx):
    if not cfg.timing or cfg.timing >= 3: return
    A(f'''s_memrealtime s[96:97]
    s_and_b32 m0, {sidx}, 63
    s_waitcnt lgkmcnt(0)
    v_writelane_b32 {vreg}, s96, m0''')

def stamp_s(A, sreg):
    if not cfg.timing: return
    A(f's_memrealtime s[96:97]\n s_waitcnt lgkmcnt(0)\n s_mov_b32 {sreg}, s96')

def dump(A, vregs):
    if not cfg.timing: return
    stamp_s(A, 's100')
    A(f'''s_lshl_b32 s63, {sX}, 5
    s_add_u32 s63, s63, {sT}
    s_lshl_b32 s63, s63, 2
    s_add_u32 s63, s63, {sW}
    s_lshl_b32 s63, s63, 11
    s_add_u32 s63, s63, {DBG}
    v_mbcnt_lo_u32_b32 v1, -1, 0
    v_mbcnt_hi_u32_b32 v1, -1, v1
    v_lshlrev_b32 v1, 2, v1
    v_mov_b32 v2, s98
    v_writelane_b32 v2, s99, 1
    v_writelane_b32 v2, s100, 2
    s_memtime s[96:97]
    s_waitcnt lgkmcnt(0)
    s_sub_u32 s101, s96, s101
    v_writelane_b32 v2, s101, 3
    buffer_store_dword v2, v1, {WS}, s63 offen''')
    for i, x in enumerate(vregs):
        A(f'buffer_store_dword {x}, v1, {WS}, s63 offen offset:{256*(i+1)}')
    A('s_waitcnt vmcnt(0)')

def interleave(A, mains, fills, start=0, every=1):
    fi = 0
    for i, m in enumerate(mains):
        A(m)
        if i >= start and (i - start) % every == 0 and fi < len(fills):
            A(fills[fi]); fi += 1
    assert fi == len(fills), (fi, len(fills))

def prologue(A):
    A(f'''
    s_cmp_ge_u32 s2, 256
    s_cbranch_scc1 L_end
    s_load_dwordx16 s[64:79], s[0:1], 0
    s_load_dwordx8 s[80:87], s[0:1], 64
    s_load_dwordx4 s[88:91], s[0:1], 96
    s_getreg_b32 {sX}, hwreg(HW_REG_XCC_ID)
    v_lshrrev_b32 v1, 6, v0
    s_and_b32 {sX}, {sX}, 15
    v_readfirstlane_b32 {sW}, v1
    s_mov_b32 {sSLOW}, 0
    s_mov_b32 s6, {sX}
    ''')
    if cfg.codepf:
        A('''s_getpc_b64 s[92:93]
        L_pc:
        s_lshr_b32 s63, s2, 3
        s_lshl_b32 s63, s63, 8
        v_add_u32 v2, s63, v0
        v_lshlrev_b32 v2, 4, v2
        v_min_u32 v2, L_code_end-L_pc-4, v2
        v_and_b32 v3, 7, v0
        v_cmp_eq_u32 vcc, 0, v3
        s_and_saveexec_b64 s[94:95], vcc
        global_load_dword v75, v2, s[92:93]
        s_mov_b64 exec, s[94:95]''')
    A('s_waitcnt lgkmcnt(0)')
    stamp_s(A, 's98')
    srds = [(8, 90, WS_BYTES), (12, 64, XB), (16, 86, XB), (20, 88, 256), (24, 66, 9216), (28, 68, 4718592),
            (32, 70, 4718592), (36, 72, 4718592), (40, 74, 4718592), (44, 80, 5308416), (48, 82, 5308416), (52, 84, 5308416)]
    for d, p, n in srds:
        A(f'''s_mov_b32 s{d}, s{p}
        s_mov_b32 s{d+1}, s{p+1}
        s_mov_b32 s{d+2}, {n}
        s_mov_b32 s{d+3}, 0x20000''')
    A(f'''
    v_and_b32 v1, 31, v0
    v_lshrrev_b32 v2, 5, v0
    v_mul_u32_u24 v3, 1152, v2
    v_lshl_add_u32 v76, v1, 4, v3
    s_and_b32 s63, s2, 1
    s_lshl_b32 s63, s63, 2
    s_add_u32 s63, s63, {sW}
    v_xor_b32 v4, s63, v1
    v_lshl_add_u32 v77, v4, 4, v3
    v_cmp_gt_u32 vcc, 24, v1
    v_mov_b32 v3, {OOB}
    v_mov_b32 v4, {f2u(-1.0/576):#x}
    v_cndmask_b32 v76, v3, v76, vcc
    v_cndmask_b32 v77, v3, v77, vcc
    v_cndmask_b32 v78, 0, v4, vcc
    s_mul_i32 s3, s2, 9216
    buffer_load_dwordx4 v[40:43], v76, {SX}, s3 offen
    buffer_load_dwordx4 v[44:47], v76, {SX}, s3 offen offset:384
    buffer_load_dwordx4 v[48:51], v76, {SX}, s3 offen offset:768
    ''')
    if not cfg.skip_init:
        A(f'''
        s_cmp_eq_u32 s2, 0
        s_cselect_b32 s63, {NSEG}, 0
        v_cmp_eq_u32 vcc, 0, v0
        v_mov_b32 v8, s63
        v_mov_b64 v[12:13], 0
        v_cndmask_b32 v4, 0, v8, vcc
        v_mov_b64 v[14:15], 0
        v_mov_b32 v5, v4
        v_mov_b32 v6, v4
        v_mov_b32 v7, v4
        v_mov_b32 v8, -1
        v_lshlrev_b32 v9, 4, v0
        v_lshlrev_b32 v10, 2, v0
        s_lshl_b32 s63, s2, 13
        s_add_u32 s66, s63, 4096
        s_lshl_b32 s67, s2, 10
        s_add_u32 s67, s67, {ONES0}
        buffer_store_dwordx4 v[4:7], v9, {WS}, s63 offen sc1
        buffer_store_dwordx4 v[12:15], v9, {WS}, s66 offen sc1
        buffer_store_dword v8, v10, {WS}, s67 offen sc1
        ''')
    A(f'''
    v_mov_b32 v2, s2
    v_cmp_eq_u32 vcc, 0, v0
    s_lshr_b32 {sT}, s2, 3
    s_mov_b32 s7, 0
    v_cndmask_b32 v79, v3, v2, vcc
    s_cmp_ge_u32 {sX}, 8
    s_cbranch_scc1 L_norole
    L_dispatch:
    s_lshl_b32 s63, {sX}, 2
    s_lshr_b32 {sX}, {cfg.xmap:#x}, s63
    s_and_b32 {sX}, {sX}, 7
    s_and_b32 {sL}, {sX}, 1
    s_lshr_b32 s63, {sX}, 1
    s_cmp_eq_u32 s63, 0
    s_cbranch_scc1 L_chain
    s_cmp_eq_u32 s63, 1
    s_cbranch_scc1 L_qkv
    s_cmp_eq_u32 s63, 2
    s_cbranch_scc1 L_j_rg
    s_cmp_lt_u32 {sT}, 24
    s_cbranch_scc1 L_up
    s_branch L_att
    L_j_rg:
    s_cmp_ge_u32 {sT}, 24
    s_cbranch_scc1 L_red
    s_cmp_eq_u32 {sL}, 0
    s_cbranch_scc1 L_wo
    s_branch L_dn
    L_norole:
    ''')
    ln0_hook(A, 0)
    validate(A, True)
    A(f'''
    s_mov_b32 s63, 2
    s_branch L_abort
    L_rerank:
    s_mov_b32 s7, 1
    s_mov_b32 s64, 0
    L_rr1:
    s_mov_b32 s65, 0
    s_mov_b32 s66, 0
    v_bfe_u32 v3, v2, 0, 7
    v_cmp_eq_u32 vcc, s64, v3
    v_add_u32 v4, 0, v1
    v_cmp_gt_u32 s[68:69], s2, v4
    s_bcnt1_i32_b64 s63, vcc
    s_add_u32 s65, s65, s63
    s_and_b64 s[68:69], s[68:69], vcc
    s_bcnt1_i32_b64 s63, s[68:69]
    s_add_u32 s66, s66, s63
    v_bfe_u32 v3, v2, 8, 7
    v_cmp_eq_u32 vcc, s64, v3
    v_add_u32 v4, 1, v1
    v_cmp_gt_u32 s[68:69], s2, v4
    s_bcnt1_i32_b64 s63, vcc
    s_add_u32 s65, s65, s63
    s_and_b64 s[68:69], s[68:69], vcc
    s_bcnt1_i32_b64 s63, s[68:69]
    s_add_u32 s66, s66, s63
    v_bfe_u32 v3, v2, 16, 7
    v_cmp_eq_u32 vcc, s64, v3
    v_add_u32 v4, 2, v1
    v_cmp_gt_u32 s[68:69], s2, v4
    s_bcnt1_i32_b64 s63, vcc
    s_add_u32 s65, s65, s63
    s_and_b64 s[68:69], s[68:69], vcc
    s_bcnt1_i32_b64 s63, s[68:69]
    s_add_u32 s66, s66, s63
    v_bfe_u32 v3, v2, 24, 7
    v_cmp_eq_u32 vcc, s64, v3
    v_add_u32 v4, 3, v1
    v_cmp_gt_u32 s[68:69], s2, v4
    s_bcnt1_i32_b64 s63, vcc
    s_add_u32 s65, s65, s63
    s_and_b64 s[68:69], s[68:69], vcc
    s_bcnt1_i32_b64 s63, s[68:69]
    s_add_u32 s66, s66, s63
    s_cmp_eq_u32 s64, s6
    s_cselect_b32 {sT}, s66, {sT}
    s_cmp_lg_u32 s65, {33 if cfg.force_slow else 32}
    s_cselect_b32 {sSLOW}, 1, {sSLOW}
    s_add_u32 s64, s64, 1
    s_cmp_lt_u32 s64, 8
    s_cbranch_scc1 L_rr1
    s_mov_b32 {sX}, s6
    s_cmp_eq_u32 {sSLOW}, 0
    s_cbranch_scc1 L_rr2
    s_lshr_b32 {sX}, s2, 5
    s_and_b32 {sT}, s2, 31
    L_rr2:
    s_waitcnt vmcnt(0) lgkmcnt(0)
    s_barrier
    s_branch L_dispatch
    L_abort:
    s_lshl_b32 s64, {sX}, 8
    s_or_b32 s63, s63, s64
    s_lshl_b32 s64, {sI}, 16
    s_or_b32 s63, s63, s64
    s_or_b32 s63, s63, 0x80000000
    s_mov_b64 exec, 1
    v_mov_b64 v[4:5], 0
    v_mov_b64 v[6:7], 0
    ds_write_b128 v4, v[4:7]
    ds_write_b32 v4, v4 offset:4096
    v_mov_b32 v1, s63
    s_lshl_b32 s64, {sX}, 2
    s_add_u32 s64, s64, {DBG - 4096}
    v_mov_b32 v2, s64
    buffer_store_dword v1, v2, {WS}, 0 offen
    s_waitcnt vmcnt(0)
    L_end:
    s_endpgm
    ''')

def ringidx(d, s_):
    if PRING & (PRING - 1) == 0: return f's_and_b32 {d}, {s_}, {PRING - 1}'
    assert PRING == 3
    return f's_mul_i32 {d}, {s_}, 171\n s_lshr_b32 {d}, {d}, 9\n s_mul_i32 {d}, {d}, 3\n s_sub_u32 {d}, {s_}, {d}'

def capture(A, fn):
    n0 = len(A.lines); fn(); ls = A.lines[n0:]; del A.lines[n0:]
    return ls

M16 = 'v_mfma_f32_16x16x32_bf16'
def red_stream(A, name, pbase, res_ext, res_base, out_ext, xo_base, xn_base, fin, fout, code, fres, fcon, fpub):
    vPL, vG, vL, vNW, vCP, vSW, vSR, vMK = 'v1', 'v3', 'v4', 12, 'v17', 'v19', 'v20', 'v21'
    vPA, vP, vFA, vF, vCA = 'v22', 'v10', 'v6', 'v7', 'v9'
    SA, SB = 24, 28
    PL = 32; RS = 104; ACC = 116; PK = 136; T = 148; CO = 168; SH = 164; NX = 192
    IMN, IMR = 16384, 49152
    ln = xn_base is not None
    lane(A, vPA)
    A(f'''v_min_u32 {vPA}, 23, {vPA}
    v_lshlrev_b32 {vPA}, 2, {vPA}
    v_add_u32 {vPA}, {fin}, {vPA}
    s_lshl_b32 s63, s70, 2
    s_add_u32 s64, s63, {fres or 0}
    v_mov_b32 v162, s64
    s_add_u32 s64, s63, {fout or 0}
    v_mov_b32 {vFA}, s64
    s_add_u32 s63, s63, {fcon}
    s_cmp_eq_u32 {sW}, 0
    s_cselect_b32 s63, s63, {OOB}''')
    lane(A, vCA)
    A(f'''v_cmp_eq_u32 vcc, 0, {vCA}
    v_mov_b32 v8, s63
    v_mov_b32 {vCA}, {OOB}
    v_cndmask_b32 {vCA}, {vCA}, v8, vcc
    s_mov_b32 s78, 0
    s_mov_b32 s77, 0''')
    poll = f'buffer_load_dword {vP}, {vPA}, {WS}, 0 offen sc1'
    def flag():
        if fout is None: return
        l = A.lab('Lf')
        A(f'''s_mov_b64 exec, 1
        ds_add_rtn_u32 {vF}, v11, v23
        s_waitcnt lgkmcnt(0)
        v_readfirstlane_b32 s63, {vF}
        v_mov_b32 {vF}, {sI}
        s_and_b32 s63, s63, 3
        s_cmp_lg_u32 s63, 3
        s_cbranch_scc1 {l}
        buffer_store_dword {vF}, {vFA}, {WS}, 0 offen sc1
        {l}:
        s_mov_b64 exec, -1''')
    def need_res(add):
        if fres is None: return
        l = A.lab('Lr')
        A(f'''s_add_u32 s79, {sI}, {add + 1}
        s_min_u32 s79, s79, {NSEG}
        s_cmp_ge_u32 s78, s79
        s_cbranch_scc1 {l}''')
        spin(A, 'v161', 'v162', 's79', code + 100)
        A(f'v_readfirstlane_b32 s78, v161\n {l}:')
    def resid(add):
        if res_ext:
            A(f'''s_mul_i32 s67, {sI}, 36864
            s_add_u32 s67, s67, s72
            s_add_u32 s67, s67, {36864 * add}
            s_mov_b32 m0, s75
            s_xor_b32 s75, s75, 0x10000
            buffer_load_dwordx4 {vG}, {SX}, s67 offen lds
            buffer_load_dwordx4 {vG}, {SX}, s67 offen offset:1024 lds
            s_mov_b64 exec, 0xffff
            buffer_load_dwordx4 {vG}, {SX}, s67 offen offset:2048 lds
            s_mov_b64 exec, -1''')
        else:
            A(f'''s_mul_i32 s67, {sI}, 40960
            s_add_u32 s67, s67, s76
            s_add_u32 s67, s67, {res_base + 40960 * add}
            buffer_load_dwordx4 {v(RS,4)}, {vL}, {WS}, s67 offen sc1
            buffer_load_dwordx4 {v(RS+4,4)}, {vL}, {WS}, s67 offen offset:1024 sc1
            buffer_load_dwordx2 {v(RS+8,2)}, v5, {WS}, s67 offen offset:2048 sc1''')
    def ldlist(sreg):
        pre = ringidx('s67', sreg) + f'\n s_mul_i32 s67, s67, {8*36864}\n s_add_u32 s67, s67, {pbase}\n s_add_u32 s68, s67, s74\n s_add_u32 s67, s67, s73'
        o = []
        for a_ in range(9):
            pw, pp = divmod(a_, 3)
            for kh in range(2):
                o.append(f's_add_u32 s69, {"s67" if pp < 2 else "s68"}, {kh*4*36864 + pw*3072}\n'
                         f'buffer_load_dwordx4 {v(PL+8*a_+4*kh,4)}, {vPL}, {WS}, s69 offen offset:{512*pp if pp < 2 else 0} sc1')
        return pre, o
    def rowsum(xs):
        A('s_nop 1' if len(xs) == 1 else 's_nop 0')
        for x, t in xs: A(f'v_add_f32_dpp {x}, {x}, {x} row_ror:8 row_mask:0xf bank_mask:0xf')
        for sw in ('v_permlane16_swap_b32', 'v_permlane32_swap_b32'):
            for x, t in xs: A(f'v_mov_b32 {t}, {x}')
            A('s_nop 1' if len(xs) == 1 else 's_nop 0')
            for x, t in xs: A(f'{sw} {x}, {t}')
            for x, t in xs: A(f'v_add_f32 {x}, {x}, {t}')
    def prep():
        if res_ext:
            for j in range(5): A(f'v_add_u32 {v(T+j)}, s77, {v(vNW+j)}')
            A('s_xor_b32 s77, s77, 0x10000\n s_barrier')
            for j in range(5): A(f'ds_read_b64 {v(RS+2*j,2)}, {v(T+j)} offset:{IMR}')
            A('s_waitcnt lgkmcnt(0)')
        for d in range(10):
            A(f'v_lshlrev_b32 {v(ACC+2*d)}, 16, {v(RS+d)}\n v_and_b32 {v(ACC+2*d+1)}, 0xffff0000, {v(RS+d)}')
        if ln:
            A(f'v_pk_add_f32 {v(T,2)}, {v(ACC,2)}, {v(ACC+2,2)}')
            for d in range(2, 10): A(f'v_pk_add_f32 {v(T,2)}, {v(T,2)}, {v(ACC+2*d,2)}')
            A(f'v_add_f32 {v(T)}, {v(T)}, {v(T+1)}')
            rowsum([(v(T), v(T+1))])
            A(f'v_mul_f32 {v(SH)}, {f2u(1.0/144):#x}, {v(T)}\n v_mul_f32 {v(SH+2)}, {v(SH)}, {vMK}')
            for d in range(10):
                A(f'v_pk_add_f32 {v(ACC+2*d,2)}, {v(ACC+2*d,2)}, {v(SH if d < 8 else SH+2,2)} op_sel_hi:[1,0] neg_lo:[0,1] neg_hi:[0,1]')
            A(f'v_mov_b64 {v(T,2)}, 0\n v_mov_b64 {v(T+2,2)}, 0')
    def stat(j):
        if not ln: return
        for h in (0, 2):
            x = v(ACC + 4 * j + h, 2)
            A(f'v_pk_add_f32 {v(T,2)}, {v(T,2)}, {x}\n v_pk_fma_f32 {v(T+2,2)}, {x}, {x}, {v(T+2,2)}')
    def local_store(vd, va, so):
        l1 = A.lab('Lc'); l2 = A.lab('Lc')
        A(f'''s_cmp_lg_u32 {sSLOW}, 0
        s_cbranch_scc1 {l1}
        buffer_store_dword {vd}, {va}, {WS}, {so} offen
        s_branch {l2}
        {l1}:
        buffer_store_dword {vd}, {va}, {WS}, {so} offen sc1
        {l2}:''')
    def respub():
        if fpub is None: return
        A(f'v_mov_b32 v163, {sI}\n s_mov_b32 s63, {fpub - fcon}\n buffer_store_dword v163, {vCA}, {WS}, s63 offen sc1')
    def st3(srd, va, soff):
        for q in range(3):
            A(f's_waitcnt lgkmcnt({2-q})')
            if q == 2: A('s_mov_b64 exec, 0xffff')
            A(f'buffer_store_dwordx4 {v(CO+4*q,4)}, {va}, {srd}, {soff} offen offset:{1024*q} sc1')
        A('s_mov_b64 exec, -1')
    A(f's_mov_b32 {sI}, 0\n s_mov_b32 s65, 1\n s_mov_b32 s66, 0')
    l = A.lab('Lpt')
    A(f'{l}:'); pre, lds_ = ldlist('s66'); A(pre)
    for x in lds_: A(x)
    A(f's_add_u32 s66, s66, 1\n s_cmp_lt_u32 s66, {PRING}\n s_cbranch_scc1 {l}\n s_mov_b32 s66, 0')
    need_res(0); resid(0)
    A('s_waitcnt vmcnt(0)')
    prep(); need_res(1)
    A(f'{name}_spin:')
    spin(A, vP, vPA, 's65', code)
    A(f'{name}_ld:')
    stamp(A, 'v220', sI)
    pre, lds_ = ldlist('s65'); A(pre)
    LEAD = 8
    for x in lds_[:LEAD]: A(x)
    if fout is not None:
        l = A.lab('Lnf')
        A(f's_cmp_eq_u32 s66, 0\n s_cbranch_scc1 {l}\n s_waitcnt vmcnt({LEAD})'); flag(); A(f'{l}:')
    def mf(i):
        d = v(ACC + 4 * (i >> 2), 4)
        A(f'{M16} {d}, {v(SB if (i >> 1) & 1 else SA,4)}, {v(PL+4*i,4)}, {d}')
    for i in range(18):
        if i + LEAD < 18: A(lds_[i + LEAD]); y = LEAD
        else: y = 17 - i
        if i + LEAD == 16: A(poll)
        if i + LEAD >= 16 and i < 17: y += 1
        A(f's_waitcnt vmcnt({y})')
        mf(i)
        if i in (7, 11, 15): stat((i >> 2) - 1)
    A(f'''{name}_mid:
    s_add_u32 s66, {sI}, 2
    v_cmp_gt_u32 vcc, s66, {vP}
    s_cbranch_vccz {name}_ov''')
    resid(1)
    n0 = len(A.lines)
    A(f's_mul_i32 s67, {sI}, 36864\n s_add_u32 s67, s67, s72\n v_mov_b32 v8, s65')
    if ln:
        stat(3); stat(4)
        A(f'v_add_f32 {v(T)}, {v(T)}, {v(T+1)}\n v_add_f32 {v(T+2)}, {v(T+2)}, {v(T+3)}')
        rowsum([(v(T), v(T+1)), (v(T+2), v(T+3))])
        A(f'''v_mul_f32 {v(T+4)}, {f2u(1.0/144):#x}, {v(T)}
        v_fma_f32 {v(T+1)}, -{v(T+4)}, {v(T)}, {v(T+2)}
        v_add_f32 {v(T)}, {v(T+4)}, {v(SH)}
        ds_write_b64 {vSW}, {v(T,2)}
        s_add_u32 s68, s67, {xn_base}
        s_waitcnt lgkmcnt(0)
        s_barrier
        ds_read_b128 {v(T+4,4)}, {vSR}
        ds_read_b128 {v(T+8,4)}, {vSR} offset:16''')
        local_store('v8', vCA, '0')
        A(f'''s_waitcnt lgkmcnt(0)
        v_pk_add_f32 {v(T+2,2)}, {v(T+4,2)}, {v(T+6,2)}
        v_pk_add_f32 {v(T,2)}, {v(T+8,2)}, {v(T+10,2)}
        v_mov_b32 {v(T+7)}, {f2u(1e-5):#x}
        v_pk_add_f32 {v(T+2,2)}, {v(T+2,2)}, {v(T,2)}
        v_fmac_f32 {v(T+7)}, {f2u(1.0/576):#x}, {v(T+3)}
        v_mul_f32 {v(T+2)}, 0.25, {v(T+2)}
        v_sub_f32 {v(T+4)}, {v(T+4)}, {v(T+2)}
        v_sub_f32 {v(T+5)}, {v(T+6)}, {v(T+2)}
        v_sub_f32 {v(T+8)}, {v(T+8)}, {v(T+2)}
        v_sub_f32 {v(T+9)}, {v(T+10)}, {v(T+2)}
        v_pk_mul_f32 {v(T+4,2)}, {v(T+4,2)}, {v(T+4,2)}
        v_pk_fma_f32 {v(T+4,2)}, {v(T+8,2)}, {v(T+8,2)}, {v(T+4,2)}
        v_add_f32 {v(T+4)}, {v(T+4)}, {v(T+5)}
        v_fmac_f32 {v(T+7)}, 0x3e800000, {v(T+4)}
        v_rsq_f32 {v(T+4)}, {v(T+7)}
        v_sub_f32 {v(T+2)}, {v(SH)}, {v(T+2)}
        v_mul_f32 {v(T+6)}, {v(T+2)}, {v(T+4)}''')
        for j in range(5):
            for h in (0, 2): A(f'v_pk_fma_f32 {v(NX+4*j+h,2)}, {v(ACC+4*j+h,2)}, {v(T+4,2)}, {v(T+6,2)} op_sel_hi:[1,0,0]')
            for h in (0, 1): A(f'v_cvt_pk_bf16_f32 {v(NX+4*j+h)}, {v(NX+4*j+2*h)}, {v(NX+4*j+2*h+1)}')
            A(f'ds_write_b64 {v(vNW+j)}, {v(NX+4*j,2)} offset:{IMN}')
        for d in range(10):
            A(f'v_pk_add_f32 {v(ACC+2*d,2)}, {v(ACC+2*d,2)}, {v(SH if d < 8 else SH+2,2)} op_sel_hi:[1,0]')
        A('s_waitcnt lgkmcnt(0)\n s_barrier')
        for q in range(3): A(f'ds_read_b128 {v(CO+4*q,4)}, {vCP} offset:{IMN+1024*q}')
        A(poll)
        for d in range(10): A(f'v_cvt_pk_bf16_f32 {v(PK+d)}, {v(ACC+2*d)}, {v(ACC+2*d+1)}')
        st3(WS, vCP, 's68')
        respub()
        A(f'''s_mul_i32 s67, {sI}, 40960
        s_add_u32 s67, s67, s76
        s_add_u32 s67, s67, {xo_base}
        buffer_store_dwordx4 {v(PK,4)}, {vL}, {WS}, s67 offen sc1
        buffer_store_dwordx4 {v(PK+4,4)}, {vL}, {WS}, s67 offen offset:1024 sc1
        buffer_store_dwordx2 {v(PK+8,2)}, v5, {WS}, s67 offen offset:2048 sc1''')
        n1, n2 = 3, 4
    else:
        A('s_barrier')
        for j in range(5):
            for h in (0, 1): A(f'v_cvt_pk_bf16_f32 {v(PK+2*j+h)}, {v(ACC+4*j+2*h)}, {v(ACC+4*j+2*h+1)}')
            A(f'ds_write_b64 {v(vNW+j)}, {v(PK+2*j,2)} offset:{IMN}')
        local_store('v8', vCA, '0')
        A('s_waitcnt lgkmcnt(0)\n s_barrier')
        for q in range(3): A(f'ds_read_b128 {v(CO+4*q,4)}, {vCP} offset:{IMN+1024*q}')
        A(poll)
        st3(SOUT, vG, 's67')
        n1, n2 = 3, 0
    post = list(A.lines[n0:])
    stamp(A, 'v221', sI)
    A(f'''s_add_u32 {sI}, {sI}, 1
    s_add_u32 s65, {sI}, 1
    s_cmp_ge_u32 {sI}, {NSEG}
    s_cbranch_scc1 {name}_done
    s_waitcnt vmcnt({n1 + n2})''')
    prep(); need_res(1)
    A(f'''s_mov_b32 s66, 1
    v_cmp_gt_u32 vcc, s65, {vP}
    s_cbranch_vccz {name}_ld
    s_mov_b32 s66, 0
    s_waitcnt vmcnt({n2})''')
    flag()
    A(f's_branch {name}_spin')
    A(f'{name}_ov:')
    ren = lambda t: t.replace('s67', 's81').replace('s68', 's82')
    pre, lds_ = ldlist('s66'); A(ren(pre))
    k = 0; since = 99; import re as _re
    rs = [ren(x) for x in capture(A, lambda: resid(1))]
    for l in post:
        t = l.strip()
        if t.startswith('buffer_load_dword '):
            for x in lds_[k:]: A(ren(x))
            k = len(lds_); A.lines += rs
        m = _re.search(r'(Lc_\d+)', l)
        if m: l = l.replace(m.group(1), m.group(1) + 'w')
        A.lines.append(l); since += 1
        if t.startswith('v_') and since >= 4 and k < len(lds_) and not t.startswith('v_rsq'):
            A(ren(lds_[k])); k += 1; since = 0
    stamp(A, 'v221', sI)
    A(f's_add_u32 {sI}, {sI}, 1\n s_add_u32 s65, {sI}, 1\n s_waitcnt vmcnt({n1 + n2})')
    prep(); need_res(1)
    stamp(A, 'v220', sI)
    for i in range(18):
        mf(i)
        if i in (11, 15): stat((i >> 2) - 2)
    A('s_nop 1'); stat(2)
    if fout is not None: A(f's_waitcnt vmcnt(0)'); flag()
    else: A('s_nop 3')
    A(f's_branch {name}_mid')
    A(f'{name}_done:\n s_waitcnt vmcnt({n2})')
    flag()
    if fpub is not None:
        A('s_waitcnt vmcnt(0)\n s_barrier'); respub()
    A('s_waitcnt vmcnt(0)')
    dump(A, ['v220', 'v221'])
    A('s_endpgm')

def role_red(A):
    A('L_red:')
    if not enabled('red'):
        ln0_hook(A, 0); A('s_endpgm'); return
    ln0_hook(A, 0)
    validate(A, True)
    A(f'''
    s_sub_u32 s63, {sT}, 24
    s_lshr_b32 s71, s63, 2
    s_and_b32 s70, s63, 3
    s_mul_i32 s72, s70, 9216
    s_lshr_b32 s63, s70, 1
    s_lshl_b32 s73, s63, 10
    s_lshl_b32 s74, s63, 9
    s_add_u32 s74, s74, 2048
    ''')
    lane(A, 'v8')
    A(f'''
    v_and_b32 v9, 7, v8
    v_bfe_u32 v10, v8, 3, 1
    v_lshrrev_b32 v11, 4, v8
    v_mul_u32_u24 v1, 36864, v11
    v_lshl_add_u32 v1, v10, 8, v1
    v_lshl_add_u32 v1, v9, 4, v1
    s_mul_i32 s63, {sW}, 9216
    s_and_b32 s64, s70, 1
    s_lshl_b32 s64, s64, 7
    s_add_u32 s63, s63, s64
    v_add_u32 v1, s63, v1
    v_lshrrev_b32 v22, 5, v8
    v_lshl_add_u32 v23, v22, 1, v10
    s_mul_i32 s63, {sW}, 18
    v_add_u32 v23, s63, v23
    v_mul_u32_u24 v32, 1152, v9
    v_and_b32 v33, 1, v11
    v_lshl_add_u32 v32, v33, 3, v32
    v_cmp_eq_u32 vcc, 0, v22
    v_mov_b32 v34, {OOB}
    v_mov_b32 v35, 12288
    v_mov_b64 v[40:41], 0
    ds_write_b64 v35, v[40:41] offset:49152
    v_add_u32 v38, 0x10000, v35
    ds_write_b64 v38, v[40:41] offset:49152
    v_cndmask_b32 v21, 0, 1.0, vcc
    s_and_b32 s63, s70, 1
    s_lshl_b32 s63, s63, 2
    v_lshrrev_b32 v36, 1, v9
    v_add_u32 v36, s63, v36
    ''')
    for j in range(5):
        A(f'''v_add_u32 v37, {4*j}, v23
        v_xor_b32 v37, v37, v36
        v_lshl_add_u32 v{12+j}, v37, 4, v32''')
    A(f'''
    v_cndmask_b32 v16, v35, v16, vcc
    s_mul_i32 s63, {sW}, 2304
    s_add_u32 s75, s63, 49152
    v_lshl_add_u32 v17, v8, 4, s63
    v_cmp_gt_u32 vcc, 16, v8
    v_lshlrev_b32 v20, 5, v9
    v_add_u32 v20, 32768, v20
    v_cndmask_b32 v18, v34, v17, vcc
    s_and_b32 s63, s70, 1
    s_lshl_b32 s63, s63, 2
    s_add_u32 s63, s63, {sW}
    s_lshl_b32 s63, s63, 4
    v_xor_b32 v3, s63, v17
    v_lshlrev_b32 v4, 4, v8
    v_lshlrev_b32 v5, 3, v8
    s_lshl_b32 s76, s70, 2
    s_add_u32 s76, s76, {sW}
    s_mul_i32 s76, s76, 2560
    s_lshl_b32 s63, {sW}, 3
    v_add_u32 v19, s63, v20
    v_and_b32 v33, 1, v8
    v_cmp_eq_u32 vcc, 0, v33
    v_mov_b32 v34, 0x3f80
    v_mov_b32 v35, 0x3f800000
    v_cndmask_b32 v34, v35, v34, vcc
    v_bfe_u32 v33, v8, 1, 3
    ''')
    for d in range(8):
        A(f'v_cmp_eq_u32 vcc, {d}, v33\n s_nop 1\n v_cndmask_b32 v{24+d}, 0, v34, vcc')
    A(f'''
    v_mov_b32 v11, 36864
    v_mov_b32 v23, 1
    ds_write_b32 v11, v40
    s_waitcnt lgkmcnt(0)
    s_barrier
    s_lshl_b32 s80, {sL}, 1
    s_add_u32 s80, s80, s71
    ''')
    A('''s_cmp_eq_u32 s80, 1
    s_cbranch_scc1 L_red_1
    s_cmp_eq_u32 s80, 2
    s_cbranch_scc1 L_red_2
    s_cmp_eq_u32 s80, 3
    s_cbranch_scc1 L_red_3
    ''')
    red_stream(A, 'L_r10', PW, True, 0, False, X1, XNF, F_WO, F_XNF, 10, None, F_CON, F_RES)
    A('L_red_1:')
    red_stream(A, 'L_r11', PW + PRING * 294912, False, X2, False, X1 + XL, XNF + XB, F_WO + 512, F_XNF + 128, 11, F_RES + 256, F_CON + 128, F_RES + 128)
    A('L_red_2:')
    red_stream(A, 'L_r20', PD, False, X1, False, X2, XNA + XB, F_DN, F_XNA + 128, 12, F_RES, F_CON + 256, F_RES + 256)
    A('L_red_3:')
    red_stream(A, 'L_r21', PD + PRING * 294912, False, X1 + XL, True, 0, None, F_DN + 512, None, 14, F_RES + 128, F_CON + 384, None)
```

```python
from base import *
import base

class Sched:
    def __init__(s, mains):
        s.mains = mains; s.gaps = [[] for _ in mains]; s.stmin = 0; s.lastst = 0; s.avoid = False
    def put(s, g, text):
        for l in text.split('\n'):
            if l.strip(): s.gaps[g].append(l.strip())
    @staticmethod
    def wt(l):
        import re
        l = l.strip()
        if not l or l.startswith('@mark') or l.endswith(':'): return 0
        if l.startswith(('@', 's_waitcnt')): return cfg.wts[0]
        if l.startswith(('v_exp', 'v_rcp', 'v_perm')): return cfg.wts[1]
        if l.startswith('v_'): return cfg.wts[2]
        if l.startswith('buffer_'): return cfg.wts[3]
        if l.startswith('ds_'): return cfg.wts[4]
        big = any(abs(int(x, 0)) > 64 for x in re.findall(r'(?<![\w\[:])(-?(?:0x[0-9a-f]+|\d+))(?![\w\]:])', l.split(None, 1)[1] if ' ' in l else ''))
        return cfg.wts[6] if big else cfg.wts[5]
    def load(s, g):
        w = sum(s.wt(x) for x in s.gaps[g])
        if g + 1 < len(s.mains) and s.mains[g + 1].startswith('@'): w += cfg.wts[0]
        return w
    def fit(s, g, items, hi, cap=None):
        cap = cap or cfg.cap
        while True:
            add = {}; q = g; ok = True; last = -99; plan = []
            for it in items:
                w = sum(s.wt(x) for x in it.split('\n'))
                q2 = max(q, last + 8, s.stmin) if it.startswith('buffer_store') else q
                while q2 < hi and s.load(q2) + add.get(q2, 0) + w > cap and (s.load(q2) + add.get(q2, 0)) > 0: q2 += 1
                if q2 >= hi: ok = False; break
                add[q2] = add.get(q2, 0) + w; plan.append((q2, it))
                if it.startswith('buffer_store'): last = q2
                else: q = q2
            if ok: break
            cap += 0.25
        for q2, it in plan:
            s.put(q2, it)
            if it.startswith('buffer_store'): s.lastst = q2
        return q
    def seq(s, g, items, step=1, cap=1, share=False):
        last = -99
        for it in items:
            while len([x for x in s.gaps[g] if (x.startswith('v_') if share else not x.startswith('@mark'))]) >= cap: g += 1
            if it.startswith('buffer_store'):
                gs = max(g, last + 8, s.stmin)
                busy = lambda q: any(x.startswith('buffer_') for y in s.gaps[max(q - 2, 0):q + 3] for x in y)
                while s.avoid and busy(gs): gs += 1
                s.put(gs, it); last = gs; s.lastst = gs
                continue
            s.put(g, it); g += step
        return g
    def emit(s, A, pre=()):
        vm = 0; marks = {'entry': 0}; ds = list(pre)
        for m, gp in zip(s.mains, s.gaps):
            for l in m.split('\n') + gp:
                l = l.strip()
                if not l: continue
                if l.startswith('@mark'): marks[l.split()[1]] = vm; continue
                if l in cfg.x_drop: continue
                if l.startswith('@wait'):
                    w = f's_waitcnt vmcnt({vm - marks[l.split()[1]]})'
                    if cfg.timing == 4:
                        k = 12 + ['poll', 'st', 'entry', 'p1', 'th0'].index(l.split()[1]) % 4
                        w = f's_memtime s[28:29]\n {w}\n s_memtime s[30:31]\n s_waitcnt lgkmcnt(0)\n s_sub_u32 s30, s30, s28\n s_add_u32 s{k}, s{k}, s30'
                    A(w); continue
                if l == 's_barrier' and cfg.timing == 4:
                    A('s_memtime s[28:29]\n s_barrier\n s_memtime s[30:31]\n s_waitcnt lgkmcnt(0)\n s_sub_u32 s30, s30, s28\n s_add_u32 s16, s16, s30'); continue
                if l.startswith('@lw'):
                    t = l.split()[1]
                    if t in ds:
                        k = len(ds) - 1 - ds.index(t); A(f's_waitcnt lgkmcnt({k})'); ds = ds[len(ds) - k:]
                    continue
                tag = None
                if '#' in l: l, tag = [x.strip() for x in l.split('#')]
                if any(k in l for k in cfg.x_drop): continue
                if l.startswith('buffer_'): vm += 1
                if l.startswith('ds_'): ds.append(tag)
                A(l)
        return ds
def lines(t): return [l.strip() for l in t.split('\n') if l.strip()]

def flag_addr(A, dst, sval):
    lane(A, 'v1')
    A(f'''v_cmp_eq_u32 vcc, 0, v1
    v_mov_b32 v2, {sval}
    v_mov_b32 {dst}, {OOB}
    v_cndmask_b32 {dst}, {dst}, v2, vcc''')

M16 = 'v_mfma_f32_16x16x32_bf16'
XPK = 60; XT = 66; XLA = 70; XDV = 72; XSV = 73; XPA = 74; XP = 75; XFV = 76; XFA = 77
XBUF = 36864; XB0 = 8192
def gs_stream(A, name, NCT, NK, wreg, swap, rows, XFR, RING, epi, in_base, in_lstride, in_sstride, out_lstride, out_sstride,
              flag_lstride, stride, code, sig0, sig1, dma0, dstep, poll0, poll1, share, local, prio=0, lowlate=False, plan=None):
    ringn = PRING if local else 0
    RA = min(RING - 1, cfg.rgra) if local else RING - 1
    ND = (2 * NK) // 4
    NH = (NK + 3) // 4
    AW = 4 * NCT
    lane(A, 'v1')
    if rows:
        A(f'''v_and_b32 v2, 15, v1
        v_lshrrev_b32 v3, 4, v1
        v_lshrrev_b32 v4, 1, v2
        v_mul_u32_u24 v5, 1152, v2
        v_add_u32 v5, {XB0 + 2 * XBUF}, v5
        v_xor_b32 v6, v3, v4
        v_lshl_add_u32 {v(XLA)}, v6, 4, v5
        v_xor_b32 v6, 4, v6
        v_lshl_add_u32 {v(XLA+1)}, v6, 4, v5''')
    else:
        A(f'v_lshlrev_b32 {v(XLA)}, 4, v1\n v_add_u32 {v(XLA)}, {XB0 + 2 * XBUF}, {v(XLA)}')
    lw0 = A.lab('Lw0')
    A(f'''s_lshl_b32 s70, {sW}, 10
    v_lshl_add_u32 {v(XDV)}, v1, 4, s70
    s_add_u32 s70, s70, {XB0}
    s_mov_b32 s85, {-2 * XBUF}
    s_mov_b32 s3, 4096
    s_mov_b32 s4, {XBUF}
    s_mov_b32 s5, {XBUF}
    s_mov_b32 {sI}, 0
    s_mov_b32 s77, 0
    s_mov_b32 s78, 0
    s_mov_b32 s79, 0
    s_mov_b32 s92, {OOB}
    s_mov_b32 s93, 0
    s_cmp_eq_u32 {sW}, 0
    s_cbranch_scc1 {lw0}
    v_mov_b32 {v(XPA)}, {OOB}
    v_mov_b32 {v(XFA)}, {OOB}
    {lw0}:''')
    def rd(f):
        f %= 2 * NK; th, ks = divmod(f, NK)
        if rows: return f'ds_read_b128 {v(XFR+4*(f%RING),4)}, {v(XLA+(ks&1))} offset:{th*18432 + 128*(ks>>1)}'
        return f'ds_read_b128 {v(XFR+4*(f%RING),4)}, {v(XLA)} offset:{f*1024}'
    def pre(f): return [f'f{(f + i) % (2 * NK)}' for i in range(RA)]
    def mains(th, k0, k1, reads=True):
        m = []
        for ks in range(k0, k1):
            f = th * NK + ks
            for ct in range(NCT):
                d = v(AW * th + 4 * ct, 4); w = r(wreg(ks, ct), 4); x = v(XFR + 4 * (f % RING), 4)
                a_, b_ = (x, w) if swap[ct] else (w, x)
                t = f'{M16} {d}, {a_}, {b_}, {"0" if ks == 0 else d}'
                if ct == 0: t = f'@lw f{f}\n' + t
                m.append(t)
        S = Sched(m)
        if reads:
            for ks in range(k0, k1): S.put((ks - k0) * NCT, rd(th * NK + ks + RA) + f' #f{(th * NK + ks + RA) % (2 * NK)}')
        return S
    def dma(q): return ['s_mov_b32 m0, s70\n s_nop 0' if q == 0 else 's_add_u32 m0, m0, s3\n s_add_u32 s73, s73, s3', f'buffer_load_dwordx4 {v(XDV)}, {WS}, s73 offen sc1 lds']
    poll = f'buffer_load_dword {v(XP)}, {v(XPA)}, {WS}, 0 offen sc1'
    def flagst(so): return f'buffer_store_dword {v(XFV)}, {v(XFA)}, {WS}, {so} offen{loc[0]}'
    loc = ['' if local else ' sc1']
    def sig(S, g, mark):
        S.put(g, f'v_mov_b32 {v(XFV)}, s95')
        S.put(g + 1, f'@wait {mark}\n s_barrier\n' + flagst('s94'))
    XQ = 64 if local else XP
    decide = lines(f'''v_cmp_gt_u32 vcc, s74, {v(XQ)}
        v_cmp_gt_u32 s[66:67], s75, {v(XQ)}
        s_cmp_eq_u32 {'s67' if prio == 0 else 'vcc_lo'}, 0
        s_cselect_b32 s72, {2 - prio}, 0
        s_cmp_eq_u32 {'vcc_lo' if prio == 0 else 's67'}, 0
        s_cselect_b32 s72, {1 + prio}, s72
        v_mov_b32 {v(XFV)}, s72''')
    if local: decide[0] = f'v_add_u32 v64, v65, {v(XP)}\n' + decide[0]
    soff = lambda site: 4 * site if site < 4 else 4096
    def dwr(site): return f'ds_write_b32 {v(XDV)}, {v(XFV)} offset:{soff(site)}'
    def drd(site): return f'ds_read_b32 {v(XFV)}, {v(XSV)} offset:{soff(site)}'
    dget = [f'v_readfirstlane_b32 s72, {v(XFV)}', 's_cmp_lg_u32 s72, 0']
    if plan:
        pick = ['''s_sub_u32 s68, s72, 1
        s_cmp_eq_u32 s68, 0
        s_cselect_b32 s69, s74, s75''', '''s_cselect_b32 s63, s44, s47
        s_cselect_b32 s64, s45, s48
        s_cselect_b32 s80, s46, s49''', '''s_cmp_lt_u32 s69, s63
        s_cselect_b32 s80, s64, s80
        s_add_u32 s80, s80, s69''', '''s_cmp_eq_u32 s68, 0
        s_cselect_b32 s74, s80, s74
        s_cselect_b32 s75, s75, s80''']
    else:
        pick = lines(f'''s_sub_u32 s68, s72, 1
        s_cmp_eq_u32 s68, 0
        s_cselect_b32 s69, s74, s75
        s_cselect_b32 s63, {stride}, 0
        s_cselect_b32 s64, 0, {stride}
        s_add_u32 s74, s74, s63
        s_add_u32 s75, s75, s64''')
    pick += lines(f'''s_mul_i32 s73, s69, {in_sstride}
        s_mul_i32 s63, s68, {in_lstride}
        s_add_u32 s73, s73, s63
        s_add_u32 s73, s73, s90''')
    tog = [f'v_add_u32 {v(XLA+q)}, s5, {v(XLA+q)}' for q in range(2 if rows else 1)]
    advance = lines(f'''s_mov_b32 s63, s85
        s_mov_b32 s85, s4
        s_mov_b32 s4, s5
        s_mov_b32 s5, s63
        s_add_u32 s70, s70, s85
        s_mov_b32 s81, s77
        s_mov_b32 s82, s78
        s_mov_b32 s83, s79
        s_mov_b32 s94, s92
        s_mov_b32 s95, s93
        {ringidx('s63', 's69') if local else 's_mov_b32 s63, s69'}
        s_mul_i32 s63, s63, {out_sstride}
        s_mul_i32 s64, s68, {out_lstride}
        s_add_u32 s63, s63, s64
        s_add_u32 s77, s63, s87
        s_add_u32 s78, s63, s88
        s_add_u32 s79, s63, s89
        s_mul_i32 s92, s68, {flag_lstride}
        {f's_sub_u32 s93, s80, 1{chr(10)} s_min_u32 s93, s93, {NSEG}' if plan else f's_add_u32 s93, s69, {stride - 1}'}
        {'s_mov_b32 s50, s69' if cfg.timing else ''}
        s_add_u32 {sI}, {sI}, 1''')
    A(f's_add_u32 s90, s90, {in_base - in_sstride}')
    if not local:
        for q in range(3): A(f's_sub_u32 s{87+q}, s{87+q}, {out_sstride}')
    GX = (NK - RA) * NCT; GN = NK * NCT
    def put_dma(S, g0, pollmark):
        g = S.fit(0, pick, max(g0 - 1, 5))
        g0 = max(g0, g + 2)
        for q in range(ND):
            d = dma(q); gg = g0 + dstep * q
            if gg % NCT == 0: gg += 1
            gp = gg - 1 if (gg - 1) % NCT else gg - 2
            S.put(gp, d[0].replace('\n s_nop 0', '')); S.put(gg, d[1])
            if pollmark == 1 and q == NH - 1: S.put(gg + 2, poll + '\n @mark poll')
            if pollmark == 2 and q == NH - 1: S.put(gg, '@mark th0')
        return gg
    hi_only = decide[:2] + ['s_mov_b32 s72, 0'] + decide[4:] if lowlate else decide
    def put_decide(S, site, o=0, far=False):
        q = (13, 12, 9, 8, 7) if (far or not local) else cfg.dq
        S.put(o + GX - q[0], '@wait poll\n' + decide[0]); S.put(o + GX - q[1], decide[1]); S.put(o + GX - q[2], '\n'.join((hi_only if far else decide)[2:-1]))
        S.put(o + GX - q[3], decide[6]); S.put(o + GX - q[4], dwr(site) + ' #dw')
    def tstamp():
        if cfg.timing and cfg.timing < 3:
            l1 = A.lab('Lt'); l2 = A.lab('Lt')
            A(f's_sub_u32 s63, s50, 1\n s_cmp_eq_u32 s92, 0\n s_cbranch_scc0 {l1}')
            stamp(A, 'v78', 's63'); A(f's_branch {l2}\n {l1}:'); stamp(A, 'v79', 's63'); A(f'{l2}:')
    def fill1(S, o, lastdma=None):
        if sig1 is not None:
            S.put(o, '@mark p1'); sig(S, o + sig1, 'p1')
        put_decide(S, 1, o, lastdma is not None)
        if o: S.stmin = lastdma + 4
        S.fit(o + 4, epi(0, 77, loc=loc[0]), o + GX)
        if lastdma is not None:
            g = max(lastdma, S.lastst, o + (sig1 or 0) + 1) + 1
            lim = o + GX - 10
            S.fit(g, advance, o + GX)
        S.put(o + GX - 1, '@lw dw')
    def phase0(E, D):
        S = mains(0, 0, NK)
        if D:
            S1 = mains(1, 0, NK - RA); S.mains += S1.mains; S.gaps += S1.gaps
            ld_ = put_dma(S, dma0 if E else 3, (2 if cfg.rgpoll else 1) if local else 0)
            if not local: S.put(GN + poll1, poll + '\n @mark poll')
            elif cfg.rgpoll:
                S.put((dma0 if E else 3) - 3, poll + '\n @mark poll'); S.put(GN + GX - 1, '@wait th0')
        else:
            S.put(poll0, poll + '\n @mark poll'); put_decide(S, 0)
        here = (not E) or sig0
        if here: S.put(GX - 2, f'v_mov_b32 {v(XFV)}, s95')
        if E:
            S.fit(4, epi(1, 81, loc=loc[0]), (dma0 - 2 if sig0 else GN - 4))
        S.put(GX - 1, f'@wait {"st" if (E and sig0) else "entry"}\n @lw dw\n s_barrier')
        if here: S.put(GX - 1, flagst('s94'))
        if not D:
            S.put(GX - 1, drd(0) + ' #dr')
            S.put(GN - 4, '@lw dr\n' + dget[0]); S.put(GN - 1, dget[1])
        else: fill1(S, GN, ld_)
        tstamp()
        S.emit(A, pre(0))
        if D: A(f's_branch {name}_fe')
        else: A(f's_cbranch_scc1 {name}_p1d\n s_branch {name}_p1n')
    def phase1(D):
        S = mains(1, 0, NK - RA)
        ld_ = None
        if D:
            S.put(0, poll + '\n @mark poll')
            ld_ = put_dma(S, 3, 2)
        else: S.put(poll1, poll + '\n @mark poll')
        fill1(S, 0, ld_)
        if D: S.put(GX - 1, '@wait th0')
        S.emit(A, pre(NK))
    def burst():
        for x in pick: A(x)
        if cfg.timing and local:
            l1 = A.lab('Lt')
            A(f's_sub_u32 s63, s69, 1\n s_cmp_eq_u32 s68, 0\n s_cbranch_scc0 {l1}'); stamp(A, 'v67', 's63'); A(f'{l1}:')
        for q in range(ND):
            for x in dma(q): A(x)
    def start(nyoung, early=False):
        if early:
            A(f'v_mov_b32 {v(XFV)}, s93\n s_waitcnt vmcnt({ND})\n s_barrier\n {flagst("s92")}'); nyoung += 1
        for x in advance + tog + hi_only + [dwr(3)]: A(x)
        A(f's_waitcnt vmcnt({nyoung}) lgkmcnt(0)\n s_barrier\n {drd(3)}')
        for f in range(RA): A(rd(f))
        A(f's_waitcnt lgkmcnt({RA})')
        for x in dget: A(x)
    def alone():
        A('s_nop 7'); n = 0
        for x in epi(1, 77, True, loc=loc[0]):
            for l in lines(x):
                if not l.startswith('@'): A(l)
                if l.startswith('buffer_'): n += 1
        return n
    def idle():
        l = A.lab('Lsp'); d = A.lab('Lspd')
        A(f'''s_cmp_lg_u32 {sW}, 0
        s_cbranch_scc1 {d}
        s_mov_b32 {sSPIN}, 0
        {l}:
        {poll}
        s_waitcnt vmcnt(0)''')
        for x in decide: A(x)
        A(f'''{dwr(4)}
        s_cmp_lg_u32 s72, 0
        s_cbranch_scc1 {d}
        s_add_u32 {sSPIN}, {sSPIN}, 1
        s_cmp_lt_u32 {sSPIN}, {cfg.spin_limit}
        s_cbranch_scc1 {l}
        {d}:
        s_waitcnt lgkmcnt(0)
        s_barrier
        {drd(4)}
        s_waitcnt lgkmcnt(0)
        {dget[0]}
        s_mov_b32 s63, {code}
        s_cmp_eq_u32 s72, 0
        s_cbranch_scc1 L_abort''')
    def flush():
        A(f'v_mov_b32 {v(XFV)}, s93\n s_waitcnt vmcnt(0)\n s_barrier\n {flagst("s92")}')
        if cfg.timing and local:
            l1 = A.lab('Lt')
            A(f's_sub_u32 s63, s93, 1\n s_cmp_eq_u32 s92, 0\n s_cbranch_scc0 {l1}'); stamp(A, 'v66', 's63'); A(f'{l1}:')
        A(f's_cmp_ge_u32 {sI}, s91\n s_cbranch_scc1 {name}_done')
    if cfg.timing and local: A('v_mov_b32 v66, 0\n v_mov_b32 v67, 0')
    if cfg.timing: A('v_mov_b32 v78, 0\n v_mov_b32 v79, 0')
    if cfg.timing == 4:
        for k in range(12, 28):
            if k not in (20, 21, 22, 23): A(f's_mov_b32 s{k}, 0')
    def cnt(k):
        if cfg.timing == 4: A(f's_addk_i32 s{k}, 1')
    if local: A(f's_cmp_lg_u32 {sSLOW}, 0\n s_cbranch_scc1 {name}_sl')
    A(f'{name}_idle:')
    idle(); burst(); start(ND - NH)
    A(f'{name}_slow:\n s_cbranch_scc1 {name}_p0d')
    phase0(False, False)
    A(f'{name}_p0d:'); phase0(False, True)
    A(f'{name}_p0e:'); cnt(18); phase0(True, False)
    A(f'{name}_p1d:'); cnt(19); phase1(True)
    A(f's_branch {name}_fe')
    A(f'{name}_p0ed:'); cnt(17); phase0(True, True)
    del A.lines[-1]
    A(f'{name}_fe:')
    A(f'{"" if "febar" in cfg.x_drop else "s_barrier"}\n {drd(1)}')
    S = mains(1, NK - RA, NK)
    S.gaps[0] = tog + S.gaps[0]
    S.put(RA * NCT - 4, '@lw dr\n' + dget[0]); S.put(RA * NCT - 1, dget[1])
    S.emit(A, pre(2 * NK - RA) + ['dr'])
    A(f's_cbranch_scc1 {name}_p0ed\n s_branch {name}_p0e')
    A(f'{name}_p1n:'); cnt(24); phase1(False)
    A(f's_barrier\n {drd(1)}')
    S = mains(1, NK - RA, NK, reads=False)
    S.put(RA * NCT - 4, '@lw dr\n' + dget[0]); S.put(RA * NCT - 1, dget[1])
    S.emit(A, pre(2 * NK - RA) + ['dr'])
    A(f's_cbranch_scc0 {name}_t2')
    if local:
        alone(); burst(); start(ND - NH, True)
    else:
        burst(); n = alone(); start(ND - NH + n)
    A(f's_branch {name}_slow')
    A(f'{name}_t2:'); cnt(25)
    alone(); flush()
    A(f's_branch {name}_idle')
    if local:
        loc[0] = ' sc1'
        A(f'{name}_sl:')
        idle(); burst()
        for x in advance + tog: A(x)
        A('s_waitcnt vmcnt(0)')
        A('s_barrier')
        for f in range(RA): A(rd(f))
        mains(0, 0, NK).emit(A, pre(0))
        S = mains(1, 0, NK - RA); S.seq(4, epi(0, 77, loc=loc[0]), share=share); S.emit(A, pre(NK))
        mains(1, NK - RA, NK, reads=False).emit(A, pre(2 * NK - RA))
        alone(); flush()
        A(f's_branch {name}_sl')
    A(f'{name}_done:\n s_waitcnt vmcnt(0)')
    if cfg.timing == 4:
        for i, k in enumerate((12, 13, 14, 15, 16, 17, 18, 19, 24, 25)): A(f'v_writelane_b32 v66, s{k}, {i}')
    dump(A, ['v78', 'v79', 'v66', 'v67'])
    A('s_endpgm')

def xw(ks, ct): return 80 + (ks * 6 + ct) * 4

def xs_setup(A, fbase, fin, shared, plan=None):
    if shared:
        A(f'''s_lshl_b32 s63, {sT}, 7
        s_lshl_b32 s64, {sL}, 2
        s_add_u32 s63, s63, s64
        s_add_u32 s74, {sL}, 1
        s_add_u32 s75, {sL}, 1''')
    else:
        A(f'''s_lshl_b32 s63, {sT}, 7
        s_cmp_eq_u32 {sL}, 0
        s_cselect_b32 s74, 1, 1000
        s_cselect_b32 s75, 1000, 1''')
    A(f's_add_u32 s63, s63, {fbase}')
    flag_addr(A, v(XFA), 's63')
    A(f'''v_and_b32 v2, 3, v1
    v_lshrrev_b32 v3, 5, v1
        v_lshlrev_b32 v2, 2, v2
    v_lshl_add_u32 v2, v3, 7, v2
    v_add_u32 {v(XPA)}, {fin}, v2
    {'' if shared else f'v_cmp_eq_u32 vcc, {sL}, v3'}
    v_mov_b32 v2, {OOB}
    s_nop 0
    {'' if shared else f'v_cndmask_b32 {v(XPA)}, v2, {v(XPA)}, vcc'}
    s_mov_b32 s90, 0
    s_mov_b32 s91, {NSEG}''')
    if plan:
        S0, S1 = plan
        assert S0 % 2 == 0 and S1 % 2 == 0
        A(f'''s_cmp_eq_u32 {sL}, 0
        s_mov_b32 s44, {S0}
        s_mov_b32 s45, 2
        s_cselect_b32 s46, 1, 1000
        s_mov_b32 s47, {S1}
        s_mov_b32 s48, 1
        s_mov_b32 s49, 2
        s_cselect_b32 s75, {S1 + 1}, 1
        s_cselect_b32 s91, {S0//2 + NSEG - S0 + (NSEG - S1)//2}, {S0//2 + S1 + (NSEG - S1)//2}''')
    if shared:
        A(f'''s_sub_u32 s64, s75, 1
        v_mov_b32 v2, {sL}
        v_mov_b32 v3, s64
        s_mov_b32 s63, 4096
        buffer_store_dword v2, {v(XFA)}, {WS}, 0 offen sc1
        buffer_store_dword v3, {v(XFA)}, {WS}, s63 offen sc1''')

def warm_sweep(A, grp_s, only_l1=False, then_wait=False):
    if not cfg.delay1: return
    l = A.lab('Ld1')
    if only_l1: A(f's_cmp_eq_u32 {sL}, 0\n s_cbranch_scc1 {l}')
    A(f's_cmp_lg_u32 s7, 0\n s_cbranch_scc1 {l}')
    NW = 128 * 4
    lane(A, 'v1')
    A(grp_s)
    A(f'''s_add_u32 s63, s63, {sT}
    s_lshl_b32 s63, s63, 2
    s_add_u32 s63, s63, {sW}
    s_lshl_b32 s63, s63, 10
    v_lshl_add_u32 v10, v1, 4, s63
    s_lshl_b32 s64, {sW}, 10
    s_mov_b32 m0, s64''')
    def sweep(srds, i0, i1):
        for i in range(i0, i1):
            A(f's_mov_b32 s65, {i*NW*1024}')
            for srd in srds: A(f'buffer_load_dwordx4 v10, {srd}, s65 offen lds')
    sweep([SWK, SWQ], 0, 4)
    ln0_hook(A, 8, False)
    sweep([SWK, SWQ], 4, 7)
    A('s_waitcnt vmcnt(6)'); arrive(A)
    sweep([SWK, SWQ], 7, 9)
    sweep([SWV, SWO], 0, 9)
    A('s_waitcnt vmcnt(0)\n s_mov_b32 s7, 2\n s_barrier')
    if then_wait:
        validate(A)
        A(f's_lshl_b32 s63, {sT}, 7\n s_add_u32 s63, s63, {F_CH}\n v_mov_b32 v1, s63\n s_mov_b32 s64, 1')
        spin(A, 'v2', 'v1', 's64', 60)
    A(f'{l}:')

def hold_back(A, on, fbase, only_l1=False):
    if not on: return
    l = A.lab('Lh')
    if only_l1: A(f's_cmp_eq_u32 {sL}, 0\n s_cbranch_scc1 {l}')
    ln0_hook(A, 0)
    validate(A, True)
    l2 = A.lab('Lh')
    A(f's_cmp_lg_u32 {sW}, 0\n s_cbranch_scc1 {l2}\n s_lshl_b32 s63, {sT}, 7\n s_add_u32 s63, s63, {fbase}\n v_mov_b32 v1, s63\n s_mov_b32 s64, 1')
    spin(A, 'v2', 'v1', 's64', 60)
    A(f'{l2}:\n s_barrier\n {l}:')

def staged(A, units, nslot, slot_bytes, region_s, pre=None, ranges=None, hold={}, mid=None):
    n = len(units)
    if ranges is None: ranges = [((i % nslot) * slot_bytes, slot_bytes) for i in range(n)]
    ov = lambda x, y: x[0] < y[0] + y[1] and y[0] < x[0] + x[1]
    dep = [max([hold.get(j, j) for j in range(i) if ov(ranges[i], ranges[j])], default=-1) for i in range(n)]
    cnt = []
    def issue(i):
        assert i == len(cnt)
        ls = units[i][0](ranges[i][0])
        cnt.append(sum(1 for x in ls if x.startswith('buffer_')))
        for x in ls: A(x)
    def ist(k):
        if cfg.timing == 5: A(f's_memrealtime s[96:97]\n s_waitcnt lgkmcnt(0)\n v_writelane_b32 v19, s96, {k}')
    ist(0)
    n0, n1 = pre or (cfg.pre0, cfg.pre1); n1 += n0
    for i in range(n0): issue(i)
    ln0_hook(A, sum(cnt), False)
    ist(1)
    for i in range(n0, n1): issue(i)
    A(f's_waitcnt vmcnt({sum(cnt[n0:])})')
    arrive(A)
    if mid: mid[0](A)
    ist(2)
    while len(cnt) < n and dep[len(cnt)] < 0: issue(len(cnt))
    ist(3)
    for i in range(n):
        A(f's_waitcnt vmcnt({min(sum(cnt[i + 1:]), 63)})')
        ist(4 + i)
        if mid and i == n1: mid[1](A)
        for x in units[i][1](ranges[i][0]): A(x)
        if len(cnt) < n and dep[len(cnt)] <= i:
            A('s_waitcnt lgkmcnt(0)')
            while len(cnt) < n and dep[len(cnt)] <= i: issue(len(cnt))
    A('s_waitcnt lgkmcnt(0)')
    if cfg.timing == 5:
        ist(60); A('s_mov_b32 s99, 0\n s_mov_b32 s101, 0'); dump(A, ['v19']); A('s_endpgm')

def role_qkv(A):
    A('L_qkv:')
    if not enabled('qkv'):
        ln0_hook(A, 0); A('s_endpgm'); return
    lane(A, 'v1')
    A(f'''
    v_lshrrev_b32 v2, 2, v1
    v_and_b32 v4, 3, v1
    v_lshlrev_b32 v3, 4, v4
    v_lshl_add_u32 v10, v2, 13, v3
    v_lshrrev_b32 v5, 4, v1
    v_and_b32 v2, 3, v2
    v_lshl_add_u32 v5, v5, 3, v2
    s_mul_i32 s67, {sW}, 36864
    v_lshl_add_u32 v5, v5, 6, v3
    v_add_u32 v11, s67, v5
    s_lshl_b32 s65, {sT}, 8
    s_lshl_b32 s63, {sW}, 6
    s_add_u32 s65, s65, s63
    ''')
    units = []
    for mi, srd in enumerate((SWK, SWV, SWQ)):
        for c in range(9):
            def dma(o, srd=srd, c=c):
                l = []
                for q in range(4):
                    l += [f's_add_u32 m0, s67, {o+1024*q}', f's_add_u32 s69, s65, {(64*c+16*q)*8192}', f'buffer_load_dwordx4 v10, {srd}, s69 offen lds']
                return l
            def rdf(o, mi=mi, c=c):
                return [f'ds_read_b64_tr_b16 {r(xw(2*c+kk, 2*mi+ch)+2*i,2)}, v11 offset:{o+kk*2048+i*256+ch*8}' for kk in range(2) for ch in range(2) for i in range(2)]
            units.append((dma, rdf))
    staged(A, units, 9, 4096, 's67')
    A('s_barrier')
    validate(A)
    xs_setup(A, F_QKV, F_XNA, cfg.shq, cfg.qplan)
    A(f'''s_mul_i32 s63, {sT}, 24576
    s_lshl_b32 s64, {sW}, 11
    s_add_u32 s63, s63, s64
    v_lshlrev_b32 {v(XSV)}, 4, v1
    s_add_u32 s87, s63, {QKV}
    s_add_u32 s88, s87, 8192
    s_add_u32 s89, s87, 16384''')
    def epi(th, sb, alone=False, loc=None):
        a_ = 24 * th; f = []
        def piece(b, soff):
            return [f'v_cvt_pk_bf16_f32 {v(b+d)}, {v(b+2*d)}, {v(b+2*d+1)}' for d in range(4)] + \
                   [f'buffer_store_dwordx4 {v(b,4)}, {v(XSV)}, {WS}, {soff} offen offset:{1024*th} sc1']
        f += piece(a_, f's{sb+1}')
        for ch in range(2):
            b = a_ + 8 + 4 * ch
            if th == 0:
                f += [f'v_cvt_pk_bf16_f32 {v(XPK+2*ch+d)}, {v(b+2*d)}, {v(b+2*d+1)}' for d in range(2)]
            else:
                f += [f'v_cvt_pk_bf16_f32 {v(b+3)}, {v(b+2)}, {v(b+3)}', f'v_cvt_pk_bf16_f32 {v(b+2)}, {v(b)}, {v(b+1)}',
                      f'v_mov_b64 {v(b,2)}, {v(XPK+2*ch,2)}',
                      f'buffer_store_dwordx4 {v(b,4)}, {v(XSV)}, {WS}, s{sb+2} offen offset:{1024*ch} sc1']
        f += piece(a_ + 16, f's{sb}')
        f[-1] += '\n @mark st'
        return f
    gs_stream(A, 'L_q', 6, 18, xw, [0, 0, 1, 1, 0, 0], True, 48, 3, epi, XNA, XB, 36864, 64 * 32 * 24576, 32 * 24576,
              4096, 2 if cfg.shq else 1, 20, True, None, 45, 6, 44, 44, False, False, prio=1, lowlate=cfg.shq and 'q' in cfg.lowlate, plan=cfg.qplan)

def role_up(A):
    A('L_up:')
    if not enabled('up'):
        ln0_hook(A, 0); A('s_endpgm'); return
    warm_sweep(A, f's_mul_i32 s63, {sL}, 24\n s_add_u32 s63, s63, 32')
    hold_back(A, 'u' in cfg.hold, F_QKV)
    lane(A, 'v1')
    for j in range(3):
        A(f'''v_add_u32 v2, {64*j}, v1
        v_mul_u32_u24 v3, 10923, v2
        v_lshrrev_b32 v3, 16, v3
        v_mul_u32_u24 v4, 6, v3
        v_sub_u32 v4, v2, v4
        v_mul_u32_u24 v3, 9216, v3
        v_lshl_add_u32 v{10+j}, v4, 4, v3''')
    A(f'''
    v_lshrrev_b32 v2, 4, v1
    v_bfe_u32 v3, v1, 2, 2
    v_lshl_add_u32 v2, v2, 3, v3
    v_mul_u32_u24 v2, 96, v2
    v_and_b32 v3, 1, v1
    v_lshl_add_u32 v2, v3, 4, v2
    v_bfe_u32 v3, v1, 1, 1
    v_lshl_add_u32 v2, v3, 3, v2
    s_mul_i32 s67, {sW}, 36864
    v_add_u32 v13, s67, v2
    s_mul_i32 s65, {sT}, 384
    s_mul_i32 s63, {sW}, 96
    s_add_u32 s65, s65, s63
    ''')
    units = []
    for ks in range(18):
        def dma(o, ks=ks):
            l = [f's_add_u32 s69, s65, {32*ks*9216}']
            for mat, srd in enumerate((SW1, SW3)):
                for j in range(3):
                    l += [f's_add_u32 m0, s67, {o+3072*mat+1024*j}', 's_nop 0', f'buffer_load_dwordx4 v{10+j}, {srd}, s69 offen lds']
            return l
        def rdf(o, ks=ks):
            return [f'ds_read_b64_tr_b16 {r(xw(ks, 2*t+mat)+2*i,2)}, v13 offset:{o+3072*mat+i*384+t*32}' for t in range(3) for mat in range(2) for i in range(2)]
        units.append((dma, rdf))
    staged(A, units, 6, 6144, 's67')
    A('s_barrier')
    validate(A)
    xs_setup(A, F_UP, F_XNF, cfg.shu, cfg.uplan)
    A(f'''v_lshrrev_b32 v2, 5, v1
    v_and_b32 v3, 31, v1
    v_lshlrev_b32 v3, 4, v3
    v_mul_u32_u24 v2, 18432, v2
    v_add_u32 {v(XSV)}, v2, v3
    s_mul_i32 s63, {sT}, 12
    s_mul_i32 s64, {sW}, 3
    s_add_u32 s63, s63, s64
    s_mul_i32 s66, {sT}, 86
    s_lshr_b32 s66, s66, 8
    s_mul_i32 s66, s66, 18432
    s_add_u32 s66, s66, {HB}
    s_mov_b32 s86, {f2u(-LOG2E):#x}''')
    for t in range(3):
        A(f'''s_add_u32 s64, s63, {t}
        s_lshl_b32 s64, s64, 9
        s_add_u32 s{87+t}, s64, s66''')
    def epi(th, sb, alone=False, loc=None):
        f = []
        if alone:
            B = [24 + 8 * t for t in range(3)]
            for t in range(3): f += [f'v_mul_f32 {v(4*t+j)}, s86, {v(B[t]+j)}' for j in range(4)]
            f += [f'v_exp_f32 {v(j)}, {v(j)}' for j in range(12)]
            for t in range(3): f += [f'v_pk_mul_f32 {v(B[t]+4+j,2)}, {v(B[t]+j,2)}, {v(B[t]+4+j,2)}' for j in (0, 2)]
            f += [f'v_pk_add_f32 {v(j,2)}, {v(j,2)}, 1.0 op_sel_hi:[1,0]' for j in range(0, 12, 2)]
            f += [f'v_rcp_f32 {v(j)}, {v(j)}' for j in range(12)]
            f += [f'v_mov_b64 {v(B[t],2)}, {v(XPK+2*t,2)}' for t in range(3)]
            for t in range(3): f += [f'v_pk_mul_f32 {v(B[t]+4+j,2)}, {v(4*t+j,2)}, {v(B[t]+4+j,2)}' for j in (0, 2)]
            for t in range(3): f += [f'v_cvt_pk_bf16_f32 {v(B[t]+2+d)}, {v(B[t]+4+2*d)}, {v(B[t]+5+2*d)}' for d in range(2)]
            for t in range(3):
                f += [f'v_permlane32_swap_b32 {v(B[t])}, {v(B[t]+2)}', f'v_permlane32_swap_b32 {v(B[t]+1)}, {v(B[t]+3)}',
                      f'buffer_store_dwordx4 {v(B[t],4)}, {v(XSV)}, {WS}, s{sb+t} offen sc1']
            return f
        T = [v(XT + j) for j in range(4)]
        for t in range(3):
            b = 24 * th + 8 * t
            G = [v(b + j) for j in range(4)]; U = [v(b + 4 + j) for j in range(4)]
            f += [f'v_mul_f32 {T[j]}, s86, {G[j]}' for j in range(4)]
            for j in range(4): f += [f'v_exp_f32 {T[j]}, {T[j]}', f'v_mul_f32 {U[j]}, {G[j]}, {U[j]}']
            f += [f'v_add_f32 {T[j]}, 1.0, {T[j]}' for j in range(4)]
            f += [f'v_rcp_f32 {T[j]}, {T[j]}' for j in range(4)]
            f += [f'v_mul_f32 {U[j]}, {T[j]}, {U[j]}' for j in range(4)]
            if th == 0:
                f += [f'v_cvt_pk_bf16_f32 {v(XPK+2*t+d)}, {U[2*d]}, {U[2*d+1]}' for d in range(2)]
            else:
                f += [f'v_mov_b64 {v(b,2)}, {v(XPK+2*t,2)}\n v_cvt_pk_bf16_f32 {v(b+2)}, {U[0]}, {U[1]}', f'v_cvt_pk_bf16_f32 {v(b+3)}, {U[2]}, {U[3]}\n s_nop 0',
                      f'v_permlane32_swap_b32 {v(b)}, {v(b+2)}', f'v_permlane32_swap_b32 {v(b+1)}, {v(b+3)}',
                      f'buffer_store_dwordx4 {v(b,4)}, {v(XSV)}, {WS}, s{sb+t} offen sc1']
        return f
    gs_stream(A, 'L_u', 6, 18, xw, [0] * 6, True, 48, 3, epi, XNF, XB, 36864, 64 * 294912, 294912,
              4096, 2 if cfg.shu else 1, 21, False, 38, 3, 6, 44, 33, True, False, lowlate=cfg.shu and 'u' in cfg.lowlate, plan=cfg.uplan)

def role_rg(A, name, key, NK, wsrd, in_base, in_sstride, out_base, fout, code):
    A(f'{name}:')
    if not enabled(key):
        ln0_hook(A, 0); A('s_endpgm'); return
    def w_(k, ct): return 256 + (k * 3 + ct) * 4
    warm_sweep(A, f's_mov_b32 s63, {80 if key == "wo" else 104}')
    hold_back(A, key[0] in cfg.hold, F_QKV)
    A(f'''s_mul_i32 s86, {sT}, 86
    s_lshr_b32 s86, s86, 8
    s_mul_i32 s63, s86, 3
    s_sub_u32 s80, {sT}, s63''')
    lane(A, 'v1')
    for j in range(3):
        A(f'''v_add_u32 v2, {64*j}, v1
        v_mul_u32_u24 v3, 10923, v2
        v_lshrrev_b32 v3, 16, v3
        v_mul_u32_u24 v4, 6, v3
        v_sub_u32 v4, v2, v4
        v_mul_u32_u24 v3, 1152, v3
        v_lshl_add_u32 v{10+j}, v4, 4, v3''')
    A(f'''
    v_lshrrev_b32 v2, 4, v1
    v_bfe_u32 v3, v1, 2, 2
    v_lshl_add_u32 v2, v2, 3, v3
    v_mul_u32_u24 v2, 96, v2
    s_mul_i32 s67, {sW}, 36864
    v_add_u32 v2, s67, v2
    v_and_b32 v3, 3, v1
    v_lshl_add_u32 v13, v3, 4, v2
    v_and_b32 v3, 1, v1
    v_lshl_add_u32 v2, v3, 4, v2
    v_bfe_u32 v3, v1, 1, 1
    v_lshl_add_u32 v14, v3, 3, v2
    s_mul_i32 s71, s80, 384
    s_mul_i32 s63, {sW}, 96
    s_add_u32 s71, s71, s63
    s_mul_i32 s65, s86, {NK*32*1152}
    s_add_u32 s65, s65, s71
    ''')
    units = []
    for k in range(NK):
        def dma(o, k=k):
            l = [f's_add_u32 s69, s65, {32*k*1152}']
            for j in range(3):
                l += [f's_add_u32 m0, s67, {o+1024*j}', 's_nop 0', f'buffer_load_dwordx4 v{10+j}, {wsrd}, s69 offen lds']
            return l
        def rdf(o, k=k):
            return [f'ds_read_b64_tr_b16 {r(w_(k,ct)+2*i,2)}, {"v13" if ct < 2 else "v14"} offset:{o+i*384+(ct*8 if ct < 2 else 64)}' for ct in range(3) for i in range(2)]
        units.append((dma, rdf))
    staged(A, units, 12, 3072, 's67')
    A('s_barrier')
    validate(A)
    A(f's_lshl_b32 s63, {sT}, 2\n s_add_u32 s63, s63, {fout}')
    flag_addr(A, v(XFA), 's63')
    A(f'''v_lshlrev_b32 {v(XSV)}, 4, v1
    s_lshl_b32 s87, {sT}, 2
    s_add_u32 s87, s87, {sW}
    s_mul_i32 s87, s87, 3072
    s_add_u32 s87, s87, {out_base}
    s_mov_b32 s88, s87
    s_mov_b32 s89, s87
    s_mul_i32 s90, s86, {NK*2048}
    s_mov_b32 s91, {2*NSEG}
    s_mov_b32 s74, 1
    s_mov_b32 s75, 1
    v_lshrrev_b32 v2, 5, v1
    v_and_b32 v3, 31, v1''')
    if key == 'wo':
        A(f'''s_lshl_b32 s65, s86, 7
        v_and_b32 v4, 3, v3
        v_lshl_add_u32 v4, v4, 2, s65
        v_lshl_add_u32 v4, v2, 12, v4
        v_add_u32 {v(XPA)}, {F_ATT}, v4''')
    else:
        A(f'''s_mul_i32 s65, s86, 3
        v_lshrrev_b32 v5, 1, v3
        v_min_u32 v5, 2, v5
        v_add_u32 v5, s65, v5
        v_and_b32 v4, {1 if cfg.shu else 0}, v3
        v_lshlrev_b32 v4, 2, v4
        v_lshl_add_u32 v4, v5, 7, v4
        v_lshl_add_u32 v4, v2, 12, v4
        v_add_u32 {v(XPA)}, {F_UP}, v4''')
    A(f'''v_and_b32 v4, 3, v3
    v_lshlrev_b32 v4, 2, v4
    v_lshl_add_u32 v4, v2, 7, v4
    v_add_u32 v4, {F_CON + (0 if key == 'wo' else 256)}, v4
    v_cmp_gt_u32 vcc, 16, v3
    v_mov_b64 v[8:9], 0
    v_mov_b64 v[10:11], 0
    v_cndmask_b32 {v(XPA)}, v4, {v(XPA)}, vcc
    v_cndmask_b32 v65, {PRING}, 0, vcc''')
    def epi(th, sb, alone=False, loc=''):
        b = 12 * th; o = 48 + 4 * th
        f = [f'v_cvt_pk_bf16_f32 {v(o+d)}, {v(b+2*d)}, {v(b+2*d+1)}' for d in range(4)]
        f.append(f'buffer_store_dwordx4 {v(o,4)}, {v(XSV)}, {WS}, s{sb} offen offset:{1024*th}{loc}')
        f += [f'v_cvt_pk_bf16_f32 {v(56+2*th+d)}, {v(b+8+2*d)}, {v(b+9+2*d)}' for d in range(2)]
        if th == 1:
            f = f[5:] + f[:5]
            f += ['v_permlane32_swap_b32 v56, v58', 'v_permlane32_swap_b32 v57, v59',
                  f'buffer_store_dwordx4 v[56:59], {v(XSV)}, {WS}, s{sb} offen offset:2048{loc}\n @mark st']
        return f
    GX = (NK - 3) * 3
    gs_stream(A, name, 3, NK, w_, [0] * 3, False, 80, cfg.rgring[NK == 18], epi, in_base, 64 * in_sstride, in_sstride, PRING * 294912, 294912,
              512, 1, code, True, None, cfg.rgdma[0], cfg.rgdma[1], cfg.rp0, cfg.rp1, True, True, lowlate='r' in cfg.lowlate)

def wr_reg(A, i, val):
    A(f'v_mov_b32 {r(i)}, {val}' if i < 256 else f'v_accvgpr_write_b32 {r(i)}, {val}')

def role_att(A):
    A('L_att:')
    if not enabled('att'):
        ln0_hook(A, 0); A('s_endpgm'); return
    ln0_hook(A, 0)
    validate(A, True)
    SET = [256, 384]
    BI, SA, PP, PM, OA, OP, T = 16, 20, 40, 48, 64, 128, 160
    vLD, vKM, vVM, vPA, vP, vFA, vF = 'v4', 'v5', 'v6', 'v7', 'v8', 'v9', 'v10'
    A(f'''s_sub_u32 s70, {sT}, 24
    s_lshl_b32 s70, s70, 2
    s_add_u32 s70, s70, {sW}
    s_lshl_b32 s71, {sL}, 5
    s_add_u32 s71, s71, s70
    s_lshl_b32 s71, s71, 7
    s_sub_u32 s63, {sT}, 24
    s_lshl_b32 s63, s63, 7
    s_lshl_b32 s64, {sL}, 12
    s_add_u32 s63, s63, s64
    s_lshl_b32 s64, {sW}, 2
    s_add_u32 s63, s63, s64
    s_add_u32 s63, s63, {F_ATT}''')
    flag_addr(A, vFA, 's63')
    A(f'''
    v_lshlrev_b32 {vLD}, 4, v1
    v_and_b32 v2, 15, v1
    v_lshrrev_b32 v3, 4, v1
    v_lshrrev_b32 v11, 2, v2
    v_and_b32 v12, 1, v2
    v_lshl_add_u32 v11, v11, 1, v12
    v_lshlrev_b32 v11, 4, v11
    v_lshl_add_u32 {vKM}, v3, 7, v11
    v_lshlrev_b32 {vVM}, 3, v1
    v_and_b32 v11, {1 if cfg.shq else 0}, v1
    v_lshlrev_b32 v11, 2, v11
    s_add_u32 s63, s71, {F_QKV}
    v_add_u32 v11, s63, v11
    s_add_u32 s63, s71, {F_CH}
    v_mov_b32 v12, s63
    v_cmp_gt_u32 vcc, 8, v1
    s_nop 1
    v_cndmask_b32 {vPA}, v12, v11, vcc
    v_lshlrev_b32 v3, 2, v3
    v_sub_u32 v2, v2, v3
    v_mov_b32 v12, {f2u(-1e30):#x}
    s_mul_i32 s72, {sL}, {64*32}
    s_add_u32 s72, s72, s70
    s_mul_i32 s73, s72, 4096
    s_add_u32 s73, s73, {KVM}
    s_mul_i32 s72, s72, 24576
    s_add_u32 s72, s72, {QKV}
    s_mul_i32 s74, {sL}, {64*262144}
    s_lshr_b32 s63, s70, 2
    s_lshl_b32 s63, s63, 15
    s_add_u32 s74, s74, s63
    s_and_b32 s63, s70, 3
    s_lshl_b32 s63, s63, 12
    s_add_u32 s74, s74, s63
    s_add_u32 s74, s74, {OB}
    s_mov_b32 s75, {f2u(128**-0.5*LOG2E):#x}
    ''')
    for rr in range(4):
        A(f'''v_cmp_le_i32 vcc, {rr}, v2
        s_nop 1
        v_cndmask_b32 {v(BI+rr)}, v12, 0, vcc''')
    for i in (PP + 2, PP + 3, PM + 1, PM + 2, PM + 5, PM + 6): A(f'v_mov_b32 {v(i)}, 0')
    def ld_qkv(P):
        b = SET[P]
        A(f's_mul_i32 s67, s64, {32*24576}\n s_add_u32 s67, s67, s72')
        for k in range(24):
            if k % 4 == 0 and k: A('s_add_u32 s67, s67, 4096')
            A(f'buffer_load_dwordx4 {r(b+4*k,4)}, {vLD}, {WS}, s67 offen offset:{1024*(k%4)} {cfg.attld}')
    def ld_m(P, sreg=sI):
        b = SET[P]
        A(f's_mul_i32 s68, {sreg}, {32*4096}\n s_add_u32 s68, s68, s73')
        for u in range(4):
            A(f'buffer_load_dwordx4 {r(b+96+4*u,4)}, {vKM}, {WS}, s68 offen offset:{512*u} sc1')
        for u in range(4):
            A(f'buffer_load_dwordx2 {r(b+112+2*u,2)}, {vVM}, {WS}, s68 offen offset:{2048+512*u} sc1')
    def allred2(op):
        x0, x1, t0, t1 = v(T), v(T+1), v(T+2), v(T+3)
        for sw in ('v_permlane16_swap_b32', 'v_permlane32_swap_b32'):
            A(f'''v_mov_b32 {t0}, {x0}
            v_mov_b32 {t1}, {x1}
            s_nop 0
            {sw} {x0}, {t0}
            {sw} {x1}, {t1}
            {op} {x0}, {x0}, {t0}
            {op} {x1}, {x1}, {t1}''')
    def compute(P):
        b = SET[P]
        Q = lambda u, th: r(b + 4 * (2 * u + th), 4)
        K = lambda u, th: r(b + 32 + 4 * (2 * u + th), 4)
        for u in range(4):
            for ai, (a_, qh, c0) in enumerate(((K(u,0), 0, v(BI,4)), (r(b+96+4*u,4), 0, '0'), (K(u,0), 1, '0'), (K(u,1), 1, v(BI,4)), (r(b+96+4*u,4), 1, '0'))):
                d = v(SA + 4 * ai, 4)
                A(f'{M16} {d}, {a_}, {Q(u,qh)}, {c0 if u == 0 else d}')
        S0 = [SA + i for i in range(4)] + [SA + 4, SA + 5]
        S1 = [SA + 8 + i for i in range(8)] + [SA + 16, SA + 17]
        A('s_nop 4')
        A(f'v_max3_f32 {v(T)}, {v(S0[0])}, {v(S0[1])}, {v(S0[2])}\n v_max3_f32 {v(T)}, {v(T)}, {v(S0[3])}, {v(S0[4])}\n v_max_f32 {v(T)}, {v(T)}, {v(S0[5])}')
        A(f'v_max_f32 {v(T+1)}, {v(S1[0])}, {v(S1[1])}')
        for q in range(2, 10, 2): A(f'v_max3_f32 {v(T+1)}, {v(T+1)}, {v(S1[q])}, {v(S1[q+1])}')
        allred2('v_max_f32')
        A(f'v_mul_f32 {v(T)}, s75, {v(T)}\n v_mul_f32 {v(T+1)}, s75, {v(T+1)}')
        for qh, S in enumerate((S0, S1)):
            for x in S: A(f'v_fma_f32 {v(x)}, {v(x)}, s75, -{v(T+qh)}')
        for x in S0 + S1: A(f'v_exp_f32 {v(x)}, {v(x)}')
        for qh, S in enumerate((S0, S1)):
            A(f'v_add_f32 {v(T+qh)}, {v(S[0])}, {v(S[1])}')
            for x in S[2:]: A(f'v_add_f32 {v(T+qh)}, {v(T+qh)}, {v(x)}')
        allred2('v_add_f32')
        A(f'v_rcp_f32 {v(T)}, {v(T)}\n v_rcp_f32 {v(T+1)}, {v(T+1)}')
        for qh, S in enumerate((S0, S1)):
            for x in S: A(f'v_mul_f32 {v(x)}, {v(x)}, {v(T+qh)}')
        for d in range(2): A(f'v_cvt_pk_bf16_f32 {v(PP+d)}, {v(S0[2*d])}, {v(S0[2*d+1])}')
        for d in range(4): A(f'v_cvt_pk_bf16_f32 {v(PP+4+d)}, {v(S1[2*d])}, {v(S1[2*d+1])}')
        for qh, S in enumerate((S0, S1)):
            for o in (0, 3): A(f'v_cvt_pk_bf16_f32 {v(PM+4*qh+o)}, {v(S[-2])}, {v(S[-1])}')
        od = lambda u, qh, ch: v(OA + 32 * qh + 8 * u + 4 * ch, 4)
        for qh in range(2):
            for u in range(4):
                for ch in range(2):
                    A(f'{M16} {od(u,qh,ch)}, {r(b+64+4*(2*u+ch),4)}, {v(PP+4*qh,4)}, 0')
        for qh in range(2):
            for u in range(4):
                for ch in range(2):
                    A(f'v_mfma_f32_16x16x16_bf16 {od(u,qh,ch)}, {r(b+112+2*u,2)}, {v(PM+4*qh+2*ch,2)}, {od(u,qh,ch)}')
    def pack():
        for d in range(32):
            A(f'v_cvt_pk_bf16_f32 {v(OP+d)}, {v(OA+2*d)}, {v(OA+2*d+1)}')
    def stores():
        A(f's_mul_i32 s67, {sI}, 262144\n s_add_u32 s67, s67, s74')
        for k in range(8):
            A(f'buffer_store_dwordx4 {v(OP+4*k,4)}, {vLD}, {WS}, s67 offen offset:{1024*(k%4)} {cfg.attst}')
            if k == 3: A('s_add_u32 s67, s67, 16384')
    poll = f'buffer_load_dword {vP}, {vPA}, {WS}, 0 offen sc1'
    def flag(): A(f'v_mov_b32 {vF}, {sI}\n buffer_store_dword {vF}, {vFA}, {WS}, 0 offen sc1')
    for P in (0, 1):
        for i in range(96, 112): wr_reg(A, SET[P] + i, 0)
    A(f's_mov_b32 s76, 0x33333333\n s_mov_b32 s77, 0x33333333\n s_mov_b32 {sI}, 0\n s_mov_b32 s66, 0\n s_branch L_a_wait0')
    for P in (0, 1):
        l1 = A.lab('La'); l2 = A.lab('La')
        A(f'''L_a_wait{P}:
        s_mov_b32 {sSPIN}, 0
        L_a_spin{P}:
        {poll}
        s_waitcnt vmcnt(0)
        L_a_chk{P}:
        v_cmp_ge_u32 vcc, {sI}, {vP}
        s_bitcmp1_b32 s66, 1
        s_cbranch_scc1 {l1}
        s_cmp_lg_u32 vcc_hi, 0
        s_cbranch_scc1 {l1}''')
        ld_m(P)
        A(f'''s_or_b32 s66, s66, 2
        {l1}:
        s_bitcmp1_b32 s66, 0
        s_cbranch_scc1 {l2}
        s_and_b32 s63, vcc_lo, 0xff
        s_cbranch_scc1 {l2}
        s_mov_b32 s64, {sI}''')
        ld_qkv(P)
        A(f'''s_or_b32 s66, s66, 1
        {l2}:
        s_cmp_eq_u32 s66, 3
        s_cbranch_scc1 L_a_top{P}
        s_add_u32 {sSPIN}, {sSPIN}, 1
        s_cmp_lt_u32 {sSPIN}, {cfg.spin_limit}
        s_cbranch_scc1 L_a_spin{P}
        s_mov_b32 s63, 30
        s_branch L_abort
        L_a_topf{P}:
        s_waitcnt vmcnt(8)''')
        flag()
        A(f'''s_waitcnt vmcnt(1)
        s_branch L_a_top2{P}
        L_a_top{P}:
        s_waitcnt vmcnt(0)
        L_a_top2{P}:
        s_add_u32 s64, {sI}, 1
        v_cmp_ge_u32 vcc, s64, {vP}''')
        stamp(A, 'v220', sI)
        def variant(ldf, gapc):
            body = capture(A, lambda: compute(P)); ld = capture(A, ldf)
            groups = []; cur = []
            for l in ld:
                cur.append(l)
                if l.strip().startswith('buffer_'): groups.append(cur); cur = []
            k = 0; cost = 0; tot = 0; fl = False
            for l in body:
                A.lines.append(l); c_ = 16 if 'mfma' in l else 6; cost += c_; tot += c_
                if cost >= gapc and k < len(groups): A.lines += groups[k]; k += 1; cost = 0
                if tot > 700 and not fl and l.strip().startswith('v_add_f32'):
                    A(f's_waitcnt vmcnt({k})'); flag(); fl = True
            assert k == len(groups) and fl, (k, len(groups))
        A(f'''s_and_b32 s63, vcc_lo, 0xff
        s_cbranch_scc0 L_a_w{P}
        s_mov_b32 s66, 0''')
        variant(lambda: None, 1)
        A(f's_branch L_a_e{P}\n L_a_w{P}:\n s_cmp_eq_u32 vcc_hi, 0\n s_cbranch_scc1 L_a_ww{P}\n s_mov_b32 s66, 1')
        variant(lambda: ld_qkv(1 - P), 56)
        A(f's_branch L_a_e{P}\n L_a_ww{P}:\n s_mov_b32 s66, 3')
        variant(lambda: (ld_qkv(1 - P), ld_m(1 - P, 's64')), 42)
        A(f'L_a_e{P}:\n {poll}')
        pack()
        stores()
        stamp(A, 'v221', sI)
        A(f'''s_add_u32 {sI}, {sI}, 1
        s_waitcnt vmcnt(8)
        v_cmp_ge_u32 vcc, {sI}, {vP}
        s_cmp_eq_u32 s66, 3
        s_cbranch_scc1 L_a_top2{1-P}
        s_cmp_eq_u32 s66, 0
        s_cbranch_scc1 L_a_idle{P}
        s_cmp_lg_u32 vcc_hi, 0
        s_cbranch_scc1 L_a_idle{P}''')
        ld_m(1 - P)
        A(f'''s_branch L_a_topf{1-P}
        L_a_idle{P}:
        {poll}
        s_waitcnt vmcnt(0)''')
        flag()
        A(f'''s_cmp_ge_u32 {sI}, {NSEG}
        s_cbranch_scc1 L_a_done
        s_mov_b32 {sSPIN}, 0
        s_branch L_a_chk{1-P}''')
    A('L_a_done:\n s_waitcnt vmcnt(0)')
    dump(A, ['v220', 'v221'])
    A('s_endpgm')

L_MEM = 147456; L_QK = L_MEM + 9216; L_O = L_QK + 4096; L_SM = L_O + 2048
def cwq(T, c): return 80 + (T * 9 + c) * 8
def cwo(t, c2): return 80 + 288 + (t * 2 + c2) * 8
def resident():
    reg = [('k', c) for c in range(9) if c not in cfg.KL] + [('v', c) for c in range(9) if c not in cfg.VL]
    lds = [('k', c) for c in cfg.KL] + [('v', c) for c in cfg.VL]
    assert len(reg) == 9 and len(lds) == 9
    return reg, lds
def cwr(m, T, c): return 80 + 144 + (resident()[0].index((m, c)) * 2 + T) * 8

def chain_mem0(A):
    A(f'''
    v_lshrrev_b32 v2, 4, v1
    v_bfe_u32 v3, v1, 2, 1
    v_lshl_add_u32 v2, v2, 1, v3
    v_mul_u32_u24 v2, 1152, v2
    v_bfe_u32 v3, v1, 3, 1
    v_bfe_u32 v4, v1, 1, 1
    v_lshl_add_u32 v3, v3, 1, v4
    v_and_b32 v4, 1, v1
    s_lshl_b32 s63, {sW}, 2
    v_add_u32 v5, s63, v3
    v_lshl_add_u32 v5, v4, 5, v5
    v_lshl_add_u32 v5, v5, 1, v2
    s_mul_i32 s63, {sW}, 144
    s_add_u32 s63, s63, 128
    v_lshl_add_u32 v6, v3, 2, s63
    v_lshl_add_u32 v6, v4, 1, v6
    v_lshl_add_u32 v6, v6, 1, v2
    s_lshl_b32 s63, {sW}, 8
    s_add_u32 s63, s63, {L_MEM}
    v_lshl_add_u32 v7, v1, 2, s63
    ''')
    for c in range(8):
        o = (144 * (c >> 1) + 64 * (c & 1)) * 2
        A(f'buffer_load_ushort v{40+c}, v5, {SMEM0}, 0 offen offset:{o}')
        A(f'buffer_load_ushort v{50+c}, v5, {SMEM0}, 0 offen offset:{o+32}')
    A(f'buffer_load_dword v48, v6, {SMEM0}, 0 offen')
    return

def chain_mem0b(A):
    for c in range(8): A(f'v_lshl_or_b32 v{40+c}, v{50+c}, 16, v{40+c}')
    for c in range(9): A(f'ds_write_b32 v7, v{40+c} offset:{c*1024}')
    A('s_waitcnt lgkmcnt(0)')


def chain_init(A):
    lane(A, 'v1')
    A(f'''
    v_lshrrev_b32 v2, 5, v1
    v_bfe_u32 v3, v1, 4, 1
    v_bfe_u32 v4, v1, 3, 1
    v_bfe_u32 v5, v1, 2, 1
    v_and_b32 v6, 3, v1
    v_lshlrev_b32 v7, 4, v6
    v_lshl_add_u32 v8, v2, 2, v3
    v_lshl_add_u32 v8, v5, 4, v8
    v_lshl_add_u32 v8, v4, 1, v8
    v_lshl_add_u32 v10, v8, 13, v7
    v_mul_u32_u24 v8, 144, v2
    v_lshl_add_u32 v8, v3, 2, v8
    v_lshl_add_u32 v8, v4, 3, v8
    v_add_u32 v8, v8, v5
    v_lshl_add_u32 v11, v8, 13, v7
    s_mul_i32 s67, {sW}, 36864
    v_lshrrev_b32 v8, 2, v1
    v_lshl_add_u32 v9, v8, 6, s67
    v_lshl_add_u32 v13, v6, 3, v9
    v_lshl_add_u32 v14, v6, 4, v9
    v_lshrrev_b32 v8, 4, v1
    v_lshl_add_u32 v8, v8, 2, v5
    v_mul_u32_u24 v8, 288, v8
    v_lshl_add_u32 v8, v6, 3, v8
    v_add_u32 v8, s67, v8
    v_lshl_add_u32 v15, v4, 5, v8
    v_mul_u32_u24 v9, 9216, v4
    v_add_u32 v12, v9, v8
    v_lshl_add_u32 v16, v1, 4, s67
    s_lshl_b32 s65, {sT}, 8
    s_lshl_b32 s63, {sW}, 6
    s_add_u32 s65, s65, s63
    s_mul_i32 s66, {sT}, 147456
    s_mul_i32 s63, {sW}, 288
    s_add_u32 s66, s66, s63
    ''')
    for j in range(9):
        A(f'''v_add_u32 v8, {64*j}, v1
        v_mul_u32_u24 v9, 3641, v8
        v_lshrrev_b32 v9, 16, v9
        v_mul_u32_u24 v17, 18, v9
        v_sub_u32 v8, v8, v17
        v_mul_u32_u24 v9, 1152, v9
        v_lshl_add_u32 v{24+j}, v8, 4, v9''')
    def dqkv(srd, c):
        def f(o):
            l = []
            for tau in range(4):
                pi, jh = tau & 1, tau >> 1
                row = 144 * (c >> 1) + 64 * (c & 1) + 32 * pi + 8 * jh if c < 8 else 288 * jh + 128 + 2 * pi
                l += [f's_add_u32 m0, s67, {o+1024*tau}', f's_add_u32 s69, s65, {row*8192}', f'buffer_load_dwordx4 {"v10" if c < 8 else "v11"}, {srd}, s69 offen lds']
            return l
        return f
    units = []
    tra = lambda m, T: ('v13', 32 * T) if m != 'v' else ('v14', 8 * T)
    for c in range(9):
        units.append((dqkv(SWQ, c), lambda o, c=c: [f'ds_read_b64_tr_b16 {r(cwq(T,c)+2*tau,2)}, v13 offset:{o+1024*tau+32*T}' for T in range(2) for tau in range(4)]))
    for (m, c) in resident()[0]:
        units.append((dqkv(SWK if m == 'k' else SWV, c), lambda o, m=m, c=c: [f'ds_read_b64_tr_b16 {r(cwr(m,T,c)+2*tau,2)}, {tra(m,T)[0]} offset:{o+1024*tau+tra(m,T)[1]}' for T in range(2) for tau in range(4)]))
    ranges = [((i % 9) * 4096, 4096) for i in range(18)]
    for u in range(4):
        def d(o, u=u):
            l = [f's_add_u32 s69, s66, {32*u*1152}']
            for j in range(9): l += [f's_add_u32 m0, s67, {9216*u+1024*j}', 's_nop 0', f'buffer_load_dwordx4 v{24+j}, {SWO}, s69 offen lds']
            return l
        def rd_(o, u=u):
            l = [f'ds_read_b64_tr_b16 {r(cwo(2*p+(u>>1),u&1)+2*tau,2)}, v15 offset:{9216*u+(16*(tau>>1)+2*(tau&1))*288+64*p}' for p in range(4) for tau in range(4)]
            if u & 1: l += [f'ds_read_b64_tr_b16 {r(cwo(8,u>>1)+2*tau,2)}, v12 offset:{9216*(u-1)+(16*(tau>>1)+2*(tau&1))*288+256}' for tau in range(4)]
            return l
        units.append((d, rd_)); ranges.append((9216 * u, 9216))
    for i, (m, c) in enumerate(resident()[1]):
        def rv(o, m=m, i=i):
            b = 36 + 16 * (i & 1); pb = 36 + 16 * ((i + 1) & 1)
            l = [f'ds_read_b64_tr_b16 {v(b+8*ch+2*tau,2)}, {tra(m,ch)[0]} offset:{o+1024*tau+tra(m,ch)[1]}' for ch in range(2) for tau in range(4)]
            if i > 0: l += ['s_waitcnt lgkmcnt(8)'] + [f'ds_write_b128 v16, {v(pb+4*q,4)} offset:{o-4096+1024*q}' for q in range(4)]
            if i == 8: l += ['s_waitcnt lgkmcnt(4)'] + [f'ds_write_b128 v16, {v(b+4*q,4)} offset:{o+1024*q}' for q in range(4)]
            return l
        units.append((dqkv(SWK if m == 'k' else SWV, c), rv))
        ranges.append((i * 4096, 4096))
    dep_fix = True
    staged(A, units, 9, 4096, 's67', pre=cfg.chpre, ranges=ranges, hold={18: 19, 20: 21}, mid=(chain_mem0, chain_mem0b))

(vLM, vWV, vIDX, vQW, vQR, vKR, vSM, vOW, vKMS, vPS, vRS, vKP, vSI, vSV, vSC, vZ) = [f'v{64+i}' for i in range(16)]
def role_chain(A):
    A('L_chain:')
    if not enabled('chain'):
        ln0_hook(A, 0); A('s_endpgm'); return
    warm_sweep(A, 's_mov_b32 s63, 0', True, cfg.ch1wait)
    hold_back(A, 'c' in cfg.hold, F_CH, True)
    chain_init(A)
    validate(A)
    lane(A, 'v1')
    A(f'''
    v_and_b32 v2, 15, v1
    v_lshrrev_b32 v3, 4, v1
    v_and_b32 v8, 3, v1
    v_mov_b32 v6, {OOB}
    v_lshlrev_b32 v4, 4, v1
    v_add_u32 {vLM}, {L_MEM}, v4
    s_mul_i32 s63, {sW}, 36864
    v_add_u32 {vWV}, s63, v4
    s_lshl_b32 s63, {sW}, 10
    s_add_u32 s63, s63, {L_QK}
    s_sub_u32 s66, s63, {L_MEM}
    v_lshlrev_b32 v4, 2, v1
    v_add_u32 {vSM}, {L_SM}, v4
    s_lshl_b32 s67, {sW}, 8
    v_and_b32 v4, 2, v1
    v_cmp_eq_u32 vcc, 0, v4
    v_mov_b32 v5, 0x4444
    v_mov_b32 v7, 0xeeee
    v_cndmask_b32 {vIDX}, v7, v5, vcc
    v_lshlrev_b32 v4, 4, v2
    v_lshl_add_u32 v4, v3, 2, v4
    v_add_u32 {vQW}, s63, v4
    v_bfe_u32 v4, v1, 2, 2
    v_lshl_add_u32 v4, v3, 3, v4
    v_lshl_add_u32 v4, v4, 4, s63
    v_and_b32 v5, 1, v1
    v_lshl_add_u32 {vQR}, v5, 3, v4
    v_bfe_u32 v5, v1, 1, 1
    v_lshl_add_u32 {vKR}, v5, 3, v4
    v_lshrrev_b32 v4, 3, v2
    v_lshl_add_u32 v4, v4, 2, v8
    v_lshlrev_b32 v4, 4, v4
    v_lshl_add_u32 v4, v3, 7, v4
    s_lshl_b32 s64, {sW}, 9
    v_add_u32 v4, s64, v4
    v_and_b32 v5, 4, v1
    v_cmp_eq_u32 vcc, 0, v5
    s_add_u32 s68, s64, {2048 - 2*L_SM}
    s_nop 0
    v_cndmask_b32 {vKMS}, v6, v4, vcc
    s_lshr_b32 s63, {sW}, 1
    s_lshl_b32 s63, s63, 10
    s_and_b32 s64, {sW}, 1
    s_lshl_b32 s64, s64, 5
    s_add_u32 s63, s63, s64
    s_add_u32 s63, s63, {L_O}
    v_lshrrev_b32 v4, 1, v2
    v_lshlrev_b32 v4, 6, v4
    v_and_b32 v5, 1, v1
    v_lshl_add_u32 v4, v5, 4, v4
    v_lshl_add_u32 v4, v3, 8, v4
    v_add_u32 {vOW}, s63, v4
    v_lshrrev_b32 v4, 2, v2
    v_lshrrev_b32 v5, 5, v1
    v_lshl_add_u32 v4, v4, 1, v5
    v_and_b32 v7, 1, v3
    v_lshl_add_u32 v7, v7, 2, v8
    v_lshlrev_b32 v7, 4, v7
    v_lshl_add_u32 {vPS}, v4, 12, v7
    v_bfe_u32 v4, v1, 1, 2
    v_lshlrev_b32 v4, 5, v4
    v_and_b32 v7, 1, v1
    v_lshl_add_u32 v4, v7, 3, v4
    v_lshl_add_u32 v4, v5, 4, v4
    v_and_b32 v7, 1, v3
    v_lshl_add_u32 v4, v7, 2, v4
    v_and_b32 v7, 8, v1
    v_cmp_eq_u32 vcc, 0, v7
    v_bfe_u32 v9, v1, 2, 1
    v_lshl_add_u32 {vSI}, v9, 1, v8
    v_cndmask_b32 {vRS}, v6, v4, vcc
    v_mov_b32 v4, 0x3f80
    v_mov_b32 v5, 0x3f800000
    v_cndmask_b32 v4, v5, v4, vcc
    v_and_b32 v7, 2, v1
    v_cmp_eq_u32 vcc, 0, v7
    s_nop 1
    v_cndmask_b32 {vSV}, 0, v4, vcc
    ''')
    l3 = A.lab('Lw3')
    A(f'''
    s_lshl_b32 s63, {sL}, 5
    s_add_u32 s63, s63, {sT}
    s_lshl_b32 s63, s63, 7
    s_add_u32 s64, s63, {F_QKV}
    v_and_b32 v4, {1 if cfg.shq else 0}, v1
    v_lshl_add_u32 {vKP}, v4, 2, s64
    s_cmp_lg_u32 {sW}, 3
    s_cbranch_scc1 {l3}
    v_lshlrev_b32 v4, 8, v8
    v_add_u32 {vSI}, {L_SM}, v4
    s_add_u32 s64, s63, {F_CH}
    v_cmp_eq_u32 vcc, 0, v1
    v_mov_b32 v4, s64
    s_nop 0
    v_cndmask_b32 {vRS}, v6, v4, vcc
    {l3}:
    s_mul_i32 s71, {sL}, {64*32}
    s_add_u32 s71, s71, {sT}
    s_mul_i32 s72, s71, 4096
    s_add_u32 s72, s72, {KVM}
    s_mul_i32 s71, s71, 24576
    s_add_u32 s94, s71, {QKV + 8192}
    s_lshl_b32 s63, {sW}, 11
    s_add_u32 s71, s71, s63
    s_add_u32 s71, s71, {QKV + 8192 - L_MEM}
    s_add_u32 s70, s71, 8192
    s_mul_i32 s73, {sL}, {2*RSLOT}
    s_add_u32 s73, s73, {RING0}
    s_lshl_b32 s74, {sW}, 5
    s_add_u32 s74, s74, {sT}
    s_lshl_b32 s63, {sT}, 7
    s_add_u32 s63, s63, s73
    s_lshl_b32 s64, {sW}, 16
    s_add_u32 s85, s63, s64
    s_add_u32 s86, s85, 32768
    s_lshl_b32 s64, {sW}, 13
    s_add_u32 s87, s63, s64
    s_add_u32 s87, s87, {64*4096}
    s_lshl_b32 s83, s74, 12
    s_add_u32 s83, s83, s73
    s_sub_u32 s83, s83, {L_MEM}
    s_mov_b32 s82, {RSLOT}
    s_mul_i32 s75, {sL}, {3*9216}
    s_add_u32 s75, s75, {MEM0}
    s_lshl_b32 s63, s74, 7
    s_add_u32 s88, s75, s63
    s_add_u32 s89, s88, 9216
    s_add_u32 s90, s88, 18432
    s_mul_i32 s91, {sW}, 3072
    s_sub_u32 s91, s91, s63
    s_sub_u32 s91, s91, {L_MEM}
    s_mov_b32 s77, {f2u(128**-0.5*LOG2E):#x}
    s_mov_b32 s78, 0x00ff00ff
    s_mov_b32 s79, 0x00ff00ff
    s_mov_b32 s92, 0x0000ffff
    s_mov_b32 s93, 0x0000ffff
    s_mov_b32 s84, 1
    s_mov_b32 s4, 0x3f803f80
    s_mov_b32 s5, 0x3f803f80
    s_mov_b32 {sI}, 0
    ''')
    A(f's_cmp_lg_u32 {sSLOW}, 0\n s_cbranch_scc1 L_chs')
    chain_loop(A, 'L_chf', '')
    A('L_chs:')
    chain_loop(A, 'L_chs', ' sc1')

def chain_loop(A, name, loc):
    KX, AQ, AK, AR, BB, AV = 0, 8, 16, [24, 28], [32, 40, 48], 56
    sm = 'v_smfmac_f32_16x16x64_bf16'
    ACCS = [12, 13, 14, 15, 16, 17, 18, 19, 24, 25, 26, 27]
    NPS = 12
    def pst(k): return f's_memtime s[{28+2*k}:{29+2*k}]' if cfg.timing == True else ''
    def ps(k): A(pst(k))
    if cfg.timing:
        for k in range(NPS): A(f's_mov_b32 s{ACCS[k]}, 0\n s_mov_b32 s{28+2*k}, 0')
        A('s_mov_b32 s52, 0')
    REG, LDS = resident()
    seqA = []
    for c in range(9):
        seqA += [('k', 0, c), ('q', 0, c), ('k', 1, c), ('q', 1, c)] if c in cfg.KL else [('q', 0, c), ('q', 1, c), ('k', 0, c), ('k', 1, c)]
    seqV = [('v', T, c) for c in cfg.VORD for T in range(2)]
    fed = [x for x in seqA + seqV if (x[0], x[2]) in LDS]
    def brd(n):
        m, T, c = fed[n]
        return [f'ds_read_b128 {v(BB[n%3]+4*hb,4)}, {vWV} offset:{LDS.index((m,c))*4096+(2*T+hb)*1024} #b{n}' + ('x' if hb == 0 else '') for hb in range(2)]
    chunks = list(range(9)) + cfg.VORD
    assert cfg.VORD[:2] == [7, 8]
    NF = len(fed)
    xs = {16: BB[(NF - 3) % 3] + 4, 17: BB[(NF - 2) % 3] + 4}
    def aslot(i): return xs[i] if i in xs else AR[i & 1]
    def ard(i): return f'ds_read_b128 {v(aslot(i),4)}, {vLM} offset:{chunks[i]*1024} #a{i}'
    def mm(x, i):
        m, T, c = x
        acc = {'q': AQ, 'k': AK, 'v': AV}[m] + 4 * T
        pre = [f'@lw a{i}']; post = []
        if x in fed:
            n = fed.index(x); b = v(BB[n % 3], 8); pre.append(f'@lw b{n}')
            if n + 3 < len(fed): post = brd(n + 3)
        else: b = r(cwq(T, c) if m == 'q' else cwr(m, T, c), 8)
        return pre, f'{sm} {v(acc,4)}, {v(aslot(i),4)}, {b}, {vIDX}', post
    strip = lambda l: l.split('#')[0]
    def pre_reads():
        for n in range(3):
            for x in brd(n): A(strip(x))
    zero = [f'v_mov_b64 {v(i,2)}, 0' for i in list(range(8, 24, 2)) + list(range(56, 64, 2))]
    pre_reads()
    for x in zero: A(x)
    sel = f's_cmp_lg_u32 s76, 0\n s_cselect_b32 s80, s71, {OOB}\n s_cselect_b32 s81, s70, {OOB}'
    A(f'buffer_load_dword v0, {vKP}, {WS}, 0 offen sc1\n s_add_u32 s63, s83, s82')
    for so in ('s83', 's63'):
        for i in range(4): A(f'buffer_load_dwordx4 v[4:7], {vLM}, {WS}, {so} offen offset:{1024*i} sc1')
    for so in ('s88', 's89', 's90'): A(f's_sub_u32 s63, {so}, {L_SM}\n buffer_load_dword v4, {vSM}, {WS}, s63 offen sc1')
    A(f'''s_waitcnt vmcnt(11)
    v_cmp_eq_u32 vcc, 0, v0
    s_mov_b32 s69, {OOB}
    s_cmp_eq_u64 vcc, 0
    s_cselect_b32 s76, 1, 0
    {sel}''')
    A(f'{name}_top:')
    ps(11)
    A(f's_waitcnt lgkmcnt(0)\n s_barrier\n {name}_top2:')
    if cfg.timing == True:
        ls = A.lab('Lts')
        A(f's_memtime s[52:53]\n s_waitcnt lgkmcnt(0)\n s_cmp_lt_u32 {sI}, 8\n s_cbranch_scc1 {ls}')
        for k in range(NPS):
            A(f's_sub_u32 s63, s{30+2*k}, s{28+2*k}\n s_add_u32 s{ACCS[k]}, s{ACCS[k]}, s63')
        A(f'{ls}:')
    stamp(A, vZ, sI)
    ps(0)
    VX = [20, 8]
    kld = [f'buffer_load_dwordx4 {v(KX+4*q,4)}, {vLM}, {WS}, s71 offen offset:{1024*q} sc1' for q in range(2)]
    vld = [f'buffer_load_dwordx4 {v(VX[q],4)}, {vLM}, {WS}, s70 offen offset:{1024*q} sc1' for q in range(2)]
    pk = lambda d, b: f'v_pk_add_f32 {v(d,2)}, {v(b,2)}, {v(b+2,2)}'
    ad = lambda b: [f'v_add_f32 {v(b)}, {v(b)}, {v(b+2)}', f'v_add_f32 {v(b+1)}, {v(b+1)}, {v(b+3)}']
    cv = lambda d, b: f'v_cvt_pk_bf16_f32 {v(d)}, {v(b)}, {v(b+1)}'
    L = [ard(0), ard(1), kld[0].replace('s71', 's80'), kld[1].replace('s71', 's80')]
    extra = {8: [f'v_lshlrev_b32 {vSC}, 2, {vLM}', f's_sub_u32 s63, s81, {3*L_MEM}'],
             9: ['s_mov_b32 exec_hi, 0', f'buffer_load_dword {vSC}, {vSC}, {WS}, s63 offen sc1', 's_mov_b32 exec_hi, -1'],
             1: [f'buffer_store_dword {vSV}, {vKP}, {WS}, s69 offen sc1'],
             11: ['s_cmp_eq_u32 s76, 0', f's_cbranch_scc1 {name}_m1', f'{name}_m1r:'],
             cfg.midchk: ['s_cmp_eq_u32 s76, 0', f's_cbranch_scc1 {name}_m2', f'{name}_m2r:'],
             34: [f's_cmp_eq_u32 {sI}, {NSEG-1}']}
    pend = []
    for j, x in enumerate(seqA):
        i = j // 4
        pre, m_, post = mm(x, i)
        L += pre + [m_]
        pend += post
        if j % 4 == 3 and i + 2 < 9: pend.append(ard(i + 2))
        if pend: L.append(pend.pop(0))
        if len(pend) > 1: L.append(pend.pop(0))
        L += extra.get(j, [])
    L += pend; pend = []
    L.append(pst(1))
    vq = list(enumerate(seqV))
    def vrun(n, fill=()):
        o = []; fill = list(fill)
        for _ in range(n):
            j, x = vq.pop(0); i = 9 + j // 2
            pre, m_, post = mm(x, i)
            o += pre + [m_] + post
            if j % 2 == 1 and i + 2 < 16: o.append(ard(i + 2))
            if x == fed[NF - 3]: o.append(ard(16))
            if x == fed[NF - 2]: o.append(ard(17))
            if fill: o += fill.pop(0)
        return o
    g = cfg.vgaps
    L += vrun(g[0], [['s_nop 0'], ad(AQ)])
    L += ad(AQ + 4) + [cv(10, AQ), cv(11, AQ + 4), f'ds_write2_b32 {vQW}, v10, v11 offset0:0 offset1:64', pk(AK, AK), pk(AK + 4, AK + 4),
          f'ds_read_b64_tr_b16 v[8:9], {vQR}', cv(18, AK), cv(19, AK + 4), f'ds_write2_b32 {vQW}, v18, v19 offset0:128 offset1:192',
          f'ds_read_b64_tr_b16 v[10:11], {vQR} offset:64 #q', f'ds_read_b64_tr_b16 v[12:13], {vKR} offset:512', f'ds_read_b64_tr_b16 v[14:15], {vKR} offset:576 #k']
    state = Sched(['\n'.join(L)]).emit(A)
    A(f's_cbranch_scc1 {name}_late')
    vsave = list(vq)
    smf = [f'{M16} v[16:19], v[0:3], v[8:11], 0', f'{M16} v[20:23], v[4:7], v[8:11], 0', f'{M16} v[0:3], v[12:15], v[8:11], 0']
    kmst = f'buffer_store_dwordx4 v[12:15], {vKMS}, {WS}, s72 offen sc1'
    def smid(withv, st):
        run = (lambda n, f=(): vrun(n, f)) if withv else (lambda n, f=(): [y for x in f for y in x])
        L = run(g[2], [[f'v_add_u32 v4, s66, {vLM}'], [f'v_add_u32 v5, s67, {vSM}']])
        L += [f's_nop {cfg.snop if withv else 5}'] + [f'v_cndmask_b32 v{16+q}, v{20+q}, v{16+q}, vcc' for q in range(4)]
        L += ['ds_write_b128 v4, v[16:19]', 'v_cndmask_b32 v0, v1, v0, vcc', 'v_cndmask_b32 v2, v3, v2, vcc', 'v_cndmask_b32 v0, v2, v0, s[92:93]', 'ds_write_b32 v5, v0 #sw']
        L += run(g[3], [[vld[0]], [vld[1]]])
        L += ['@lw sw', 's_barrier', pst(4)]
        XR = [0, 4, 40, 16]
        L += [f'ds_read_b128 {v(XR[w],4)}, {vLM} offset:{L_QK-L_MEM+1024*w} #s{w}' for w in range(4)]
        L += [f'ds_read2st64_b32 v[32:33], {vSM} offset0:0 offset1:1', f'ds_read2st64_b32 v[34:35], {vSM} offset0:2 offset1:3 #st']
        L += [kmst] + run(g[4], [[f'buffer_load_dword {vSC}, {vKP}, {WS}, 0 offen sc1']])
        L += ['@lw st']
        Sched(['\n'.join(L)]).emit(A, st)
    assert seqV.index(fed[-1]) < sum(g[:4]) and NF % 3 == 0
    L = vrun(g[1], [['s_cmp_lg_u32 s76, 1']]) + [f's_cbranch_scc1 {name}_m3', f'{name}_m3r:', 's_mov_b64 vcc, s[78:79]', pst(2), 's_waitcnt vmcnt(2)', '@lw q', pst(3), smf[0], smf[1], '@lw k', smf[2]]
    st2 = Sched(['\n'.join(L)]).emit(A, state)
    smid(True, st2)
    assert not vq
    vmst = [pk(36, AV), pk(38, AV + 4), cv(40, 36), cv(41, 38), f'v_lshl_add_u32 v42, {vSM}, 1, s68', f'buffer_store_dwordx2 v[40:41], v42, {WS}, s72 offen sc1']
    A(f'''{name}_join:
    v_pk_add_f32 v[0:1], v[0:1], v[4:5]
    v_pk_add_f32 v[2:3], v[2:3], v[6:7]
    v_pk_add_f32 v[16:17], v[40:41], v[16:17]
    v_pk_add_f32 v[18:19], v[42:43], v[18:19]
    v_pk_add_f32 v[32:33], v[32:33], v[34:35]
    v_pk_add_f32 v[0:1], v[0:1], v[16:17]
    v_pk_add_f32 v[2:3], v[2:3], v[18:19]
    v_add_f32 v4, v32, v33
    v_max3_f32 v24, v0, v1, v2
    v_max3_f32 v24, v24, v3, v4
    {vmst[0]}
    {vmst[1]}
    v_max_f32_dpp v24, v24, v24 row_ror:8 row_mask:0xf bank_mask:0xf
    v_mov_b32 v25, v24
    {vmst[2]}
    {vmst[3]}
    v_permlane16_swap_b32 v24, v25
    v_max_f32 v24, v24, v25
    v_mov_b32 v25, v24
    v_mov_b64 v[44:45], s[96:97]
    v_mov_b64 v[46:47], s[96:97]
    v_permlane32_swap_b32 v24, v25
    v_max_f32 v24, v24, v25
    v_mul_f32 v24, s77, v24'''.replace('s[96:97]', 's[4:5]'))
    X = [4, 0, 1, 2, 3]
    for x in X: A(f'v_fma_f32 v{x}, v{x}, s77, -v24')
    for x in X: A(f'v_exp_f32 v{x}, v{x}')
    A(f'''v_cvt_pk_bf16_f32 v12, v0, v1
    v_cvt_pk_bf16_f32 v13, v2, v3
    v_mov_b32_dpp v5, v4 row_ror:8 row_mask:0xf bank_mask:0xf
    v_mov_b32_dpp v14, v12 row_ror:8 row_mask:0xf bank_mask:0xf
    v_mov_b32_dpp v15, v13 row_ror:8 row_mask:0xf bank_mask:0xf
    v_cvt_pk_bf16_f32 v16, v4, v5
    {pst(5)}
    s_waitcnt vmcnt(2)
    {pst(6)}
    {M16} v[32:35], v[44:47], v[12:15], 0
    v_mov_b32 v17, 0
    {M16} v[24:27], {v(VX[0],4)}, v[12:15], 0
    v_mov_b32 v18, 0
    {M16} v[28:31], {v(VX[1],4)}, v[12:15], 0
    v_mov_b32 v19, v16
    {vmst[4]}
    v_mfma_f32_16x16x16_bf16 v[32:35], v[44:45], v[16:17], v[32:35]
    v_and_b32 v43, 0xffffffdf, {vLM}
    v_mfma_f32_16x16x16_bf16 v[24:27], v[40:41], v[16:17], v[24:27]
    v_mov_b64 v[48:49], 0
    v_mfma_f32_16x16x16_bf16 v[28:31], v[40:41], v[18:19], v[28:31]
    {vmst[5]}
    v_mov_b64 v[50:51], 0
    v_mov_b64 v[52:53], 0
    v_mov_b64 v[54:55], 0
    v_rcp_f32 v32, v32
    v_mov_b64 v[56:57], 0
    v_pk_mul_f32 v[24:25], v[24:25], v[32:33] op_sel_hi:[1,0]
    v_pk_mul_f32 v[26:27], v[26:27], v[32:33] op_sel_hi:[1,0]
    v_pk_mul_f32 v[28:29], v[28:29], v[32:33] op_sel_hi:[1,0]
    v_pk_mul_f32 v[30:31], v[30:31], v[32:33] op_sel_hi:[1,0]''')
    for d in range(4): A(f'v_cvt_pk_bf16_f32 v{36+d}, v{24+2*d}, v{25+2*d}')
    A(f'''s_mov_b64 exec, s[78:79]
    ds_write_b128 {vOW}, v[36:39]
    s_mov_b64 exec, -1
    v_mov_b64 v[58:59], 0
    v_mov_b64 v[60:61], 0
    v_mov_b64 v[62:63], 0
    v_mov_b64 v[44:45], 0
    v_mov_b64 v[46:47], 0
    v_and_b32 v34, 0x7c, {vSM}
    v_bfe_u32 v35, {vSM}, 7, 1
    v_lshl_add_u32 v34, v35, 12, v34
    s_waitcnt lgkmcnt(0)
    s_barrier''')
    for u in range(4): A(f'ds_read_b128 {v(4*u,4)}, v43 offset:{L_O-L_MEM+1024*(u>>1)+32*(u&1)}')
    for c2 in range(2): A(f'ds_read_b128 {v(16+4*c2,4)}, {vLM} offset:{L_O-L_MEM+1024*c2}')
    for x in [f's_add_u32 s71, s71, {32*24576}', f's_add_u32 s70, s70, {32*24576}', f's_add_u32 s72, s72, {32*4096}', f's_add_u32 {sI}, {sI}, 1',
              's_add_u32 s95, s89, s91', f's_mov_b32 {sSPIN}, 0', f's_cmp_eq_u32 {sW}, 3']: A(x)
    ps(7)
    pm = lambda p, u: f'{sm} {v(48+4*p,4)}, {v(4*u,4)}, {r(cwo(2*p+(u>>1),u&1),8)}, {vIDX}'
    mains = []
    for u in range(4):
        mains += [f's_waitcnt lgkmcnt({5-u})\n' + pm(0, u), pm(1, u)]
    mains += [f's_waitcnt lgkmcnt(0)\n {sm} v[44:47], v[16:19], {r(cwo(8,0),8)}, {vIDX}', f'{sm} v[44:47], v[20:23], {r(cwo(8,1),8)}, {vIDX}']
    mains += [pm(2, u) for u in range(4)] + [pm(3, u) for u in range(4)]
    S = Sched(mains)
    for q in (7, 8, 9, 10): S.put(q, 's_nop 0')
    S.put(11, cv(24, 48) + '\n' + cv(25, 50)); S.put(12, cv(26, 52) + '\n' + cv(27, 54))
    S.put(13, f'v_and_or_b32 v24, v24, -2, s84\n buffer_store_dwordx4 v[24:27], {vPS}, {WS}, s85 offen{loc}')
    S.put(14, '\n'.join(ad(44))); S.put(15, cv(33, 44)); S.put(16, 'v_and_or_b32 v33, v33, -2, s84')
    S.put(17, f'buffer_store_dword v33, v34, {WS}, s87 offen{loc}')
    S.emit(A)
    A(f'''{cv(28, 56)}
    {cv(29, 58)}
    v_and_or_b32 v28, v28, -2, s84
    s_nop 3
    {cv(30, 60)}
    {cv(31, 62)}
    buffer_store_dwordx4 v[28:31], {vPS}, {WS}, s86 offen{loc}''')
    ps(8); ps(9); ps(10)
    rot = lines(f'''s_mov_b32 s63, s88
    s_mov_b32 s88, s89
    s_mov_b32 s89, s90
    s_mov_b32 s90, s63
    s_add_u32 s85, s85, s82
    s_add_u32 s86, s86, s82
    s_add_u32 s87, s87, s82
    s_add_u32 s83, s83, s82
    s_sub_u32 s82, 0, s82
    s_bfe_u32 s84, {sI}, 0x10001
    s_xor_b32 s84, s84, 1''')
    pre_reads()
    A(f'''s_waitcnt vmcnt(4)
    v_cmp_ge_u32 vcc, {sI}, {vSC}
    s_cbranch_scc1 {name}_w3
    s_cmp_eq_u64 vcc, 0
    s_cselect_b32 s76, 1, 0
    s_cmp_ge_u32 s74, 72
    s_cbranch_scc1 {name}_poll''')
    SEL = 60
    for d in range(4): A(f'v_cmp_eq_u32 vcc, {d}, {vSI}\n s_nop 1\n v_cndmask_b32 {v(SEL+d)}, 0, {vSV}, vcc')
    if cfg.w1: A(f's_waitcnt vmcnt({cfg.w1 - 1})')
    for i in range(cfg.d1): A('s_nop 7')
    ps(9)
    GS = [[0, 4, 8, 12], [16, 20, 24, 28]]
    def gissue(k):
        for i in range(4): A(f'buffer_load_dwordx4 {v(GS[k][i],4)}, {vLM}, {WS}, s83 offen offset:{1024*i} sc1')
    def gproc(k):
        G = GS[k]
        A(f'''s_waitcnt vmcnt(6)
        {M16} v[56:59], {v(SEL,4)}, {v(G[0],4)}, 0
        v_xor_b32 {vSC}, s84, v{G[0]}
        {M16} v[56:59], {v(SEL,4)}, {v(G[1],4)}, v[56:59]
        v_bitop3_b32 {vSC}, {vSC}, v{G[1]}, s84 bitop3:0xf6
        s_waitcnt vmcnt(5)
        {M16} v[56:59], {v(SEL,4)}, {v(G[2],4)}, v[56:59]
        v_bitop3_b32 {vSC}, {vSC}, v{G[2]}, s84 bitop3:0xf6
        s_waitcnt vmcnt(4)
        {M16} v[56:59], {v(SEL,4)}, {v(G[3],4)}, v[56:59]
        v_bitop3_b32 {vSC}, {vSC}, v{G[3]}, s84 bitop3:0xf6
        v_and_b32 {vSC}, 1, {vSC}
        v_cmp_ne_u32 vcc, 0, {vSC}
        s_add_u32 {sSPIN}, {sSPIN}, 1
        v_mov_b32 {vSC}, -1
        s_nop 2
        v_add_f32_dpp v56, v56, v56 row_ror:8 row_mask:0xf bank_mask:0xf
        v_add_f32_dpp v57, v57, v57 row_ror:8 row_mask:0xf bank_mask:0xf
        v_cvt_pk_bf16_f32 v58, v56, v57
        v_min_u32 v58, -2, v58
        s_cbranch_vccz {name}_gok
        {'s_addk_i32 s12, 1' if cfg.timing == 6 else ''}''')
    gissue(0)
    for i in range(cfg.d2): A('s_nop 7')
    A(f'{name}_g:')
    gissue(1); gproc(0); gissue(0); gproc(1)
    A(f'''s_cmp_lt_u32 {sSPIN}, {cfg.spin_limit}
    s_cbranch_scc1 {name}_g
    s_mov_b32 s63, 41
    s_branch L_abort
    {name}_gok:
    buffer_store_dword v58, {vRS}, {WS}, s89 offen{loc}
    buffer_store_dword {vSC}, {vRS}, {WS}, s88 offen{loc}''')
    ps(10)
    lp = A.lab('Lp')
    A(f'{name}_poll:\n s_barrier')
    for x in rot: A(x)
    def pissue():
        for q in range(3): A(f'buffer_load_dwordx4 {vLM}, {WS}, s95 offen offset:{1024*q} sc1 lds')
    A(f'''s_mul_i32 s63, {sW}, 3072
    s_add_u32 m0, s63, {L_MEM}
    s_waitcnt vmcnt({cfg.w3})
    v_add_u32 {vSC}, s63, {vLM}''')
    for i in range(cfg.d3): A('s_nop 7')
    pissue()
    for x in zero: A(x)
    A(sel)
    for i in range(cfg.d4): A('s_nop 7')
    A(f'{lp}:')
    pissue()
    A(f'''s_waitcnt vmcnt(3)
    ds_read_b128 v[24:27], {vSC}
    ds_read_b128 v[28:31], {vSC} offset:1024
    ds_read_b128 v[4:7], {vSC} offset:2048
    s_add_u32 {sSPIN}, {sSPIN}, 1
    s_waitcnt lgkmcnt(1)
    v_max3_u32 v0, v24, v25, v26
    v_max3_u32 v1, v27, v28, v29
    v_max3_u32 v0, v0, v30, v31
    s_waitcnt lgkmcnt(0)
    v_max3_u32 v1, v1, v4, v5
    v_max3_u32 v0, v0, v6, v7
    v_max_u32 v0, v0, v1
    v_cmp_eq_u32 vcc, -1, v0
    s_cbranch_vccz {name}_top
    {'s_add_u32 s13, s13, 1' if cfg.timing == 6 else ''}
    s_cmp_lt_u32 {sSPIN}, {cfg.spin_limit}
    s_cbranch_scc1 {lp}
    s_mov_b32 s63, 42
    s_branch L_abort
    {name}_w3:
    v_mov_b32 {vSV}, {sI}
    s_mov_b32 s69, {F_CH - F_QKV}
    s_cmp_eq_u64 vcc, 0
    s_cselect_b32 s76, 1, 0
    s_barrier''')
    for x in zero + rot: A(x)
    A(f'{sel}\n s_waitcnt vmcnt(0)\n s_branch {name}_top')
    touch = f'v_lshlrev_b32 {vSC}, 2, {vLM}\n s_sub_u32 s63, s70, {3*L_MEM}\n s_mov_b32 exec_hi, 0\n buffer_load_dword {vSC}, {vSC}, {WS}, s63 offen sc1\n s_mov_b32 exec_hi, -1'
    A(f'''{name}_m1:
    buffer_load_dword v0, {vKP}, {WS}, 0 offen sc1
    s_branch {name}_m1r
    {name}_m2:
    s_waitcnt vmcnt(0)
    v_cmp_ge_u32 vcc, {sI}, v0
    s_cbranch_vccnz {name}_m2r
    {kld[0]}
    {kld[1]}
    {touch}
    s_mov_b32 s76, 2
    s_branch {name}_m2r
    {name}_m3:
    s_cmp_eq_u32 s76, 2
    s_cbranch_scc1 {name}_m4
    s_add_u32 s64, {sI}, 1''')
    spin(A, 'v0', vKP, 's64', 40)
    A(f'''{kld[0]}
    {kld[1]}
    {touch}
    {name}_m4:
    s_waitcnt vmcnt(1)
    s_branch {name}_m3r''')
    A(f'{name}_late:')
    vq[:] = vsave
    Sched(['\n'.join(vrun(len(vq)) + ['@lw k', kmst, 's_nop 6'] + vmst)]).emit(A, state)
    A(f'''s_waitcnt vmcnt(0) lgkmcnt(0)
    s_barrier
    v_mov_b32 v0, {NSEG}
    buffer_store_dword v0, {vKP}, {WS}, s69 offen sc1
    s_waitcnt vmcnt(0)''')
    if cfg.timing:
        for k in range(NPS): A(f'v_writelane_b32 v10, s{ACCS[k]}, {k}')
    dump(A, [vZ, 'v10'])
    A('s_endpgm')

cfg.x_nospin = cfg.x_nopf = cfg.x_latereset = False
cfg.x_drop = []; cfg.nt = False; cfg.x_nost = 0; cfg.x_same = False; cfg.x_nopf = True; cfg.attld = 'sc1'; cfg.attst = 'sc1'; cfg.shq = True; cfg.shu = True; cfg.lowlate = 'qu'; cfg.wts = (0.7, 2.0, 1.3, 1.5, 1.0, 0.6, 1.0); cfg.cap = 2.0; cfg.rgring = (4, 4); cfg.rgra = 3; cfg.rgdma = (25, 4); cfg.midchk = 27; cfg.qplan = None; cfg.uplan = None; cfg.chpre = (2, 2); cfg.hold = ''; cfg.rgpoll = True; cfg.dq = (8, 8, 6, 5, 5); cfg.rp0 = 0; cfg.rp1 = 5
cfg.d1 = 0; cfg.d2 = 0; cfg.d3 = 0; cfg.delay1 = True; cfg.ch1wait = False; cfg.pre0 = 0; cfg.pre1 = 1; cfg.vtouch = True; cfg.lateflag = True; cfg.w1 = 1; cfg.w3 = 2; cfg.w1 = 0; cfg.d1 = 3; cfg.d2 = 3; cfg.d3 = 1; cfg.d4 = 3
cfg.KL = [0, 1, 3, 4, 6, 7]; cfg.VL = [0, 1, 2]; cfg.VORD = [7, 8, 0, 3, 1, 2, 4, 5, 6]; cfg.vgaps = [2, 4, 2, 4, 6]; cfg.snop = 1
def build():
    A = Asm()
    kernel_begin(A, KNAME)
    prologue(A)
    role_chain(A)
    role_qkv(A)
    role_up(A)
    role_rg(A, 'L_wo', 'wo', 16, SWO, OB, 262144, PW, F_WO, 50)
    role_rg(A, 'L_dn', 'dn', 18, SW2, HB, 294912, PD, F_DN, 51)
    role_att(A)
    role_red(A)
    A('s_endpgm\n L_code_end:')
    return build_file([(KNAME, 256, 256, LDS_BYTES)], A.text(), [descriptor(KNAME)])

if __name__ == '__main__':
    out = sys.argv[1] if len(sys.argv) > 1 else 'interleave_layers__memory_aug_recurrent_mem_tr__glu_gated_swiglu__prompt.s'
    open(out, 'w').write(build())
```

```python
import sys
from asm import *
from layout import *

KNAME = 'interleave_layers__memory_aug_recurrent_mem_tr__glu_gated_swiglu__prompt_kernel'
WS, SX, SOUT, SDBG, SMEM0, SWQ, SWK, SWV, SWO, SW1, SW3, SW2 = [f's[{8+4*i}:{11+4*i}]' for i in range(12)]
sX, sT, sW, sSLOW, sL, sI, sSPIN = 's56', 's57', 's58', 's59', 's60', 's61', 's62'
OOB = 0x7ffffff0
LOG2E = 1.4426950408889634

class Cfg:
    roles = None
    skip_init = False
    spin_limit = 400000
    lam = 14
    timing = False
    force_slow = False
    force_rank = False
    codepf = True
    sat = 'ar'
    xmap = 0x73416250
cfg = Cfg()

def f2u(x):
    import struct
    return struct.unpack('<I', struct.pack('<f', x))[0]

def enabled(n):
    return cfg.roles is None or n in cfg.roles

def pollops(vdst, vaddr):
    if isinstance(vdst, tuple):
        n = vdst[0]
        fix = f'v_min_u32 v{n}, v{n}, v{n+1}\n v_lshrrev_b32 v{n+1}, 6, v{n}\n v_or_b32 v{n+1}, v{n+1}, {vdst[1]}\n v_add3_u32 v{n}, v{n}, v{n+1}, -1\n v_max_i32 v{n}, 0, v{n}'
        return f'buffer_load_dwordx2 v[{n}:{n+1}], {vaddr}, {WS}, 0 offen sc1', fix, f'v{n}'
    return f'buffer_load_dword {vdst}, {vaddr}, {WS}, 0 offen sc1', '', vdst

def spin(A, vdst, vaddr, starget, code):
    l = A.lab('Lspin'); d = A.lab('Lspind')
    ld, fix, vdst = pollops(vdst, vaddr)
    A(f'''
    s_mov_b32 {sSPIN}, 0
    {l}:
    {ld}
    s_waitcnt vmcnt(0)
    {fix}
    v_cmp_gt_u32 vcc, {starget}, {vdst}
    s_cbranch_vccz {d}
    s_add_u32 {sSPIN}, {sSPIN}, 1
    s_cmp_lt_u32 {sSPIN}, {cfg.spin_limit}
    s_cbranch_scc1 {l}
    s_mov_b32 s63, {code}
    s_branch L_abort
    {d}:
    ''')

def validate(A, early=False):
    l = A.lab('Lval'); d = A.lab('Lvald'); ok = A.lab('Lvalok')
    A(f'''
    s_cmp_eq_u32 s7, 1
    s_cbranch_scc1 {ok}
    v_mbcnt_lo_u32_b32 v1, -1, 0
    v_mbcnt_hi_u32_b32 v1, -1, v1
    v_lshlrev_b32 v1, 2, v1
    s_mov_b32 {sSPIN}, 0
    s_mov_b32 s63, 0x80808080
    {'s_cmp_lg_u32 %s, 0' % sW if early else ''}
    {'s_cbranch_scc1 ' + d if early else ''}
    {l}:
    buffer_load_dword v2, v1, {SDBG}, 0 offen sc1
    s_waitcnt vmcnt(0)
    v_and_b32 v3, s63, v2
    v_cmp_ne_u32 vcc, s63, v3
    s_cbranch_vccz {d}
    s_add_u32 {sSPIN}, {sSPIN}, 1
    s_cmp_lt_u32 {sSPIN}, {cfg.spin_limit}
    s_cbranch_scc1 {l}
    {d}:''')
    if early: A(f'''s_barrier
    buffer_load_dword v2, v1, {SDBG}, 0 offen sc1
    s_waitcnt vmcnt(0)
    v_and_b32 v3, s63, v2
    v_cmp_ne_u32 vcc, s63, v3''')
    A(f'''s_mov_b32 s63, 1
    s_cbranch_vccnz L_abort
    v_lshlrev_b32 v3, v2, 1
    v_lshrrev_b32 v4, 8, v2
    v_lshl_or_b32 v3, 1, v4, v3
    v_lshrrev_b32 v4, 16, v2
    v_lshl_or_b32 v3, 1, v4, v3
    v_lshrrev_b32 v4, 24, v2
    v_lshl_or_b32 v3, 1, v4, v3
    s_nop 1
    v_or_b32_dpp v3, v3, v3 quad_perm:[1,0,3,2] row_mask:0xf bank_mask:0xf
    v_cmp_ne_u32 vcc, {0x1ff if (cfg.force_slow or cfg.force_rank) else 0xff}, v3
    s_cbranch_vccnz L_rerank
    s_mov_b32 s7, 1
    {ok}:
    ''')
    stamp_s(A, 's99')
    if cfg.timing: A('s_memtime s[96:97]\n s_waitcnt lgkmcnt(0)\n s_mov_b32 s101, s96')

def ln0_hook(A, younger, finish=True):
    l = A.lab('Lln')
    ACC = 52; T = 20
    def halfsum(x, t):
        for m in ('quad_perm:[1,0,3,2]', 'quad_perm:[2,3,0,1]', 'row_half_mirror', 'row_mirror'):
            A(f's_nop 1\n v_add_f32_dpp {x}, {x}, {x} {m} row_mask:0xf bank_mask:0xf')
        A(f'v_mov_b32 {t}, {x}\n s_nop 1\n v_permlane16_swap_b32 {x}, {t}\n v_add_f32 {x}, {x}, {t}')
    A(f's_cmp_lg_u32 s7, 0\n s_cbranch_scc1 {l}\n s_waitcnt vmcnt({min(63, younger + (0 if cfg.skip_init else 3))})')
    for d in range(12):
        A(f'v_lshlrev_b32 {v(ACC+2*d)}, 16, {v(40+d)}\n v_and_b32 {v(ACC+2*d+1)}, 0xffff0000, {v(40+d)}')
    A(f'v_pk_add_f32 {v(T,2)}, {v(ACC,2)}, {v(ACC+2,2)}')
    for d in range(2, 12): A(f'v_pk_add_f32 {v(T,2)}, {v(T,2)}, {v(ACC+2*d,2)}')
    A(f'v_add_f32 {v(T)}, {v(T)}, {v(T+1)}')
    halfsum(v(T), v(T+1))
    A(f'v_mul_f32 {v(T)}, v78, {v(T)}')
    for d in range(12): A(f'v_pk_add_f32 {v(ACC+2*d,2)}, {v(ACC+2*d,2)}, {v(T,2)} op_sel_hi:[1,0]')
    A(f'v_pk_mul_f32 {v(T+2,2)}, {v(ACC,2)}, {v(ACC,2)}')
    for d in range(1, 12): A(f'v_pk_fma_f32 {v(T+2,2)}, {v(ACC+2*d,2)}, {v(ACC+2*d,2)}, {v(T+2,2)}')
    A(f'v_add_f32 {v(T+2)}, {v(T+2)}, {v(T+3)}')
    halfsum(v(T+2), v(T+3))
    A(f'''v_mov_b32 {v(T+3)}, {f2u(1e-5):#x}
    v_fmac_f32 {v(T+3)}, {f2u(1.0/576):#x}, {v(T+2)}
    v_rsq_f32 {v(T+2)}, {v(T+3)}
    v_sub_f32 {v(T)}, 0, {v(T)}
    v_mul_f32 {v(T+1)}, {v(T+3)}, {v(T+2)}
    v_lshrrev_b32 v76, 2, v0
    v_and_b32 v78, 31, v0
    v_cmp_eq_u32 vcc, 0, v78
    v_mov_b32 v78, {OOB}
    s_lshl_b32 s63, s2, 6
    v_cndmask_b32 v76, v78, v76, vcc
    s_add_u32 s63, s63, {ST}
    buffer_store_dwordx2 {v(T,2)}, v76, {WS}, s63 offen sc1
    s_add_u32 s63, s3, {XNA}''')
    for d in range(12): A(f'v_pk_mul_f32 {v(ACC+2*d,2)}, {v(ACC+2*d,2)}, {v(T+2,2)} op_sel_hi:[1,0]')
    for d in range(12): A(f'v_cvt_pk_bf16_f32 {v(40+d)}, {v(ACC+2*d)}, {v(ACC+2*d+1)}')
    for j in range(3): A(f'buffer_store_dwordx4 {v(40+4*j,4)}, v77, {WS}, s63 offen offset:{384*j} sc1')
    A(f'{l}:')
    if finish:
        A('s_waitcnt vmcnt(0)'); arrive(A)

def arrive(A):
    l = A.lab('Lar')
    A(f'''s_cmp_lg_u32 s7, 0
    s_cbranch_scc1 {l}
    s_or_b32 s63, s6, 0x80
    v_mov_b32 v20, s63
    s_barrier
    buffer_store_byte v20, v79, {SDBG}, 0 offen sc1
    {l}:''')

def lane(A, dst):
    A(f'''v_mbcnt_lo_u32_b32 {dst}, -1, 0
    v_mbcnt_hi_u32_b32 {dst}, -1, {dst}''')

def stamp(A, vreg, sidx):
    if not cfg.timing or cfg.timing >= 3: return
    A(f'''s_memrealtime s[96:97]
    s_and_b32 m0, {sidx}, 63
    s_waitcnt lgkmcnt(0)
    v_writelane_b32 {vreg}, s96, m0''')

def stamp_s(A, sreg):
    if not cfg.timing: return
    A(f's_memrealtime s[96:97]\n s_waitcnt lgkmcnt(0)\n s_mov_b32 {sreg}, s96')

def dump(A, vregs):
    if not cfg.timing: return
    stamp_s(A, 's100')
    A(f'''s_lshl_b32 s63, {sX}, 5
    s_add_u32 s63, s63, {sT}
    s_lshl_b32 s63, s63, 2
    s_add_u32 s63, s63, {sW}
    s_lshl_b32 s63, s63, 11
    s_add_u32 s63, s63, {DBG}
    v_mbcnt_lo_u32_b32 v1, -1, 0
    v_mbcnt_hi_u32_b32 v1, -1, v1
    v_lshlrev_b32 v1, 2, v1
    v_mov_b32 v2, s98
    v_writelane_b32 v2, s99, 1
    v_writelane_b32 v2, s100, 2
    s_memtime s[96:97]
    s_waitcnt lgkmcnt(0)
    s_sub_u32 s101, s96, s101
    v_writelane_b32 v2, s101, 3
    buffer_store_dword v2, v1, {WS}, s63 offen''')
    for i, x in enumerate(vregs):
        A(f'buffer_store_dword {x}, v1, {WS}, s63 offen offset:{256*(i+1)}')
    A('s_waitcnt vmcnt(0)')

def interleave(A, mains, fills, start=0, every=1):
    fi = 0
    for i, m in enumerate(mains):
        A(m)
        if i >= start and (i - start) % every == 0 and fi < len(fills):
            A(fills[fi]); fi += 1
    assert fi == len(fills), (fi, len(fills))

def prologue(A):
    A(f'''
    s_cmp_ge_u32 s2, 256
    s_cbranch_scc1 L_end
    s_load_dwordx16 s[64:79], s[0:1], 0
    s_load_dwordx8 s[80:87], s[0:1], 64
    s_load_dwordx4 s[88:91], s[0:1], 96
    s_getreg_b32 {sX}, hwreg(HW_REG_XCC_ID)
    v_lshrrev_b32 v1, 6, v0
    s_and_b32 {sX}, {sX}, 15
    v_readfirstlane_b32 {sW}, v1
    s_mov_b32 {sSLOW}, 0
    s_mov_b32 s6, {sX}
    ''')
    if cfg.codepf:
        A('''s_getpc_b64 s[92:93]
        L_pc:
        s_lshr_b32 s63, s2, 3
        s_lshl_b32 s63, s63, 8
        v_add_u32 v2, s63, v0
        v_lshlrev_b32 v2, 4, v2
        v_min_u32 v2, L_code_end-L_pc-4, v2
        v_and_b32 v3, 7, v0
        v_cmp_eq_u32 vcc, 0, v3
        s_and_saveexec_b64 s[94:95], vcc
        global_load_dword v75, v2, s[92:93]
        s_mov_b64 exec, s[94:95]''')
    A('s_waitcnt lgkmcnt(0)')
    stamp_s(A, 's98')
    srds = [(8, 90, WS_BYTES), (12, 64, XB), (16, 86, XB), (20, 88, 256), (24, 66, 9216), (28, 68, 4718592),
            (32, 70, 4718592), (36, 72, 4718592), (40, 74, 4718592), (44, 80, 5308416), (48, 82, 5308416), (52, 84, 5308416)]
    for d, p, n in srds:
        A(f'''s_mov_b32 s{d}, s{p}
        s_mov_b32 s{d+1}, s{p+1}
        s_mov_b32 s{d+2}, {n}
        s_mov_b32 s{d+3}, 0x20000''')
    A(f'''
    v_and_b32 v1, 31, v0
    v_lshrrev_b32 v2, 5, v0
    v_mul_u32_u24 v3, 1152, v2
    v_lshl_add_u32 v76, v1, 4, v3
    s_and_b32 s63, s2, 1
    s_lshl_b32 s63, s63, 2
    s_add_u32 s63, s63, {sW}
    v_xor_b32 v4, s63, v1
    v_lshl_add_u32 v77, v4, 4, v3
    v_cmp_gt_u32 vcc, 24, v1
    v_mov_b32 v3, {OOB}
    v_mov_b32 v4, {f2u(-1.0/576):#x}
    v_cndmask_b32 v76, v3, v76, vcc
    v_cndmask_b32 v77, v3, v77, vcc
    v_cndmask_b32 v78, 0, v4, vcc
    s_mul_i32 s3, s2, 9216
    buffer_load_dwordx4 v[40:43], v76, {SX}, s3 offen
    buffer_load_dwordx4 v[44:47], v76, {SX}, s3 offen offset:384
    buffer_load_dwordx4 v[48:51], v76, {SX}, s3 offen offset:768
    ''')
    if not cfg.skip_init:
        A(f'''
        s_cmp_eq_u32 s2, 0
        s_cselect_b32 s63, {NSEG}, 0
        v_cmp_eq_u32 vcc, 0, v0
        v_mov_b32 v8, s63
        v_mov_b64 v[12:13], 0
        v_cndmask_b32 v4, 0, v8, vcc
        v_mov_b64 v[14:15], 0
        v_mov_b32 v5, v4
        v_mov_b32 v6, v4
        v_mov_b32 v7, v4
        v_mov_b32 v8, -1
        v_lshlrev_b32 v9, 4, v0
        v_lshlrev_b32 v10, 2, v0
        s_lshl_b32 s63, s2, 13
        s_add_u32 s66, s63, 4096
        s_lshl_b32 s67, s2, 10
        s_add_u32 s67, s67, {ONES0}
        buffer_store_dwordx4 v[4:7], v9, {WS}, s63 offen sc1
        buffer_store_dwordx4 v[12:15], v9, {WS}, s66 offen sc1
        buffer_store_dword v8, v10, {WS}, s67 offen sc1
        ''')
    A(f'''
    v_mov_b32 v2, s2
    v_cmp_eq_u32 vcc, 0, v0
    s_lshr_b32 {sT}, s2, 3
    s_mov_b32 s7, 0
    v_cndmask_b32 v79, v3, v2, vcc
    s_cmp_ge_u32 {sX}, 8
    s_cbranch_scc1 L_norole
    L_dispatch:
    s_lshl_b32 s63, {sX}, 2
    s_lshr_b32 {sX}, {cfg.xmap:#x}, s63
    s_and_b32 {sX}, {sX}, 7
    s_and_b32 {sL}, {sX}, 1
    s_lshr_b32 s63, {sX}, 1
    s_cmp_eq_u32 s63, 0
    s_cbranch_scc1 L_chain
    s_cmp_eq_u32 s63, 1
    s_cbranch_scc1 L_qkv
    s_cmp_eq_u32 s63, 2
    s_cbranch_scc1 L_j_rg
    s_cmp_lt_u32 {sT}, 24
    s_cbranch_scc1 L_up
    s_branch L_att
    L_j_rg:
    s_cmp_ge_u32 {sT}, 24
    s_cbranch_scc1 L_red
    s_cmp_eq_u32 {sL}, 0
    s_cbranch_scc1 L_wo
    s_branch L_dn
    L_norole:
    ''')
    ln0_hook(A, 0)
    validate(A, True)
    A(f'''
    s_mov_b32 s63, 2
    s_branch L_abort
    L_rerank:
    s_mov_b32 s7, 1
    s_mov_b32 s64, 0
    L_rr1:
    s_mov_b32 s65, 0
    s_mov_b32 s66, 0
    v_bfe_u32 v3, v2, 0, 7
    v_cmp_eq_u32 vcc, s64, v3
    v_add_u32 v4, 0, v1
    v_cmp_gt_u32 s[68:69], s2, v4
    s_bcnt1_i32_b64 s63, vcc
    s_add_u32 s65, s65, s63
    s_and_b64 s[68:69], s[68:69], vcc
    s_bcnt1_i32_b64 s63, s[68:69]
    s_add_u32 s66, s66, s63
    v_bfe_u32 v3, v2, 8, 7
    v_cmp_eq_u32 vcc, s64, v3
    v_add_u32 v4, 1, v1
    v_cmp_gt_u32 s[68:69], s2, v4
    s_bcnt1_i32_b64 s63, vcc
    s_add_u32 s65, s65, s63
    s_and_b64 s[68:69], s[68:69], vcc
    s_bcnt1_i32_b64 s63, s[68:69]
    s_add_u32 s66, s66, s63
    v_bfe_u32 v3, v2, 16, 7
    v_cmp_eq_u32 vcc, s64, v3
    v_add_u32 v4, 2, v1
    v_cmp_gt_u32 s[68:69], s2, v4
    s_bcnt1_i32_b64 s63, vcc
    s_add_u32 s65, s65, s63
    s_and_b64 s[68:69], s[68:69], vcc
    s_bcnt1_i32_b64 s63, s[68:69]
    s_add_u32 s66, s66, s63
    v_bfe_u32 v3, v2, 24, 7
    v_cmp_eq_u32 vcc, s64, v3
    v_add_u32 v4, 3, v1
    v_cmp_gt_u32 s[68:69], s2, v4
    s_bcnt1_i32_b64 s63, vcc
    s_add_u32 s65, s65, s63
    s_and_b64 s[68:69], s[68:69], vcc
    s_bcnt1_i32_b64 s63, s[68:69]
    s_add_u32 s66, s66, s63
    s_cmp_eq_u32 s64, s6
    s_cselect_b32 {sT}, s66, {sT}
    s_cmp_lg_u32 s65, {33 if cfg.force_slow else 32}
    s_cselect_b32 {sSLOW}, 1, {sSLOW}
    s_add_u32 s64, s64, 1
    s_cmp_lt_u32 s64, 8
    s_cbranch_scc1 L_rr1
    s_mov_b32 {sX}, s6
    s_cmp_eq_u32 {sSLOW}, 0
    s_cbranch_scc1 L_rr2
    s_lshr_b32 {sX}, s2, 5
    s_and_b32 {sT}, s2, 31
    L_rr2:
    s_waitcnt vmcnt(0) lgkmcnt(0)
    s_barrier
    s_branch L_dispatch
    L_abort:
    s_lshl_b32 s64, {sX}, 8
    s_or_b32 s63, s63, s64
    s_lshl_b32 s64, {sI}, 16
    s_or_b32 s63, s63, s64
    s_or_b32 s63, s63, 0x80000000
    s_mov_b64 exec, 1
    v_mov_b64 v[4:5], 0
    v_mov_b64 v[6:7], 0
    ds_write_b128 v4, v[4:7]
    ds_write_b32 v4, v4 offset:4096
    v_mov_b32 v1, s63
    s_lshl_b32 s64, {sX}, 2
    s_add_u32 s64, s64, {DBG - 4096}
    v_mov_b32 v2, s64
    buffer_store_dword v1, v2, {WS}, 0 offen
    s_waitcnt vmcnt(0)
    L_end:
    s_endpgm
    ''')

def magic(R):
    M = -(-512 // R)
    assert all((x * M >> 9) == x // R for x in range(70))
    return M
def ringidx(d, s_, R, M=None):
    return f's_mul_i32 {d}, {s_}, {M or magic(R)}\n s_lshr_b32 {d}, {d}, 9\n s_mul_i32 {d}, {d}, {R}\n s_sub_u32 {d}, {s_}, {d}'

def capture(A, fn):
    n0 = len(A.lines); fn(); ls = A.lines[n0:]; del A.lines[n0:]
    return ls

M16 = 'v_mfma_f32_16x16x32_bf16'
def red_stream(A, name, R, pbase, res_base, xn_base, fin, fout, code, fres, fcon):
    stof = lambda base_: ST + (base_ - XNA) // XB * 16384
    vPL, vG, vL, vNW, vCP, vSW, vSR, vMK = 'v1', 'v3', 'v4', 12, 'v17', 'v19', 'v20', 'v21'
    vPA, vP, vFA, vF, vCA = 'v22', 'v10', 'v6', 'v7', 'v9'
    SA, SB = 24, 28
    PL = 32; RS = 104; ACC = 116; PK = 136; T = 148; CO = 168; SH = 164; NX = 192
    IMN, IMR = 16384, 49152
    ln = xn_base is not None
    lane(A, vPA)
    A(f'''v_min_u32 {vPA}, 23, {vPA}
    v_lshlrev_b32 {vPA}, 2, {vPA}
    v_add_u32 {vPA}, {fin}, {vPA}
    s_lshl_b32 s63, s70, 2
    s_add_u32 s64, s63, {fres or 0}
    v_mov_b32 v162, s64
    s_add_u32 s64, s63, {fout or 0}
    v_mov_b32 {vFA}, s64
    s_mov_b32 s83, s64
    s_add_u32 s63, s63, {fcon}
    s_cmp_eq_u32 {sW}, 0
    s_cselect_b32 s63, s63, {OOB}''')
    lane(A, vCA)
    A(f'''v_cmp_eq_u32 vcc, 0, {vCA}
    v_mov_b32 v8, s63
    v_mov_b32 {vCA}, {OOB}
    v_cndmask_b32 {vCA}, {vCA}, v8, vcc
    s_mov_b32 s78, 0
    s_mov_b32 s77, 0''')
    poll = f'buffer_load_dword {vP}, {vPA}, {WS}, 0 offen sc1'
    def flag():
        if fout is None: return
        l = A.lab('Lf')
        A(f'''s_mov_b64 exec, 1
        ds_add_rtn_u32 {vF}, v11, v23
        s_waitcnt lgkmcnt(0)
        v_readfirstlane_b32 s63, {vF}
        v_mov_b32 {vF}, {sI}
        s_and_b32 s63, s63, 3
        s_cmp_lg_u32 s63, 3
        s_cbranch_scc1 {l}
        {f's_mov_b32 s85, {sI}{chr(10)} s_atomic_umax s85, s[8:9], s83' if 'r' in cfg.sat else f'buffer_store_dword {vF}, {vFA}, {WS}, 0 offen sc1'}
        {l}:
        s_mov_b64 exec, -1''')
    def need_res(add):
        if fres is None: return
        l = A.lab('Lr')
        A(f'''s_add_u32 s79, {sI}, {add + 1}
        s_min_u32 s79, s79, {NSEG}
        s_cmp_ge_u32 s78, s79
        s_cbranch_scc1 {l}''')
        spin(A, 'v161', 'v162', 's79', code + 100)
        A(f'v_readfirstlane_b32 s78, v161\n {l}:')
    def resid(add):
        A(f'''s_mul_i32 s67, {sI}, 36864
        s_add_u32 s67, s67, s72
        s_add_u32 s67, s67, {res_base + 36864 * add}
        s_mov_b32 m0, s75
        s_xor_b32 s75, s75, 0x10000
        buffer_load_dwordx4 {vCP}, {WS}, s67 offen sc1 lds
        buffer_load_dwordx4 {vCP}, {WS}, s67 offen offset:1024 sc1 lds
        s_mov_b64 exec, 0xffff
        buffer_load_dwordx4 {vCP}, {WS}, s67 offen offset:2048 sc1 lds
        s_mov_b64 exec, -1
        s_lshl_b32 s67, {sI}, 8
        s_add_u32 s67, s67, {stof(res_base) + 256 * add}
        buffer_load_dwordx2 {v(RS+10,2)}, {vL}, {WS}, s67 offen sc1''')
    def ldlist(sreg):
        pre = ringidx('s67', sreg, R) + f'\n s_mul_i32 s67, s67, {8*36864}\n s_add_u32 s67, s67, {pbase}\n s_add_u32 s68, s67, s74\n s_add_u32 s67, s67, s73'
        o = []
        for a_ in range(9):
            pw, pp = divmod(a_, 3)
            for kh in range(2):
                o.append(f's_add_u32 s69, {"s67" if pp < 2 else "s68"}, {kh*4*36864 + pw*3072}\n'
                         f'buffer_load_dwordx4 {v(PL+8*a_+4*kh,4)}, {vPL}, {WS}, s69 offen offset:{512*pp if pp < 2 else 0} sc1')
        return pre, o
    def rowsum(xs):
        A('s_nop 1' if len(xs) == 1 else 's_nop 0')
        for x, t in xs: A(f'v_add_f32_dpp {x}, {x}, {x} row_ror:8 row_mask:0xf bank_mask:0xf')
        for sw in ('v_permlane16_swap_b32', 'v_permlane32_swap_b32'):
            for x, t in xs: A(f'v_mov_b32 {t}, {x}')
            A('s_nop 1' if len(xs) == 1 else 's_nop 0')
            for x, t in xs: A(f'{sw} {x}, {t}')
            for x, t in xs: A(f'v_add_f32 {x}, {x}, {t}')
    def prep():
        A(f'v_mov_b64 {v(SH,2)}, {v(RS+10,2)}')
        need_res(1); resid(1)
        for j in range(5): A(f'v_add_u32 {v(T+j)}, s77, {v(vNW+j)}')
        A('s_xor_b32 s77, s77, 0x10000')
        for j in range(5): A(f'ds_read_b64 {v(RS+2*j,2)}, {v(T+j)} offset:{IMR}')
        for d in range(10):
            if d % 2 == 0: A(f's_waitcnt lgkmcnt({4 - d // 2})')
            A(f'v_lshlrev_b32 {v(ACC+2*d)}, 16, {v(RS+d)}\n v_and_b32 {v(ACC+2*d+1)}, 0xffff0000, {v(RS+d)}')
            if ln: A(f'v_pk_mul_f32 {v(ACC+2*d,2)}, {v(ACC+2*d,2)}, {v(SH,2)} op_sel:[0,1] op_sel_hi:[1,1]')
            else: A(f'v_pk_fma_f32 {v(ACC+2*d,2)}, {v(ACC+2*d,2)}, {v(SH,2)}, {v(SH,2)} op_sel:[0,1,0] op_sel_hi:[1,1,0]')
        if ln: A(f'v_mov_b64 {v(T,2)}, 0\n v_mov_b64 {v(T+2,2)}, 0')
        else: A('s_nop 0')
    def stat(j):
        if not ln: return
        for h in (0, 2):
            x = v(ACC + 4 * j + h, 2)
            A(f'v_pk_add_f32 {v(T,2)}, {v(T,2)}, {x}\n v_pk_fma_f32 {v(T+2,2)}, {x}, {x}, {v(T+2,2)}')
    def local_store(vd, va, so):
        l1 = A.lab('Lc'); l2 = A.lab('Lc')
        A(f'''s_cmp_lg_u32 {sSLOW}, 0
        s_cbranch_scc1 {l1}
        buffer_store_dword {vd}, {va}, {WS}, {so} offen
        s_branch {l2}
        {l1}:
        buffer_store_dword {vd}, {va}, {WS}, {so} offen sc1
        {l2}:''')
    def st3(srd, va, soff):
        for q in range(3):
            A(f's_waitcnt lgkmcnt({2-q})')
            if q == 2: A('s_mov_b64 exec, 0xffff')
            A(f'buffer_store_dwordx4 {v(CO+4*q,4)}, {va}, {srd}, {soff} offen offset:{1024*q} sc1')
        A('s_mov_b64 exec, -1')
    def tk(k):
        if cfg.timing == 7: A(f's_memtime s[28:29]\n s_waitcnt lgkmcnt(0)\n s_sub_u32 s31, s28, s30\n s_mov_b32 s30, s28\n s_add_u32 s{40+k}, s{40+k}, s31\n s_add_u32 s{48+k}, s{48+k}, 1')
    if cfg.timing == 7:
        for k in range(40, 56): A(f's_mov_b32 s{k}, 0')
        A('s_mov_b32 s30, 0')
    A(f's_mov_b32 {sI}, 0\n s_mov_b32 s65, 1\n s_mov_b32 s66, 0')
    l = A.lab('Lpt')
    A(f'{l}:'); pre, lds_ = ldlist('s66'); A(pre)
    for x in lds_: A(x)
    A(f's_add_u32 s66, s66, 1\n s_cmp_lt_u32 s66, {R}\n s_cbranch_scc1 {l}\n s_mov_b32 s66, 0')
    need_res(0); resid(0)
    A('s_waitcnt vmcnt(0)\n s_barrier')
    prep()
    A(f'{name}_spin:')
    spin(A, vP, vPA, 's65', code)
    tk(7)
    A(f'{name}_ld:')
    stamp(A, 'v220', sI)
    pre, lds_ = ldlist('s65'); A(pre)
    LEAD = 8
    for x in lds_[:LEAD]: A(x)
    if fout is not None:
        l = A.lab('Lnf')
        A(f's_cmp_eq_u32 s66, 0\n s_cbranch_scc1 {l}\n s_waitcnt vmcnt({LEAD + 4})'); flag(); A(f'{l}:')
    tk(0)
    def mf(i):
        d = v(ACC + 4 * (i >> 2), 4)
        A(f'{M16} {d}, {v(SB if (i >> 1) & 1 else SA,4)}, {v(PL+4*i,4)}, {d}')
    for i in range(18):
        if i + LEAD < 18: A(lds_[i + LEAD]); y = LEAD
        else: y = 17 - i
        if i + LEAD == 16: A(poll)
        if i + LEAD >= 16 and i < 17: y += 1
        A(f's_waitcnt vmcnt({y})')
        mf(i)
        if i in (7, 11, 15): stat((i >> 2) - 1)
    tk(1)
    A(f'''{name}_mid:
    s_add_u32 s66, {sI}, 2
    v_cmp_gt_u32 vcc, s66, {vP}
    s_cbranch_vccz {name}_ov''')
    A('s_nop 3')
    n0 = len(A.lines)
    A(f's_mul_i32 s67, {sI}, 36864\n s_add_u32 s67, s67, s72\n v_mov_b32 v8, s65')
    if ln:
        stat(3); stat(4)
        A(f'v_add_f32 {v(T)}, {v(T)}, {v(T+1)}\n v_add_f32 {v(T+1)}, {v(T+2)}, {v(T+3)}')
        rowsum([(v(T), v(T+2)), (v(T+1), v(T+3))])
        A(f'''ds_write_b64 {vSW}, {v(T,2)}
        s_add_u32 s68, s67, {xn_base}
        s_lshl_b32 s67, {sI}, 8
        s_add_u32 s67, s67, {stof(xn_base)}
        s_waitcnt lgkmcnt(0)
        s_barrier
        ds_read_b128 {v(T+4,4)}, {vSR}
        ds_read_b128 {v(T+8,4)}, {vSR} offset:16''')
        local_store('v8', vCA, '0')
        A(f'''s_waitcnt lgkmcnt(0)
        v_pk_add_f32 {v(T+2,2)}, {v(T+4,2)}, {v(T+6,2)}
        v_pk_add_f32 {v(T,2)}, {v(T+8,2)}, {v(T+10,2)}
        v_mov_b32 {v(T+7)}, {f2u(1e-5):#x}
        v_pk_add_f32 {v(T+2,2)}, {v(T+2,2)}, {v(T,2)}
        v_mul_f32 {v(T+2)}, {f2u(1.0/576):#x}, {v(T+2)}
        v_mul_f32 {v(T+3)}, {f2u(1.0/576):#x}, {v(T+3)}
        v_fma_f32 {v(T+3)}, -{v(T+2)}, {v(T+2)}, {v(T+3)}
        v_max_f32 {v(T+3)}, 0, {v(T+3)}
        v_add_f32 {v(T+7)}, {v(T+7)}, {v(T+3)}
        v_rsq_f32 {v(T+4)}, {v(T+7)}
        v_add_f32 {v(T+8)}, {v(T+2)}, {v(SH)}
        v_mul_f32 {v(T+6)}, -{v(T+2)}, {v(T+4)}
        v_mul_f32 {v(T+9)}, {v(T+7)}, {v(T+4)}''')
        for j in range(5):
            for h in (0, 2): A(f'v_pk_fma_f32 {v(ACC+4*j+h,2)}, {v(ACC+4*j+h,2)}, {v(T+4,2)}, {v(T+6,2)} op_sel_hi:[1,0,0]')
            for h in (0, 1): A(f'v_cvt_pk_bf16_f32 {v(ACC+4*j+h)}, {v(ACC+4*j+2*h)}, {v(ACC+4*j+2*h+1)}')
            A(f'ds_write_b64 {v(vNW+j)}, {v(ACC+4*j,2)} offset:{IMN}')
        A('s_waitcnt lgkmcnt(0)\n s_barrier')
        for q in range(3): A(f'ds_read_b128 {v(CO+4*q,4)}, {vCP} offset:{IMN+1024*q}')
        A(poll)
        A(f'buffer_store_dwordx2 {v(T+8,2)}, v5, {WS}, s67 offen sc1')
        st3(WS, vCP, 's68')
        n1, n2 = 4, 0
    else:
        A('s_barrier')
        for j in range(5):
            for h in (0, 1): A(f'v_cvt_pk_bf16_f32 {v(PK+2*j+h)}, {v(ACC+4*j+2*h)}, {v(ACC+4*j+2*h+1)}')
            A(f'ds_write_b64 {v(vNW+j)}, {v(PK+2*j,2)} offset:{IMN}')
        local_store('v8', vCA, '0')
        A('s_waitcnt lgkmcnt(0)\n s_barrier')
        for q in range(3): A(f'ds_read_b128 {v(CO+4*q,4)}, {vCP} offset:{IMN+1024*q}')
        A(poll)
        st3(SOUT, vG, 's67')
        n1, n2 = 3, 0
    post = list(A.lines[n0:])
    tk(2)
    stamp(A, 'v221', sI)
    A(f'''s_add_u32 {sI}, {sI}, 1
    s_add_u32 s65, {sI}, 1
    s_cmp_ge_u32 {sI}, {NSEG}
    s_cbranch_scc1 {name}_done
    s_waitcnt vmcnt({n1 + n2})''')
    prep(); tk(3)
    A(f'''s_mov_b32 s66, 1
    v_cmp_gt_u32 vcc, s65, {vP}
    s_cbranch_vccz {name}_ld
    s_mov_b32 s66, 0
    s_waitcnt vmcnt(4)''')
    flag()
    A(f's_branch {name}_spin')
    A(f'{name}_ov:')
    ren = lambda t: t.replace('s67', 's81').replace('s68', 's82')
    pre, lds_ = ldlist('s66'); A(ren(pre))
    k = 0; since = 99; import re as _re
    for l in post:
        t = l.strip()
        if t.startswith('buffer_load_dword '):
            for x in lds_[k:]: A(ren(x))
            k = len(lds_)
        m = _re.search(r'(Lc_\d+)', l)
        if m: l = l.replace(m.group(1), m.group(1) + 'w')
        A.lines.append(l); since += 1
        if t.startswith('v_') and since >= 4 and k < len(lds_) and not t.startswith('v_rsq'):
            A(ren(lds_[k])); k += 1; since = 0
    stamp(A, 'v221', sI); tk(4)
    A(f's_add_u32 {sI}, {sI}, 1\n s_add_u32 s65, {sI}, 1\n s_waitcnt vmcnt({n1 + n2})')
    prep(); tk(5)
    stamp(A, 'v220', sI)
    for i in range(18):
        mf(i)
        if i in (11, 15): stat((i >> 2) - 2)
    A('s_nop 1'); stat(2)
    if fout is not None: A(f's_waitcnt vmcnt(4)'); flag()
    A('s_waitcnt vmcnt(0)')
    tk(6)
    A(f's_branch {name}_mid')
    A(f'{name}_done:\n s_waitcnt vmcnt({n2})')
    flag()
    A('s_waitcnt vmcnt(0) lgkmcnt(0)')
    if cfg.timing == 7:
        for k in range(16): A(f'v_writelane_b32 v220, s{40+k}, {k}')
    dump(A, ['v220', 'v221'])
    A('s_endpgm')

def role_red(A):
    A('L_red:')
    if not enabled('red'):
        ln0_hook(A, 0); A('s_endpgm'); return
    ln0_hook(A, 0)
    validate(A, True)
    A(f'''
    s_sub_u32 s63, {sT}, 24
    s_lshr_b32 s71, s63, 2
    s_and_b32 s70, s63, 3
    s_mul_i32 s72, s70, 9216
    s_lshr_b32 s63, s70, 1
    s_lshl_b32 s73, s63, 10
    s_lshl_b32 s74, s63, 9
    s_add_u32 s74, s74, 2048
    ''')
    lane(A, 'v8')
    A(f'''
    v_and_b32 v9, 7, v8
    v_bfe_u32 v10, v8, 3, 1
    v_lshrrev_b32 v11, 4, v8
    v_mul_u32_u24 v1, 36864, v11
    v_lshl_add_u32 v1, v10, 8, v1
    v_lshl_add_u32 v1, v9, 4, v1
    s_mul_i32 s63, {sW}, 9216
    s_and_b32 s64, s70, 1
    s_lshl_b32 s64, s64, 7
    s_add_u32 s63, s63, s64
    v_add_u32 v1, s63, v1
    v_lshrrev_b32 v22, 5, v8
    v_lshl_add_u32 v23, v22, 1, v10
    s_mul_i32 s63, {sW}, 18
    v_add_u32 v23, s63, v23
    v_mul_u32_u24 v32, 1152, v9
    v_and_b32 v33, 1, v11
    v_lshl_add_u32 v32, v33, 3, v32
    v_cmp_eq_u32 vcc, 0, v22
    v_mov_b32 v34, {OOB}
    v_mov_b32 v35, 12288
    v_mov_b64 v[40:41], 0
    ds_write_b64 v35, v[40:41] offset:49152
    v_add_u32 v38, 0x10000, v35
    ds_write_b64 v38, v[40:41] offset:49152
    v_cndmask_b32 v21, 0, 1.0, vcc
    s_and_b32 s63, s70, 1
    s_lshl_b32 s63, s63, 2
    v_lshrrev_b32 v36, 1, v9
    v_add_u32 v36, s63, v36
    ''')
    for j in range(5):
        A(f'''v_add_u32 v37, {4*j}, v23
        v_xor_b32 v37, v37, v36
        v_lshl_add_u32 v{12+j}, v37, 4, v32''')
    A(f'''
    v_cndmask_b32 v16, v35, v16, vcc
    s_mul_i32 s63, {sW}, 2304
    s_add_u32 s75, s63, 49152
    v_lshl_add_u32 v17, v8, 4, s63
    v_cmp_gt_u32 vcc, 16, v8
    v_lshlrev_b32 v20, 5, v9
    v_add_u32 v20, 32768, v20
    v_cndmask_b32 v18, v34, v17, vcc
    s_and_b32 s63, s70, 1
    s_lshl_b32 s63, s63, 2
    s_add_u32 s63, s63, {sW}
    s_lshl_b32 s63, s63, 4
    v_xor_b32 v3, s63, v17
    s_lshl_b32 s63, s70, 6
    v_lshl_add_u32 v4, v9, 3, s63
    s_cmp_eq_u32 {sW}, 0
    s_cselect_b32 s63, 8, 0
    v_cmp_gt_u32 vcc, s63, v8
    s_nop 1
    v_cndmask_b32 v5, v34, v4, vcc
    s_lshl_b32 s63, {sW}, 3
    v_add_u32 v19, s63, v20
    v_and_b32 v33, 1, v8
    v_cmp_eq_u32 vcc, 0, v33
    v_mov_b32 v34, 0x3f80
    v_mov_b32 v35, 0x3f800000
    v_cndmask_b32 v34, v35, v34, vcc
    v_bfe_u32 v33, v8, 1, 3
    ''')
    for d in range(8):
        A(f'v_cmp_eq_u32 vcc, {d}, v33\n s_nop 1\n v_cndmask_b32 v{24+d}, 0, v34, vcc')
    A(f'''
    v_mov_b32 v11, 36864
    v_mov_b32 v23, 1
    ds_write_b32 v11, v40
    s_waitcnt lgkmcnt(0)
    s_barrier
    s_lshl_b32 s80, {sL}, 1
    s_add_u32 s80, s80, s71
    ''')
    A('''s_cmp_eq_u32 s80, 1
    s_cbranch_scc1 L_red_1
    s_cmp_eq_u32 s80, 2
    s_cbranch_scc1 L_red_2
    s_cmp_eq_u32 s80, 3
    s_cbranch_scc1 L_red_3
    ''')
    red_stream(A, 'L_r10', PR0, PW, XNA, XNF, F_WO, F_XNF, 10, None, F_CON)
    A('L_red_1:')
    red_stream(A, 'L_r11', PR1, PW + PR0 * 294912, XNA + XB, XNF + XB, F_WO + 512, F_XNF + 128, 11, F_XNA + 128, F_CON + 128)
    A('L_red_2:')
    red_stream(A, 'L_r20', PR0, PD, XNF, XNA + XB, F_DN, F_XNA + 128, 12, F_XNF, F_CON + 256)
    A('L_red_3:')
    red_stream(A, 'L_r21', PR1, PD + PR0 * 294912, XNF + XB, None, F_DN + 512, None, 14, F_XNF + 128, F_CON + 384)
```

```python
from base import *
import base

class Sched:
    def __init__(s, mains):
        s.mains = mains; s.gaps = [[] for _ in mains]; s.stmin = 0; s.lastst = 0; s.avoid = False
    def put(s, g, text):
        for l in text.split('\n'):
            if l.strip(): s.gaps[g].append(l.strip())
    @staticmethod
    def wt(l):
        import re
        l = l.strip()
        if not l or l.startswith('@mark') or l.endswith(':'): return 0
        if l.startswith(('@', 's_waitcnt')): return cfg.wts[0]
        if l.startswith(('v_exp', 'v_rcp', 'v_perm')): return cfg.wts[1]
        if l.startswith('v_'): return cfg.wts[2]
        if l.startswith('buffer_'): return cfg.wts[3]
        if l.startswith('ds_'): return cfg.wts[4]
        big = any(abs(int(x, 0)) > 64 for x in re.findall(r'(?<![\w\[:])(-?(?:0x[0-9a-f]+|\d+))(?![\w\]:])', l.split(None, 1)[1] if ' ' in l else ''))
        return cfg.wts[6] if big else cfg.wts[5]
    def load(s, g):
        w = sum(s.wt(x) for x in s.gaps[g])
        if g + 1 < len(s.mains) and s.mains[g + 1].startswith('@'): w += cfg.wts[0]
        return w
    def fit(s, g, items, hi, cap=None):
        cap = cap or cfg.cap
        while True:
            add = {}; q = g; ok = True; last = -99; plan = []
            for it in items:
                w = sum(s.wt(x) for x in it.split('\n'))
                q2 = max(q, last + 8, s.stmin) if it.startswith('buffer_store') else q
                while q2 < hi and s.load(q2) + add.get(q2, 0) + w > cap and (s.load(q2) + add.get(q2, 0)) > 0: q2 += 1
                if q2 >= hi: ok = False; break
                add[q2] = add.get(q2, 0) + w; plan.append((q2, it))
                if it.startswith('buffer_store'): last = q2
                else: q = q2
            if ok: break
            cap += 0.25
        for q2, it in plan:
            s.put(q2, it)
            if it.startswith('buffer_store'): s.lastst = q2
        return q
    def seq(s, g, items, step=1, cap=1, share=False):
        last = -99
        for it in items:
            while len([x for x in s.gaps[g] if (x.startswith('v_') if share else not x.startswith('@mark'))]) >= cap: g += 1
            if it.startswith('buffer_store'):
                gs = max(g, last + 8, s.stmin)
                busy = lambda q: any(x.startswith('buffer_') for y in s.gaps[max(q - 2, 0):q + 3] for x in y)
                while s.avoid and busy(gs): gs += 1
                s.put(gs, it); last = gs; s.lastst = gs
                continue
            s.put(g, it); g += step
        return g
    def emit(s, A, pre=()):
        vm = 0; marks = {'entry': 0}; ds = list(pre)
        for m, gp in zip(s.mains, s.gaps):
            for l in m.split('\n') + gp:
                l = l.strip()
                if not l: continue
                if l.startswith('@mark'): marks[l.split()[1]] = vm; continue
                if l in cfg.x_drop: continue
                if l.startswith('@wait'):
                    w = f's_waitcnt vmcnt({vm - marks[l.split()[1]]})'
                    if cfg.timing == 4:
                        k = 12 + ['poll', 'st', 'entry', 'p1', 'th0'].index(l.split()[1]) % 4
                        w = f's_memtime s[28:29]\n {w}\n s_memtime s[30:31]\n s_waitcnt lgkmcnt(0)\n s_sub_u32 s30, s30, s28\n s_add_u32 s{k}, s{k}, s30'
                    A(w); continue
                if l == 's_barrier' and cfg.timing == 4:
                    A('s_memtime s[28:29]\n s_barrier\n s_memtime s[30:31]\n s_waitcnt lgkmcnt(0)\n s_sub_u32 s30, s30, s28\n s_add_u32 s16, s16, s30'); continue
                if l.startswith('@lw'):
                    t = l.split()[1]
                    if t in ds:
                        k = len(ds) - 1 - ds.index(t); A(f's_waitcnt lgkmcnt({k})'); ds = ds[len(ds) - k:]
                    continue
                tag = None
                if '#' in l: l, tag = [x.strip() for x in l.split('#')]
                if any(k in l for k in cfg.x_drop): continue
                if l.startswith('buffer_'): vm += 1
                if l.startswith('ds_'): ds.append(tag)
                A(l)
        return ds
def lines(t): return [l.strip() for l in t.split('\n') if l.strip()]

def flag_addr(A, dst, sval):
    lane(A, 'v1')
    A(f'''v_cmp_eq_u32 vcc, 0, v1
    v_mov_b32 v2, {sval}
    v_mov_b32 {dst}, {OOB}
    v_cndmask_b32 {dst}, {dst}, v2, vcc''')

M16 = 'v_mfma_f32_16x16x32_bf16'
XPK = 60; XT = 66; XLA = 70; XDV = 72; XSV = 73; XPA = 74; XP = 75; XFV = 76; XFA = 77
XBUF = 36864; XB0 = 8192
def gs_stream(A, name, NCT, NK, wreg, swap, rows, XFR, RING, epi, in_base, in_lstride, in_sstride, out_lstride, out_sstride,
              flag_lstride, stride, code, sig0, sig1, dma0, dstep, poll0, poll1, share, local, prio=0, lowlate=False, plan=None, alt=0, epihi=None):
    RA = min(RING - 1, cfg.rgra) if local else RING - 1
    ND = (2 * NK) // 4
    NH = (NK + 3) // 4
    AW = 4 * NCT
    lane(A, 'v1')
    if rows:
        A(f'''v_and_b32 v2, 15, v1
        v_lshrrev_b32 v3, 4, v1
        v_lshrrev_b32 v4, 1, v2
        v_mul_u32_u24 v5, 1152, v2
        v_add_u32 v5, {XB0 + 2 * XBUF}, v5
        v_xor_b32 v6, v3, v4
        v_lshl_add_u32 {v(XLA)}, v6, 4, v5
        v_xor_b32 v6, 4, v6
        v_lshl_add_u32 {v(XLA+1)}, v6, 4, v5''')
    else:
        A(f'v_lshlrev_b32 {v(XLA)}, 4, v1\n v_add_u32 {v(XLA)}, {XB0 + 2 * XBUF}, {v(XLA)}')
    lw0 = A.lab('Lw0')
    A(f'''s_lshl_b32 s70, {sW}, 10
    v_lshl_add_u32 {v(XDV)}, v1, 4, s70
    s_add_u32 s70, s70, {XB0}
    s_mov_b32 s85, {-2 * XBUF}
    s_mov_b32 s3, 4096
    s_mov_b32 s84, 1
    s_mov_b32 s4, {XBUF}
    s_mov_b32 s5, {XBUF}
    s_mov_b32 {sI}, 0
    s_mov_b32 s77, 0
    s_mov_b32 s78, 0
    s_mov_b32 s79, 0
    s_mov_b32 s92, {OOB if (local or 'x' not in cfg.sat) else 0}
    s_mov_b32 s93, 0
    s_cmp_eq_u32 {sW}, 0
    s_cbranch_scc1 {lw0}
    v_mov_b32 {v(XPA)}, {OOB}
    v_mov_b32 {v(XFA)}, {OOB}
    {lw0}:''')
    def rd(f):
        f %= 2 * NK; th, ks = divmod(f, NK)
        if rows: return f'ds_read_b128 {v(XFR+4*(f%RING),4)}, {v(XLA+(ks&1))} offset:{th*18432 + 128*(ks>>1)}'
        return f'ds_read_b128 {v(XFR+4*(f%RING),4)}, {v(XLA)} offset:{f*1024}'
    def pre(f): return [f'f{(f + i) % (2 * NK)}' for i in range(RA)]
    def mains(th, k0, k1, reads=True):
        m = []
        for ks in range(k0, k1):
            f = th * NK + ks
            for ct in range(NCT):
                d = v(AW * th + 4 * ct, 4); w = r(wreg(ks, ct), 4); x = v(XFR + 4 * (f % RING), 4)
                a_, b_ = (x, w) if swap[ct] else (w, x)
                t = f'{M16} {d}, {a_}, {b_}, {"0" if ks == 0 else d}'
                if ct == 0: t = f'@lw f{f}\n' + t
                m.append(t)
        S = Sched(m)
        if reads:
            for ks in range(k0, k1): S.put((ks - k0) * NCT, rd(th * NK + ks + RA) + f' #f{(th * NK + ks + RA) % (2 * NK)}')
        return S
    def dma(q): return ['s_mov_b32 m0, s70\n s_nop 0' if q == 0 else 's_add_u32 m0, m0, s3\n s_add_u32 s73, s73, s3', f'buffer_load_dwordx4 {v(XDV)}, {WS}, s73 offen sc1 lds']
    poll = f'buffer_load_dword {v(XP)}, {v(XPA)}, {WS}, 0 offen sc1'
    def flagst(so):
        if local or 'x' not in cfg.sat: return f'buffer_store_dword {v(XFV)}, {v(XFA)}, {WS}, {so} offen{loc[0]}'
        l = A.lab('Lfa')
        return f's_cmp_lg_u32 {sW}, 0\n s_cbranch_scc1 {l}\n s_add_u32 s65, {so}, s71\n s_atomic_umax s{int(so[1:]) + 1}, s[8:9], s65\n {l}:'
    loc = ['' if local else ' sc1']
    def sig(S, g, mark):
        S.put(g, f'v_mov_b32 {v(XFV)}, s95')
        S.put(g + 1, f'@wait {mark}\n s_barrier\n' + flagst('s94'))
    XQ = 64 if local else XP
    decide = lines(f'''v_cmp_gt_u32 vcc, s74, {v(XQ)}
        v_cmp_gt_u32 s[66:67], s75, {v(XQ)}
        s_cmp_eq_u32 {'s67' if prio == 0 else 'vcc_lo'}, 0
        s_cselect_b32 s72, {'s84' if alt else 2 - prio}, 0
        s_cmp_eq_u32 {'vcc_lo' if prio == 0 else 's67'}, 0
        s_cselect_b32 s72, {1 + prio}, s72
        v_mov_b32 {v(XFV)}, s72''')
    if local: decide[0] = f'v_add_u32 v64, v65, {v(XP)}\n' + decide[0]
    soff = lambda site: 4 * site if site < 4 else 4096
    def dwr(site): return f'ds_write_b32 {v(XDV)}, {v(XFV)} offset:{soff(site)}'
    def drd(site): return f'ds_read_b32 {v(XFV)}, {v(XSV)} offset:{soff(site)}'
    dget = [f'v_readfirstlane_b32 s72, {v(XFV)}', 's_cmp_lg_u32 s72, 0']
    if plan:
        pick = ['''s_sub_u32 s68, s72, 1
        s_cmp_eq_u32 s68, 0
        s_cselect_b32 s69, s74, s75''', '''s_cselect_b32 s63, s44, s47
        s_cselect_b32 s64, s45, s48
        s_cselect_b32 s80, s46, s49''', '''s_cmp_lt_u32 s69, s63
        s_cselect_b32 s80, s64, s80
        s_add_u32 s80, s80, s69''', '''s_cmp_eq_u32 s68, 0
        s_cselect_b32 s74, s80, s74
        s_cselect_b32 s75, s75, s80''']
    else:
        pick = lines(f'''s_sub_u32 s68, s72, 1
        s_cmp_eq_u32 s68, 0
        s_cselect_b32 s69, s74, s75
        s_cselect_b32 s63, {stride}, 0
        s_cselect_b32 s64, 0, {stride}
        s_add_u32 s74, s74, s63
        s_add_u32 s75, s75, s64''')
    if alt:
        assert prio == 1
        pick += [f's_add_u32 s63, s75, {alt}\n s_cmp_lt_u32 s74, s63\n s_cselect_b32 s84, 1, s68', 's_cmp_lt_u32 s75, 3\n s_cselect_b32 s84, 1, s84']
    pick += lines(f'''s_mul_i32 s73, s69, {in_sstride}
        s_mul_i32 s63, s68, {in_lstride}
        s_add_u32 s73, s73, s63
        s_add_u32 s73, s73, s90''')
    tog = [f'v_add_u32 {v(XLA+q)}, s5, {v(XLA+q)}' for q in range(2 if rows else 1)]
    advance = lines(f'''s_mov_b32 s63, s85
        s_mov_b32 s85, s4
        s_mov_b32 s4, s5
        s_mov_b32 s5, s63
        s_add_u32 s70, s70, s85
        s_mov_b32 s81, s77
        s_mov_b32 s82, s78
        s_mov_b32 s83, s79
        s_mov_b32 s94, s92
        s_mov_b32 s95, s93
        {(f's_mul_i32 s64, s68, {PR1 - PR0}{chr(10)} s_add_u32 s64, s64, {PR0}{chr(10)} s_mul_i32 s63, s68, {magic(PR1) - magic(PR0)}{chr(10)} s_add_u32 s63, s63, {magic(PR0)}{chr(10)}' + ringidx('s63', 's69', 's64', 's63')) if local else 's_mov_b32 s63, s69'}
        s_mul_i32 s63, s63, {out_sstride}
        s_mul_i32 s64, s68, {out_lstride}
        s_add_u32 s63, s63, s64
        s_add_u32 s77, s63, s87
        s_add_u32 s78, s63, s88
        s_add_u32 s79, s63, s89
        s_mul_i32 s92, s68, {flag_lstride}
        {f's_sub_u32 s93, s80, 1{chr(10)} s_min_u32 s93, s93, {NSEG}' if plan else f's_add_u32 s93, s69, {stride - 1}'}
        {'s_mov_b32 s50, s69' if cfg.timing else ''}
        s_add_u32 {sI}, {sI}, 1''')
    A(f's_add_u32 s90, s90, {in_base - in_sstride}')
    if not local:
        for q in range(3): A(f's_sub_u32 s{87+q}, s{87+q}, {out_sstride}')
    GX = (NK - RA) * NCT; GN = NK * NCT
    def put_dma(S, g0, pollmark):
        g = S.fit(0, pick, max(g0 - 1, 5))
        g0 = max(g0, g + 2)
        for q in range(ND):
            d = dma(q); gg = g0 + dstep * q
            if gg % NCT == 0: gg += 1
            gp = gg - 1 if (gg - 1) % NCT else gg - 2
            S.put(gp, d[0].replace('\n s_nop 0', '')); S.put(gg, d[1])
            if pollmark == 1 and q == NH - 1: S.put(gg + 2, poll + '\n @mark poll')
            if pollmark == 2 and q == NH - 1: S.put(gg, '@mark th0')
        return gg
    hi_only = decide[:2] + ['s_mov_b32 s72, 0'] + decide[4:] if lowlate else decide
    def put_decide(S, site, o=0, far=False):
        q = (13, 12, 9, 8, 7) if (far or not local) else cfg.dq
        S.put(o + GX - q[0], '@wait poll\n' + decide[0]); S.put(o + GX - q[1], decide[1]); S.put(o + GX - q[2], '\n'.join((hi_only if far else decide)[2:-1]))
        S.put(o + GX - q[3], decide[6]); S.put(o + GX - q[4], dwr(site) + ' #dw')
    def tstamp():
        if cfg.timing and cfg.timing < 3:
            l1 = A.lab('Lt'); l2 = A.lab('Lt')
            A(f's_sub_u32 s63, s50, 1\n s_cmp_eq_u32 s92, 0\n s_cbranch_scc0 {l1}')
            stamp(A, 'v78', 's63'); A(f's_branch {l2}\n {l1}:'); stamp(A, 'v79', 's63'); A(f'{l2}:')
    def fill1(S, o, lastdma=None):
        if sig1 is not None:
            S.put(o, '@mark p1'); sig(S, o + sig1, 'p1')
        put_decide(S, 1, o, lastdma is not None)
        if o: S.stmin = lastdma + 4
        S.fit(o + 4, epi(0, 77, loc=loc[0]), o + GX)
        if lastdma is not None:
            g = max(lastdma, S.lastst, o + (sig1 or 0) + 1) + 1
            lim = o + GX - 10
            S.fit(g, advance, o + GX)
        S.put(o + GX - 1, '@lw dw')
    def phase0(E, D):
        S = mains(0, 0, NK)
        if D:
            S1 = mains(1, 0, NK - RA); S.mains += S1.mains; S.gaps += S1.gaps
            ld_ = put_dma(S, dma0 if E else 3, (2 if cfg.rgpoll else 1) if local else 0)
            if not local: S.put(GN + poll1, poll + '\n @mark poll')
            elif cfg.rgpoll:
                S.put((dma0 if E else 3) - 3, poll + '\n @mark poll'); S.put(GN + GX - 1, '@wait th0')
        else:
            S.put(poll0, poll + '\n @mark poll'); put_decide(S, 0)
        here = (not E) or sig0
        if here: S.put(GX - 2, f'v_mov_b32 {v(XFV)}, s95')
        if E:
            S.fit(4, epi(1, 81, loc=loc[0]), (dma0 - 2 if sig0 else epihi or GN - 4))
        S.put(GX - 1, f'@wait {"st" if (E and sig0) else "entry"}\n @lw dw\n s_barrier')
        if here: S.put(GX - 1, flagst('s94'))
        if not D:
            S.put(GX - 1, drd(0) + ' #dr')
            S.put(GN - 4, '@lw dr\n' + dget[0]); S.put(GN - 1, dget[1])
        else: fill1(S, GN, ld_)
        tstamp()
        S.emit(A, pre(0))
        if D: A(f's_branch {name}_fe')
        else: A(f's_cbranch_scc1 {name}_p1d\n s_branch {name}_p1n')
    XRD = 68 if local else XFA
    outl = []
    def soft(S, g, off, pre_, val, after):
        a_, r_, c_ = cfg.softq
        l = A.lab('Lsb'); outl.append((l, off))
        S.put(g - a_ - 1, pre_ + f'\n v_mov_b32 {v(XFV)}, {val}')
        S.put(g - a_, f'ds_write_b32 {v(XDV)}, {v(XFV)} offset:{off}')
        S.put(g - r_, f'ds_read_b32 {v(XFV)}, {v(XRD)} offset:{off} #sr')
        S.put(g - c_, f'@lw sr\n v_cmp_gt_u32 vcc, s76, {v(XFV)}')
        S.put(g, f's_cbranch_vccnz {l}o\n {l}:\n' + after)
    def steady():
        S = mains(0, 0, NK)
        S1 = mains(1, 0, NK); S.mains += S1.mains; S.gaps += S1.gaps
        S.gaps[GN + GX] = tog + S.gaps[GN + GX]
        a_ = cfg.softq[0]
        S.put(0, 's_add_u32 s76, s76, 4')
        if sig0: S.fit(4, epi(1, 81, loc=loc[0]), dma0 - 5)
        ld_ = put_dma(S, dma0, 2)
        S.put(dma0 - 3 if local else GN + poll1 - 6, poll + '\n @mark poll')
        fv = f'v_mov_b32 {v(XFV)}, s95\n' if local else ''
        if sig0 and not local: soft(S, GX - 1, 8, '@wait st', 's76', flagst('s94')); gs = 0
        else:
            soft(S, GX - 1, 8, '@wait entry', 's76', '')
            gs = (GX + a_ + 2) if local else GN + sig1 + a_
            soft(S, gs, 4104, '@wait st', 's76', fv + flagst('s94'))
        g1 = GN + GX - 1
        S.put(g1 - a_ - 7, '@wait poll\n' + decide[0]); S.put(g1 - a_ - 6, decide[1]); S.put(g1 - a_ - 3, '\n'.join(hi_only[2:-1]) + '\n s_or_b32 s72, s72, s76')
        soft(S, g1, 4100, '@wait th0', 's72', dget[0])
        S.put(2 * GN - 1, 's_and_b32 s72, s72, 3')
        if not sig0: S.fit(4, epi(1, 81, loc=loc[0]), epihi or GN - 4)
        S.stmin = ld_ + 4
        S.fit(GN + 4, epi(0, 77, loc=loc[0]), GN + GX)
        S.fit(max(ld_, S.lastst, gs) + 1, advance, GN + GX)
        tstamp()
        S.emit(A, pre(0))
        A(f's_cbranch_scc1 {name}_p0ed\n s_branch {name}_p0e')
        for l, off in outl:
            A(f'''{l}o:
            s_mov_b32 {sSPIN}, 0
            {l}s:
            ds_read_b32 {v(XFV)}, {v(XRD)} offset:{off}
            s_waitcnt lgkmcnt(0)
            v_cmp_gt_u32 vcc, s76, {v(XFV)}
            s_cbranch_vccz {l}
            s_add_u32 {sSPIN}, {sSPIN}, 1
            s_cmp_lt_u32 {sSPIN}, {cfg.spin_limit * 4}
            s_cbranch_scc1 {l}s
            s_mov_b32 s63, {code + 30}
            s_branch L_abort''')
    def phase1(D):
        S = mains(1, 0, NK - RA)
        ld_ = None
        if D:
            S.put(0, poll + '\n @mark poll')
            ld_ = put_dma(S, 3, 2)
        else: S.put(poll1, poll + '\n @mark poll')
        fill1(S, 0, ld_)
        if D: S.put(GX - 1, '@wait th0')
        S.emit(A, pre(NK))
    def burst():
        for x in pick: A(x)
        if cfg.timing and local:
            l1 = A.lab('Lt')
            A(f's_sub_u32 s63, s69, 1\n s_cmp_eq_u32 s68, 0\n s_cbranch_scc0 {l1}'); stamp(A, 'v67', 's63'); A(f'{l1}:')
        for q in range(ND):
            for x in dma(q): A(x)
    def start(nyoung, early=False):
        if early:
            A(f'v_mov_b32 {v(XFV)}, s93\n s_waitcnt vmcnt({ND})\n s_barrier\n {flagst("s92")}'); nyoung += 1
        for x in advance + tog + hi_only + [dwr(3)]: A(x)
        A(f's_waitcnt vmcnt({nyoung}) lgkmcnt(0)\n s_barrier\n {drd(3)}')
        for f in range(RA): A(rd(f))
        A(f's_waitcnt lgkmcnt({RA})')
        for x in dget: A(x)
    def alone():
        A('s_nop 7'); n = 0
        for x in epi(1, 77, True, loc=loc[0]):
            for l in lines(x):
                if not l.startswith('@'): A(l)
                if l.startswith('buffer_'): n += 1
        return n
    def idle():
        l = A.lab('Lsp'); d = A.lab('Lspd')
        A(f'''s_cmp_lg_u32 {sW}, 0
        s_cbranch_scc1 {d}
        s_mov_b32 {sSPIN}, 0
        {l}:
        {poll}
        s_waitcnt vmcnt(0)''')
        for x in decide: A(x)
        A(f'''{dwr(4)}
        s_cmp_lg_u32 s72, 0
        s_cbranch_scc1 {d}
        s_add_u32 {sSPIN}, {sSPIN}, 1
        s_cmp_lt_u32 {sSPIN}, {cfg.spin_limit}
        s_cbranch_scc1 {l}
        {d}:
        s_waitcnt lgkmcnt(0)
        s_barrier
        {drd(4)}
        s_waitcnt lgkmcnt(0)
        {dget[0]}
        s_mov_b32 s63, {code}
        s_cmp_eq_u32 s72, 0
        s_cbranch_scc1 L_abort''')
    def flush():
        A(f'v_mov_b32 {v(XFV)}, s93\n s_waitcnt vmcnt(0)\n s_barrier\n {flagst("s92")}')
        if cfg.timing and local:
            l1 = A.lab('Lt')
            A(f's_sub_u32 s63, s93, 1\n s_cmp_eq_u32 s92, 0\n s_cbranch_scc0 {l1}'); stamp(A, 'v66', 's63'); A(f'{l1}:')
        A(f's_cmp_ge_u32 {sI}, s91\n s_cbranch_scc1 {name}_done')
    if cfg.timing and local: A('v_mov_b32 v66, 0\n v_mov_b32 v67, 0')
    if cfg.timing: A('v_mov_b32 v78, 0\n v_mov_b32 v79, 0')
    if cfg.timing == 4:
        for k in range(12, 28):
            if k not in (20, 21, 22, 23): A(f's_mov_b32 s{k}, 0')
    def cnt(k):
        if cfg.timing == 4: A(f's_addk_i32 s{k}, 1')
    if name[2] in cfg.soft:
        assert local or 'x' in cfg.sat
        A(f'''v_and_b32 v2, 3, v1
        v_lshlrev_b32 {v(XRD)}, 10, v2
        v_mov_b32 v2, 0
        ds_write_b32 {v(XDV)}, v2 offset:8
        ds_write_b32 {v(XDV)}, v2 offset:4100
        ds_write_b32 {v(XDV)}, v2 offset:4104
        s_mov_b32 s76, 0''')
    if local: A(f's_cmp_lg_u32 {sSLOW}, 0\n s_cbranch_scc1 {name}_sl')
    A(f'{name}_idle:')
    idle(); burst(); start(ND - NH)
    A(f'{name}_slow:\n s_cbranch_scc1 {name}_p0d')
    phase0(False, False)
    A(f'{name}_p0d:'); phase0(False, True)
    A(f'{name}_p0e:'); cnt(18); phase0(True, False)
    A(f'{name}_p1d:'); cnt(19); phase1(True)
    A(f's_branch {name}_fe')
    A(f'{name}_p0ed:'); cnt(17)
    if name[2] in cfg.soft: steady()
    else:
        phase0(True, True)
        del A.lines[-1]
    A(f'{name}_fe:')
    A(f'{"" if "febar" in cfg.x_drop else "s_barrier"}\n {drd(1)}')
    S = mains(1, NK - RA, NK)
    S.gaps[0] = tog + S.gaps[0]
    S.put(RA * NCT - 4, '@lw dr\n' + dget[0]); S.put(RA * NCT - 1, dget[1])
    S.emit(A, pre(2 * NK - RA) + ['dr'])
    A(f's_cbranch_scc1 {name}_p0ed\n s_branch {name}_p0e')
    A(f'{name}_p1n:'); cnt(24); phase1(False)
    A(f's_barrier\n {drd(1)}')
    S = mains(1, NK - RA, NK, reads=False)
    S.put(RA * NCT - 4, '@lw dr\n' + dget[0]); S.put(RA * NCT - 1, dget[1])
    S.emit(A, pre(2 * NK - RA) + ['dr'])
    A(f's_cbranch_scc0 {name}_t2')
    if local:
        alone(); burst(); start(ND - NH, True)
    else:
        burst(); n = alone(); start(ND - NH + n)
    A(f's_branch {name}_slow')
    A(f'{name}_t2:'); cnt(25)
    alone(); flush()
    A(f's_branch {name}_idle')
    if local:
        loc[0] = ' sc1'
        A(f'{name}_sl:')
        idle(); burst()
        for x in advance + tog: A(x)
        A('s_waitcnt vmcnt(0)')
        A('s_barrier')
        for f in range(RA): A(rd(f))
        mains(0, 0, NK).emit(A, pre(0))
        S = mains(1, 0, NK - RA); S.seq(4, epi(0, 77, loc=loc[0]), share=share); S.emit(A, pre(NK))
        mains(1, NK - RA, NK, reads=False).emit(A, pre(2 * NK - RA))
        alone(); flush()
        A(f's_branch {name}_sl')
    A(f'{name}_done:\n s_waitcnt vmcnt(0) lgkmcnt(0)')
    if cfg.timing == 4:
        for i, k in enumerate((12, 13, 14, 15, 16, 17, 18, 19, 24, 25)): A(f'v_writelane_b32 v66, s{k}, {i}')
    dump(A, ['v78', 'v79', 'v66', 'v67'])
    A('s_endpgm')

def xw(ks, ct): return 80 + (ks * 6 + ct) * 4

def xs_setup(A, fbase, fin, shared, plan=None):
    if shared:
        A(f'''s_lshl_b32 s63, {sT}, 7
        s_lshl_b32 s64, {sL}, 2
        s_add_u32 s63, s63, s64
        s_add_u32 s74, {sL}, 1
        s_add_u32 s75, {sL}, 1''')
    else:
        A(f'''s_lshl_b32 s63, {sT}, 7
        s_cmp_eq_u32 {sL}, 0
        s_cselect_b32 s74, 1, 1000
        s_cselect_b32 s75, 1000, 1''')
    A(f's_add_u32 s63, s63, {fbase}\n s_mov_b32 s71, s63')
    flag_addr(A, v(XFA), 's63')
    A(f'''v_and_b32 v2, 3, v1
    v_lshrrev_b32 v3, 5, v1
        v_lshlrev_b32 v2, 2, v2
    v_lshl_add_u32 v2, v3, 7, v2
    v_add_u32 {v(XPA)}, {fin}, v2
    {'' if shared else f'v_cmp_eq_u32 vcc, {sL}, v3'}
    v_mov_b32 v2, {OOB}
    s_nop 0
    {'' if shared else f'v_cndmask_b32 {v(XPA)}, v2, {v(XPA)}, vcc'}
    s_mov_b32 s90, 0
    s_mov_b32 s91, {NSEG}''')
    if plan:
        S0, S1 = plan
        assert S0 % 2 == 0 and S1 % 2 == 0
        A(f'''s_cmp_eq_u32 {sL}, 0
        s_mov_b32 s44, {S0}
        s_mov_b32 s45, 2
        s_cselect_b32 s46, 1, 1000
        s_mov_b32 s47, {S1}
        s_mov_b32 s48, 1
        s_mov_b32 s49, 2
        s_cselect_b32 s75, {S1 + 1}, 1
        s_cselect_b32 s91, {S0//2 + NSEG - S0 + (NSEG - S1)//2}, {S0//2 + S1 + (NSEG - S1)//2}''')
    if shared:
        A(f'''s_sub_u32 s64, s75, 1
        v_mov_b32 v2, {sL}
        v_mov_b32 v3, s64
        s_mov_b32 s63, 4096
        buffer_store_dword v2, {v(XFA)}, {WS}, 0 offen sc1
        buffer_store_dword v3, {v(XFA)}, {WS}, s63 offen sc1''')

def warm_sweep(A, grp_s, only_l1=False, then_wait=False):
    if not cfg.delay1: return
    l = A.lab('Ld1')
    if only_l1: A(f's_cmp_eq_u32 {sL}, 0\n s_cbranch_scc1 {l}')
    A(f's_cmp_lg_u32 s7, 0\n s_cbranch_scc1 {l}')
    NW = 128 * 4
    lane(A, 'v1')
    A(grp_s)
    A(f'''s_add_u32 s63, s63, {sT}
    s_lshl_b32 s63, s63, 2
    s_add_u32 s63, s63, {sW}
    s_lshl_b32 s63, s63, 10
    v_lshl_add_u32 v10, v1, 4, s63
    s_lshl_b32 s64, {sW}, 10
    s_mov_b32 m0, s64''')
    def sweep(srds, i0, i1):
        for i in range(i0, i1):
            A(f's_mov_b32 s65, {i*NW*1024}')
            for srd in srds: A(f'buffer_load_dwordx4 v10, {srd}, s65 offen lds')
    sweep([SWK, SWQ], 0, 4)
    ln0_hook(A, 8, False)
    sweep([SWK, SWQ], 4, 7)
    A('s_waitcnt vmcnt(6)'); arrive(A)
    sweep([SWK, SWQ], 7, 9)
    sweep([SWV, SWO], 0, 9)
    A('s_waitcnt vmcnt(0)\n s_mov_b32 s7, 2\n s_barrier')
    if then_wait:
        validate(A)
        A(f's_lshl_b32 s63, {sT}, 7\n s_add_u32 s63, s63, {F_CH}\n v_mov_b32 v1, s63\n s_mov_b32 s64, 1')
        spin(A, 'v2', 'v1', 's64', 60)
    A(f'{l}:')

def hold_back(A, on, fbase, only_l1=False):
    if not on: return
    l = A.lab('Lh')
    if only_l1: A(f's_cmp_eq_u32 {sL}, 0\n s_cbranch_scc1 {l}')
    ln0_hook(A, 0)
    validate(A, True)
    l2 = A.lab('Lh')
    A(f's_cmp_lg_u32 {sW}, 0\n s_cbranch_scc1 {l2}\n s_lshl_b32 s63, {sT}, 7\n s_add_u32 s63, s63, {fbase}\n v_mov_b32 v1, s63\n s_mov_b32 s64, 1')
    spin(A, 'v2', 'v1', 's64', 60)
    A(f'{l2}:\n s_barrier\n {l}:')

def staged(A, units, nslot, slot_bytes, region_s, pre=None, ranges=None, hold={}, mid=None):
    n = len(units)
    if ranges is None: ranges = [((i % nslot) * slot_bytes, slot_bytes) for i in range(n)]
    ov = lambda x, y: x[0] < y[0] + y[1] and y[0] < x[0] + x[1]
    dep = [max([hold.get(j, j) for j in range(i) if ov(ranges[i], ranges[j])], default=-1) for i in range(n)]
    cnt = []
    def issue(i):
        assert i == len(cnt)
        ls = units[i][0](ranges[i][0])
        cnt.append(sum(1 for x in ls if x.startswith('buffer_')))
        for x in ls: A(x)
    def ist(k):
        if cfg.timing == 5: A(f's_memrealtime s[96:97]\n s_waitcnt lgkmcnt(0)\n v_writelane_b32 v19, s96, {k}')
    ist(0)
    n0, n1 = pre or (cfg.pre0, cfg.pre1); n1 += n0
    for i in range(n0): issue(i)
    ln0_hook(A, sum(cnt), False)
    ist(1)
    for i in range(n0, n1): issue(i)
    A(f's_waitcnt vmcnt({sum(cnt[n0:])})')
    arrive(A)
    if mid: mid[0](A)
    ist(2)
    while len(cnt) < n and dep[len(cnt)] < 0: issue(len(cnt))
    ist(3)
    for i in range(n):
        A(f's_waitcnt vmcnt({min(sum(cnt[i + 1:]), 63)})')
        ist(4 + i)
        if mid and i == n1: mid[1](A)
        for x in units[i][1](ranges[i][0]): A(x)
        if len(cnt) < n and dep[len(cnt)] <= i:
            A('s_waitcnt lgkmcnt(0)')
            while len(cnt) < n and dep[len(cnt)] <= i: issue(len(cnt))
    A('s_waitcnt lgkmcnt(0)')
    if cfg.timing == 5:
        ist(60); A('s_mov_b32 s99, 0\n s_mov_b32 s101, 0'); dump(A, ['v19']); A('s_endpgm')

def role_qkv(A):
    A('L_qkv:')
    if not enabled('qkv'):
        ln0_hook(A, 0); A('s_endpgm'); return
    lane(A, 'v1')
    A(f'''
    v_lshrrev_b32 v2, 2, v1
    v_and_b32 v4, 3, v1
    v_lshlrev_b32 v3, 4, v4
    v_lshl_add_u32 v10, v2, 13, v3
    v_lshrrev_b32 v5, 4, v1
    v_and_b32 v2, 3, v2
    v_lshl_add_u32 v5, v5, 3, v2
    s_mul_i32 s67, {sW}, 36864
    v_lshl_add_u32 v5, v5, 6, v3
    v_add_u32 v11, s67, v5
    s_lshl_b32 s65, {sT}, 8
    s_lshl_b32 s63, {sW}, 6
    s_add_u32 s65, s65, s63
    ''')
    units = []
    for mi, srd in enumerate((SWK, SWV, SWQ)):
        for c in range(9):
            def dma(o, srd=srd, c=c):
                l = []
                for q in range(4):
                    l += [f's_add_u32 m0, s67, {o+1024*q}', f's_add_u32 s69, s65, {(64*c+16*q)*8192}', f'buffer_load_dwordx4 v10, {srd}, s69 offen lds']
                return l
            def rdf(o, mi=mi, c=c):
                return [f'ds_read_b64_tr_b16 {r(xw(2*c+kk, 2*mi+ch)+2*i,2)}, v11 offset:{o+kk*2048+i*256+ch*8}' for kk in range(2) for ch in range(2) for i in range(2)]
            units.append((dma, rdf))
    staged(A, units, 9, 4096, 's67')
    A('s_barrier')
    validate(A)
    xs_setup(A, F_QKV, F_XNA, cfg.shq, cfg.qplan)
    A(f'''s_mul_i32 s63, {sT}, 24576
    s_lshl_b32 s64, {sW}, 11
    s_add_u32 s63, s63, s64
    v_lshlrev_b32 {v(XSV)}, 4, v1
    s_add_u32 s87, s63, {QKV}
    s_add_u32 s88, s87, 8192
    s_add_u32 s89, s87, 16384''')
    def epi(th, sb, alone=False, loc=None):
        a_ = 24 * th; f = []
        def piece(b, soff):
            return [f'v_cvt_pk_bf16_f32 {v(b+d)}, {v(b+2*d)}, {v(b+2*d+1)}' for d in range(4)] + \
                   [f'buffer_store_dwordx4 {v(b,4)}, {v(XSV)}, {WS}, {soff} offen offset:{1024*th} sc1']
        f += piece(a_, f's{sb+1}')
        for ch in range(2):
            b = a_ + 8 + 4 * ch
            if th == 0:
                f += [f'v_cvt_pk_bf16_f32 {v(XPK+2*ch+d)}, {v(b+2*d)}, {v(b+2*d+1)}' for d in range(2)]
            else:
                f += [f'v_cvt_pk_bf16_f32 {v(b+3)}, {v(b+2)}, {v(b+3)}', f'v_cvt_pk_bf16_f32 {v(b+2)}, {v(b)}, {v(b+1)}',
                      f'v_mov_b64 {v(b,2)}, {v(XPK+2*ch,2)}',
                      f'buffer_store_dwordx4 {v(b,4)}, {v(XSV)}, {WS}, s{sb+2} offen offset:{1024*ch} sc1']
        f += piece(a_ + 16, f's{sb}')
        f[-1] += '\n @mark st'
        return f
    gs_stream(A, 'L_q', 6, 18, xw, [0, 0, 1, 1, 0, 0], True, 48, 3, epi, XNA, XB, 36864, 64 * 32 * 24576, 32 * 24576,
              4096, 2 if cfg.shq else 1, 20, True, None, 45, 6, 44, 44, False, False, prio=1, lowlate=cfg.shq and 'q' in cfg.lowlate, plan=cfg.qplan, alt=cfg.qalt)

def role_up(A):
    A('L_up:')
    if not enabled('up'):
        ln0_hook(A, 0); A('s_endpgm'); return
    warm_sweep(A, f's_mul_i32 s63, {sL}, 24\n s_add_u32 s63, s63, 32')
    hold_back(A, 'u' in cfg.hold, F_QKV)
    lane(A, 'v1')
    for j in range(3):
        A(f'''v_add_u32 v2, {64*j}, v1
        v_mul_u32_u24 v3, 10923, v2
        v_lshrrev_b32 v3, 16, v3
        v_mul_u32_u24 v4, 6, v3
        v_sub_u32 v4, v2, v4
        v_mul_u32_u24 v3, 9216, v3
        v_lshl_add_u32 v{10+j}, v4, 4, v3''')
    A(f'''
    v_lshrrev_b32 v2, 4, v1
    v_bfe_u32 v3, v1, 2, 2
    v_lshl_add_u32 v2, v2, 3, v3
    v_mul_u32_u24 v2, 96, v2
    v_and_b32 v3, 1, v1
    v_lshl_add_u32 v2, v3, 4, v2
    v_bfe_u32 v3, v1, 1, 1
    v_lshl_add_u32 v2, v3, 3, v2
    s_mul_i32 s67, {sW}, 36864
    v_add_u32 v13, s67, v2
    s_mul_i32 s65, {sT}, 384
    s_mul_i32 s63, {sW}, 96
    s_add_u32 s65, s65, s63
    ''')
    units = []
    for ks in range(18):
        def dma(o, ks=ks):
            l = [f's_add_u32 s69, s65, {32*ks*9216}']
            for mat, srd in enumerate((SW1, SW3)):
                for j in range(3):
                    l += [f's_add_u32 m0, s67, {o+3072*mat+1024*j}', 's_nop 0', f'buffer_load_dwordx4 v{10+j}, {srd}, s69 offen lds']
            return l
        def rdf(o, ks=ks):
            return [f'ds_read_b64_tr_b16 {r(xw(ks, 2*t+mat)+2*i,2)}, v13 offset:{o+3072*mat+i*384+t*32}' for t in range(3) for mat in range(2) for i in range(2)]
        units.append((dma, rdf))
    staged(A, units, 6, 6144, 's67')
    A('s_barrier')
    validate(A)
    xs_setup(A, F_UP, F_XNF, cfg.shu, cfg.uplan)
    A(f'''v_lshrrev_b32 v2, 5, v1
    v_and_b32 v3, 31, v1
    v_lshlrev_b32 v3, 4, v3
    v_mul_u32_u24 v2, 18432, v2
    v_add_u32 {v(XSV)}, v2, v3
    s_mul_i32 s63, {sT}, 12
    s_mul_i32 s64, {sW}, 3
    s_add_u32 s63, s63, s64
    s_mul_i32 s66, {sT}, 86
    s_lshr_b32 s66, s66, 8
    s_mul_i32 s66, s66, 18432
    s_add_u32 s66, s66, {HB}
    s_mov_b32 s86, {f2u(-LOG2E):#x}''')
    for t in range(3):
        A(f'''s_add_u32 s64, s63, {t}
        s_lshl_b32 s64, s64, 9
        s_add_u32 s{87+t}, s64, s66''')
    def epi(th, sb, alone=False, loc=None):
        f = []
        if alone:
            B = [24 + 8 * t for t in range(3)]
            for t in range(3): f += [f'v_mul_f32 {v(4*t+j)}, s86, {v(B[t]+j)}' for j in range(4)]
            f += [f'v_exp_f32 {v(j)}, {v(j)}' for j in range(12)]
            for t in range(3): f += [f'v_pk_mul_f32 {v(B[t]+4+j,2)}, {v(B[t]+j,2)}, {v(B[t]+4+j,2)}' for j in (0, 2)]
            f += [f'v_pk_add_f32 {v(j,2)}, {v(j,2)}, 1.0 op_sel_hi:[1,0]' for j in range(0, 12, 2)]
            f += [f'v_rcp_f32 {v(j)}, {v(j)}' for j in range(12)]
            f += [f'v_mov_b64 {v(B[t],2)}, {v(XPK+2*t,2)}' for t in range(3)]
            for t in range(3): f += [f'v_pk_mul_f32 {v(B[t]+4+j,2)}, {v(4*t+j,2)}, {v(B[t]+4+j,2)}' for j in (0, 2)]
            for t in range(3): f += [f'v_cvt_pk_bf16_f32 {v(B[t]+2+d)}, {v(B[t]+4+2*d)}, {v(B[t]+5+2*d)}' for d in range(2)]
            for t in range(3):
                f += [f'v_permlane32_swap_b32 {v(B[t])}, {v(B[t]+2)}', f'v_permlane32_swap_b32 {v(B[t]+1)}, {v(B[t]+3)}',
                      f'buffer_store_dwordx4 {v(B[t],4)}, {v(XSV)}, {WS}, s{sb+t} offen sc1']
            return f
        T = [v(XT + j) for j in range(4)]
        for t in range(3):
            b = 24 * th + 8 * t
            G = [v(b + j) for j in range(4)]; U = [v(b + 4 + j) for j in range(4)]
            f += [f'v_mul_f32 {T[j]}, s86, {G[j]}' for j in range(4)]
            for j in range(4): f += [f'v_exp_f32 {T[j]}, {T[j]}', f'v_mul_f32 {U[j]}, {G[j]}, {U[j]}']
            f += [f'v_add_f32 {T[j]}, 1.0, {T[j]}' for j in range(4)]
            f += [f'v_rcp_f32 {T[j]}, {T[j]}' for j in range(4)]
            f += [f'v_mul_f32 {U[j]}, {T[j]}, {U[j]}' for j in range(4)]
            if th == 0:
                f += [f'v_cvt_pk_bf16_f32 {v(XPK+2*t+d)}, {U[2*d]}, {U[2*d+1]}' for d in range(2)]
            else:
                f += [f'v_mov_b64 {v(b,2)}, {v(XPK+2*t,2)}\n v_cvt_pk_bf16_f32 {v(b+2)}, {U[0]}, {U[1]}', f'v_cvt_pk_bf16_f32 {v(b+3)}, {U[2]}, {U[3]}\n s_nop 0',
                      f'v_permlane32_swap_b32 {v(b)}, {v(b+2)}', f'v_permlane32_swap_b32 {v(b+1)}, {v(b+3)}',
                      f'buffer_store_dwordx4 {v(b,4)}, {v(XSV)}, {WS}, s{sb+t} offen sc1']
        if th == 1: f[-1] += '\n @mark st'
        return f
    gs_stream(A, 'L_u', 6, 18, xw, [0] * 6, True, 48, 3, epi, XNF, XB, 36864, 64 * 294912, 294912,
              4096, 2 if cfg.shu else 1, 21, cfg.upsig[0], cfg.upsig[1], cfg.upsig[2], 6, cfg.upsig[3], 33, True, False, lowlate=cfg.shu and 'u' in cfg.lowlate, plan=cfg.uplan, epihi=cfg.upsig[4])

def role_rg(A, name, key, NK, wsrd, in_base, in_sstride, out_base, fout, code):
    A(f'{name}:')
    if not enabled(key):
        ln0_hook(A, 0); A('s_endpgm'); return
    def w_(k, ct): return 256 + (k * 3 + ct) * 4
    warm_sweep(A, f's_mov_b32 s63, {80 if key == "wo" else 104}')
    hold_back(A, key[0] in cfg.hold, F_QKV)
    A(f'''s_mul_i32 s86, {sT}, 86
    s_lshr_b32 s86, s86, 8
    s_mul_i32 s63, s86, 3
    s_sub_u32 s80, {sT}, s63''')
    lane(A, 'v1')
    for j in range(3):
        A(f'''v_add_u32 v2, {64*j}, v1
        v_mul_u32_u24 v3, 10923, v2
        v_lshrrev_b32 v3, 16, v3
        v_mul_u32_u24 v4, 6, v3
        v_sub_u32 v4, v2, v4
        v_mul_u32_u24 v3, 1152, v3
        v_lshl_add_u32 v{10+j}, v4, 4, v3''')
    A(f'''
    v_lshrrev_b32 v2, 4, v1
    v_bfe_u32 v3, v1, 2, 2
    v_lshl_add_u32 v2, v2, 3, v3
    v_mul_u32_u24 v2, 96, v2
    s_mul_i32 s67, {sW}, 36864
    v_add_u32 v2, s67, v2
    v_and_b32 v3, 3, v1
    v_lshl_add_u32 v13, v3, 4, v2
    v_and_b32 v3, 1, v1
    v_lshl_add_u32 v2, v3, 4, v2
    v_bfe_u32 v3, v1, 1, 1
    v_lshl_add_u32 v14, v3, 3, v2
    s_mul_i32 s71, s80, 384
    s_mul_i32 s63, {sW}, 96
    s_add_u32 s71, s71, s63
    s_mul_i32 s65, s86, {NK*32*1152}
    s_add_u32 s65, s65, s71
    ''')
    units = []
    for k in range(NK):
        def dma(o, k=k):
            l = [f's_add_u32 s69, s65, {32*k*1152}']
            for j in range(3):
                l += [f's_add_u32 m0, s67, {o+1024*j}', 's_nop 0', f'buffer_load_dwordx4 v{10+j}, {wsrd}, s69 offen lds']
            return l
        def rdf(o, k=k):
            return [f'ds_read_b64_tr_b16 {r(w_(k,ct)+2*i,2)}, {"v13" if ct < 2 else "v14"} offset:{o+i*384+(ct*8 if ct < 2 else 64)}' for ct in range(3) for i in range(2)]
        units.append((dma, rdf))
    staged(A, units, 12, 3072, 's67')
    A('s_barrier')
    validate(A)
    A(f's_lshl_b32 s63, {sT}, 2\n s_add_u32 s63, s63, {fout}')
    flag_addr(A, v(XFA), 's63')
    A(f'''v_lshlrev_b32 {v(XSV)}, 4, v1
    s_lshl_b32 s87, {sT}, 2
    s_add_u32 s87, s87, {sW}
    s_mul_i32 s87, s87, 3072
    s_add_u32 s87, s87, {out_base}
    s_mov_b32 s88, s87
    s_mov_b32 s89, s87
    s_mul_i32 s90, s86, {NK*2048}
    s_mov_b32 s91, {2*NSEG}
    s_mov_b32 s74, 1
    s_mov_b32 s75, 1
    v_lshrrev_b32 v2, 5, v1
    v_and_b32 v3, 31, v1''')
    if key == 'wo':
        A(f'''s_lshl_b32 s65, s86, 7
        v_and_b32 v4, 3, v3
        v_lshl_add_u32 v4, v4, 2, s65
        v_lshl_add_u32 v4, v2, 12, v4
        v_add_u32 {v(XPA)}, {F_ATT}, v4''')
    else:
        A(f'''s_mul_i32 s65, s86, 3
        v_lshrrev_b32 v5, 1, v3
        v_min_u32 v5, 2, v5
        v_add_u32 v5, s65, v5
        v_and_b32 v4, {1 if cfg.shu else 0}, v3
        v_lshlrev_b32 v4, 2, v4
        v_lshl_add_u32 v4, v5, 7, v4
        v_lshl_add_u32 v4, v2, 12, v4
        v_add_u32 {v(XPA)}, {F_UP}, v4''')
    A(f'''v_and_b32 v4, 3, v3
    v_lshlrev_b32 v4, 2, v4
    v_lshl_add_u32 v4, v2, 7, v4
    v_add_u32 v4, {F_CON + (0 if key == 'wo' else 256)}, v4
    v_cmp_gt_u32 vcc, 16, v3
    v_mov_b64 v[8:9], 0
    v_mov_b64 v[10:11], 0
    v_cndmask_b32 {v(XPA)}, v4, {v(XPA)}, vcc
    v_mul_i32_i24 v65, {PR1 - PR0}, v2
    v_add_u32 v65, {PR0}, v65
    v_cndmask_b32 v65, v65, 0, vcc''')
    def epi(th, sb, alone=False, loc=''):
        b = 12 * th; o = 48 + 4 * th
        f = [f'v_cvt_pk_bf16_f32 {v(o+d)}, {v(b+2*d)}, {v(b+2*d+1)}' for d in range(4)]
        f.append(f'buffer_store_dwordx4 {v(o,4)}, {v(XSV)}, {WS}, s{sb} offen offset:{1024*th}{loc}')
        f += [f'v_cvt_pk_bf16_f32 {v(56+2*th+d)}, {v(b+8+2*d)}, {v(b+9+2*d)}' for d in range(2)]
        if th == 1:
            f = f[5:] + f[:5]
            f += ['v_permlane32_swap_b32 v56, v58', 'v_permlane32_swap_b32 v57, v59',
                  f'buffer_store_dwordx4 v[56:59], {v(XSV)}, {WS}, s{sb} offen offset:2048{loc}\n @mark st']
        return f
    GX = (NK - 3) * 3
    gs_stream(A, name, 3, NK, w_, [0] * 3, False, 80, cfg.rgring[NK == 18], epi, in_base, 64 * in_sstride, in_sstride, PR0 * 294912, 294912,
              512, 1, code, True, None, cfg.rgdma[0], cfg.rgdma[1], cfg.rp0, cfg.rp1, True, True, lowlate='r' in cfg.lowlate)

def wr_reg(A, i, val):
    A(f'v_mov_b32 {r(i)}, {val}' if i < 256 else f'v_accvgpr_write_b32 {r(i)}, {val}')

def role_att(A):
    A('L_att:')
    if not enabled('att'):
        ln0_hook(A, 0); A('s_endpgm'); return
    ln0_hook(A, 0)
    validate(A, True)
    SET = [256, 384]
    BI, SA, PP, PM, OA, OP, T = 16, 20, 40, 48, 64, 128, 160
    vLD, vKM, vVM, vPA, vP, vFA, vF = 'v4', 'v5', 'v6', 'v7', 'v8', 'v9', 'v10'
    A(f'''s_sub_u32 s70, {sT}, 24
    s_lshl_b32 s70, s70, 2
    s_add_u32 s70, s70, {sW}
    s_lshl_b32 s71, {sL}, 5
    s_add_u32 s71, s71, s70
    s_lshl_b32 s71, s71, 7
    s_sub_u32 s63, {sT}, 24
    s_lshl_b32 s63, s63, 7
    s_lshl_b32 s64, {sL}, 12
    s_add_u32 s63, s63, s64
    s_lshl_b32 s64, {sW}, 2
    s_add_u32 s63, s63, s64
    s_add_u32 s63, s63, {F_ATT}''')
    A('s_mov_b32 s78, s63')
    flag_addr(A, vFA, 's63')
    A(f'''
    v_lshlrev_b32 {vLD}, 4, v1
    v_and_b32 v2, 15, v1
    v_lshrrev_b32 v3, 4, v1
    v_lshrrev_b32 v11, 2, v2
    v_and_b32 v12, 1, v2
    v_lshl_add_u32 v11, v11, 1, v12
    v_lshlrev_b32 v11, 4, v11
    v_lshl_add_u32 {vKM}, v3, 7, v11
    v_lshlrev_b32 {vVM}, 3, v1
    v_and_b32 v11, {1 if cfg.shq else 0}, v1
    v_lshlrev_b32 v11, 2, v11
    s_add_u32 s63, s71, {F_QKV}
    v_add_u32 v11, s63, v11
    s_add_u32 s63, s71, {F_CH}
    v_mov_b32 v12, s63
    v_cmp_gt_u32 vcc, 8, v1
    s_nop 1
    v_cndmask_b32 {vPA}, v12, v11, vcc
    v_lshlrev_b32 v3, 2, v3
    v_sub_u32 v2, v2, v3
    v_mov_b32 v12, {f2u(-1e30):#x}
    s_mul_i32 s72, {sL}, {64*32}
    s_add_u32 s72, s72, s70
    s_mul_i32 s73, s72, 4096
    s_add_u32 s73, s73, {KVM}
    s_mul_i32 s72, s72, 24576
    s_add_u32 s72, s72, {QKV}
    s_mul_i32 s74, {sL}, {64*262144}
    s_lshr_b32 s63, s70, 2
    s_lshl_b32 s63, s63, 15
    s_add_u32 s74, s74, s63
    s_and_b32 s63, s70, 3
    s_lshl_b32 s63, s63, 12
    s_add_u32 s74, s74, s63
    s_add_u32 s74, s74, {OB}
    s_mov_b32 s75, {f2u(128**-0.5*LOG2E):#x}
    ''')
    for rr in range(4):
        A(f'''v_cmp_le_i32 vcc, {rr}, v2
        s_nop 1
        v_cndmask_b32 {v(BI+rr)}, v12, 0, vcc''')
    for i in (PP + 2, PP + 3, PM + 1, PM + 2, PM + 5, PM + 6): A(f'v_mov_b32 {v(i)}, 0')
    def ld_qkv(P):
        b = SET[P]
        A(f's_mul_i32 s67, s64, {32*24576}\n s_add_u32 s67, s67, s72')
        for k in range(24):
            if k % 4 == 0 and k: A('s_add_u32 s67, s67, 4096')
            A(f'buffer_load_dwordx4 {r(b+4*k,4)}, {vLD}, {WS}, s67 offen offset:{1024*(k%4)} {cfg.attld}')
    def ld_m(P, sreg=sI):
        b = SET[P]
        A(f's_mul_i32 s68, {sreg}, {32*4096}\n s_add_u32 s68, s68, s73')
        for u in range(4):
            A(f'buffer_load_dwordx4 {r(b+96+4*u,4)}, {vKM}, {WS}, s68 offen offset:{512*u} sc1')
        for u in range(4):
            A(f'buffer_load_dwordx2 {r(b+112+2*u,2)}, {vVM}, {WS}, s68 offen offset:{2048+512*u} sc1')
    def allred2(op):
        x0, x1, t0, t1 = v(T), v(T+1), v(T+2), v(T+3)
        for sw in ('v_permlane16_swap_b32', 'v_permlane32_swap_b32'):
            A(f'''v_mov_b32 {t0}, {x0}
            v_mov_b32 {t1}, {x1}
            s_nop 0
            {sw} {x0}, {t0}
            {sw} {x1}, {t1}
            {op} {x0}, {x0}, {t0}
            {op} {x1}, {x1}, {t1}''')
    def compute(P):
        b = SET[P]
        Q = lambda u, th: r(b + 4 * (2 * u + th), 4)
        K = lambda u, th: r(b + 32 + 4 * (2 * u + th), 4)
        for u in range(4):
            for ai, (a_, qh, c0) in enumerate(((K(u,0), 0, v(BI,4)), (r(b+96+4*u,4), 0, '0'), (K(u,0), 1, '0'), (K(u,1), 1, v(BI,4)), (r(b+96+4*u,4), 1, '0'))):
                d = v(SA + 4 * ai, 4)
                A(f'{M16} {d}, {a_}, {Q(u,qh)}, {c0 if u == 0 else d}')
        S0 = [SA + i for i in range(4)] + [SA + 4, SA + 5]
        S1 = [SA + 8 + i for i in range(8)] + [SA + 16, SA + 17]
        A('s_nop 4')
        A(f'v_max3_f32 {v(T)}, {v(S0[0])}, {v(S0[1])}, {v(S0[2])}\n v_max3_f32 {v(T)}, {v(T)}, {v(S0[3])}, {v(S0[4])}\n v_max_f32 {v(T)}, {v(T)}, {v(S0[5])}')
        A(f'v_max_f32 {v(T+1)}, {v(S1[0])}, {v(S1[1])}')
        for q in range(2, 10, 2): A(f'v_max3_f32 {v(T+1)}, {v(T+1)}, {v(S1[q])}, {v(S1[q+1])}')
        allred2('v_max_f32')
        A(f'v_mul_f32 {v(T)}, s75, {v(T)}\n v_mul_f32 {v(T+1)}, s75, {v(T+1)}')
        for qh, S in enumerate((S0, S1)):
            for x in S: A(f'v_fma_f32 {v(x)}, {v(x)}, s75, -{v(T+qh)}')
        for x in S0 + S1: A(f'v_exp_f32 {v(x)}, {v(x)}')
        for qh, S in enumerate((S0, S1)):
            A(f'v_add_f32 {v(T+qh)}, {v(S[0])}, {v(S[1])}')
            for x in S[2:]: A(f'v_add_f32 {v(T+qh)}, {v(T+qh)}, {v(x)}')
        allred2('v_add_f32')
        A(f'v_rcp_f32 {v(T)}, {v(T)}\n v_rcp_f32 {v(T+1)}, {v(T+1)}')
        for qh, S in enumerate((S0, S1)):
            for x in S: A(f'v_mul_f32 {v(x)}, {v(x)}, {v(T+qh)}')
        for d in range(2): A(f'v_cvt_pk_bf16_f32 {v(PP+d)}, {v(S0[2*d])}, {v(S0[2*d+1])}')
        for d in range(4): A(f'v_cvt_pk_bf16_f32 {v(PP+4+d)}, {v(S1[2*d])}, {v(S1[2*d+1])}')
        for qh, S in enumerate((S0, S1)):
            for o in (0, 3): A(f'v_cvt_pk_bf16_f32 {v(PM+4*qh+o)}, {v(S[-2])}, {v(S[-1])}')
        od = lambda u, qh, ch: v(OA + 32 * qh + 8 * u + 4 * ch, 4)
        for qh in range(2):
            for u in range(4):
                for ch in range(2):
                    A(f'{M16} {od(u,qh,ch)}, {r(b+64+4*(2*u+ch),4)}, {v(PP+4*qh,4)}, 0')
        for qh in range(2):
            for u in range(4):
                for ch in range(2):
                    A(f'v_mfma_f32_16x16x16_bf16 {od(u,qh,ch)}, {r(b+112+2*u,2)}, {v(PM+4*qh+2*ch,2)}, {od(u,qh,ch)}')
    def pack():
        for d in range(32):
            A(f'v_cvt_pk_bf16_f32 {v(OP+d)}, {v(OA+2*d)}, {v(OA+2*d+1)}')
    def stores():
        A(f's_mul_i32 s67, {sI}, 262144\n s_add_u32 s67, s67, s74')
        for k in range(8):
            A(f'buffer_store_dwordx4 {v(OP+4*k,4)}, {vLD}, {WS}, s67 offen offset:{1024*(k%4)} {cfg.attst}')
            if k == 3: A('s_add_u32 s67, s67, 16384')
    poll = f'buffer_load_dword {vP}, {vPA}, {WS}, 0 offen sc1'
    def flag():
        if 'a' in cfg.sat:
            l = A.lab('Lfa')
            A(f's_cmp_eq_u32 s79, {sI}\n s_cbranch_scc1 {l}\n s_waitcnt lgkmcnt(0)\n s_mov_b32 s79, {sI}\n s_atomic_umax s79, s[8:9], s78\n {l}:')
        else: A(f'v_mov_b32 {vF}, {sI}\n buffer_store_dword {vF}, {vFA}, {WS}, 0 offen sc1')
    A('s_mov_b32 s79, 0')
    for P in (0, 1):
        for i in range(96, 112): wr_reg(A, SET[P] + i, 0)
    A(f's_mov_b32 s76, 0x33333333\n s_mov_b32 s77, 0x33333333\n s_mov_b32 {sI}, 0\n s_mov_b32 s66, 0\n s_branch L_a_wait0')
    for P in (0, 1):
        l1 = A.lab('La'); l2 = A.lab('La')
        A(f'''L_a_wait{P}:
        s_mov_b32 {sSPIN}, 0
        L_a_spin{P}:
        {poll}
        s_waitcnt vmcnt(0)
        L_a_chk{P}:
        v_cmp_ge_u32 vcc, {sI}, {vP}
        s_bitcmp1_b32 s66, 1
        s_cbranch_scc1 {l1}
        s_cmp_lg_u32 vcc_hi, 0
        s_cbranch_scc1 {l1}''')
        ld_m(P)
        A(f'''s_or_b32 s66, s66, 2
        {l1}:
        s_bitcmp1_b32 s66, 0
        s_cbranch_scc1 {l2}
        s_and_b32 s63, vcc_lo, 0xff
        s_cbranch_scc1 {l2}
        s_mov_b32 s64, {sI}''')
        ld_qkv(P)
        A(f'''s_or_b32 s66, s66, 1
        {l2}:
        s_cmp_eq_u32 s66, 3
        s_cbranch_scc1 L_a_top{P}
        s_add_u32 {sSPIN}, {sSPIN}, 1
        s_cmp_lt_u32 {sSPIN}, {cfg.spin_limit}
        s_cbranch_scc1 L_a_spin{P}
        s_mov_b32 s63, 30
        s_branch L_abort
        L_a_topf{P}:
        s_waitcnt vmcnt(8)''')
        flag()
        A(f'''s_waitcnt vmcnt({0 if 'a' in cfg.sat else 1})
        s_branch L_a_top2{P}
        L_a_top{P}:
        s_waitcnt vmcnt(0)
        L_a_top2{P}:
        s_add_u32 s64, {sI}, 1
        v_cmp_ge_u32 vcc, s64, {vP}''')
        stamp(A, 'v220', sI)
        def variant(ldf, gapc):
            body = capture(A, lambda: compute(P)); ld = capture(A, ldf)
            groups = []; cur = []
            for l in ld:
                cur.append(l)
                if l.strip().startswith('buffer_'): groups.append(cur); cur = []
            k = 0; cost = 0; tot = 0; fl = False
            for l in body:
                A.lines.append(l); c_ = 16 if 'mfma' in l else 6; cost += c_; tot += c_
                if cost >= gapc and k < len(groups): A.lines += groups[k]; k += 1; cost = 0
                if tot > 700 and not fl and l.strip().startswith('v_add_f32'):
                    A(f's_waitcnt vmcnt({k})'); flag(); fl = True
            assert k == len(groups) and fl, (k, len(groups))
        A(f'''s_and_b32 s63, vcc_lo, 0xff
        s_cbranch_scc0 L_a_w{P}
        s_mov_b32 s66, 0''')
        variant(lambda: None, 1)
        A(f's_branch L_a_e{P}\n L_a_w{P}:\n s_cmp_eq_u32 vcc_hi, 0\n s_cbranch_scc1 L_a_ww{P}\n s_mov_b32 s66, 1')
        variant(lambda: ld_qkv(1 - P), 56)
        A(f's_branch L_a_e{P}\n L_a_ww{P}:\n s_mov_b32 s66, 3')
        variant(lambda: (ld_qkv(1 - P), ld_m(1 - P, 's64')), 42)
        A(f'L_a_e{P}:\n {poll}')
        pack()
        stores()
        stamp(A, 'v221', sI)
        A(f'''s_add_u32 {sI}, {sI}, 1
        s_waitcnt vmcnt(8)
        v_cmp_ge_u32 vcc, {sI}, {vP}
        s_cmp_eq_u32 s66, 3
        s_cbranch_scc1 L_a_top2{1-P}
        s_cmp_eq_u32 s66, 0
        s_cbranch_scc1 L_a_idle{P}
        s_cmp_lg_u32 vcc_hi, 0
        s_cbranch_scc1 L_a_idle{P}''')
        ld_m(1 - P)
        A(f'''s_branch L_a_topf{1-P}
        L_a_idle{P}:
        {poll}
        s_waitcnt vmcnt(0)''')
        flag()
        A(f'''s_cmp_ge_u32 {sI}, {NSEG}
        s_cbranch_scc1 L_a_done
        s_mov_b32 {sSPIN}, 0
        s_branch L_a_chk{1-P}''')
    A('L_a_done:\n s_waitcnt vmcnt(0) lgkmcnt(0)')
    dump(A, ['v220', 'v221'])
    A('s_endpgm')

L_MEM = 147456; L_QK = L_MEM + 9216; L_O = L_QK + 4096; L_SM = L_O + 2048
def cwq(T, c): return 80 + (T * 9 + c) * 8
def cwo(t, c2): return 80 + 288 + (t * 2 + c2) * 8
def resident():
    reg = [('k', c) for c in range(9) if c not in cfg.KL] + [('v', c) for c in range(9) if c not in cfg.VL]
    lds = [('k', c) for c in cfg.KL] + [('v', c) for c in cfg.VL]
    assert len(reg) == 9 and len(lds) == 9
    return reg, lds
def cwr(m, T, c): return 80 + 144 + (resident()[0].index((m, c)) * 2 + T) * 8

def chain_mem0(A):
    A(f'''
    v_lshrrev_b32 v2, 4, v1
    v_bfe_u32 v3, v1, 2, 1
    v_lshl_add_u32 v2, v2, 1, v3
    v_mul_u32_u24 v2, 1152, v2
    v_bfe_u32 v3, v1, 3, 1
    v_bfe_u32 v4, v1, 1, 1
    v_lshl_add_u32 v3, v3, 1, v4
    v_and_b32 v4, 1, v1
    s_lshl_b32 s63, {sW}, 2
    v_add_u32 v5, s63, v3
    v_lshl_add_u32 v5, v4, 5, v5
    v_lshl_add_u32 v5, v5, 1, v2
    s_mul_i32 s63, {sW}, 144
    s_add_u32 s63, s63, 128
    v_lshl_add_u32 v6, v3, 2, s63
    v_lshl_add_u32 v6, v4, 1, v6
    v_lshl_add_u32 v6, v6, 1, v2
    s_lshl_b32 s63, {sW}, 8
    s_add_u32 s63, s63, {L_MEM}
    v_lshl_add_u32 v7, v1, 2, s63
    ''')
    for c in range(8):
        o = (144 * (c >> 1) + 64 * (c & 1)) * 2
        A(f'buffer_load_ushort v{40+c}, v5, {SMEM0}, 0 offen offset:{o}')
        A(f'buffer_load_ushort v{50+c}, v5, {SMEM0}, 0 offen offset:{o+32}')
    A(f'buffer_load_dword v48, v6, {SMEM0}, 0 offen')
    return

def chain_mem0b(A):
    for c in range(8): A(f'v_lshl_or_b32 v{40+c}, v{50+c}, 16, v{40+c}')
    for c in range(9): A(f'ds_write_b32 v7, v{40+c} offset:{c*1024}')
    A('s_waitcnt lgkmcnt(0)')


def chain_init(A):
    lane(A, 'v1')
    A(f'''
    v_lshrrev_b32 v2, 5, v1
    v_bfe_u32 v3, v1, 4, 1
    v_bfe_u32 v4, v1, 3, 1
    v_bfe_u32 v5, v1, 2, 1
    v_and_b32 v6, 3, v1
    v_lshlrev_b32 v7, 4, v6
    v_lshl_add_u32 v8, v2, 2, v3
    v_lshl_add_u32 v8, v5, 4, v8
    v_lshl_add_u32 v8, v4, 1, v8
    v_lshl_add_u32 v10, v8, 13, v7
    v_mul_u32_u24 v8, 144, v2
    v_lshl_add_u32 v8, v3, 2, v8
    v_lshl_add_u32 v8, v4, 3, v8
    v_add_u32 v8, v8, v5
    v_lshl_add_u32 v11, v8, 13, v7
    s_mul_i32 s67, {sW}, 36864
    v_lshrrev_b32 v8, 2, v1
    v_lshl_add_u32 v9, v8, 6, s67
    v_lshl_add_u32 v13, v6, 3, v9
    v_lshl_add_u32 v14, v6, 4, v9
    v_lshrrev_b32 v8, 4, v1
    v_lshl_add_u32 v8, v8, 2, v5
    v_mul_u32_u24 v8, 288, v8
    v_lshl_add_u32 v8, v6, 3, v8
    v_add_u32 v8, s67, v8
    v_lshl_add_u32 v15, v4, 5, v8
    v_mul_u32_u24 v9, 9216, v4
    v_add_u32 v12, v9, v8
    v_lshl_add_u32 v16, v1, 4, s67
    s_lshl_b32 s65, {sT}, 8
    s_lshl_b32 s63, {sW}, 6
    s_add_u32 s65, s65, s63
    s_mul_i32 s66, {sT}, 147456
    s_mul_i32 s63, {sW}, 288
    s_add_u32 s66, s66, s63
    ''')
    for j in range(9):
        A(f'''v_add_u32 v8, {64*j}, v1
        v_mul_u32_u24 v9, 3641, v8
        v_lshrrev_b32 v9, 16, v9
        v_mul_u32_u24 v17, 18, v9
        v_sub_u32 v8, v8, v17
        v_mul_u32_u24 v9, 1152, v9
        v_lshl_add_u32 v{24+j}, v8, 4, v9''')
    def dqkv(srd, c):
        def f(o):
            l = []
            for tau in range(4):
                pi, jh = tau & 1, tau >> 1
                row = 144 * (c >> 1) + 64 * (c & 1) + 32 * pi + 8 * jh if c < 8 else 288 * jh + 128 + 2 * pi
                l += [f's_add_u32 m0, s67, {o+1024*tau}', f's_add_u32 s69, s65, {row*8192}', f'buffer_load_dwordx4 {"v10" if c < 8 else "v11"}, {srd}, s69 offen lds']
            return l
        return f
    units = []
    tra = lambda m, T: ('v13', 32 * T) if m != 'v' else ('v14', 8 * T)
    for c in range(9):
        units.append((dqkv(SWQ, c), lambda o, c=c: [f'ds_read_b64_tr_b16 {r(cwq(T,c)+2*tau,2)}, v13 offset:{o+1024*tau+32*T}' for T in range(2) for tau in range(4)]))
    for (m, c) in resident()[0]:
        units.append((dqkv(SWK if m == 'k' else SWV, c), lambda o, m=m, c=c: [f'ds_read_b64_tr_b16 {r(cwr(m,T,c)+2*tau,2)}, {tra(m,T)[0]} offset:{o+1024*tau+tra(m,T)[1]}' for T in range(2) for tau in range(4)]))
    ranges = [((i % 9) * 4096, 4096) for i in range(18)]
    for u in range(4):
        def d(o, u=u):
            l = [f's_add_u32 s69, s66, {32*u*1152}']
            for j in range(9): l += [f's_add_u32 m0, s67, {9216*u+1024*j}', 's_nop 0', f'buffer_load_dwordx4 v{24+j}, {SWO}, s69 offen lds']
            return l
        def rd_(o, u=u):
            l = [f'ds_read_b64_tr_b16 {r(cwo(2*p+(u>>1),u&1)+2*tau,2)}, v15 offset:{9216*u+(16*(tau>>1)+2*(tau&1))*288+64*p}' for p in range(4) for tau in range(4)]
            if u & 1: l += [f'ds_read_b64_tr_b16 {r(cwo(8,u>>1)+2*tau,2)}, v12 offset:{9216*(u-1)+(16*(tau>>1)+2*(tau&1))*288+256}' for tau in range(4)]
            return l
        units.append((d, rd_)); ranges.append((9216 * u, 9216))
    for i, (m, c) in enumerate(resident()[1]):
        def rv(o, m=m, i=i):
            b = 36 + 16 * (i & 1); pb = 36 + 16 * ((i + 1) & 1)
            l = [f'ds_read_b64_tr_b16 {v(b+8*ch+2*tau,2)}, {tra(m,ch)[0]} offset:{o+1024*tau+tra(m,ch)[1]}' for ch in range(2) for tau in range(4)]
            if i > 0: l += ['s_waitcnt lgkmcnt(8)'] + [f'ds_write_b128 v16, {v(pb+4*q,4)} offset:{o-4096+1024*q}' for q in range(4)]
            if i == 8: l += ['s_waitcnt lgkmcnt(4)'] + [f'ds_write_b128 v16, {v(b+4*q,4)} offset:{o+1024*q}' for q in range(4)]
            return l
        units.append((dqkv(SWK if m == 'k' else SWV, c), rv))
        ranges.append((i * 4096, 4096))
    dep_fix = True
    staged(A, units, 9, 4096, 's67', pre=cfg.chpre, ranges=ranges, hold={18: 19, 20: 21}, mid=(chain_mem0, chain_mem0b))

(vLM, vWV, vIDX, vQW, vQR, vKR, vSM, vOW, vKMS, vPS, vRS, vKP, vSI, vSV, vSC, vZ) = [f'v{64+i}' for i in range(16)]
def role_chain(A):
    A('L_chain:')
    if not enabled('chain'):
        ln0_hook(A, 0); A('s_endpgm'); return
    warm_sweep(A, 's_mov_b32 s63, 0', True, cfg.ch1wait)
    hold_back(A, 'c' in cfg.hold, F_CH, True)
    chain_init(A)
    validate(A)
    lane(A, 'v1')
    A(f'''
    v_and_b32 v2, 15, v1
    v_lshrrev_b32 v3, 4, v1
    v_and_b32 v8, 3, v1
    v_mov_b32 v6, {OOB}
    v_lshlrev_b32 v4, 4, v1
    v_add_u32 {vLM}, {L_MEM}, v4
    s_mul_i32 s63, {sW}, 36864
    v_add_u32 {vWV}, s63, v4
    s_lshl_b32 s63, {sW}, 10
    s_add_u32 s63, s63, {L_QK}
    s_sub_u32 s66, s63, {L_MEM}
    v_lshlrev_b32 v4, 2, v1
    v_add_u32 {vSM}, {L_SM}, v4
    s_lshl_b32 s67, {sW}, 8
    v_and_b32 v4, 2, v1
    v_cmp_eq_u32 vcc, 0, v4
    v_mov_b32 v5, 0x4444
    v_mov_b32 v7, 0xeeee
    v_cndmask_b32 {vIDX}, v7, v5, vcc
    v_lshlrev_b32 v4, 4, v2
    v_lshl_add_u32 v4, v3, 2, v4
    v_add_u32 {vQW}, s63, v4
    v_bfe_u32 v4, v1, 2, 2
    v_lshl_add_u32 v4, v3, 3, v4
    v_lshl_add_u32 v4, v4, 4, s63
    v_and_b32 v5, 1, v1
    v_lshl_add_u32 {vQR}, v5, 3, v4
    v_bfe_u32 v5, v1, 1, 1
    v_lshl_add_u32 {vKR}, v5, 3, v4
    v_lshrrev_b32 v4, 3, v2
    v_lshl_add_u32 v4, v4, 2, v8
    v_lshlrev_b32 v4, 4, v4
    v_lshl_add_u32 v4, v3, 7, v4
    s_lshl_b32 s64, {sW}, 9
    v_add_u32 v4, s64, v4
    v_and_b32 v5, 4, v1
    v_cmp_eq_u32 vcc, 0, v5
    s_add_u32 s68, s64, {2048 - 2*L_SM}
    s_nop 0
    v_cndmask_b32 {vKMS}, v6, v4, vcc
    s_lshr_b32 s63, {sW}, 1
    s_lshl_b32 s63, s63, 10
    s_and_b32 s64, {sW}, 1
    s_lshl_b32 s64, s64, 5
    s_add_u32 s63, s63, s64
    s_add_u32 s63, s63, {L_O}
    v_lshrrev_b32 v4, 1, v2
    v_lshlrev_b32 v4, 6, v4
    v_and_b32 v5, 1, v1
    v_lshl_add_u32 v4, v5, 4, v4
    v_lshl_add_u32 v4, v3, 8, v4
    v_add_u32 {vOW}, s63, v4
    v_lshrrev_b32 v4, 2, v2
    v_lshrrev_b32 v5, 5, v1
    v_lshl_add_u32 v4, v4, 1, v5
    v_and_b32 v7, 1, v3
    v_lshl_add_u32 v7, v7, 2, v8
    v_lshlrev_b32 v7, 4, v7
    v_lshl_add_u32 {vPS}, v4, 12, v7
    v_bfe_u32 v4, v1, 1, 2
    v_lshlrev_b32 v4, 5, v4
    v_and_b32 v7, 1, v1
    v_lshl_add_u32 v4, v7, 3, v4
    v_lshl_add_u32 v4, v5, 4, v4
    v_and_b32 v7, 1, v3
    v_lshl_add_u32 v4, v7, 2, v4
    v_and_b32 v7, 8, v1
    v_cmp_eq_u32 vcc, 0, v7
    v_bfe_u32 v9, v1, 2, 1
    v_lshl_add_u32 {vSI}, v9, 1, v8
    v_cndmask_b32 {vRS}, v6, v4, vcc
    v_mov_b32 v4, 0x3f80
    v_mov_b32 v5, 0x3f800000
    v_cndmask_b32 v4, v5, v4, vcc
    v_and_b32 v7, 2, v1
    v_cmp_eq_u32 vcc, 0, v7
    s_nop 1
    v_cndmask_b32 {vSV}, 0, v4, vcc
    ''')
    l3 = A.lab('Lw3')
    A(f'''
    s_lshl_b32 s63, {sL}, 5
    s_add_u32 s63, s63, {sT}
    s_lshl_b32 s63, s63, 7
    s_add_u32 s64, s63, {F_QKV}
    s_mov_b32 s54, s64
    s_add_u32 s55, s63, {F_CH}
    v_and_b32 v4, {1 if cfg.shq else 0}, v1
    v_lshl_add_u32 {vKP}, v4, 2, s64
    s_cmp_lg_u32 {sW}, 3
    s_cbranch_scc1 {l3}
    v_lshlrev_b32 v4, 8, v8
    v_add_u32 {vSI}, {L_SM}, v4
    s_add_u32 s64, s63, {F_CH}
    v_cmp_eq_u32 vcc, 0, v1
    v_mov_b32 v4, s64
    s_nop 0
    v_cndmask_b32 {vRS}, v6, v4, vcc
    {l3}:
    s_mul_i32 s71, {sL}, {64*32}
    s_add_u32 s71, s71, {sT}
    s_mul_i32 s72, s71, 4096
    s_add_u32 s72, s72, {KVM}
    s_mul_i32 s71, s71, 24576
    s_add_u32 s94, s71, {QKV + 8192}
    s_lshl_b32 s63, {sW}, 11
    s_add_u32 s71, s71, s63
    s_add_u32 s71, s71, {QKV + 8192 - L_MEM}
    s_add_u32 s70, s71, 8192
    s_mul_i32 s73, {sL}, {2*RSLOT}
    s_add_u32 s73, s73, {RING0}
    s_lshl_b32 s74, {sW}, 5
    s_add_u32 s74, s74, {sT}
    s_lshl_b32 s63, {sT}, 7
    s_add_u32 s63, s63, s73
    s_lshl_b32 s64, {sW}, 16
    s_add_u32 s85, s63, s64
    s_add_u32 s86, s85, 32768
    s_lshl_b32 s64, {sW}, 13
    s_add_u32 s87, s63, s64
    s_add_u32 s87, s87, {64*4096}
    s_lshl_b32 s83, s74, 12
    s_add_u32 s83, s83, s73
    s_sub_u32 s83, s83, {L_MEM}
    s_mov_b32 s82, {RSLOT}
    s_mul_i32 s75, {sL}, {3*9216}
    s_add_u32 s75, s75, {MEM0}
    s_lshl_b32 s63, s74, 7
    s_add_u32 s88, s75, s63
    s_add_u32 s89, s88, 9216
    s_add_u32 s90, s88, 18432
    s_mul_i32 s91, {sW}, 3072
    s_sub_u32 s91, s91, s63
    s_sub_u32 s91, s91, {L_MEM}
    s_mov_b32 s77, {f2u(128**-0.5*LOG2E):#x}
    s_mov_b32 s78, 0x00ff00ff
    s_mov_b32 s79, 0x00ff00ff
    s_mov_b32 s92, 0x0000ffff
    s_mov_b32 s93, 0x0000ffff
    s_mov_b32 s84, 1
    s_mov_b32 s4, 0x3f803f80
    s_mov_b32 s5, 0x3f803f80
    s_mov_b32 {sI}, 0
    ''')
    A(f's_cmp_lg_u32 {sSLOW}, 0\n s_cbranch_scc1 L_chs')
    chain_loop(A, 'L_chf', '')
    A('L_chs:')
    chain_loop(A, 'L_chs', ' sc1')

def chain_loop(A, name, loc):
    KX, AQ, AK, AR, BB, AV = 0, 8, 16, [24, 28], [32, 40, 48], 56
    sm = 'v_smfmac_f32_16x16x64_bf16'
    ACCS = [12, 13, 14, 15, 16, 17, 18, 19, 24, 25, 26, 27]
    NPS = 12
    def pst(k): return f's_memtime s[{28+2*k}:{29+2*k}]' if cfg.timing == True else ''
    def ps(k): A(pst(k))
    if cfg.timing:
        for k in range(NPS): A(f's_mov_b32 s{ACCS[k]}, 0\n s_mov_b32 s{28+2*k}, 0')
        A('s_mov_b32 s52, 0')
    REG, LDS = resident()
    seqA = []
    for c in range(9):
        seqA += [('k', 0, c), ('q', 0, c), ('k', 1, c), ('q', 1, c)] if c in cfg.KL else [('q', 0, c), ('q', 1, c), ('k', 0, c), ('k', 1, c)]
    seqV = [('v', T, c) for c in cfg.VORD for T in range(2)]
    fed = [x for x in seqA + seqV if (x[0], x[2]) in LDS]
    def brd(n):
        m, T, c = fed[n]
        return [f'ds_read_b128 {v(BB[n%3]+4*hb,4)}, {vWV} offset:{LDS.index((m,c))*4096+(2*T+hb)*1024} #b{n}' + ('x' if hb == 0 else '') for hb in range(2)]
    chunks = list(range(9)) + cfg.VORD
    assert cfg.VORD[:2] == [7, 8]
    NF = len(fed)
    xs = {16: BB[(NF - 3) % 3] + 4, 17: BB[(NF - 2) % 3] + 4}
    def aslot(i): return xs[i] if i in xs else AR[i & 1]
    def ard(i): return f'ds_read_b128 {v(aslot(i),4)}, {vLM} offset:{chunks[i]*1024} #a{i}'
    def mm(x, i):
        m, T, c = x
        acc = {'q': AQ, 'k': AK, 'v': AV}[m] + 4 * T
        pre = [f'@lw a{i}']; post = []
        if x in fed:
            n = fed.index(x); b = v(BB[n % 3], 8); pre.append(f'@lw b{n}')
            if n + 3 < len(fed): post = brd(n + 3)
        else: b = r(cwq(T, c) if m == 'q' else cwr(m, T, c), 8)
        return pre, f'{sm} {v(acc,4)}, {v(aslot(i),4)}, {b}, {vIDX}', post
    strip = lambda l: l.split('#')[0]
    def pre_reads():
        for n in range(3):
            for x in brd(n): A(strip(x))
    zero = [f'v_mov_b64 {v(i,2)}, 0' for i in list(range(8, 24, 2)) + list(range(56, 64, 2))]
    pre_reads()
    for x in zero: A(x)
    sel = f's_cmp_lg_u32 s76, 0\n s_cselect_b32 s80, s71, {OOB}\n s_cselect_b32 s81, s70, {OOB}'
    A(f'buffer_load_dword v0, {vKP}, {WS}, 0 offen sc1\n s_add_u32 s63, s83, s82')
    for so in ('s83', 's63'):
        for i in range(4): A(f'buffer_load_dwordx4 v[4:7], {vLM}, {WS}, {so} offen offset:{1024*i} sc1')
    for so in ('s88', 's89', 's90'): A(f's_sub_u32 s63, {so}, {L_SM}\n buffer_load_dword v4, {vSM}, {WS}, s63 offen sc1')
    A(f'''s_waitcnt vmcnt(11)
    v_cmp_eq_u32 vcc, 0, v0
    s_mov_b32 s69, {OOB}
    s_cmp_eq_u64 vcc, 0
    s_cselect_b32 s76, 1, 0
    {sel}''')
    A(f'{name}_top:')
    ps(11)
    A(f's_waitcnt lgkmcnt(0)\n s_barrier')
    if cfg.timing == 2: A('s_memrealtime s[96:97]')
    A(f'{name}_top2:')
    if cfg.timing == True:
        ls = A.lab('Lts')
        A(f's_memtime s[52:53]\n s_waitcnt lgkmcnt(0)\n s_cmp_lt_u32 {sI}, 8\n s_cbranch_scc1 {ls}')
        for k in range(NPS):
            A(f's_sub_u32 s63, s{30+2*k}, s{28+2*k}\n s_add_u32 s{ACCS[k]}, s{ACCS[k]}, s63')
        A(f'{ls}:')
    if cfg.timing != 2: stamp(A, vZ, sI)
    ps(0)
    VX = [20, 8]
    kld = [f'buffer_load_dwordx4 {v(KX+4*q,4)}, {vLM}, {WS}, s71 offen offset:{1024*q} sc1' for q in range(2)]
    vld = [f'buffer_load_dwordx4 {v(VX[q],4)}, {vLM}, {WS}, s70 offen offset:{1024*q} sc1' for q in range(2)]
    pk = lambda d, b: f'v_pk_add_f32 {v(d,2)}, {v(b,2)}, {v(b+2,2)}'
    ad = lambda b: [f'v_add_f32 {v(b)}, {v(b)}, {v(b+2)}', f'v_add_f32 {v(b+1)}, {v(b+1)}, {v(b+3)}']
    cv = lambda d, b: f'v_cvt_pk_bf16_f32 {v(d)}, {v(b)}, {v(b+1)}'
    L = [ard(0), ard(1), kld[0].replace('s71', 's80'), kld[1].replace('s71', 's80'), 's_cmp_eq_u32 s76, 0', f's_cbranch_scc1 {name}_m1', f'{name}_m1r:']
    extra = {cfg.tpos: [f'v_lshlrev_b32 {vSC}, 2, {vLM}', f's_sub_u32 s63, s81, {3*L_MEM}'],
             cfg.tpos + 1: ['s_mov_b32 exec_hi, 0', f'buffer_load_dword {vSC}, {vSC}, {WS}, s63 offen sc1', 's_mov_b32 exec_hi, -1'],
             cfg.midchk: ['s_cmp_eq_u32 s76, 0', f's_cbranch_scc1 {name}_m2', f'{name}_m2r:'],
             34: [f's_cmp_eq_u32 {sI}, {NSEG-1}']}
    pend = []
    for j, x in enumerate(seqA):
        i = j // 4
        pre, m_, post = mm(x, i)
        L += pre + [m_]
        pend += post
        if j % 4 == 3 and i + 2 < 9: pend.append(ard(i + 2))
        if pend: L.append(pend.pop(0))
        if len(pend) > 1: L.append(pend.pop(0))
        L += extra.get(j, [])
    L += pend; pend = []
    L.append(pst(1))
    vq = list(enumerate(seqV))
    def vrun(n, fill=()):
        o = []; fill = list(fill)
        for _ in range(n):
            j, x = vq.pop(0); i = 9 + j // 2
            pre, m_, post = mm(x, i)
            o += pre + [m_] + post
            if j % 2 == 1 and i + 2 < 16: o.append(ard(i + 2))
            if x == fed[NF - 3]: o.append(ard(16))
            if x == fed[NF - 2]: o.append(ard(17))
            if fill: o += fill.pop(0)
        return o
    g = cfg.vgaps
    L += vrun(g[0], [['s_nop 0'], ad(AQ)])
    L += ad(AQ + 4) + [cv(10, AQ), cv(11, AQ + 4), f'ds_write2_b32 {vQW}, v10, v11 offset0:0 offset1:64', pk(AK, AK), pk(AK + 4, AK + 4),
          f'ds_read_b64_tr_b16 v[8:9], {vQR}', cv(18, AK), cv(19, AK + 4), f'ds_write2_b32 {vQW}, v18, v19 offset0:128 offset1:192',
          f'ds_read_b64_tr_b16 v[10:11], {vQR} offset:64 #q', f'ds_read_b64_tr_b16 v[12:13], {vKR} offset:512', f'ds_read_b64_tr_b16 v[14:15], {vKR} offset:576 #k']
    state = Sched(['\n'.join(L)]).emit(A)
    A(f's_cbranch_scc1 {name}_late')
    vsave = list(vq)
    smf = [f'{M16} v[16:19], v[0:3], v[8:11], 0', f'{M16} v[20:23], v[4:7], v[8:11], 0', f'{M16} v[0:3], v[12:15], v[8:11], 0']
    kmst = f'buffer_store_dwordx4 v[12:15], {vKMS}, {WS}, s72 offen sc1'
    def smid(withv, st):
        run = (lambda n, f=(): vrun(n, f)) if withv else (lambda n, f=(): [y for x in f for y in x])
        L = run(g[2], [[f'v_add_u32 v4, s66, {vLM}'], [f'v_add_u32 v5, s67, {vSM}']])
        L += [f's_nop {cfg.snop if withv else 5}'] + [f'v_cndmask_b32 v{16+q}, v{20+q}, v{16+q}, vcc' for q in range(4)]
        L += ['ds_write_b128 v4, v[16:19]', 'v_cndmask_b32 v0, v1, v0, vcc', 'v_cndmask_b32 v2, v3, v2, vcc', 'v_cndmask_b32 v0, v2, v0, s[92:93]', 'ds_write_b32 v5, v0 #sw']
        L += run(g[3], [[vld[0]], [vld[1]]])
        L += ['@lw sw', 's_barrier', pst(4)]
        XR = [0, 4, 40, 16]
        L += [f'ds_read_b128 {v(XR[w],4)}, {vLM} offset:{L_QK-L_MEM+1024*w} #s{w}' for w in range(4)]
        L += [f'ds_read2st64_b32 v[32:33], {vSM} offset0:0 offset1:1', f'ds_read2st64_b32 v[34:35], {vSM} offset0:2 offset1:3 #st']
        L += ([kmst] if cfg.kmpos == 0 else []) + run(g[4])
        L += ['@lw st']
        Sched(['\n'.join(L)]).emit(A, st)
    assert seqV.index(fed[-1]) < sum(g[:4]) and NF % 3 == 0
    L = vrun(g[1], [['s_cmp_lg_u32 s76, 1']]) + [f's_cbranch_scc1 {name}_m3', f'{name}_m3r:', 's_mov_b64 vcc, s[78:79]', pst(2), 's_waitcnt vmcnt(1)', '@lw q', pst(3), smf[0], smf[1], '@lw k', smf[2]]
    st2 = Sched(['\n'.join(L)]).emit(A, state)
    smid(True, st2)
    assert not vq
    vmst = [pk(36, AV), pk(38, AV + 4), cv(40, 36), cv(41, 38), f'v_lshl_add_u32 v42, {vSM}, 1, s68', f'buffer_store_dwordx2 v[40:41], v42, {WS}, s72 offen sc1']
    A(f'''{name}_join:
    v_pk_add_f32 v[0:1], v[0:1], v[4:5]
    v_pk_add_f32 v[2:3], v[2:3], v[6:7]
    v_pk_add_f32 v[16:17], v[40:41], v[16:17]
    v_pk_add_f32 v[18:19], v[42:43], v[18:19]
    v_pk_add_f32 v[32:33], v[32:33], v[34:35]
    v_pk_add_f32 v[0:1], v[0:1], v[16:17]
    v_pk_add_f32 v[2:3], v[2:3], v[18:19]
    v_add_f32 v4, v32, v33
    v_max3_f32 v24, v0, v1, v2
    v_max3_f32 v24, v24, v3, v4
    {vmst[0]}
    {vmst[1]}
    v_max_f32_dpp v24, v24, v24 row_ror:8 row_mask:0xf bank_mask:0xf
    v_mov_b32 v25, v24
    {vmst[2]}
    {vmst[3]}
    v_permlane16_swap_b32 v24, v25
    v_max_f32 v24, v24, v25
    v_mov_b32 v25, v24
    v_mov_b64 v[44:45], s[96:97]
    v_mov_b64 v[46:47], s[96:97]
    v_permlane32_swap_b32 v24, v25
    v_max_f32 v24, v24, v25
    v_mul_f32 v24, s77, v24'''.replace('s[96:97]', 's[4:5]'))
    X = [4, 0, 1, 2, 3]
    for x in X: A(f'v_fma_f32 v{x}, v{x}, s77, -v24')
    for x in X: A(f'v_exp_f32 v{x}, v{x}')
    kq = cfg.kmpos
    A(f'''v_cvt_pk_bf16_f32 v36, v0, v1
    v_cvt_pk_bf16_f32 v37, v2, v3
    v_mov_b32_dpp v5, v4 row_ror:8 row_mask:0xf bank_mask:0xf
    v_mov_b32_dpp v38, v36 row_ror:8 row_mask:0xf bank_mask:0xf
    v_mov_b32_dpp v39, v37 row_ror:8 row_mask:0xf bank_mask:0xf
    v_cvt_pk_bf16_f32 v16, v4, v5
    {pst(5)}
    s_waitcnt vmcnt({1 if kq == 0 else 0})
    {pst(6)}
    {M16} v[32:35], v[44:47], v[36:39], 0
    v_mov_b32 v17, 0
    {M16} v[24:27], {v(VX[0],4)}, v[36:39], 0
    v_mov_b32 v18, 0
    {M16} v[28:31], {v(VX[1],4)}, v[36:39], 0
    v_mov_b32 v19, v16
    {vmst[4]}
    v_mfma_f32_16x16x16_bf16 v[32:35], v[44:45], v[16:17], v[32:35]
    v_and_b32 v43, 0xffffffdf, {vLM}
    v_mfma_f32_16x16x16_bf16 v[24:27], v[40:41], v[16:17], v[24:27]
    v_mov_b64 v[48:49], 0
    v_mfma_f32_16x16x16_bf16 v[28:31], v[40:41], v[18:19], v[28:31]
    {vmst[5]}
    v_mov_b64 v[50:51], 0
    v_mov_b64 v[52:53], 0
    v_mov_b64 v[54:55], 0
    v_rcp_f32 v32, v32
    v_mov_b64 v[56:57], 0
    v_pk_mul_f32 v[24:25], v[24:25], v[32:33] op_sel_hi:[1,0]
    v_pk_mul_f32 v[26:27], v[26:27], v[32:33] op_sel_hi:[1,0]
    v_pk_mul_f32 v[28:29], v[28:29], v[32:33] op_sel_hi:[1,0]
    v_pk_mul_f32 v[30:31], v[30:31], v[32:33] op_sel_hi:[1,0]''')
    for d in range(4): A(f'v_cvt_pk_bf16_f32 v{36+d}, v{24+2*d}, v{25+2*d}')
    rest = lines(f'''v_mov_b64 v[58:59], 0
    v_mov_b64 v[60:61], 0
    v_mov_b64 v[62:63], 0
    v_mov_b64 v[44:45], 0
    v_mov_b64 v[46:47], 0
    v_and_b32 v34, 0x7c, {vSM}
    v_bfe_u32 v35, {vSM}, 7, 1
    v_lshl_add_u32 v34, v35, 12, v34''')
    A(f's_mov_b64 exec, s[78:79]\n ds_write_b128 {vOW}, v[36:39]\n s_mov_b64 exec, -1')
    if kq == 1: A(kmst)
    else:
        for x in rest: A(x)
    A('s_waitcnt lgkmcnt(0)\n s_barrier')
    if cfg.timing == 2: A(f's_mov_b32 m0, {sI}\n s_nop 0\n v_writelane_b32 {vZ}, s96, m0')
    for u in range(4): A(f'ds_read_b128 {v(4*u,4)}, v43 offset:{L_O-L_MEM+1024*(u>>1)+32*(u&1)}')
    for c2 in range(2): A(f'ds_read_b128 {v(16+4*c2,4)}, {vLM} offset:{L_O-L_MEM+1024*c2}')
    if kq == 1:
        for x in rest: A(x)
    for x in [f's_add_u32 s71, s71, {32*24576}', f's_add_u32 s70, s70, {32*24576}', f's_add_u32 s72, s72, {32*4096}', f's_add_u32 {sI}, {sI}, 1',
              's_add_u32 s95, s89, s91', f's_mov_b32 {sSPIN}, 0', f's_cmp_eq_u32 {sW}, 3']: A(x)
    ps(7)
    pm = lambda p, u: f'{sm} {v(48+4*p,4)}, {v(4*u,4)}, {r(cwo(2*p+(u>>1),u&1),8)}, {vIDX}'
    mains = []
    for u in range(4):
        mains += [f's_waitcnt lgkmcnt({5-u})\n' + pm(0, u), pm(1, u)]
    t8 = [f's_waitcnt lgkmcnt(0)\n {sm} v[44:47], v[16:19], {r(cwo(8,0),8)}, {vIDX}', f'{sm} v[44:47], v[20:23], {r(cwo(8,1),8)}, {vIDX}']
    p23 = [pm(2, u) for u in range(4)] + [pm(3, u) for u in range(4)]
    st0 = f'buffer_store_dwordx4 v[24:27], {vPS}, {WS}, s85 offen{loc}'
    st1 = f'buffer_store_dwordx4 v[28:31], {vPS}, {WS}, s86 offen{loc}'
    st8 = f'buffer_store_dword v33, v34, {WS}, s87 offen{loc}'
    if cfg.woord == 0:
        S = Sched(mains + t8 + p23)
        for q in (7, 8, 9, 10): S.put(q, 's_nop 0')
        S.put(11, cv(24, 48) + '\n' + cv(25, 50)); S.put(12, cv(26, 52) + '\n' + cv(27, 54))
        S.put(13, f'v_and_or_b32 v24, v24, -2, s84\n {st0}')
        S.put(14, '\n'.join(ad(44))); S.put(15, cv(33, 44)); S.put(16, 'v_and_or_b32 v33, v33, -2, s84')
        S.put(17, st8)
        S.emit(A)
        A(f'{cv(28, 56)}\n {cv(29, 58)}\n v_and_or_b32 v28, v28, -2, s84\n s_nop 3\n {cv(30, 60)}\n {cv(31, 62)}\n {st1}')
    elif cfg.woord == 1:
        S = Sched(mains + p23 + t8)
        for q in (7, 8, 9, 10): S.put(q, 's_nop 0')
        S.put(11, cv(24, 48) + '\n' + cv(25, 50)); S.put(12, cv(26, 52) + '\n' + cv(27, 54))
        S.put(13, f'v_and_or_b32 v24, v24, -2, s84\n {st0}')
        S.put(15, cv(28, 56)); S.put(16, cv(29, 58)); S.put(17, 'v_and_or_b32 v28, v28, -2, s84')
        S.emit(A)
        A(f's_nop 1\n {cv(30, 60)}\n {cv(31, 62)}\n {st1}\n s_nop 1\n {pk(44, 44)}\n {cv(33, 44)}\n v_and_or_b32 v33, v33, -2, s84\n {st8}')
    else:
        S = Sched(mains + t8 + p23)
        for q, x in zip(range(7, 18), ['s_nop 0'] * 4 + [cv(24, 48), cv(25, 50), cv(26, 52), cv(27, 54), 'v_and_or_b32 v24, v24, -2, s84'] + ad(44)): S.put(q, x)
        S.emit(A)
        A(f'{st0}\n {cv(28, 56)}\n {cv(29, 58)}\n v_and_or_b32 v28, v28, -2, s84\n {cv(33, 44)}\n v_and_or_b32 v33, v33, -2, s84\n s_nop 0\n {cv(30, 60)}\n {cv(31, 62)}\n {st1}\n {st8}')
    ps(8); ps(9); ps(10)
    rot = lines(f'''s_mov_b32 s63, s88
    s_mov_b32 s88, s89
    s_mov_b32 s89, s90
    s_mov_b32 s90, s63
    s_add_u32 s85, s85, s82
    s_add_u32 s86, s86, s82
    s_add_u32 s87, s87, s82
    s_add_u32 s83, s83, s82
    s_sub_u32 s82, 0, s82
    s_bfe_u32 s84, {sI}, 0x10001
    s_xor_b32 s84, s84, 1''')
    pre_reads()
    A(f'''s_load_dwordx2 s[64:65], s[8:9], s54 glc
    s_cbranch_scc1 {name}_w3
    s_cmp_ge_u32 s74, 72
    s_cbranch_scc1 {name}_nred''')
    rdy = f's_waitcnt lgkmcnt(0)\n {"s_min_u32 s64, s64, s65" if cfg.shq else ""}\n s_cmp_gt_u32 s64, {sI}\n s_cselect_b32 s76, 1, 0\n' + sel
    SEL = 60
    for d in range(4): A(f'v_cmp_eq_u32 vcc, {d}, {vSI}\n s_nop 1\n v_cndmask_b32 {v(SEL+d)}, 0, {vSV}, vcc')
    if cfg.w1: A(f's_waitcnt vmcnt({cfg.w1 - 1})')
    for i in range(cfg.d1): A('s_nop 7')
    ps(9)
    GS = [[0, 4, 8, 12], [16, 20, 24, 28]]
    def gissue(k):
        for i in range(4): A(f'buffer_load_dwordx4 {v(GS[k][i],4)}, {vLM}, {WS}, s83 offen offset:{1024*i} sc1')
    def gproc(k):
        G = GS[k]
        A(f'''s_waitcnt vmcnt(6)
        {M16} v[56:59], {v(SEL,4)}, {v(G[0],4)}, 0
        v_xor_b32 {vSC}, s84, v{G[0]}
        {M16} v[56:59], {v(SEL,4)}, {v(G[1],4)}, v[56:59]
        v_bitop3_b32 {vSC}, {vSC}, v{G[1]}, s84 bitop3:0xf6
        s_waitcnt vmcnt(5)
        {M16} v[56:59], {v(SEL,4)}, {v(G[2],4)}, v[56:59]
        v_bitop3_b32 {vSC}, {vSC}, v{G[2]}, s84 bitop3:0xf6
        s_waitcnt vmcnt(4)
        {M16} v[56:59], {v(SEL,4)}, {v(G[3],4)}, v[56:59]
        v_bitop3_b32 {vSC}, {vSC}, v{G[3]}, s84 bitop3:0xf6
        v_and_b32 {vSC}, 1, {vSC}
        v_cmp_ne_u32 vcc, 0, {vSC}
        s_add_u32 {sSPIN}, {sSPIN}, 1
        v_mov_b32 {vSC}, -1
        s_nop 2
        v_add_f32_dpp v56, v56, v56 row_ror:8 row_mask:0xf bank_mask:0xf
        v_add_f32_dpp v57, v57, v57 row_ror:8 row_mask:0xf bank_mask:0xf
        v_cvt_pk_bf16_f32 v58, v56, v57
        v_min_u32 v58, -2, v58
        s_cbranch_vccz {name}_gok
        {'s_addk_i32 s12, 1' if cfg.timing == 6 else ''}''')
    gissue(0)
    for i in range(cfg.d2): A('s_nop 7')
    A(f'{name}_g:')
    gissue(1); gproc(0); gissue(0); gproc(1)
    A(f'''s_cmp_lt_u32 {sSPIN}, {cfg.spin_limit}
    s_cbranch_scc1 {name}_g
    s_mov_b32 s63, 41
    s_branch L_abort
    {name}_gok:
    buffer_store_dword v58, {vRS}, {WS}, s89 offen{loc}
    buffer_store_dword {vSC}, {vRS}, {WS}, s88 offen{loc}''')
    ps(10)
    lp = A.lab('Lp')
    A(f'{name}_poll:\n s_barrier')
    for x in rot: A(x)
    def pissue():
        for q in range(3): A(f'buffer_load_dwordx4 {vLM}, {WS}, s95 offen offset:{1024*q} sc1 lds')
    A(f'''s_mul_i32 s63, {sW}, 3072
    s_add_u32 m0, s63, {L_MEM}
    s_waitcnt vmcnt({cfg.w3})
    v_add_u32 {vSC}, s63, {vLM}''')
    for i in range(cfg.d3): A('s_nop 7')
    pissue()
    for x in zero: A(x)
    A(rdy)
    for i in range(cfg.d4): A('s_nop 7')
    A(f'{lp}:')
    pissue()
    A(f'''s_waitcnt vmcnt(3)
    ds_read_b128 v[24:27], {vSC}
    ds_read_b128 v[28:31], {vSC} offset:1024
    ds_read_b128 v[4:7], {vSC} offset:2048
    s_add_u32 {sSPIN}, {sSPIN}, 1
    s_waitcnt lgkmcnt(1)
    v_max3_u32 v0, v24, v25, v26
    v_max3_u32 v1, v27, v28, v29
    v_max3_u32 v0, v0, v30, v31
    s_waitcnt lgkmcnt(0)
    v_max3_u32 v1, v1, v4, v5
    v_max3_u32 v0, v0, v6, v7
    v_max_u32 v0, v0, v1
    v_cmp_eq_u32 vcc, -1, v0
    s_cbranch_vccz {name}_top
    {'s_add_u32 s13, s13, 1' if cfg.timing == 6 else ''}
    s_cmp_lt_u32 {sSPIN}, {cfg.spin_limit}
    s_cbranch_scc1 {lp}
    s_mov_b32 s63, 42
    s_branch L_abort
    {name}_nred:
    s_waitcnt vmcnt(3)
    s_branch {name}_poll
    {name}_w3:
    {rdy}
    s_mov_b32 s69, 1
    s_waitcnt vmcnt(3)
    s_barrier
    s_atomic_add s69, s[8:9], s55''')
    for x in zero + rot: A(x)
    A(f's_barrier\n s_branch {name}_top2')
    touch = f'v_lshlrev_b32 {vSC}, 2, {vLM}\n s_sub_u32 s63, s70, {3*L_MEM}\n s_mov_b32 exec_hi, 0\n buffer_load_dword {vSC}, {vSC}, {WS}, s63 offen sc1\n s_mov_b32 exec_hi, -1'
    A(f'''{name}_m1:
    buffer_load_dword v0, {vKP}, {WS}, 0 offen sc1
    s_branch {name}_m1r
    {name}_m2:
    s_waitcnt vmcnt(1)
    v_cmp_ge_u32 vcc, {sI}, v0
    s_cbranch_vccnz {name}_m2r
    {kld[0]}
    {kld[1]}
    {touch}
    s_mov_b32 s76, 2
    s_branch {name}_m2r
    {name}_m3:
    s_cmp_eq_u32 s76, 2
    s_cbranch_scc1 {name}_m4
    s_add_u32 s64, {sI}, 1''')
    spin(A, 'v0', vKP, 's64', 40)
    A(f'''{kld[0]}
    {kld[1]}
    {touch}
    {name}_m4:
    s_waitcnt vmcnt(1)
    s_branch {name}_m3r''')
    A(f'{name}_late:')
    vq[:] = vsave
    Sched(['\n'.join(vrun(len(vq)) + ['@lw k', kmst, 's_nop 6'] + vmst)]).emit(A, state)
    A(f'''s_waitcnt vmcnt(0) lgkmcnt(0)
    s_barrier
    s_cmp_lg_u32 {sW}, 3
    s_cbranch_scc1 {name}_fin
    s_mov_b32 s69, 1
    s_atomic_add s69, s[8:9], s55
    s_waitcnt lgkmcnt(0)
    {name}_fin:''')
    if cfg.timing:
        for k in range(NPS): A(f'v_writelane_b32 v10, s{ACCS[k]}, {k}')
    dump(A, [vZ, 'v10'])
    A('s_endpgm')

cfg.x_nospin = cfg.x_nopf = cfg.x_latereset = False
cfg.x_drop = []; cfg.nt = False; cfg.x_nost = 0; cfg.x_same = False; cfg.x_nopf = True; cfg.attld = 'sc1'; cfg.attst = 'sc1'; cfg.shq = True; cfg.shu = True; cfg.lowlate = ''; cfg.wts = (0.7, 2.0, 1.3, 1.5, 1.0, 0.6, 1.0); cfg.cap = 2.0; cfg.rgring = (4, 4); cfg.rgra = 3; cfg.rgdma = (25, 4); cfg.upsig = (False, 38, 3, 44, None); cfg.soft = ''; cfg.softq = (12, 6, 2); cfg.qalt = 8; cfg.ktouch = False; cfg.tpos = 8; cfg.kmpos = 0; cfg.woord = 1; cfg.midchk = 15; cfg.flagpos = 23; cfg.qplan = None; cfg.uplan = None; cfg.chpre = (2, 2); cfg.hold = ''; cfg.rgpoll = True; cfg.dq = (8, 8, 6, 5, 5); cfg.rp0 = 0; cfg.rp1 = 5
cfg.d1 = 0; cfg.d2 = 0; cfg.d3 = 0; cfg.delay1 = True; cfg.ch1wait = False; cfg.pre0 = 0; cfg.pre1 = 1; cfg.vtouch = True; cfg.lateflag = True; cfg.w1 = 1; cfg.w3 = 2; cfg.w1 = 0; cfg.d1 = 5; cfg.d2 = 3; cfg.d3 = 2; cfg.d4 = 3
cfg.KL = [0, 1, 3, 4, 6, 7]; cfg.VL = [0, 1, 2]; cfg.VORD = [7, 8, 0, 3, 1, 2, 4, 5, 6]; cfg.vgaps = [2, 4, 2, 4, 6]; cfg.snop = 1
def build():
    A = Asm()
    kernel_begin(A, KNAME)
    prologue(A)
    role_chain(A)
    role_qkv(A)
    role_up(A)
    role_rg(A, 'L_wo', 'wo', 16, SWO, OB, 262144, PW, F_WO, 50)
    role_rg(A, 'L_dn', 'dn', 18, SW2, HB, 294912, PD, F_DN, 51)
    role_att(A)
    role_red(A)
    A('s_endpgm\n L_code_end:')
    return build_file([(KNAME, 256, 256, LDS_BYTES)], A.text(), [descriptor(KNAME)])

if __name__ == '__main__':
    out = sys.argv[1] if len(sys.argv) > 1 else 'interleave_layers__memory_aug_recurrent_mem_tr__glu_gated_swiglu__prompt.s'
    open(out, 'w').write(build())
```

```python
import sys
from asm import *
from layout import *

KNAME = 'interleave_layers__memory_aug_recurrent_mem_tr__glu_gated_swiglu__prompt_kernel'
WS, SX, SOUT, SDBG, SMEM0, SWQ, SWK, SWV, SWO, SW1, SW3, SW2 = [f's[{8+4*i}:{11+4*i}]' for i in range(12)]
sX, sT, sW, sSLOW, sL, sI, sSPIN = 's56', 's57', 's58', 's59', 's60', 's61', 's62'
OOB = 0x7ffffff0
LOG2E = 1.4426950408889634

class Cfg:
    roles = None
    skip_init = False
    spin_limit = 400000
    lam = 14
    timing = False
    force_slow = False
    force_rank = False
    codepf = True
    sat = 'ar'
    bigk = 'wd'
    bigsh = True
    rplan = (12, 48)
    bigstep = 5
    bigpoll = None
    xmap = 0x73415260
cfg = Cfg()

def f2u(x):
    import struct
    return struct.unpack('<I', struct.pack('<f', x))[0]

def enabled(n):
    return cfg.roles is None or n in cfg.roles

def pollops(vdst, vaddr):
    if isinstance(vdst, tuple):
        n = vdst[0]
        fix = f'v_min_u32 v{n}, v{n}, v{n+1}\n v_lshrrev_b32 v{n+1}, 6, v{n}\n v_or_b32 v{n+1}, v{n+1}, {vdst[1]}\n v_add3_u32 v{n}, v{n}, v{n+1}, -1\n v_max_i32 v{n}, 0, v{n}'
        return f'buffer_load_dwordx2 v[{n}:{n+1}], {vaddr}, {WS}, 0 offen sc1', fix, f'v{n}'
    return f'buffer_load_dword {vdst}, {vaddr}, {WS}, 0 offen sc1', '', vdst

def spin(A, vdst, vaddr, starget, code):
    l = A.lab('Lspin'); d = A.lab('Lspind')
    ld, fix, vdst = pollops(vdst, vaddr)
    A(f'''
    s_mov_b32 {sSPIN}, 0
    {l}:
    {ld}
    s_waitcnt vmcnt(0)
    {fix}
    v_cmp_gt_u32 vcc, {starget}, {vdst}
    s_cbranch_vccz {d}
    s_add_u32 {sSPIN}, {sSPIN}, 1
    s_cmp_lt_u32 {sSPIN}, {cfg.spin_limit}
    s_cbranch_scc1 {l}
    s_mov_b32 s63, {code}
    s_branch L_abort
    {d}:
    ''')

def validate(A, early=False):
    l = A.lab('Lval'); d = A.lab('Lvald'); ok = A.lab('Lvalok')
    A(f'''
    s_cmp_eq_u32 s7, 1
    s_cbranch_scc1 {ok}
    v_mbcnt_lo_u32_b32 v1, -1, 0
    v_mbcnt_hi_u32_b32 v1, -1, v1
    v_lshlrev_b32 v1, 2, v1
    s_mov_b32 {sSPIN}, 0
    s_mov_b32 s63, 0x80808080
    {'s_cmp_lg_u32 %s, 0' % sW if early else ''}
    {'s_cbranch_scc1 ' + d if early else ''}
    {l}:
    buffer_load_dword v2, v1, {SDBG}, 0 offen sc1
    s_waitcnt vmcnt(0)
    v_and_b32 v3, s63, v2
    v_cmp_ne_u32 vcc, s63, v3
    s_cbranch_vccz {d}
    s_add_u32 {sSPIN}, {sSPIN}, 1
    s_cmp_lt_u32 {sSPIN}, {cfg.spin_limit}
    s_cbranch_scc1 {l}
    {d}:''')
    if early: A(f'''s_barrier
    buffer_load_dword v2, v1, {SDBG}, 0 offen sc1
    s_waitcnt vmcnt(0)
    v_and_b32 v3, s63, v2
    v_cmp_ne_u32 vcc, s63, v3''')
    A(f'''s_mov_b32 s63, 1
    s_cbranch_vccnz L_abort
    v_lshlrev_b32 v3, v2, 1
    v_lshrrev_b32 v4, 8, v2
    v_lshl_or_b32 v3, 1, v4, v3
    v_lshrrev_b32 v4, 16, v2
    v_lshl_or_b32 v3, 1, v4, v3
    v_lshrrev_b32 v4, 24, v2
    v_lshl_or_b32 v3, 1, v4, v3
    s_nop 1
    v_or_b32_dpp v3, v3, v3 quad_perm:[1,0,3,2] row_mask:0xf bank_mask:0xf
    v_cmp_ne_u32 vcc, {0x1ff if (cfg.force_slow or cfg.force_rank) else 0xff}, v3
    s_cbranch_vccnz L_rerank
    s_mov_b32 s7, 1
    {ok}:
    ''')
    stamp_s(A, 's99')
    if cfg.timing: A('s_memtime s[96:97]\n s_waitcnt lgkmcnt(0)\n s_mov_b32 s101, s96')

def ln0_hook(A, younger, finish=True):
    l = A.lab('Lln')
    ACC = 52; T = 20
    def halfsum(x, t):
        for m in ('quad_perm:[1,0,3,2]', 'quad_perm:[2,3,0,1]', 'row_half_mirror', 'row_mirror'):
            A(f's_nop 1\n v_add_f32_dpp {x}, {x}, {x} {m} row_mask:0xf bank_mask:0xf')
        A(f'v_mov_b32 {t}, {x}\n s_nop 1\n v_permlane16_swap_b32 {x}, {t}\n v_add_f32 {x}, {x}, {t}')
    A(f's_cmp_lg_u32 s7, 0\n s_cbranch_scc1 {l}\n s_waitcnt vmcnt({min(63, younger + (0 if cfg.skip_init else 3))})')
    for d in range(12):
        A(f'v_lshlrev_b32 {v(ACC+2*d)}, 16, {v(40+d)}\n v_and_b32 {v(ACC+2*d+1)}, 0xffff0000, {v(40+d)}')
    A(f'v_pk_add_f32 {v(T,2)}, {v(ACC,2)}, {v(ACC+2,2)}')
    for d in range(2, 12): A(f'v_pk_add_f32 {v(T,2)}, {v(T,2)}, {v(ACC+2*d,2)}')
    A(f'v_add_f32 {v(T)}, {v(T)}, {v(T+1)}')
    halfsum(v(T), v(T+1))
    A(f'v_mul_f32 {v(T)}, v78, {v(T)}')
    for d in range(12): A(f'v_pk_add_f32 {v(ACC+2*d,2)}, {v(ACC+2*d,2)}, {v(T,2)} op_sel_hi:[1,0]')
    A(f'v_pk_mul_f32 {v(T+2,2)}, {v(ACC,2)}, {v(ACC,2)}')
    for d in range(1, 12): A(f'v_pk_fma_f32 {v(T+2,2)}, {v(ACC+2*d,2)}, {v(ACC+2*d,2)}, {v(T+2,2)}')
    A(f'v_add_f32 {v(T+2)}, {v(T+2)}, {v(T+3)}')
    halfsum(v(T+2), v(T+3))
    A(f'''v_mov_b32 {v(T+3)}, {f2u(1e-5):#x}
    v_fmac_f32 {v(T+3)}, {f2u(1.0/576):#x}, {v(T+2)}
    v_rsq_f32 {v(T+2)}, {v(T+3)}
    v_sub_f32 {v(T)}, 0, {v(T)}
    v_mul_f32 {v(T+1)}, {v(T+3)}, {v(T+2)}
    v_lshrrev_b32 v76, 2, v0
    v_and_b32 v78, 31, v0
    v_cmp_eq_u32 vcc, 0, v78
    v_mov_b32 v78, {OOB}
    s_lshl_b32 s63, s2, 6
    v_cndmask_b32 v76, v78, v76, vcc
    s_add_u32 s63, s63, {ST}
    buffer_store_dwordx2 {v(T,2)}, v76, {WS}, s63 offen sc1
    s_add_u32 s63, s3, {XNA}''')
    for d in range(12): A(f'v_pk_mul_f32 {v(ACC+2*d,2)}, {v(ACC+2*d,2)}, {v(T+2,2)} op_sel_hi:[1,0]')
    for d in range(12): A(f'v_cvt_pk_bf16_f32 {v(40+d)}, {v(ACC+2*d)}, {v(ACC+2*d+1)}')
    for j in range(3): A(f'buffer_store_dwordx4 {v(40+4*j,4)}, v77, {WS}, s63 offen offset:{384*j} sc1')
    A(f'{l}:')
    if finish:
        A('s_waitcnt vmcnt(0)'); arrive(A)

def arrive(A):
    l = A.lab('Lar')
    A(f'''s_cmp_lg_u32 s7, 0
    s_cbranch_scc1 {l}
    s_or_b32 s63, s6, 0x80
    v_mov_b32 v20, s63
    s_barrier
    buffer_store_byte v20, v79, {SDBG}, 0 offen sc1
    {l}:''')

def lane(A, dst):
    A(f'''v_mbcnt_lo_u32_b32 {dst}, -1, 0
    v_mbcnt_hi_u32_b32 {dst}, -1, {dst}''')

def stamp(A, vreg, sidx):
    if not cfg.timing or cfg.timing >= 3: return
    A(f'''s_memrealtime s[96:97]
    s_and_b32 m0, {sidx}, 63
    s_waitcnt lgkmcnt(0)
    v_writelane_b32 {vreg}, s96, m0''')

def stamp_s(A, sreg):
    if not cfg.timing: return
    A(f's_memrealtime s[96:97]\n s_waitcnt lgkmcnt(0)\n s_mov_b32 {sreg}, s96')

def dump(A, vregs):
    if not cfg.timing: return
    stamp_s(A, 's100')
    A(f'''s_lshl_b32 s63, {sX}, 5
    s_add_u32 s63, s63, {sT}
    s_lshl_b32 s63, s63, 2
    s_add_u32 s63, s63, {sW}
    s_lshl_b32 s63, s63, 11
    s_add_u32 s63, s63, {DBG}
    v_mbcnt_lo_u32_b32 v1, -1, 0
    v_mbcnt_hi_u32_b32 v1, -1, v1
    v_lshlrev_b32 v1, 2, v1
    v_mov_b32 v2, s98
    v_writelane_b32 v2, s99, 1
    v_writelane_b32 v2, s100, 2
    s_memtime s[96:97]
    s_waitcnt lgkmcnt(0)
    s_sub_u32 s101, s96, s101
    v_writelane_b32 v2, s101, 3
    buffer_store_dword v2, v1, {WS}, s63 offen''')
    for i, x in enumerate(vregs):
        A(f'buffer_store_dword {x}, v1, {WS}, s63 offen offset:{256*(i+1)}')
    A('s_waitcnt vmcnt(0)')

def interleave(A, mains, fills, start=0, every=1):
    fi = 0
    for i, m in enumerate(mains):
        A(m)
        if i >= start and (i - start) % every == 0 and fi < len(fills):
            A(fills[fi]); fi += 1
    assert fi == len(fills), (fi, len(fills))

def prologue(A):
    A(f'''
    s_cmp_ge_u32 s2, 256
    s_cbranch_scc1 L_end
    s_load_dwordx16 s[64:79], s[0:1], 0
    s_load_dwordx8 s[80:87], s[0:1], 64
    s_load_dwordx4 s[88:91], s[0:1], 96
    s_getreg_b32 {sX}, hwreg(HW_REG_XCC_ID)
    v_lshrrev_b32 v1, 6, v0
    s_and_b32 {sX}, {sX}, 15
    v_readfirstlane_b32 {sW}, v1
    s_mov_b32 {sSLOW}, 0
    s_mov_b32 s6, {sX}
    ''')
    if cfg.codepf:
        A('''s_getpc_b64 s[92:93]
        L_pc:
        s_lshr_b32 s63, s2, 3
        s_lshl_b32 s63, s63, 8
        v_add_u32 v2, s63, v0
        v_lshlrev_b32 v2, 5, v2
        v_min_u32 v2, L_code_end-L_pc-4, v2
        v_and_b32 v3, 3, v0
        v_cmp_eq_u32 vcc, 0, v3
        s_and_saveexec_b64 s[94:95], vcc
        global_load_dword v75, v2, s[92:93]
        s_mov_b64 exec, s[94:95]''')
    A('s_waitcnt lgkmcnt(0)')
    stamp_s(A, 's98')
    srds = [(8, 90, WS_BYTES), (12, 64, XB), (16, 86, XB), (20, 88, 256), (24, 66, 9216), (28, 68, 4718592),
            (32, 70, 4718592), (36, 72, 4718592), (40, 74, 4718592), (44, 80, 5308416), (48, 82, 5308416), (52, 84, 5308416)]
    for d, p, n in srds:
        A(f'''s_mov_b32 s{d}, s{p}
        s_mov_b32 s{d+1}, s{p+1}
        s_mov_b32 s{d+2}, {n}
        s_mov_b32 s{d+3}, 0x20000''')
    A(f'''
    v_and_b32 v1, 31, v0
    v_lshrrev_b32 v2, 5, v0
    v_mul_u32_u24 v3, 1152, v2
    v_lshl_add_u32 v76, v1, 4, v3
    s_and_b32 s63, s2, 1
    s_lshl_b32 s63, s63, 2
    s_add_u32 s63, s63, {sW}
    v_xor_b32 v4, s63, v1
    v_lshl_add_u32 v77, v4, 4, v3
    v_cmp_gt_u32 vcc, 24, v1
    v_mov_b32 v3, {OOB}
    v_mov_b32 v4, {f2u(-1.0/576):#x}
    v_cndmask_b32 v76, v3, v76, vcc
    v_cndmask_b32 v77, v3, v77, vcc
    v_cndmask_b32 v78, 0, v4, vcc
    s_mul_i32 s3, s2, 9216
    buffer_load_dwordx4 v[40:43], v76, {SX}, s3 offen
    buffer_load_dwordx4 v[44:47], v76, {SX}, s3 offen offset:384
    buffer_load_dwordx4 v[48:51], v76, {SX}, s3 offen offset:768
    ''')
    if not cfg.skip_init:
        A(f'''
        s_cmp_eq_u32 s2, 0
        s_cselect_b32 s63, {NSEG}, 0
        v_cmp_eq_u32 vcc, 0, v0
        v_mov_b32 v8, s63
        v_mov_b64 v[12:13], 0
        v_cndmask_b32 v4, 0, v8, vcc
        v_mov_b64 v[14:15], 0
        v_mov_b32 v5, v4
        v_mov_b32 v6, v4
        v_mov_b32 v7, v4
        v_mov_b32 v8, -1
        v_lshlrev_b32 v9, 4, v0
        v_lshlrev_b32 v10, 2, v0
        s_lshl_b32 s63, s2, 13
        s_add_u32 s66, s63, 4096
        s_lshl_b32 s67, s2, 10
        s_add_u32 s67, s67, {ONES0}
        buffer_store_dwordx4 v[4:7], v9, {WS}, s63 offen sc1
        buffer_store_dwordx4 v[12:15], v9, {WS}, s66 offen sc1
        buffer_store_dword v8, v10, {WS}, s67 offen sc1
        ''')
    A(f'''
    v_mov_b32 v2, s2
    v_cmp_eq_u32 vcc, 0, v0
    s_lshr_b32 {sT}, s2, 3
    s_mov_b32 s7, 0
    v_cndmask_b32 v79, v3, v2, vcc
    s_cmp_ge_u32 {sX}, 8
    s_cbranch_scc1 L_norole
    L_dispatch:
    s_lshl_b32 s63, {sX}, 2
    s_lshr_b32 {sX}, {cfg.xmap:#x}, s63
    s_and_b32 {sX}, {sX}, 7
    s_and_b32 {sL}, {sX}, 1
    s_lshr_b32 s63, {sX}, 1
    s_cmp_eq_u32 s63, 0
    s_cbranch_scc1 L_chain
    s_cmp_eq_u32 s63, 1
    s_cbranch_scc1 L_qkv
    s_cmp_eq_u32 s63, 2
    s_cbranch_scc1 L_j_rg
    s_cmp_lt_u32 {sT}, 24
    s_cbranch_scc1 L_up
    s_branch L_att
    L_j_rg:
    s_cmp_ge_u32 {sT}, 24
    s_cbranch_scc1 L_red
    s_cmp_eq_u32 {sL}, 0
    s_cbranch_scc1 L_wo
    s_branch L_dn
    L_norole:
    ''')
    ln0_hook(A, 0)
    validate(A, True)
    A(f'''
    s_mov_b32 s63, 2
    s_branch L_abort
    L_rerank:
    s_mov_b32 s7, 1
    s_mov_b32 s64, 0
    L_rr1:
    s_mov_b32 s65, 0
    s_mov_b32 s66, 0
    v_bfe_u32 v3, v2, 0, 7
    v_cmp_eq_u32 vcc, s64, v3
    v_add_u32 v4, 0, v1
    v_cmp_gt_u32 s[68:69], s2, v4
    s_bcnt1_i32_b64 s63, vcc
    s_add_u32 s65, s65, s63
    s_and_b64 s[68:69], s[68:69], vcc
    s_bcnt1_i32_b64 s63, s[68:69]
    s_add_u32 s66, s66, s63
    v_bfe_u32 v3, v2, 8, 7
    v_cmp_eq_u32 vcc, s64, v3
    v_add_u32 v4, 1, v1
    v_cmp_gt_u32 s[68:69], s2, v4
    s_bcnt1_i32_b64 s63, vcc
    s_add_u32 s65, s65, s63
    s_and_b64 s[68:69], s[68:69], vcc
    s_bcnt1_i32_b64 s63, s[68:69]
    s_add_u32 s66, s66, s63
    v_bfe_u32 v3, v2, 16, 7
    v_cmp_eq_u32 vcc, s64, v3
    v_add_u32 v4, 2, v1
    v_cmp_gt_u32 s[68:69], s2, v4
    s_bcnt1_i32_b64 s63, vcc
    s_add_u32 s65, s65, s63
    s_and_b64 s[68:69], s[68:69], vcc
    s_bcnt1_i32_b64 s63, s[68:69]
    s_add_u32 s66, s66, s63
    v_bfe_u32 v3, v2, 24, 7
    v_cmp_eq_u32 vcc, s64, v3
    v_add_u32 v4, 3, v1
    v_cmp_gt_u32 s[68:69], s2, v4
    s_bcnt1_i32_b64 s63, vcc
    s_add_u32 s65, s65, s63
    s_and_b64 s[68:69], s[68:69], vcc
    s_bcnt1_i32_b64 s63, s[68:69]
    s_add_u32 s66, s66, s63
    s_cmp_eq_u32 s64, s6
    s_cselect_b32 {sT}, s66, {sT}
    s_cmp_lg_u32 s65, {33 if cfg.force_slow else 32}
    s_cselect_b32 {sSLOW}, 1, {sSLOW}
    s_add_u32 s64, s64, 1
    s_cmp_lt_u32 s64, 8
    s_cbranch_scc1 L_rr1
    s_mov_b32 {sX}, s6
    s_cmp_eq_u32 {sSLOW}, 0
    s_cbranch_scc1 L_rr2
    s_lshr_b32 {sX}, s2, 5
    s_and_b32 {sT}, s2, 31
    L_rr2:
    s_waitcnt vmcnt(0) lgkmcnt(0)
    s_barrier
    s_branch L_dispatch
    L_abort:
    s_lshl_b32 s64, {sX}, 8
    s_or_b32 s63, s63, s64
    s_lshl_b32 s64, {sI}, 16
    s_or_b32 s63, s63, s64
    s_or_b32 s63, s63, 0x80000000
    s_mov_b64 exec, 1
    v_mov_b64 v[4:5], 0
    v_mov_b64 v[6:7], 0
    ds_write_b128 v4, v[4:7]
    ds_write_b32 v4, v4 offset:4096
    v_mov_b32 v1, s63
    s_lshl_b32 s64, {sX}, 2
    s_add_u32 s64, s64, {DBG - 4096}
    v_mov_b32 v2, s64
    buffer_store_dword v1, v2, {WS}, 0 offen
    s_waitcnt vmcnt(0)
    L_end:
    s_endpgm
    ''')

def magic(R):
    M = -(-512 // R)
    assert all((x * M >> 9) == x // R for x in range(70))
    return M
def ringidx(d, s_, R, M=None):
    return f's_mul_i32 {d}, {s_}, {M or magic(R)}\n s_lshr_b32 {d}, {d}, 9\n s_mul_i32 {d}, {d}, {R}\n s_sub_u32 {d}, {s_}, {d}'

def capture(A, fn):
    n0 = len(A.lines); fn(); ls = A.lines[n0:]; del A.lines[n0:]
    return ls

M16 = 'v_mfma_f32_16x16x32_bf16'
def red_stream(A, name, R, pbase, res_base, xn_base, fin, fout, code, fres, fcon):
    stof = lambda base_: ST + (base_ - XNA) // XB * 16384
    vPL, vG, vL, vNW, vCP, vSW, vSR, vMK = 'v1', 'v3', 'v4', 12, 'v17', 'v19', 'v20', 'v21'
    vPA, vP, vFA, vF, vCA = 'v22', 'v10', 'v6', 'v7', 'v9'
    SA, SB = 24, 28
    PL = 32; RS = 104; ACC = 116; PK = 136; T = 148; CO = 168; SH = 164; NX = 192
    IMN, IMR = 16384, 49152
    ln = xn_base is not None
    big = ('w' if name[3] == '1' else 'd') in cfg.bigk
    KH = 1 if big else 2; NL = 9 * KH
    lane(A, vPA)
    A(f'''v_min_u32 {vPA}, {11 if (big and not cfg.bigsh) else 23}, {vPA}
    v_lshlrev_b32 {vPA}, 2, {vPA}
    v_add_u32 {vPA}, {fin}, {vPA}
    s_lshl_b32 s63, s70, 2
    s_add_u32 s64, s63, {fres or 0}
    v_mov_b32 v162, s64
    s_add_u32 s64, s63, {fout or 0}
    v_mov_b32 {vFA}, s64
    s_mov_b32 s83, s64
    s_add_u32 s63, s63, {fcon}
    s_cmp_eq_u32 {sW}, 0
    s_cselect_b32 s63, s63, {OOB}''')
    lane(A, vCA)
    A(f'''v_cmp_eq_u32 vcc, 0, {vCA}
    v_mov_b32 v8, s63
    v_mov_b32 {vCA}, {OOB}
    v_cndmask_b32 {vCA}, {vCA}, v8, vcc
    s_mov_b32 s78, 0
    s_mov_b32 s77, 0''')
    poll = f'buffer_load_dword {vP}, {vPA}, {WS}, 0 offen sc1'
    def flag():
        if fout is None: return
        l = A.lab('Lf')
        A(f'''s_mov_b64 exec, 1
        ds_add_rtn_u32 {vF}, v11, v23
        s_waitcnt lgkmcnt(0)
        v_readfirstlane_b32 s63, {vF}
        v_mov_b32 {vF}, {sI}
        s_and_b32 s63, s63, 3
        s_cmp_lg_u32 s63, 3
        s_cbranch_scc1 {l}
        {f's_mov_b32 s85, {sI}{chr(10)} s_atomic_umax s85, s[8:9], s83' if 'r' in cfg.sat else f'buffer_store_dword {vF}, {vFA}, {WS}, 0 offen sc1'}
        {l}:
        s_mov_b64 exec, -1''')
    def need_res(add):
        if fres is None: return
        l = A.lab('Lr')
        A(f'''s_add_u32 s79, {sI}, {add + 1}
        s_min_u32 s79, s79, {NSEG}
        s_cmp_ge_u32 s78, s79
        s_cbranch_scc1 {l}''')
        spin(A, 'v161', 'v162', 's79', code + 100)
        A(f'v_readfirstlane_b32 s78, v161\n {l}:')
    def resid(add):
        A(f'''s_mul_i32 s67, {sI}, 36864
        s_add_u32 s67, s67, s72
        s_add_u32 s67, s67, {res_base + 36864 * add}
        s_mov_b32 m0, s75
        s_xor_b32 s75, s75, 0x10000
        buffer_load_dwordx4 {vCP}, {WS}, s67 offen sc1 lds
        buffer_load_dwordx4 {vCP}, {WS}, s67 offen offset:1024 sc1 lds
        s_mov_b64 exec, 0xffff
        buffer_load_dwordx4 {vCP}, {WS}, s67 offen offset:2048 sc1 lds
        s_mov_b64 exec, -1
        s_lshl_b32 s67, {sI}, 8
        s_add_u32 s67, s67, {stof(res_base) + 256 * add}
        buffer_load_dwordx2 {v(RS+10,2)}, {vL}, {WS}, s67 offen sc1''')
    def ldlist(sreg):
        pre = ringidx('s67', sreg, R) + f'\n s_mul_i32 s67, s67, {8*36864}\n s_add_u32 s67, s67, {pbase}\n s_add_u32 s68, s67, s74\n s_add_u32 s67, s67, s73'
        o = []
        for a_ in range(9):
            pw, pp = divmod(a_, 3)
            for kh in range(KH):
                o.append(f's_add_u32 s69, {"s67" if pp < 2 else "s68"}, {kh*4*36864 + pw*3072}\n'
                         f'buffer_load_dwordx4 {v(PL+4*(KH*a_+kh),4)}, {vPL}, {WS}, s69 offen offset:{512*pp if pp < 2 else 0} sc1')
        return pre, o
    def rowsum(xs):
        A('s_nop 1' if len(xs) == 1 else 's_nop 0')
        for x, t in xs: A(f'v_add_f32_dpp {x}, {x}, {x} row_ror:8 row_mask:0xf bank_mask:0xf')
        for sw in ('v_permlane16_swap_b32', 'v_permlane32_swap_b32'):
            for x, t in xs: A(f'v_mov_b32 {t}, {x}')
            A('s_nop 1' if len(xs) == 1 else 's_nop 0')
            for x, t in xs: A(f'{sw} {x}, {t}')
            for x, t in xs: A(f'v_add_f32 {x}, {x}, {t}')
    def prep():
        A(f'v_mov_b64 {v(SH,2)}, {v(RS+10,2)}')
        need_res(1); resid(1)
        for j in range(5): A(f'v_add_u32 {v(T+j)}, s77, {v(vNW+j)}')
        A('s_xor_b32 s77, s77, 0x10000')
        for j in range(5): A(f'ds_read_b64 {v(RS+2*j,2)}, {v(T+j)} offset:{IMR}')
        for d in range(10):
            if d % 2 == 0: A(f's_waitcnt lgkmcnt({4 - d // 2})')
            A(f'v_lshlrev_b32 {v(ACC+2*d)}, 16, {v(RS+d)}\n v_and_b32 {v(ACC+2*d+1)}, 0xffff0000, {v(RS+d)}')
            if ln: A(f'v_pk_mul_f32 {v(ACC+2*d,2)}, {v(ACC+2*d,2)}, {v(SH,2)} op_sel:[0,1] op_sel_hi:[1,1]')
            else: A(f'v_pk_fma_f32 {v(ACC+2*d,2)}, {v(ACC+2*d,2)}, {v(SH,2)}, {v(SH,2)} op_sel:[0,1,0] op_sel_hi:[1,1,0]')
        if ln: A(f'v_mov_b64 {v(T,2)}, 0\n v_mov_b64 {v(T+2,2)}, 0')
        else: A('s_nop 0')
    def stat(j):
        if not ln: return
        for h in (0, 2):
            x = v(ACC + 4 * j + h, 2)
            A(f'v_pk_add_f32 {v(T,2)}, {v(T,2)}, {x}\n v_pk_fma_f32 {v(T+2,2)}, {x}, {x}, {v(T+2,2)}')
    def local_store(vd, va, so):
        l1 = A.lab('Lc'); l2 = A.lab('Lc')
        A(f'''s_cmp_lg_u32 {sSLOW}, 0
        s_cbranch_scc1 {l1}
        buffer_store_dword {vd}, {va}, {WS}, {so} offen
        s_branch {l2}
        {l1}:
        buffer_store_dword {vd}, {va}, {WS}, {so} offen sc1
        {l2}:''')
    def st3(srd, va, soff):
        for q in range(3):
            A(f's_waitcnt lgkmcnt({2-q})')
            if q == 2: A('s_mov_b64 exec, 0xffff')
            A(f'buffer_store_dwordx4 {v(CO+4*q,4)}, {va}, {srd}, {soff} offen offset:{1024*q} sc1')
        A('s_mov_b64 exec, -1')
    def tk(k):
        if cfg.timing == 7: A(f's_memtime s[28:29]\n s_waitcnt lgkmcnt(0)\n s_sub_u32 s31, s28, s30\n s_mov_b32 s30, s28\n s_add_u32 s{40+k}, s{40+k}, s31\n s_add_u32 s{48+k}, s{48+k}, 1')
    if cfg.timing == 7:
        for k in range(40, 56): A(f's_mov_b32 s{k}, 0')
        A('s_mov_b32 s30, 0')
    A(f's_mov_b32 {sI}, 0\n s_mov_b32 s65, 1\n s_mov_b32 s66, 0')
    l = A.lab('Lpt')
    A(f'{l}:'); pre, lds_ = ldlist('s66'); A(pre)
    for x in lds_: A(x)
    A(f's_add_u32 s66, s66, 1\n s_cmp_lt_u32 s66, {R}\n s_cbranch_scc1 {l}\n s_mov_b32 s66, 0')
    need_res(0); resid(0)
    A('s_waitcnt vmcnt(0)\n s_barrier')
    prep()
    A(f'{name}_spin:')
    spin(A, vP, vPA, 's65', code)
    tk(7)
    A(f'{name}_ld:')
    stamp(A, 'v220', sI)
    pre, lds_ = ldlist('s65'); A(pre)
    LEAD = 6 if big else 8
    for x in lds_[:LEAD]: A(x)
    if fout is not None:
        l = A.lab('Lnf')
        A(f's_cmp_eq_u32 s66, 0\n s_cbranch_scc1 {l}\n s_waitcnt vmcnt({LEAD + 4})'); flag(); A(f'{l}:')
    tk(0)
    def mf(i):
        a_ = i // KH
        d = v(ACC + 4 * (a_ >> 1), 4)
        A(f'{M16} {d}, {v(SB if a_ & 1 else SA,4)}, {v(PL+4*i,4)}, {d}')
    for i in range(NL):
        if i + LEAD < NL: A(lds_[i + LEAD]); y = LEAD
        else: y = NL - 1 - i
        if i + LEAD == NL - 2: A(poll)
        if i + LEAD >= NL - 2 and i < NL - 1: y += 1
        A(f's_waitcnt vmcnt({y})')
        mf(i)
        if not big and i in (7, 11, 15): stat((i >> 2) - 1)
        if big and i in (5, 7): stat((i - 5) // 2)
    if big: A('s_nop 1'); stat(2)
    tk(1)
    A(f'''{name}_mid:
    s_add_u32 s66, {sI}, 2
    v_cmp_gt_u32 vcc, s66, {vP}
    s_cbranch_vccz {name}_ov''')
    A('s_nop 3')
    n0 = len(A.lines)
    A(f's_mul_i32 s67, {sI}, 36864\n s_add_u32 s67, s67, s72\n v_mov_b32 v8, s65')
    if ln:
        stat(3); stat(4)
        A(f'v_add_f32 {v(T)}, {v(T)}, {v(T+1)}\n v_add_f32 {v(T+1)}, {v(T+2)}, {v(T+3)}')
        rowsum([(v(T), v(T+2)), (v(T+1), v(T+3))])
        A(f'''ds_write_b64 {vSW}, {v(T,2)}
        s_add_u32 s68, s67, {xn_base}
        s_lshl_b32 s67, {sI}, 8
        s_add_u32 s67, s67, {stof(xn_base)}
        s_waitcnt lgkmcnt(0)
        s_barrier
        ds_read_b128 {v(T+4,4)}, {vSR}
        ds_read_b128 {v(T+8,4)}, {vSR} offset:16''')
        local_store('v8', vCA, '0')
        A(f'''s_waitcnt lgkmcnt(0)
        v_pk_add_f32 {v(T+2,2)}, {v(T+4,2)}, {v(T+6,2)}
        v_pk_add_f32 {v(T,2)}, {v(T+8,2)}, {v(T+10,2)}
        v_mov_b32 {v(T+7)}, {f2u(1e-5):#x}
        v_pk_add_f32 {v(T+2,2)}, {v(T+2,2)}, {v(T,2)}
        v_mul_f32 {v(T+2)}, {f2u(1.0/576):#x}, {v(T+2)}
        v_mul_f32 {v(T+3)}, {f2u(1.0/576):#x}, {v(T+3)}
        v_fma_f32 {v(T+3)}, -{v(T+2)}, {v(T+2)}, {v(T+3)}
        v_max_f32 {v(T+3)}, 0, {v(T+3)}
        v_add_f32 {v(T+7)}, {v(T+7)}, {v(T+3)}
        v_rsq_f32 {v(T+4)}, {v(T+7)}
        v_add_f32 {v(T+8)}, {v(T+2)}, {v(SH)}
        v_mul_f32 {v(T+6)}, -{v(T+2)}, {v(T+4)}
        v_mul_f32 {v(T+9)}, {v(T+7)}, {v(T+4)}''')
        for j in range(5):
            for h in (0, 2): A(f'v_pk_fma_f32 {v(ACC+4*j+h,2)}, {v(ACC+4*j+h,2)}, {v(T+4,2)}, {v(T+6,2)} op_sel_hi:[1,0,0]')
            for h in (0, 1): A(f'v_cvt_pk_bf16_f32 {v(ACC+4*j+h)}, {v(ACC+4*j+2*h)}, {v(ACC+4*j+2*h+1)}')
            A(f'ds_write_b64 {v(vNW+j)}, {v(ACC+4*j,2)} offset:{IMN}')
        A('s_waitcnt lgkmcnt(0)\n s_barrier')
        for q in range(3): A(f'ds_read_b128 {v(CO+4*q,4)}, {vCP} offset:{IMN+1024*q}')
        A(poll)
        A(f'buffer_store_dwordx2 {v(T+8,2)}, v5, {WS}, s67 offen sc1')
        st3(WS, vCP, 's68')
        n1, n2 = 4, 0
    else:
        A('s_barrier')
        for j in range(5):
            for h in (0, 1): A(f'v_cvt_pk_bf16_f32 {v(PK+2*j+h)}, {v(ACC+4*j+2*h)}, {v(ACC+4*j+2*h+1)}')
            A(f'ds_write_b64 {v(vNW+j)}, {v(PK+2*j,2)} offset:{IMN}')
        local_store('v8', vCA, '0')
        A('s_waitcnt lgkmcnt(0)\n s_barrier')
        for q in range(3): A(f'ds_read_b128 {v(CO+4*q,4)}, {vCP} offset:{IMN+1024*q}')
        A(poll)
        st3(SOUT, vG, 's67')
        n1, n2 = 3, 0
    post = list(A.lines[n0:])
    tk(2)
    stamp(A, 'v221', sI)
    A(f'''s_add_u32 {sI}, {sI}, 1
    s_add_u32 s65, {sI}, 1
    s_cmp_ge_u32 {sI}, {NSEG}
    s_cbranch_scc1 {name}_done
    s_waitcnt vmcnt({n1 + n2})''')
    prep(); tk(3)
    A(f'''s_mov_b32 s66, 1
    v_cmp_gt_u32 vcc, s65, {vP}
    s_cbranch_vccz {name}_ld
    s_mov_b32 s66, 0
    s_waitcnt vmcnt(4)''')
    flag()
    A(f's_branch {name}_spin')
    A(f'{name}_ov:')
    ren = lambda t: t.replace('s67', 's81').replace('s68', 's82')
    pre, lds_ = ldlist('s66'); A(ren(pre))
    k = 0; since = 99; import re as _re
    for l in post:
        t = l.strip()
        if t.startswith('buffer_load_dword '):
            for x in lds_[k:]: A(ren(x))
            k = len(lds_)
        m = _re.search(r'(Lc_\d+)', l)
        if m: l = l.replace(m.group(1), m.group(1) + 'w')
        A.lines.append(l); since += 1
        if t.startswith('v_') and since >= 4 and k < len(lds_) and not t.startswith('v_rsq'):
            A(ren(lds_[k])); k += 1; since = 0
    stamp(A, 'v221', sI); tk(4)
    A(f's_add_u32 {sI}, {sI}, 1\n s_add_u32 s65, {sI}, 1\n s_waitcnt vmcnt({n1 + n2})')
    prep(); tk(5)
    stamp(A, 'v220', sI)
    for i in range(NL):
        mf(i)
        if not big and i in (11, 15): stat((i >> 2) - 2)
    if big: A('s_nop 0'); stat(0); stat(1)
    A('s_nop 1'); stat(2)
    if fout is not None: A(f's_waitcnt vmcnt(4)'); flag()
    A('s_waitcnt vmcnt(0)')
    tk(6)
    A(f's_branch {name}_mid')
    A(f'{name}_done:\n s_waitcnt vmcnt({n2})')
    flag()
    A('s_waitcnt vmcnt(0) lgkmcnt(0)')
    if cfg.timing == 7:
        for k in range(16): A(f'v_writelane_b32 v220, s{40+k}, {k}')
    dump(A, ['v220', 'v221'])
    A('s_endpgm')

def role_red(A):
    A('L_red:')
    if not enabled('red'):
        ln0_hook(A, 0); A('s_endpgm'); return
    ln0_hook(A, 0)
    validate(A, True)
    A(f'''
    s_sub_u32 s63, {sT}, 24
    s_lshr_b32 s71, s63, 2
    s_and_b32 s70, s63, 3
    s_mul_i32 s72, s70, 9216
    s_lshr_b32 s63, s70, 1
    s_lshl_b32 s73, s63, 10
    s_lshl_b32 s74, s63, 9
    s_add_u32 s74, s74, 2048
    ''')
    lane(A, 'v8')
    A(f'''
    v_and_b32 v9, 7, v8
    v_bfe_u32 v10, v8, 3, 1
    v_lshrrev_b32 v11, 4, v8
    v_mul_u32_u24 v1, 36864, v11
    v_lshl_add_u32 v1, v10, 8, v1
    v_lshl_add_u32 v1, v9, 4, v1
    s_mul_i32 s63, {sW}, 9216
    s_and_b32 s64, s70, 1
    s_lshl_b32 s64, s64, 7
    s_add_u32 s63, s63, s64
    v_add_u32 v1, s63, v1
    v_lshrrev_b32 v22, 5, v8
    v_lshl_add_u32 v23, v22, 1, v10
    s_mul_i32 s63, {sW}, 18
    v_add_u32 v23, s63, v23
    v_mul_u32_u24 v32, 1152, v9
    v_and_b32 v33, 1, v11
    v_lshl_add_u32 v32, v33, 3, v32
    v_cmp_eq_u32 vcc, 0, v22
    v_mov_b32 v34, {OOB}
    v_mov_b32 v35, 12288
    v_mov_b64 v[40:41], 0
    ds_write_b64 v35, v[40:41] offset:49152
    v_add_u32 v38, 0x10000, v35
    ds_write_b64 v38, v[40:41] offset:49152
    v_cndmask_b32 v21, 0, 1.0, vcc
    s_and_b32 s63, s70, 1
    s_lshl_b32 s63, s63, 2
    v_lshrrev_b32 v36, 1, v9
    v_add_u32 v36, s63, v36
    ''')
    for j in range(5):
        A(f'''v_add_u32 v37, {4*j}, v23
        v_xor_b32 v37, v37, v36
        v_lshl_add_u32 v{12+j}, v37, 4, v32''')
    A(f'''
    v_cndmask_b32 v16, v35, v16, vcc
    s_mul_i32 s63, {sW}, 2304
    s_add_u32 s75, s63, 49152
    v_lshl_add_u32 v17, v8, 4, s63
    v_cmp_gt_u32 vcc, 16, v8
    v_lshlrev_b32 v20, 5, v9
    v_add_u32 v20, 32768, v20
    v_cndmask_b32 v18, v34, v17, vcc
    s_and_b32 s63, s70, 1
    s_lshl_b32 s63, s63, 2
    s_add_u32 s63, s63, {sW}
    s_lshl_b32 s63, s63, 4
    v_xor_b32 v3, s63, v17
    s_lshl_b32 s63, s70, 6
    v_lshl_add_u32 v4, v9, 3, s63
    s_cmp_eq_u32 {sW}, 0
    s_cselect_b32 s63, 8, 0
    v_cmp_gt_u32 vcc, s63, v8
    s_nop 1
    v_cndmask_b32 v5, v34, v4, vcc
    s_lshl_b32 s63, {sW}, 3
    v_add_u32 v19, s63, v20
    v_and_b32 v33, 1, v8
    v_cmp_eq_u32 vcc, 0, v33
    v_mov_b32 v34, 0x3f80
    v_mov_b32 v35, 0x3f800000
    v_cndmask_b32 v34, v35, v34, vcc
    v_bfe_u32 v33, v8, 1, 3
    ''')
    for d in range(8):
        A(f'v_cmp_eq_u32 vcc, {d}, v33\n s_nop 1\n v_cndmask_b32 v{24+d}, 0, v34, vcc')
    A(f'''
    v_mov_b32 v11, 36864
    v_mov_b32 v23, 1
    ds_write_b32 v11, v40
    s_waitcnt lgkmcnt(0)
    s_barrier
    s_lshl_b32 s80, {sL}, 1
    s_add_u32 s80, s80, s71
    ''')
    A('''s_cmp_eq_u32 s80, 1
    s_cbranch_scc1 L_red_1
    s_cmp_eq_u32 s80, 2
    s_cbranch_scc1 L_red_2
    s_cmp_eq_u32 s80, 3
    s_cbranch_scc1 L_red_3
    ''')
    red_stream(A, 'L_r10', PR0, PW, XNA, XNF, F_WO, F_XNF, 10, None, F_CON)
    A('L_red_1:')
    red_stream(A, 'L_r11', PR1, PW + PR0 * 294912, XNA + XB, XNF + XB, F_WO + 512, F_XNF + 128, 11, F_XNA + 128, F_CON + 128)
    A('L_red_2:')
    red_stream(A, 'L_r20', PR0, PD, XNF, XNA + XB, F_DN, F_XNA + 128, 12, F_XNF, F_CON + 256)
    A('L_red_3:')
    red_stream(A, 'L_r21', PR1, PD + PR0 * 294912, XNF + XB, None, F_DN + 512, None, 14, F_XNF + 128, F_CON + 384)
```

```python
from base import *
import base

class Sched:
    def __init__(s, mains):
        s.mains = mains; s.gaps = [[] for _ in mains]; s.stmin = 0; s.lastst = 0; s.avoid = False
    def put(s, g, text):
        for l in text.split('\n'):
            if l.strip(): s.gaps[g].append(l.strip())
    @staticmethod
    def wt(l):
        import re
        l = l.strip()
        if not l or l.startswith('@mark') or l.endswith(':'): return 0
        if l.startswith(('@', 's_waitcnt')): return cfg.wts[0]
        if l.startswith(('v_exp', 'v_rcp', 'v_perm')): return cfg.wts[1]
        if l.startswith('v_'): return cfg.wts[2]
        if l.startswith('buffer_'): return cfg.wts[3]
        if l.startswith('ds_'): return cfg.wts[4]
        big = any(abs(int(x, 0)) > 64 for x in re.findall(r'(?<![\w\[:])(-?(?:0x[0-9a-f]+|\d+))(?![\w\]:])', l.split(None, 1)[1] if ' ' in l else ''))
        return cfg.wts[6] if big else cfg.wts[5]
    def load(s, g):
        w = sum(s.wt(x) for x in s.gaps[g])
        if g + 1 < len(s.mains) and s.mains[g + 1].startswith('@'): w += cfg.wts[0]
        return w
    def fit(s, g, items, hi, cap=None):
        cap = cap or cfg.cap
        while True:
            add = {}; q = g; ok = True; last = -99; plan = []
            for it in items:
                w = sum(s.wt(x) for x in it.split('\n'))
                q2 = max(q, last + 8, s.stmin) if it.startswith('buffer_store') else q
                while q2 < hi and s.load(q2) + add.get(q2, 0) + w > cap and (s.load(q2) + add.get(q2, 0)) > 0: q2 += 1
                if q2 >= hi: ok = False; break
                add[q2] = add.get(q2, 0) + w; plan.append((q2, it))
                if it.startswith('buffer_store'): last = q2
                else: q = q2
            if ok: break
            cap += 0.25
        for q2, it in plan:
            s.put(q2, it)
            if it.startswith('buffer_store'): s.lastst = q2
        return q
    def seq(s, g, items, step=1, cap=1, share=False):
        last = -99
        for it in items:
            while len([x for x in s.gaps[g] if (x.startswith('v_') if share else not x.startswith('@mark'))]) >= cap: g += 1
            if it.startswith('buffer_store'):
                gs = max(g, last + 8, s.stmin)
                busy = lambda q: any(x.startswith('buffer_') for y in s.gaps[max(q - 2, 0):q + 3] for x in y)
                while s.avoid and busy(gs): gs += 1
                s.put(gs, it); last = gs; s.lastst = gs
                continue
            s.put(g, it); g += step
        return g
    def emit(s, A, pre=()):
        vm = 0; marks = {'entry': 0}; ds = list(pre)
        for m, gp in zip(s.mains, s.gaps):
            for l in m.split('\n') + gp:
                l = l.strip()
                if not l: continue
                if l.startswith('@mark'): marks[l.split()[1]] = vm; continue
                if l in cfg.x_drop: continue
                if l.startswith('@wait'):
                    w = f's_waitcnt vmcnt({vm - marks[l.split()[1]]})'
                    if cfg.timing == 4:
                        k = 12 + ['poll', 'st', 'entry', 'p1', 'th0'].index(l.split()[1]) % 4
                        w = f's_memtime s[28:29]\n {w}\n s_memtime s[30:31]\n s_waitcnt lgkmcnt(0)\n s_sub_u32 s30, s30, s28\n s_add_u32 s{k}, s{k}, s30'
                    A(w); continue
                if l == 's_barrier' and cfg.timing == 4:
                    A('s_memtime s[28:29]\n s_barrier\n s_memtime s[30:31]\n s_waitcnt lgkmcnt(0)\n s_sub_u32 s30, s30, s28\n s_add_u32 s16, s16, s30'); continue
                if l.startswith('@lw'):
                    t = l.split()[1]
                    if t in ds:
                        k = len(ds) - 1 - ds.index(t); A(f's_waitcnt lgkmcnt({k})'); ds = ds[len(ds) - k:]
                    continue
                tag = None
                if '#' in l: l, tag = [x.strip() for x in l.split('#')]
                if any(k in l for k in cfg.x_drop): continue
                if l.startswith('buffer_'): vm += 1
                if l.startswith('ds_'): ds.append(tag)
                A(l)
        return ds
def lines(t): return [l.strip() for l in t.split('\n') if l.strip()]

def flag_addr(A, dst, sval):
    lane(A, 'v1')
    A(f'''v_cmp_eq_u32 vcc, 0, v1
    v_mov_b32 v2, {sval}
    v_mov_b32 {dst}, {OOB}
    v_cndmask_b32 {dst}, {dst}, v2, vcc''')

M16 = 'v_mfma_f32_16x16x32_bf16'
XPK = 60; XT = 66; XLA = 70; XDV = 72; XSV = 73; XPA = 74; XP = 75; XFV = 76; XFA = 77
XBUF = 36864; XB0 = 8192
def gs_stream(A, name, NCT, NK, wreg, swap, rows, XFR, RING, epi, in_base, in_lstride, in_sstride, out_lstride, out_sstride,
              flag_lstride, stride, code, sig0, sig1, dma0, dstep, poll0, poll1, share, local, prio=0, lowlate=False, plan=None, alt=0, epihi=None, big=False):
    RA = min(RING - 1, cfg.rgra) if local else RING - 1
    BUF = 2 * XBUF if big else XBUF; NB = 2 if big else 3
    ND = (2 * NK) // 4
    NH = (NK + 3) // 4
    AW = 4 * NCT
    lane(A, 'v1')
    if rows:
        A(f'''v_and_b32 v2, 15, v1
        v_lshrrev_b32 v3, 4, v1
        v_lshrrev_b32 v4, 1, v2
        v_mul_u32_u24 v5, 1152, v2
        v_add_u32 v5, {XB0 + (NB - 1) * BUF}, v5
        v_xor_b32 v6, v3, v4
        v_lshl_add_u32 {v(XLA)}, v6, 4, v5
        v_xor_b32 v6, 4, v6
        v_lshl_add_u32 {v(XLA+1)}, v6, 4, v5''')
    else:
        A(f'v_lshlrev_b32 {v(XLA)}, 4, v1\n v_add_u32 {v(XLA)}, {XB0 + (NB - 1) * BUF}, {v(XLA)}\n v_add_u32 {v(XLA+1)}, {NK*1024}, {v(XLA)}')
    lw0 = A.lab('Lw0')
    A(f'''s_lshl_b32 s70, {sW}, 10
    v_lshl_add_u32 {v(XDV)}, v1, 4, s70
    s_add_u32 s70, s70, {XB0}
    s_mov_b32 s85, {-(NB - 1) * BUF}
    s_mov_b32 s3, 4096
    s_mov_b32 s84, 1
    s_mov_b32 s4, {XBUF}
    s_mov_b32 s5, {XBUF}
    s_mov_b32 {sI}, 0
    s_mov_b32 s77, 0
    s_mov_b32 s78, 0
    s_mov_b32 s79, 0
    s_mov_b32 s92, {OOB if (local or 'x' not in cfg.sat) else 0}
    s_mov_b32 s93, 0
    s_cmp_eq_u32 {sW}, 0
    s_cbranch_scc1 {lw0}
    v_mov_b32 {v(XPA)}, {OOB}
    v_mov_b32 {v(XFA)}, {OOB}
    {lw0}:''')
    def rd(f):
        f %= 2 * NK; th, ks = divmod(f, NK)
        if rows: return f'ds_read_b128 {v(XFR+4*(f%RING),4)}, {v(XLA+(ks&1))} offset:{th*18432 + 128*(ks>>1)}'
        if big: return f'ds_read_b128 {v(XFR+4*(f%RING),4)}, {v(XLA+th)} offset:{ks*1024}'
        return f'ds_read_b128 {v(XFR+4*(f%RING),4)}, {v(XLA)} offset:{f*1024}'
    def pre(f): return [f'f{(f + i) % (2 * NK)}' for i in range(RA)]
    def mains(th, k0, k1, reads=True):
        m = []
        for ks in range(k0, k1):
            f = th * NK + ks
            for ct in range(NCT):
                d = v(AW * th + 4 * ct, 4); w = r(wreg(ks, ct), 4); x = v(XFR + 4 * (f % RING), 4)
                a_, b_ = (x, w) if swap[ct] else (w, x)
                t = f'{M16} {d}, {a_}, {b_}, {"0" if ks == 0 else d}'
                if ct == 0: t = f'@lw f{f}\n' + t
                m.append(t)
        S = Sched(m)
        if reads:
            for ks in range(k0, k1): S.put((ks - k0) * NCT, rd(th * NK + ks + RA) + f' #f{(th * NK + ks + RA) % (2 * NK)}')
        return S
    def dma(q): return ['s_mov_b32 m0, s70\n s_nop 0' if q == 0 else 's_add_u32 m0, m0, s3\n s_add_u32 s73, s73, s3', f'buffer_load_dwordx4 {v(XDV)}, {WS}, s73 offen sc1 lds']
    poll = f'buffer_load_dword {v(XP)}, {v(XPA)}, {WS}, 0 offen sc1'
    def flagst(so):
        if local or 'x' not in cfg.sat: return f'buffer_store_dword {v(XFV)}, {v(XFA)}, {WS}, {so} offen{loc[0]}'
        l = A.lab('Lfa')
        return f's_cmp_lg_u32 {sW}, 0\n s_cbranch_scc1 {l}\n s_add_u32 s65, {so}, s71\n s_atomic_umax s{int(so[1:]) + 1}, s[8:9], s65\n {l}:'
    loc = ['' if local else ' sc1']
    def sig(S, g, mark):
        S.put(g, f'v_mov_b32 {v(XFV)}, s95')
        S.put(g + 1, f'@wait {mark}\n s_barrier\n' + flagst('s94'))
    XQ = 64 if local else XP
    decide = lines(f'''v_cmp_gt_u32 vcc, s74, {v(XQ)}
        v_cmp_gt_u32 s[66:67], s75, {v(XQ)}
        s_cmp_eq_u32 {'s67' if prio == 0 else 'vcc_lo'}, 0
        s_cselect_b32 s72, {'s84' if alt else 2 - prio}, 0
        s_cmp_eq_u32 {'vcc_lo' if prio == 0 else 's67'}, 0
        s_cselect_b32 s72, {1 + prio}, s72
        v_mov_b32 {v(XFV)}, s72''')
    if local: decide[0] = f'v_add_u32 v64, v65, {v(XP)}\n' + decide[0]
    soff = lambda site: 4 * site if site < 4 else 4096
    def dwr(site): return f'ds_write_b32 {v(XDV)}, {v(XFV)} offset:{soff(site)}'
    def drd(site): return f'ds_read_b32 {v(XFV)}, {v(XSV)} offset:{soff(site)}'
    dget = [f'v_readfirstlane_b32 s72, {v(XFV)}', 's_cmp_lg_u32 s72, 0']
    if plan:
        pick = ['''s_sub_u32 s68, s72, 1
        s_cmp_eq_u32 s68, 0
        s_cselect_b32 s69, s74, s75''', '''s_cselect_b32 s63, s44, s47
        s_cselect_b32 s64, s45, s48
        s_cselect_b32 s80, s46, s49''', '''s_cmp_lt_u32 s69, s63
        s_cselect_b32 s80, s64, s80
        s_add_u32 s80, s80, s69''', '''s_cmp_eq_u32 s68, 0
        s_cselect_b32 s74, s80, s74
        s_cselect_b32 s75, s75, s80''']
    else:
        pick = lines(f'''s_sub_u32 s68, s72, 1
        s_cmp_eq_u32 s68, 0
        s_cselect_b32 s69, s74, s75
        s_cselect_b32 s63, {stride}, 0
        s_cselect_b32 s64, 0, {stride}
        s_add_u32 s74, s74, s63
        s_add_u32 s75, s75, s64''')
    if alt:
        assert prio == 1
        pick += [f's_add_u32 s63, s75, {alt}\n s_cmp_lt_u32 s74, s63\n s_cselect_b32 s84, 1, s68', 's_cmp_lt_u32 s75, 3\n s_cselect_b32 s84, 1, s84']
    pick += lines(f'''s_mul_i32 s73, s69, {in_sstride}
        s_mul_i32 s63, s68, {in_lstride}
        s_add_u32 s73, s73, s63
        s_add_u32 s73, s73, s90''')
    tog = [f'v_add_u32 {v(XLA+q)}, s5, {v(XLA+q)}' for q in range(2 if (rows or big) else 1)]
    advance = lines(('s_mov_b32 s5, s85\n s_sub_u32 s85, 0, s85' if big else 's_mov_b32 s63, s85\n s_mov_b32 s85, s4\n s_mov_b32 s4, s5\n s_mov_b32 s5, s63') + f'''
        s_add_u32 s70, s70, s85
        s_mov_b32 s81, s77
        s_mov_b32 s82, s78
        s_mov_b32 s83, s79
        s_mov_b32 s94, s92
        s_mov_b32 s95, s93
        {(f's_mul_i32 s64, s68, {PR1 - PR0}{chr(10)} s_add_u32 s64, s64, {PR0}{chr(10)} s_mul_i32 s63, s68, {magic(PR1) - magic(PR0)}{chr(10)} s_add_u32 s63, s63, {magic(PR0)}{chr(10)}' + ringidx('s63', 's69', 's64', 's63')) if local else 's_mov_b32 s63, s69'}
        s_mul_i32 s63, s63, {out_sstride}
        s_mul_i32 s64, s68, {out_lstride}
        s_add_u32 s63, s63, s64
        s_add_u32 s77, s63, s87
        s_add_u32 s78, s63, s88
        s_add_u32 s79, s63, s89
        s_mul_i32 s92, s68, {flag_lstride}
        {f's_sub_u32 s93, s80, 1{chr(10)} s_min_u32 s93, s93, {NSEG}' if plan else f's_add_u32 s93, s69, {stride - 1}'}
        {'s_mov_b32 s50, s69' if cfg.timing else ''}
        s_add_u32 {sI}, {sI}, 1''')
    A(f's_add_u32 s90, s90, {in_base - in_sstride}')
    if not local:
        for q in range(3): A(f's_sub_u32 s{87+q}, s{87+q}, {out_sstride}')
    GX = (NK - RA) * NCT; GN = NK * NCT
    def put_dma(S, g0, pollmark, first=False):
        g = S.fit(0, pick, max(g0 - 1, 5))
        g0 = max(g0, g + 2)
        for q in range(ND):
            d = dma(q); gg = g0 + dstep * q
            if big and first and q >= NH: gg = max(gg, GX + 2 + dstep * (q - NH))
            if gg % NCT == 0: gg += 1
            gp = gg - 1 if (gg - 1) % NCT else gg - 2
            S.put(gp, d[0].replace('\n s_nop 0', '')); S.put(gg, d[1])
            if pollmark == 1 and q == NH - 1: S.put(gg + 2, poll + '\n @mark poll')
            if pollmark == 2 and q == NH - 1: S.put(gg, '@mark th0')
        return gg
    hi_only = decide[:2] + ['s_mov_b32 s72, 0'] + decide[4:] if lowlate else decide
    def put_decide(S, site, o=0, far=False):
        q = (13, 12, 9, 8, 7) if (far or not local or big) else cfg.dq
        S.put(o + GX - q[0], '@wait poll\n' + decide[0]); S.put(o + GX - q[1], decide[1]); S.put(o + GX - q[2], '\n'.join((hi_only if far else decide)[2:-1]))
        S.put(o + GX - q[3], decide[6]); S.put(o + GX - q[4], dwr(site) + ' #dw')
    def tstamp():
        if cfg.timing and cfg.timing < 3:
            l1 = A.lab('Lt'); l2 = A.lab('Lt')
            A(f's_sub_u32 s63, s50, 1\n s_cmp_eq_u32 s92, 0\n s_cbranch_scc0 {l1}')
            stamp(A, 'v78', 's63'); A(f's_branch {l2}\n {l1}:'); stamp(A, 'v79', 's63'); A(f'{l2}:')
    def fill1(S, o, lastdma=None):
        if sig1 is not None:
            S.put(o, '@mark p1'); sig(S, o + sig1, 'p1')
        put_decide(S, 1, o, lastdma is not None)
        if o: S.stmin = lastdma + 4
        S.fit(o + 4, epi(0, 77, loc=loc[0]), o + GX)
        if lastdma is not None:
            g = max(lastdma, S.lastst, o + (sig1 or 0) + 1) + 1
            lim = o + GX - 10
            S.fit(g, advance, o + GX)
        S.put(o + GX - 1, '@lw dw')
    def phase0(E, D):
        S = mains(0, 0, NK)
        if D:
            S1 = mains(1, 0, NK - RA); S.mains += S1.mains; S.gaps += S1.gaps
            ld_ = put_dma(S, dma0 if E else 3, (2 if cfg.rgpoll else 1) if local else 0, True)
            if not local: S.put(GN + poll1, poll + '\n @mark poll')
            elif big: S.put(GX - 3 if cfg.bigpoll is None else GN + cfg.bigpoll, poll + '\n @mark poll')
            elif cfg.rgpoll:
                S.put((dma0 if E else 3) - 3, poll + '\n @mark poll'); S.put(GN + GX - 1, '@wait th0')
        else:
            S.put(poll0, poll + '\n @mark poll'); put_decide(S, 0)
        here = (not E) or sig0
        if big:
            here = False
            if E: S.put(sig0, f'v_mov_b32 {v(XFV)}, s95'); S.put(sig0 + 1, '@wait st\n s_barrier\n' + flagst('s94'))
        if here: S.put(GX - 2, f'v_mov_b32 {v(XFV)}, s95')
        if E:
            S.fit(4, epi(1, 81, loc=loc[0]), (dma0 - 2 if sig0 else epihi or GN - 4))
        S.put(GX - 1, f'@wait {"st" if (E and sig0 and not big) else "entry"}\n @lw dw\n s_barrier')
        if here: S.put(GX - 1, flagst('s94'))
        if not D:
            S.put(GX - 1, drd(0) + ' #dr')
            S.put(GN - 4, '@lw dr\n' + dget[0]); S.put(GN - 1, dget[1])
        else: fill1(S, GN, ld_)
        tstamp()
        S.emit(A, pre(0))
        if D: A(f's_branch {name}_fe')
        else: A(f's_cbranch_scc1 {name}_p1d\n s_branch {name}_p1n')
    XRD = 68 if local else XFA
    outl = []
    def soft(S, g, off, pre_, val, after):
        a_, r_, c_ = cfg.softq
        l = A.lab('Lsb'); outl.append((l, off))
        S.put(g - a_ - 1, pre_ + f'\n v_mov_b32 {v(XFV)}, {val}')
        S.put(g - a_, f'ds_write_b32 {v(XDV)}, {v(XFV)} offset:{off}')
        S.put(g - r_, f'ds_read_b32 {v(XFV)}, {v(XRD)} offset:{off} #sr')
        S.put(g - c_, f'@lw sr\n v_cmp_gt_u32 vcc, s76, {v(XFV)}')
        S.put(g, f's_cbranch_vccnz {l}o\n {l}:\n' + after)
    def steady():
        S = mains(0, 0, NK)
        S1 = mains(1, 0, NK); S.mains += S1.mains; S.gaps += S1.gaps
        S.gaps[GN + GX] = tog + S.gaps[GN + GX]
        a_ = cfg.softq[0]
        S.put(0, 's_add_u32 s76, s76, 4')
        if sig0: S.fit(4, epi(1, 81, loc=loc[0]), dma0 - 5)
        ld_ = put_dma(S, dma0, 2)
        S.put(dma0 - 3 if local else GN + poll1 - 6, poll + '\n @mark poll')
        fv = f'v_mov_b32 {v(XFV)}, s95\n' if local else ''
        if sig0 and not local: soft(S, GX - 1, 8, '@wait st', 's76', flagst('s94')); gs = 0
        else:
            soft(S, GX - 1, 8, '@wait entry', 's76', '')
            gs = (GX + a_ + 2) if local else GN + sig1 + a_
            soft(S, gs, 4104, '@wait st', 's76', fv + flagst('s94'))
        g1 = GN + GX - 1
        S.put(g1 - a_ - 7, '@wait poll\n' + decide[0]); S.put(g1 - a_ - 6, decide[1]); S.put(g1 - a_ - 3, '\n'.join(hi_only[2:-1]) + '\n s_or_b32 s72, s72, s76')
        soft(S, g1, 4100, '@wait th0', 's72', dget[0])
        S.put(2 * GN - 1, 's_and_b32 s72, s72, 3')
        if not sig0: S.fit(4, epi(1, 81, loc=loc[0]), epihi or GN - 4)
        S.stmin = ld_ + 4
        S.fit(GN + 4, epi(0, 77, loc=loc[0]), GN + GX)
        S.fit(max(ld_, S.lastst, gs) + 1, advance, GN + GX)
        tstamp()
        S.emit(A, pre(0))
        A(f's_cbranch_scc1 {name}_p0ed\n s_branch {name}_p0e')
        for l, off in outl:
            A(f'''{l}o:
            s_mov_b32 {sSPIN}, 0
            {l}s:
            ds_read_b32 {v(XFV)}, {v(XRD)} offset:{off}
            s_waitcnt lgkmcnt(0)
            v_cmp_gt_u32 vcc, s76, {v(XFV)}
            s_cbranch_vccz {l}
            s_add_u32 {sSPIN}, {sSPIN}, 1
            s_cmp_lt_u32 {sSPIN}, {cfg.spin_limit * 4}
            s_cbranch_scc1 {l}s
            s_mov_b32 s63, {code + 30}
            s_branch L_abort''')
    def phase1(D):
        S = mains(1, 0, NK - RA)
        ld_ = None
        if D:
            S.put(0, poll + '\n @mark poll')
            ld_ = put_dma(S, 3, 2)
        else: S.put(poll1, poll + '\n @mark poll')
        fill1(S, 0, ld_)
        if D: S.put(GX - 1, '@wait th0')
        S.emit(A, pre(NK))
    def burst():
        for x in pick: A(x)
        if cfg.timing and local:
            l1 = A.lab('Lt')
            A(f's_sub_u32 s63, s69, 1\n s_cmp_eq_u32 s68, 0\n s_cbranch_scc0 {l1}'); stamp(A, 'v67', 's63'); A(f'{l1}:')
        for q in range(ND):
            for x in dma(q): A(x)
    def start(nyoung, early=False):
        if early:
            A(f'v_mov_b32 {v(XFV)}, s93\n s_waitcnt vmcnt({ND})\n s_barrier\n {flagst("s92")}'); nyoung += 1
        for x in advance + tog + hi_only + [dwr(3)]: A(x)
        A(f's_waitcnt vmcnt({nyoung}) lgkmcnt(0)\n s_barrier\n {drd(3)}')
        for f in range(RA): A(rd(f))
        A(f's_waitcnt lgkmcnt({RA})')
        for x in dget: A(x)
    def alone():
        A('s_nop 7'); n = 0
        for x in epi(1, 77, True, loc=loc[0]):
            for l in lines(x):
                if not l.startswith('@'): A(l)
                if l.startswith('buffer_'): n += 1
        return n
    def idle():
        l = A.lab('Lsp'); d = A.lab('Lspd')
        A(f'''s_cmp_lg_u32 {sW}, 0
        s_cbranch_scc1 {d}
        s_mov_b32 {sSPIN}, 0
        {l}:
        {poll}
        s_waitcnt vmcnt(0)''')
        for x in decide: A(x)
        A(f'''{dwr(4)}
        s_cmp_lg_u32 s72, 0
        s_cbranch_scc1 {d}
        s_add_u32 {sSPIN}, {sSPIN}, 1
        s_cmp_lt_u32 {sSPIN}, {cfg.spin_limit}
        s_cbranch_scc1 {l}
        {d}:
        s_waitcnt lgkmcnt(0)
        s_barrier
        {drd(4)}
        s_waitcnt lgkmcnt(0)
        {dget[0]}
        s_mov_b32 s63, {code}
        s_cmp_eq_u32 s72, 0
        s_cbranch_scc1 L_abort''')
    def flush():
        A(f'v_mov_b32 {v(XFV)}, s93\n s_waitcnt vmcnt(0)\n s_barrier\n {flagst("s92")}')
        if cfg.timing and local:
            l1 = A.lab('Lt')
            A(f's_sub_u32 s63, s93, 1\n s_cmp_eq_u32 s92, 0\n s_cbranch_scc0 {l1}'); stamp(A, 'v66', 's63'); A(f'{l1}:')
        A(f's_cmp_ge_u32 {sI}, s91\n s_cbranch_scc1 {name}_done')
    if cfg.timing and local: A('v_mov_b32 v66, 0\n v_mov_b32 v67, 0')
    if cfg.timing: A('v_mov_b32 v78, 0\n v_mov_b32 v79, 0')
    if cfg.timing == 4:
        for k in range(12, 28):
            if k not in (20, 21, 22, 23): A(f's_mov_b32 s{k}, 0')
    def cnt(k):
        if cfg.timing == 4: A(f's_addk_i32 s{k}, 1')
    if name[2] in cfg.soft:
        assert local or 'x' in cfg.sat
        A(f'''v_and_b32 v2, 3, v1
        v_lshlrev_b32 {v(XRD)}, 10, v2
        v_mov_b32 v2, 0
        ds_write_b32 {v(XDV)}, v2 offset:8
        ds_write_b32 {v(XDV)}, v2 offset:4100
        ds_write_b32 {v(XDV)}, v2 offset:4104
        s_mov_b32 s76, 0''')
    if local: A(f's_cmp_lg_u32 {sSLOW}, 0\n s_cbranch_scc1 {name}_sl')
    A(f'{name}_idle:')
    idle(); burst(); start(ND - NH)
    A(f'{name}_slow:\n s_cbranch_scc1 {name}_p0d')
    phase0(False, False)
    A(f'{name}_p0d:'); phase0(False, True)
    A(f'{name}_p0e:'); cnt(18); phase0(True, False)
    A(f'{name}_p1d:'); cnt(19); phase1(True)
    A(f's_branch {name}_fe')
    A(f'{name}_p0ed:'); cnt(17)
    if name[2] in cfg.soft: steady()
    else:
        phase0(True, True)
        del A.lines[-1]
    A(f'{name}_fe:')
    A(f'{"" if "febar" in cfg.x_drop else "s_barrier"}\n {drd(1)}')
    S = mains(1, NK - RA, NK)
    S.gaps[0] = tog + S.gaps[0]
    S.put(RA * NCT - 4, '@lw dr\n' + dget[0]); S.put(RA * NCT - 1, dget[1])
    S.emit(A, pre(2 * NK - RA) + ['dr'])
    A(f's_cbranch_scc1 {name}_p0ed\n s_branch {name}_p0e')
    A(f'{name}_p1n:'); cnt(24); phase1(False)
    A(f's_barrier\n {drd(1)}')
    S = mains(1, NK - RA, NK, reads=False)
    S.put(RA * NCT - 4, '@lw dr\n' + dget[0]); S.put(RA * NCT - 1, dget[1])
    S.emit(A, pre(2 * NK - RA) + ['dr'])
    A(f's_cbranch_scc0 {name}_t2')
    if local:
        alone(); burst(); start(ND - NH, True)
    else:
        burst(); n = alone(); start(ND - NH + n)
    A(f's_branch {name}_slow')
    A(f'{name}_t2:'); cnt(25)
    alone(); flush()
    A(f's_branch {name}_idle')
    if local:
        loc[0] = ' sc1'
        A(f'{name}_sl:')
        idle(); burst()
        for x in advance + tog: A(x)
        A('s_waitcnt vmcnt(0)')
        A('s_barrier')
        for f in range(RA): A(rd(f))
        mains(0, 0, NK).emit(A, pre(0))
        S = mains(1, 0, NK - RA); S.seq(4, epi(0, 77, loc=loc[0]), share=share); S.emit(A, pre(NK))
        mains(1, NK - RA, NK, reads=False).emit(A, pre(2 * NK - RA))
        alone(); flush()
        A(f's_branch {name}_sl')
    A(f'{name}_done:\n s_waitcnt vmcnt(0) lgkmcnt(0)')
    if cfg.timing == 4:
        for i, k in enumerate((12, 13, 14, 15, 16, 17, 18, 19, 24, 25)): A(f'v_writelane_b32 v66, s{k}, {i}')
    dump(A, ['v78', 'v79', 'v66', 'v67'])
    A('s_endpgm')

def xw(ks, ct): return 80 + (ks * 6 + ct) * 4

def xs_setup(A, fbase, fin, shared, plan=None):
    if shared:
        A(f'''s_lshl_b32 s63, {sT}, 7
        s_lshl_b32 s64, {sL}, 2
        s_add_u32 s63, s63, s64
        s_add_u32 s74, {sL}, 1
        s_add_u32 s75, {sL}, 1''')
    else:
        A(f'''s_lshl_b32 s63, {sT}, 7
        s_cmp_eq_u32 {sL}, 0
        s_cselect_b32 s74, 1, 1000
        s_cselect_b32 s75, 1000, 1''')
    A(f's_add_u32 s63, s63, {fbase}\n s_mov_b32 s71, s63')
    flag_addr(A, v(XFA), 's63')
    A(f'''v_and_b32 v2, 3, v1
    v_lshrrev_b32 v3, 5, v1
        v_lshlrev_b32 v2, 2, v2
    v_lshl_add_u32 v2, v3, 7, v2
    v_add_u32 {v(XPA)}, {fin}, v2
    {'' if shared else f'v_cmp_eq_u32 vcc, {sL}, v3'}
    v_mov_b32 v2, {OOB}
    s_nop 0
    {'' if shared else f'v_cndmask_b32 {v(XPA)}, v2, {v(XPA)}, vcc'}
    s_mov_b32 s90, 0
    s_mov_b32 s91, {NSEG}''')
    if plan:
        S0, S1 = plan
        assert S0 % 2 == 0 and S1 % 2 == 0
        A(f'''s_cmp_eq_u32 {sL}, 0
        s_mov_b32 s44, {S0}
        s_mov_b32 s45, 2
        s_cselect_b32 s46, 1, 1000
        s_mov_b32 s47, {S1}
        s_mov_b32 s48, 1
        s_mov_b32 s49, 2
        s_cselect_b32 s75, {S1 + 1}, 1
        s_cselect_b32 s91, {S0//2 + NSEG - S0 + (NSEG - S1)//2}, {S0//2 + S1 + (NSEG - S1)//2}''')
    if shared:
        A(f'''s_sub_u32 s64, s75, 1
        v_mov_b32 v2, {sL}
        v_mov_b32 v3, s64
        s_mov_b32 s63, 4096
        buffer_store_dword v2, {v(XFA)}, {WS}, 0 offen sc1
        buffer_store_dword v3, {v(XFA)}, {WS}, s63 offen sc1''')

def warm_sweep(A, grp_s, only_l1=False, then_wait=False):
    if not cfg.delay1: return
    l = A.lab('Ld1')
    if only_l1: A(f's_cmp_eq_u32 {sL}, 0\n s_cbranch_scc1 {l}')
    A(f's_cmp_lg_u32 s7, 0\n s_cbranch_scc1 {l}')
    NW = 128 * 4
    lane(A, 'v1')
    A(grp_s)
    A(f'''s_add_u32 s63, s63, {sT}
    s_lshl_b32 s63, s63, 2
    s_add_u32 s63, s63, {sW}
    s_lshl_b32 s63, s63, 10
    v_lshl_add_u32 v10, v1, 4, s63
    s_lshl_b32 s64, {sW}, 10
    s_mov_b32 m0, s64''')
    def sweep(srds, i0, i1):
        for i in range(i0, i1):
            A(f's_mov_b32 s65, {i*NW*1024}')
            for srd in srds: A(f'buffer_load_dwordx4 v10, {srd}, s65 offen lds')
    sweep([SWK, SWQ], 0, 4)
    ln0_hook(A, 8, False)
    sweep([SWK, SWQ], 4, 7)
    A('s_waitcnt vmcnt(6)'); arrive(A)
    sweep([SWK, SWQ], 7, 9)
    sweep([SWV, SWO], 0, 9)
    A('s_waitcnt vmcnt(0)\n s_mov_b32 s7, 2\n s_barrier')
    if then_wait:
        validate(A)
        A(f's_lshl_b32 s63, {sT}, 7\n s_add_u32 s63, s63, {F_CH}\n v_mov_b32 v1, s63\n s_mov_b32 s64, 1')
        spin(A, 'v2', 'v1', 's64', 60)
    A(f'{l}:')

def hold_back(A, on, fbase, only_l1=False):
    if not on: return
    l = A.lab('Lh')
    if only_l1: A(f's_cmp_eq_u32 {sL}, 0\n s_cbranch_scc1 {l}')
    ln0_hook(A, 0)
    validate(A, True)
    l2 = A.lab('Lh')
    A(f's_cmp_lg_u32 {sW}, 0\n s_cbranch_scc1 {l2}\n s_lshl_b32 s63, {sT}, 7\n s_add_u32 s63, s63, {fbase}\n v_mov_b32 v1, s63\n s_mov_b32 s64, 1')
    spin(A, 'v2', 'v1', 's64', 60)
    A(f'{l2}:\n s_barrier\n {l}:')

def staged(A, units, nslot, slot_bytes, region_s, pre=None, ranges=None, hold={}, mid=None):
    n = len(units)
    if ranges is None: ranges = [((i % nslot) * slot_bytes, slot_bytes) for i in range(n)]
    ov = lambda x, y: x[0] < y[0] + y[1] and y[0] < x[0] + x[1]
    dep = [max([hold.get(j, j) for j in range(i) if ov(ranges[i], ranges[j])], default=-1) for i in range(n)]
    cnt = []
    def issue(i):
        assert i == len(cnt)
        ls = units[i][0](ranges[i][0])
        cnt.append(sum(1 for x in ls if x.startswith('buffer_')))
        for x in ls: A(x)
    def ist(k):
        if cfg.timing == 5: A(f's_memrealtime s[96:97]\n s_waitcnt lgkmcnt(0)\n v_writelane_b32 v19, s96, {k}')
    ist(0)
    n0, n1 = pre or (cfg.pre0, cfg.pre1); n1 += n0
    for i in range(n0): issue(i)
    ln0_hook(A, sum(cnt), False)
    ist(1)
    for i in range(n0, n1): issue(i)
    A(f's_waitcnt vmcnt({sum(cnt[n0:])})')
    arrive(A)
    if mid: mid[0](A)
    ist(2)
    while len(cnt) < n and dep[len(cnt)] < 0: issue(len(cnt))
    ist(3)
    for i in range(n):
        A(f's_waitcnt vmcnt({min(sum(cnt[i + 1:]), 63)})')
        ist(4 + i)
        if mid and i == n1: mid[1](A)
        for x in units[i][1](ranges[i][0]): A(x)
        if len(cnt) < n and dep[len(cnt)] <= i:
            A('s_waitcnt lgkmcnt(0)')
            while len(cnt) < n and dep[len(cnt)] <= i: issue(len(cnt))
    A('s_waitcnt lgkmcnt(0)')
    if cfg.timing == 5:
        ist(60); A('s_mov_b32 s99, 0\n s_mov_b32 s101, 0'); dump(A, ['v19']); A('s_endpgm')

def role_qkv(A):
    A('L_qkv:')
    if not enabled('qkv'):
        ln0_hook(A, 0); A('s_endpgm'); return
    lane(A, 'v1')
    A(f'''
    v_lshrrev_b32 v2, 2, v1
    v_and_b32 v4, 3, v1
    v_lshlrev_b32 v3, 4, v4
    v_lshl_add_u32 v10, v2, 13, v3
    v_lshrrev_b32 v5, 4, v1
    v_and_b32 v2, 3, v2
    v_lshl_add_u32 v5, v5, 3, v2
    s_mul_i32 s67, {sW}, 36864
    v_lshl_add_u32 v5, v5, 6, v3
    v_add_u32 v11, s67, v5
    s_lshl_b32 s65, {sT}, 8
    s_lshl_b32 s63, {sW}, 6
    s_add_u32 s65, s65, s63
    ''')
    units = []
    for mi, srd in enumerate((SWK, SWV, SWQ)):
        for c in range(9):
            def dma(o, srd=srd, c=c):
                l = []
                for q in range(4):
                    l += [f's_add_u32 m0, s67, {o+1024*q}', f's_add_u32 s69, s65, {(64*c+16*q)*8192}', f'buffer_load_dwordx4 v10, {srd}, s69 offen lds']
                return l
            def rdf(o, mi=mi, c=c):
                return [f'ds_read_b64_tr_b16 {r(xw(2*c+kk, 2*mi+ch)+2*i,2)}, v11 offset:{o+kk*2048+i*256+ch*8}' for kk in range(2) for ch in range(2) for i in range(2)]
            units.append((dma, rdf))
    staged(A, units, 9, 4096, 's67')
    A('s_barrier')
    validate(A)
    xs_setup(A, F_QKV, F_XNA, cfg.shq, cfg.qplan)
    A(f'''s_mul_i32 s63, {sT}, 24576
    s_lshl_b32 s64, {sW}, 11
    s_add_u32 s63, s63, s64
    v_lshlrev_b32 {v(XSV)}, 4, v1
    s_add_u32 s87, s63, {QKV}
    s_add_u32 s88, s87, 8192
    s_add_u32 s89, s87, 16384''')
    def epi(th, sb, alone=False, loc=None):
        a_ = 24 * th; f = []
        def piece(b, soff):
            return [f'v_cvt_pk_bf16_f32 {v(b+d)}, {v(b+2*d)}, {v(b+2*d+1)}' for d in range(4)] + \
                   [f'buffer_store_dwordx4 {v(b,4)}, {v(XSV)}, {WS}, {soff} offen offset:{1024*th} sc1']
        f += piece(a_, f's{sb+1}')
        for ch in range(2):
            b = a_ + 8 + 4 * ch
            if th == 0:
                f += [f'v_cvt_pk_bf16_f32 {v(XPK+2*ch+d)}, {v(b+2*d)}, {v(b+2*d+1)}' for d in range(2)]
            else:
                f += [f'v_cvt_pk_bf16_f32 {v(b+3)}, {v(b+2)}, {v(b+3)}', f'v_cvt_pk_bf16_f32 {v(b+2)}, {v(b)}, {v(b+1)}',
                      f'v_mov_b64 {v(b,2)}, {v(XPK+2*ch,2)}',
                      f'buffer_store_dwordx4 {v(b,4)}, {v(XSV)}, {WS}, s{sb+2} offen offset:{1024*ch} sc1']
        f += piece(a_ + 16, f's{sb}')
        f[-1] += '\n @mark st'
        return f
    gs_stream(A, 'L_q', 6, 18, xw, [0, 0, 1, 1, 0, 0], True, 48, 3, epi, XNA, XB, 36864, 64 * 32 * 24576, 32 * 24576,
              4096, 2 if cfg.shq else 1, 20, True, None, 45, 6, 44, 44, False, False, prio=1, lowlate=cfg.shq and 'q' in cfg.lowlate, plan=cfg.qplan, alt=cfg.qalt)

def role_up(A):
    A('L_up:')
    if not enabled('up'):
        ln0_hook(A, 0); A('s_endpgm'); return
    warm_sweep(A, f's_mul_i32 s63, {sL}, 24\n s_add_u32 s63, s63, 32')
    hold_back(A, 'u' in cfg.hold, F_QKV)
    lane(A, 'v1')
    for j in range(3):
        A(f'''v_add_u32 v2, {64*j}, v1
        v_mul_u32_u24 v3, 10923, v2
        v_lshrrev_b32 v3, 16, v3
        v_mul_u32_u24 v4, 6, v3
        v_sub_u32 v4, v2, v4
        v_mul_u32_u24 v3, 9216, v3
        v_lshl_add_u32 v{10+j}, v4, 4, v3''')
    A(f'''
    v_lshrrev_b32 v2, 4, v1
    v_bfe_u32 v3, v1, 2, 2
    v_lshl_add_u32 v2, v2, 3, v3
    v_mul_u32_u24 v2, 96, v2
    v_and_b32 v3, 1, v1
    v_lshl_add_u32 v2, v3, 4, v2
    v_bfe_u32 v3, v1, 1, 1
    v_lshl_add_u32 v2, v3, 3, v2
    s_mul_i32 s67, {sW}, 36864
    v_add_u32 v13, s67, v2
    s_mul_i32 s65, {sT}, 384
    s_mul_i32 s63, {sW}, 96
    s_add_u32 s65, s65, s63
    ''')
    units = []
    for ks in range(18):
        def dma(o, ks=ks):
            l = [f's_add_u32 s69, s65, {32*ks*9216}']
            for mat, srd in enumerate((SW1, SW3)):
                for j in range(3):
                    l += [f's_add_u32 m0, s67, {o+3072*mat+1024*j}', 's_nop 0', f'buffer_load_dwordx4 v{10+j}, {srd}, s69 offen lds']
            return l
        def rdf(o, ks=ks):
            return [f'ds_read_b64_tr_b16 {r(xw(ks, 2*t+mat)+2*i,2)}, v13 offset:{o+3072*mat+i*384+t*32}' for t in range(3) for mat in range(2) for i in range(2)]
        units.append((dma, rdf))
    staged(A, units, 6, 6144, 's67')
    A('s_barrier')
    validate(A)
    xs_setup(A, F_UP, F_XNF, cfg.shu, cfg.uplan)
    A(f'''v_lshrrev_b32 v2, 5, v1
    v_and_b32 v3, 31, v1
    v_lshlrev_b32 v3, 4, v3
    v_mul_u32_u24 v2, {36864 if 'd' in cfg.bigk else 18432}, v2
    v_add_u32 {v(XSV)}, v2, v3
    s_mul_i32 s63, {sT}, 12
    s_mul_i32 s64, {sW}, 3
    s_add_u32 s63, s63, s64
    s_mul_i32 s66, {sT}, 86
    s_lshr_b32 s66, s66, {9 if 'd' in cfg.bigk else 8}
    s_mul_i32 s66, s66, {36864 if 'd' in cfg.bigk else 18432}
    s_add_u32 s66, s66, {HB}
    s_mov_b32 s86, {f2u(-LOG2E):#x}''')
    for t in range(3):
        A(f'''s_add_u32 s64, s63, {t}
        s_lshl_b32 s64, s64, 9
        s_add_u32 s{87+t}, s64, s66''')
    def epi(th, sb, alone=False, loc=None):
        f = []
        if alone:
            B = [24 + 8 * t for t in range(3)]
            for t in range(3): f += [f'v_mul_f32 {v(4*t+j)}, s86, {v(B[t]+j)}' for j in range(4)]
            f += [f'v_exp_f32 {v(j)}, {v(j)}' for j in range(12)]
            for t in range(3): f += [f'v_pk_mul_f32 {v(B[t]+4+j,2)}, {v(B[t]+j,2)}, {v(B[t]+4+j,2)}' for j in (0, 2)]
            f += [f'v_pk_add_f32 {v(j,2)}, {v(j,2)}, 1.0 op_sel_hi:[1,0]' for j in range(0, 12, 2)]
            f += [f'v_rcp_f32 {v(j)}, {v(j)}' for j in range(12)]
            f += [f'v_mov_b64 {v(B[t],2)}, {v(XPK+2*t,2)}' for t in range(3)]
            for t in range(3): f += [f'v_pk_mul_f32 {v(B[t]+4+j,2)}, {v(4*t+j,2)}, {v(B[t]+4+j,2)}' for j in (0, 2)]
            for t in range(3): f += [f'v_cvt_pk_bf16_f32 {v(B[t]+2+d)}, {v(B[t]+4+2*d)}, {v(B[t]+5+2*d)}' for d in range(2)]
            for t in range(3):
                f += [f'v_permlane32_swap_b32 {v(B[t])}, {v(B[t]+2)}', f'v_permlane32_swap_b32 {v(B[t]+1)}, {v(B[t]+3)}',
                      f'buffer_store_dwordx4 {v(B[t],4)}, {v(XSV)}, {WS}, s{sb+t} offen sc1']
            return f
        T = [v(XT + j) for j in range(4)]
        for t in range(3):
            b = 24 * th + 8 * t
            G = [v(b + j) for j in range(4)]; U = [v(b + 4 + j) for j in range(4)]
            f += [f'v_mul_f32 {T[j]}, s86, {G[j]}' for j in range(4)]
            for j in range(4): f += [f'v_exp_f32 {T[j]}, {T[j]}', f'v_mul_f32 {U[j]}, {G[j]}, {U[j]}']
            f += [f'v_add_f32 {T[j]}, 1.0, {T[j]}' for j in range(4)]
            f += [f'v_rcp_f32 {T[j]}, {T[j]}' for j in range(4)]
            f += [f'v_mul_f32 {U[j]}, {T[j]}, {U[j]}' for j in range(4)]
            if th == 0:
                f += [f'v_cvt_pk_bf16_f32 {v(XPK+2*t+d)}, {U[2*d]}, {U[2*d+1]}' for d in range(2)]
            else:
                f += [f'v_mov_b64 {v(b,2)}, {v(XPK+2*t,2)}\n v_cvt_pk_bf16_f32 {v(b+2)}, {U[0]}, {U[1]}', f'v_cvt_pk_bf16_f32 {v(b+3)}, {U[2]}, {U[3]}\n s_nop 0',
                      f'v_permlane32_swap_b32 {v(b)}, {v(b+2)}', f'v_permlane32_swap_b32 {v(b+1)}, {v(b+3)}',
                      f'buffer_store_dwordx4 {v(b,4)}, {v(XSV)}, {WS}, s{sb+t} offen sc1']
        if th == 1: f[-1] += '\n @mark st'
        return f
    gs_stream(A, 'L_u', 6, 18, xw, [0] * 6, True, 48, 3, epi, XNF, XB, 36864, 64 * 294912, 294912,
              4096, 2 if cfg.shu else 1, 21, cfg.upsig[0], cfg.upsig[1], cfg.upsig[2], 6, cfg.upsig[3], 33, True, False, lowlate=cfg.shu and 'u' in cfg.lowlate, plan=cfg.uplan, epihi=cfg.upsig[4])

def role_rg(A, name, key, NK, wsrd, in_base, in_sstride, out_base, fout, code):
    A(f'{name}:')
    if not enabled(key):
        ln0_hook(A, 0); A('s_endpgm'); return
    big = key[0] in cfg.bigk
    if big: NK *= 2
    NS = 4 if big else 8
    rplan = cfg.rplan if (big and cfg.bigsh) else None
    def w_(k, ct): return (80 if big else 256) + (k * 3 + ct) * 4
    warm_sweep(A, f's_mov_b32 s63, {80 if key == "wo" else 104}')
    hold_back(A, key[0] in cfg.hold, F_QKV)
    A(f'''s_mul_i32 s86, {sT}, 86
    s_lshr_b32 s86, s86, 8
    s_mul_i32 s63, s86, 3
    s_sub_u32 s80, {sT}, s63
    s_lshr_b32 s81, s86, 2
    s_and_b32 s86, s86, {NS - 1}''')
    lane(A, 'v1')
    for j in range(3):
        A(f'''v_add_u32 v2, {64*j}, v1
        v_mul_u32_u24 v3, 10923, v2
        v_lshrrev_b32 v3, 16, v3
        v_mul_u32_u24 v4, 6, v3
        v_sub_u32 v4, v2, v4
        v_mul_u32_u24 v3, 1152, v3
        v_lshl_add_u32 v{10+j}, v4, 4, v3''')
    A(f'''
    v_lshrrev_b32 v2, 4, v1
    v_bfe_u32 v3, v1, 2, 2
    v_lshl_add_u32 v2, v2, 3, v3
    v_mul_u32_u24 v2, 96, v2
    s_mul_i32 s67, {sW}, 36864
    v_add_u32 v2, s67, v2
    v_and_b32 v3, 3, v1
    v_lshl_add_u32 v13, v3, 4, v2
    v_and_b32 v3, 1, v1
    v_lshl_add_u32 v2, v3, 4, v2
    v_bfe_u32 v3, v1, 1, 1
    v_lshl_add_u32 v14, v3, 3, v2
    s_mul_i32 s71, s80, 384
    s_mul_i32 s63, {sW}, 96
    s_add_u32 s71, s71, s63
    s_mul_i32 s65, s86, {NK*32*1152}
    s_add_u32 s65, s65, s71
    ''')
    units = []
    for k in range(NK):
        def dma(o, k=k):
            l = [f's_add_u32 s69, s65, {32*k*1152}']
            for j in range(3):
                l += [f's_add_u32 m0, s67, {o+1024*j}', 's_nop 0', f'buffer_load_dwordx4 v{10+j}, {wsrd}, s69 offen lds']
            return l
        def rdf(o, k=k):
            return [f'ds_read_b64_tr_b16 {r(w_(k,ct)+2*i,2)}, {"v13" if ct < 2 else "v14"} offset:{o+i*384+(ct*8 if ct < 2 else 64)}' for ct in range(3) for i in range(2)]
        units.append((dma, rdf))
    staged(A, units, 12, 3072, 's67')
    A('s_barrier')
    validate(A)
    A(f's_mul_i32 s64, s86, 3\n s_add_u32 s64, s64, s80\n s_lshl_b32 s63, {sT if (not big or cfg.bigsh) else "s64"}, 2\n s_add_u32 s63, s63, {fout}')
    flag_addr(A, v(XFA), 's63')
    A(f'''v_lshlrev_b32 {v(XSV)}, 4, v1
    s_lshl_b32 s87, s64, 2
    s_add_u32 s87, s87, {sW}
    s_mul_i32 s87, s87, 3072
    s_add_u32 s87, s87, {out_base}
    s_mov_b32 s88, s87
    s_mov_b32 s89, s87
    s_mul_i32 s90, s86, {NK*2048}
    s_mov_b32 s91, {NSEG if big else 2*NSEG}
    s_mov_b32 s74, 1
    s_mov_b32 s75, 1
    v_lshrrev_b32 v2, 5, v1
    v_and_b32 v3, 31, v1''')
    if big and cfg.bigsh:
        A('s_add_u32 s74, s81, 1\n s_add_u32 s75, s81, 1')
        if rplan:
            S0, S1 = rplan
            A(f'''s_cmp_eq_u32 s81, 0
            s_mov_b32 s44, {S0}
            s_mov_b32 s45, 2
            s_cselect_b32 s46, 1, 1000
            s_mov_b32 s47, {S1}
            s_mov_b32 s48, 1
            s_mov_b32 s49, 2
            s_cselect_b32 s75, {S1 + 1}, 1
            s_cselect_b32 s91, {S0//2 + NSEG - S0 + (NSEG - S1)//2}, {S0//2 + S1 + (NSEG - S1)//2}''')
        A(f'''s_sub_u32 s63, s75, 1
        v_mov_b32 v4, s81
        v_mov_b32 v5, s63
        buffer_store_dword v4, {v(XFA)}, {WS}, 0 offen sc1
        buffer_store_dword v5, {v(XFA)}, {WS}, 0 offen offset:512 sc1''')
    elif big: A('s_cmp_eq_u32 s81, 0\n s_cselect_b32 s74, 1, 1000\n s_cselect_b32 s75, 1000, 1')
    if key == 'wo':
        A(f'''s_lshl_b32 s65, s86, {8 if big else 7}
        v_and_b32 v4, 3, v3
        v_lshl_add_u32 v4, v4, 2, s65
        v_and_b32 v5, {4 if big else 0}, v3
        v_lshl_add_u32 v4, v5, 5, v4
        v_lshl_add_u32 v4, v2, 12, v4
        v_add_u32 {v(XPA)}, {F_ATT}, v4''')
    else:
        A(f'''s_mul_i32 s65, s86, {6 if big else 3}
        v_lshrrev_b32 v5, 1, v3
        v_min_u32 v5, {5 if big else 2}, v5
        v_add_u32 v5, s65, v5
        v_and_b32 v4, {1 if cfg.shu else 0}, v3
        v_lshlrev_b32 v4, 2, v4
        v_lshl_add_u32 v4, v5, 7, v4
        v_lshl_add_u32 v4, v2, 12, v4
        v_add_u32 {v(XPA)}, {F_UP}, v4''')
    A(f'''v_and_b32 v4, 3, v3
    v_lshlrev_b32 v4, 2, v4
    v_lshl_add_u32 v4, v2, 7, v4
    v_add_u32 v4, {F_CON + (0 if key == 'wo' else 256)}, v4
    v_cmp_gt_u32 vcc, 16, v3
    v_mov_b64 v[8:9], 0
    v_mov_b64 v[10:11], 0
    v_cndmask_b32 {v(XPA)}, v4, {v(XPA)}, vcc
    v_mul_i32_i24 v65, {PR1 - PR0}, v2
    v_add_u32 v65, {PR0}, v65
    v_cndmask_b32 v65, v65, 0, vcc''')
    if big and not cfg.bigsh: A(f'v_cmp_eq_u32 vcc, s81, v2\n v_mov_b32 v4, {OOB}\n s_nop 0\n v_cndmask_b32 {v(XPA)}, v4, {v(XPA)}, vcc')
    def epi(th, sb, alone=False, loc=''):
        b = 12 * th; o = 48 + 4 * th
        f = [f'v_cvt_pk_bf16_f32 {v(o+d)}, {v(b+2*d)}, {v(b+2*d+1)}' for d in range(4)]
        f.append(f'buffer_store_dwordx4 {v(o,4)}, {v(XSV)}, {WS}, s{sb} offen offset:{1024*th}{loc}')
        f += [f'v_cvt_pk_bf16_f32 {v(56+2*th+d)}, {v(b+8+2*d)}, {v(b+9+2*d)}' for d in range(2)]
        if th == 1:
            f = f[5:] + f[:5]
            f += ['v_permlane32_swap_b32 v56, v58', 'v_permlane32_swap_b32 v57, v59',
                  f'buffer_store_dwordx4 v[56:59], {v(XSV)}, {WS}, s{sb} offen offset:2048{loc}\n @mark st']
        return f
    if big:
        gs_stream(A, name, 3, NK, w_, [0] * 3, False, 24, 4, epi, in_base, 64 * in_sstride, in_sstride, PR0 * 294912, 294912,
                  512, 2 if cfg.bigsh else 1, code, 40, None, 25, cfg.bigstep, 40, 40, True, True, big=True, plan=rplan)
    else: gs_stream(A, name, 3, NK, w_, [0] * 3, False, 80, cfg.rgring[NK == 18], epi, in_base, 64 * in_sstride, in_sstride, PR0 * 294912, 294912,
              512, 1, code, True, None, cfg.rgdma[0], cfg.rgdma[1], cfg.rp0, cfg.rp1, True, True, lowlate='r' in cfg.lowlate)

def wr_reg(A, i, val):
    A(f'v_mov_b32 {r(i)}, {val}' if i < 256 else f'v_accvgpr_write_b32 {r(i)}, {val}')

def role_att(A):
    A('L_att:')
    if not enabled('att'):
        ln0_hook(A, 0); A('s_endpgm'); return
    ln0_hook(A, 0)
    validate(A, True)
    SET = [256, 384]
    BI, SA, PP, PM, OA, OP, T = 16, 20, 40, 48, 64, 128, 160
    vLD, vKM, vVM, vPA, vP, vFA, vF = 'v4', 'v5', 'v6', 'v7', 'v8', 'v9', 'v10'
    A(f'''s_sub_u32 s70, {sT}, 24
    s_lshl_b32 s70, s70, 2
    s_add_u32 s70, s70, {sW}
    s_lshl_b32 s71, {sL}, 5
    s_add_u32 s71, s71, s70
    s_lshl_b32 s71, s71, 7
    s_sub_u32 s63, {sT}, 24
    s_lshl_b32 s63, s63, 7
    s_lshl_b32 s64, {sL}, 12
    s_add_u32 s63, s63, s64
    s_lshl_b32 s64, {sW}, 2
    s_add_u32 s63, s63, s64
    s_add_u32 s63, s63, {F_ATT}''')
    A('s_mov_b32 s78, s63')
    flag_addr(A, vFA, 's63')
    A(f'''
    v_lshlrev_b32 {vLD}, 4, v1
    v_and_b32 v2, 15, v1
    v_lshrrev_b32 v3, 4, v1
    v_lshrrev_b32 v11, 2, v2
    v_and_b32 v12, 1, v2
    v_lshl_add_u32 v11, v11, 1, v12
    v_lshlrev_b32 v11, 4, v11
    v_lshl_add_u32 {vKM}, v3, 7, v11
    v_lshlrev_b32 {vVM}, 3, v1
    v_and_b32 v11, {1 if cfg.shq else 0}, v1
    v_lshlrev_b32 v11, 2, v11
    s_add_u32 s63, s71, {F_QKV}
    v_add_u32 v11, s63, v11
    s_add_u32 s63, s71, {F_CH}
    v_mov_b32 v12, s63
    v_cmp_gt_u32 vcc, 8, v1
    s_nop 1
    v_cndmask_b32 {vPA}, v12, v11, vcc
    v_lshlrev_b32 v3, 2, v3
    v_sub_u32 v2, v2, v3
    v_mov_b32 v12, {f2u(-1e30):#x}
    s_mul_i32 s72, {sL}, {64*32}
    s_add_u32 s72, s72, s70
    s_mul_i32 s73, s72, 4096
    s_add_u32 s73, s73, {KVM}
    s_mul_i32 s72, s72, 24576
    s_add_u32 s72, s72, {QKV}
    s_mul_i32 s74, {sL}, {64*262144}
    s_lshr_b32 s63, s70, {3 if 'w' in cfg.bigk else 2}
    s_lshl_b32 s63, s63, {16 if 'w' in cfg.bigk else 15}
    s_add_u32 s74, s74, s63
    s_and_b32 s63, s70, {7 if 'w' in cfg.bigk else 3}
    s_lshl_b32 s63, s63, 12
    s_add_u32 s74, s74, s63
    s_add_u32 s74, s74, {OB}
    s_mov_b32 s75, {f2u(128**-0.5*LOG2E):#x}
    ''')
    for rr in range(4):
        A(f'''v_cmp_le_i32 vcc, {rr}, v2
        s_nop 1
        v_cndmask_b32 {v(BI+rr)}, v12, 0, vcc''')
    for i in (PP + 2, PP + 3, PM + 1, PM + 2, PM + 5, PM + 6): A(f'v_mov_b32 {v(i)}, 0')
    def ld_qkv(P):
        b = SET[P]
        A(f's_mul_i32 s67, s64, {32*24576}\n s_add_u32 s67, s67, s72')
        for k in range(24):
            if k % 4 == 0 and k: A('s_add_u32 s67, s67, 4096')
            A(f'buffer_load_dwordx4 {r(b+4*k,4)}, {vLD}, {WS}, s67 offen offset:{1024*(k%4)} {cfg.attld}')
    def ld_m(P, sreg=sI):
        b = SET[P]
        A(f's_mul_i32 s68, {sreg}, {32*4096}\n s_add_u32 s68, s68, s73')
        for u in range(4):
            A(f'buffer_load_dwordx4 {r(b+96+4*u,4)}, {vKM}, {WS}, s68 offen offset:{512*u} sc1')
        for u in range(4):
            A(f'buffer_load_dwordx2 {r(b+112+2*u,2)}, {vVM}, {WS}, s68 offen offset:{2048+512*u} sc1')
    def allred2(op):
        x0, x1, t0, t1 = v(T), v(T+1), v(T+2), v(T+3)
        for sw in ('v_permlane16_swap_b32', 'v_permlane32_swap_b32'):
            A(f'''v_mov_b32 {t0}, {x0}
            v_mov_b32 {t1}, {x1}
            s_nop 0
            {sw} {x0}, {t0}
            {sw} {x1}, {t1}
            {op} {x0}, {x0}, {t0}
            {op} {x1}, {x1}, {t1}''')
    def compute(P):
        b = SET[P]
        Q = lambda u, th: r(b + 4 * (2 * u + th), 4)
        K = lambda u, th: r(b + 32 + 4 * (2 * u + th), 4)
        for u in range(4):
            for ai, (a_, qh, c0) in enumerate(((K(u,0), 0, v(BI,4)), (r(b+96+4*u,4), 0, '0'), (K(u,0), 1, '0'), (K(u,1), 1, v(BI,4)), (r(b+96+4*u,4), 1, '0'))):
                d = v(SA + 4 * ai, 4)
                A(f'{M16} {d}, {a_}, {Q(u,qh)}, {c0 if u == 0 else d}')
        S0 = [SA + i for i in range(4)] + [SA + 4, SA + 5]
        S1 = [SA + 8 + i for i in range(8)] + [SA + 16, SA + 17]
        A('s_nop 4')
        A(f'v_max3_f32 {v(T)}, {v(S0[0])}, {v(S0[1])}, {v(S0[2])}\n v_max3_f32 {v(T)}, {v(T)}, {v(S0[3])}, {v(S0[4])}\n v_max_f32 {v(T)}, {v(T)}, {v(S0[5])}')
        A(f'v_max_f32 {v(T+1)}, {v(S1[0])}, {v(S1[1])}')
        for q in range(2, 10, 2): A(f'v_max3_f32 {v(T+1)}, {v(T+1)}, {v(S1[q])}, {v(S1[q+1])}')
        allred2('v_max_f32')
        A(f'v_mul_f32 {v(T)}, s75, {v(T)}\n v_mul_f32 {v(T+1)}, s75, {v(T+1)}')
        for qh, S in enumerate((S0, S1)):
            for x in S: A(f'v_fma_f32 {v(x)}, {v(x)}, s75, -{v(T+qh)}')
        for x in S0 + S1: A(f'v_exp_f32 {v(x)}, {v(x)}')
        for qh, S in enumerate((S0, S1)):
            A(f'v_add_f32 {v(T+qh)}, {v(S[0])}, {v(S[1])}')
            for x in S[2:]: A(f'v_add_f32 {v(T+qh)}, {v(T+qh)}, {v(x)}')
        allred2('v_add_f32')
        A(f'v_rcp_f32 {v(T)}, {v(T)}\n v_rcp_f32 {v(T+1)}, {v(T+1)}')
        for qh, S in enumerate((S0, S1)):
            for x in S: A(f'v_mul_f32 {v(x)}, {v(x)}, {v(T+qh)}')
        for d in range(2): A(f'v_cvt_pk_bf16_f32 {v(PP+d)}, {v(S0[2*d])}, {v(S0[2*d+1])}')
        for d in range(4): A(f'v_cvt_pk_bf16_f32 {v(PP+4+d)}, {v(S1[2*d])}, {v(S1[2*d+1])}')
        for qh, S in enumerate((S0, S1)):
            for o in (0, 3): A(f'v_cvt_pk_bf16_f32 {v(PM+4*qh+o)}, {v(S[-2])}, {v(S[-1])}')
        od = lambda u, qh, ch: v(OA + 32 * qh + 8 * u + 4 * ch, 4)
        for qh in range(2):
            for u in range(4):
                for ch in range(2):
                    A(f'{M16} {od(u,qh,ch)}, {r(b+64+4*(2*u+ch),4)}, {v(PP+4*qh,4)}, 0')
        for qh in range(2):
            for u in range(4):
                for ch in range(2):
                    A(f'v_mfma_f32_16x16x16_bf16 {od(u,qh,ch)}, {r(b+112+2*u,2)}, {v(PM+4*qh+2*ch,2)}, {od(u,qh,ch)}')
    def pack():
        for d in range(32):
            A(f'v_cvt_pk_bf16_f32 {v(OP+d)}, {v(OA+2*d)}, {v(OA+2*d+1)}')
    def stores():
        A(f's_mul_i32 s67, {sI}, 262144\n s_add_u32 s67, s67, s74')
        for k in range(8):
            A(f'buffer_store_dwordx4 {v(OP+4*k,4)}, {vLD}, {WS}, s67 offen offset:{1024*(k%4)} {cfg.attst}')
            if k == 3: A(f's_add_u32 s67, s67, {32768 if "w" in cfg.bigk else 16384}')
    poll = f'buffer_load_dword {vP}, {vPA}, {WS}, 0 offen sc1'
    def flag():
        if 'a' in cfg.sat:
            l = A.lab('Lfa')
            A(f's_cmp_eq_u32 s79, {sI}\n s_cbranch_scc1 {l}\n s_waitcnt lgkmcnt(0)\n s_mov_b32 s79, {sI}\n s_atomic_umax s79, s[8:9], s78\n {l}:')
        else: A(f'v_mov_b32 {vF}, {sI}\n buffer_store_dword {vF}, {vFA}, {WS}, 0 offen sc1')
    A('s_mov_b32 s79, 0')
    for P in (0, 1):
        for i in range(96, 112): wr_reg(A, SET[P] + i, 0)
    A(f's_mov_b32 s76, 0x33333333\n s_mov_b32 s77, 0x33333333\n s_mov_b32 {sI}, 0\n s_mov_b32 s66, 0\n s_branch L_a_wait0')
    for P in (0, 1):
        l1 = A.lab('La'); l2 = A.lab('La')
        A(f'''L_a_wait{P}:
        s_mov_b32 {sSPIN}, 0
        L_a_spin{P}:
        {poll}
        s_waitcnt vmcnt(0)
        L_a_chk{P}:
        v_cmp_ge_u32 vcc, {sI}, {vP}
        s_bitcmp1_b32 s66, 1
        s_cbranch_scc1 {l1}
        s_cmp_lg_u32 vcc_hi, 0
        s_cbranch_scc1 {l1}''')
        ld_m(P)
        A(f'''s_or_b32 s66, s66, 2
        {l1}:
        s_bitcmp1_b32 s66, 0
        s_cbranch_scc1 {l2}
        s_and_b32 s63, vcc_lo, 0xff
        s_cbranch_scc1 {l2}
        s_mov_b32 s64, {sI}''')
        ld_qkv(P)
        A(f'''s_or_b32 s66, s66, 1
        {l2}:
        s_cmp_eq_u32 s66, 3
        s_cbranch_scc1 L_a_top{P}
        s_add_u32 {sSPIN}, {sSPIN}, 1
        s_cmp_lt_u32 {sSPIN}, {cfg.spin_limit}
        s_cbranch_scc1 L_a_spin{P}
        s_mov_b32 s63, 30
        s_branch L_abort
        L_a_topf{P}:
        s_waitcnt vmcnt(8)''')
        flag()
        A(f'''s_waitcnt vmcnt({0 if 'a' in cfg.sat else 1})
        s_branch L_a_top2{P}
        L_a_top{P}:
        s_waitcnt vmcnt(0)
        L_a_top2{P}:
        s_add_u32 s64, {sI}, 1
        v_cmp_ge_u32 vcc, s64, {vP}''')
        stamp(A, 'v220', sI)
        def variant(ldf, gapc):
            body = capture(A, lambda: compute(P)); ld = capture(A, ldf)
            groups = []; cur = []
            for l in ld:
                cur.append(l)
                if l.strip().startswith('buffer_'): groups.append(cur); cur = []
            k = 0; cost = 0; tot = 0; fl = False
            for l in body:
                A.lines.append(l); c_ = 16 if 'mfma' in l else 6; cost += c_; tot += c_
                if cost >= gapc and k < len(groups): A.lines += groups[k]; k += 1; cost = 0
                if tot > 700 and not fl and l.strip().startswith('v_add_f32'):
                    A(f's_waitcnt vmcnt({k})'); flag(); fl = True
            assert k == len(groups) and fl, (k, len(groups))
        A(f'''s_and_b32 s63, vcc_lo, 0xff
        s_cbranch_scc0 L_a_w{P}
        s_mov_b32 s66, 0''')
        variant(lambda: None, 1)
        A(f's_branch L_a_e{P}\n L_a_w{P}:\n s_cmp_eq_u32 vcc_hi, 0\n s_cbranch_scc1 L_a_ww{P}\n s_mov_b32 s66, 1')
        variant(lambda: ld_qkv(1 - P), 56)
        A(f's_branch L_a_e{P}\n L_a_ww{P}:\n s_mov_b32 s66, 3')
        variant(lambda: (ld_qkv(1 - P), ld_m(1 - P, 's64')), 42)
        A(f'L_a_e{P}:\n {poll}')
        pack()
        stores()
        stamp(A, 'v221', sI)
        A(f'''s_add_u32 {sI}, {sI}, 1
        s_waitcnt vmcnt(8)
        v_cmp_ge_u32 vcc, {sI}, {vP}
        s_cmp_eq_u32 s66, 3
        s_cbranch_scc1 L_a_top2{1-P}
        s_cmp_eq_u32 s66, 0
        s_cbranch_scc1 L_a_idle{P}
        s_cmp_lg_u32 vcc_hi, 0
        s_cbranch_scc1 L_a_idle{P}''')
        ld_m(1 - P)
        A(f'''s_branch L_a_topf{1-P}
        L_a_idle{P}:
        {poll}
        s_waitcnt vmcnt(0)''')
        flag()
        A(f'''s_cmp_ge_u32 {sI}, {NSEG}
        s_cbranch_scc1 L_a_done
        s_mov_b32 {sSPIN}, 0
        s_branch L_a_chk{1-P}''')
    A('L_a_done:\n s_waitcnt vmcnt(0) lgkmcnt(0)')
    dump(A, ['v220', 'v221'])
    A('s_endpgm')

L_MEM = 147456; L_QK = L_MEM + 9216; L_O = L_QK + 4096; L_SM = L_O + 2048
def cwq(T, c): return 80 + (T * 9 + c) * 8
def cwo(t, c2): return 80 + 288 + (t * 2 + c2) * 8
def resident():
    reg = [('k', c) for c in range(9) if c not in cfg.KL] + [('v', c) for c in range(9) if c not in cfg.VL]
    lds = [('k', c) for c in cfg.KL] + [('v', c) for c in cfg.VL]
    assert len(reg) == 9 and len(lds) == 9
    return reg, lds
def cwr(m, T, c): return 80 + 144 + (resident()[0].index((m, c)) * 2 + T) * 8

def chain_mem0(A):
    A(f'''
    v_lshrrev_b32 v2, 4, v1
    v_bfe_u32 v3, v1, 2, 1
    v_lshl_add_u32 v2, v2, 1, v3
    v_mul_u32_u24 v2, 1152, v2
    v_bfe_u32 v3, v1, 3, 1
    v_bfe_u32 v4, v1, 1, 1
    v_lshl_add_u32 v3, v3, 1, v4
    v_and_b32 v4, 1, v1
    {f's_lshr_b32 s63, {sW}, 1{chr(10)} s_lshl_b32 s63, s63, 5{chr(10)} s_and_b32 s64, {sW}, 1{chr(10)} s_lshl_b32 s64, s64, 3{chr(10)} s_add_u32 s63, s63, s64{chr(10)} v_lshl_add_u32 v5, v3, 1, s63{chr(10)} v_add_u32 v5, v5, v4' if cfg.x2 else f's_lshl_b32 s63, {sW}, 2{chr(10)} v_add_u32 v5, s63, v3{chr(10)} v_lshl_add_u32 v5, v4, 5, v5'}
    v_lshl_add_u32 v5, v5, 1, v2
    s_mul_i32 s63, {sW}, 144
    s_add_u32 s63, s63, 128
    v_lshl_add_u32 v6, v3, 2, s63
    v_lshl_add_u32 v6, v4, 1, v6
    v_lshl_add_u32 v6, v6, 1, v2
    s_lshl_b32 s63, {sW}, 8
    s_add_u32 s63, s63, {L_MEM}
    v_lshl_add_u32 v7, v1, 2, s63
    ''')
    for c in range(8):
        o = (144 * (c >> 1) + 64 * (c & 1)) * 2
        A(f'buffer_load_ushort v{40+c}, v5, {SMEM0}, 0 offen offset:{o}')
        A(f'buffer_load_ushort v{50+c}, v5, {SMEM0}, 0 offen offset:{o+32}')
    A(f'buffer_load_dword v48, v6, {SMEM0}, 0 offen')
    return

def chain_mem0b(A):
    for c in range(8): A(f'v_lshl_or_b32 v{40+c}, v{50+c}, 16, v{40+c}')
    for c in range(9): A(f'ds_write_b32 v7, v{40+c} offset:{c*1024}')
    A('s_waitcnt lgkmcnt(0)')


def chain_init(A):
    lane(A, 'v1')
    A(f'''
    v_lshrrev_b32 v2, 5, v1
    v_bfe_u32 v3, v1, 4, 1
    v_bfe_u32 v4, v1, 3, 1
    v_bfe_u32 v5, v1, 2, 1
    v_and_b32 v6, 3, v1
    v_lshlrev_b32 v7, 4, v6
    v_lshl_add_u32 v8, v2, 2, v3
    v_lshl_add_u32 v8, v4, 1, v8
    v_lshlrev_b32 v8, {1 if cfg.x2 else 0}, v8
    v_lshl_add_u32 v8, v5, 4, v8
    v_lshl_add_u32 v10, v8, 13, v7
    v_mul_u32_u24 v8, 144, v2
    v_lshl_add_u32 v8, v3, 2, v8
    v_lshl_add_u32 v8, v4, 3, v8
    v_add_u32 v8, v8, v5
    v_lshl_add_u32 v11, v8, 13, v7
    s_mul_i32 s67, {sW}, 36864
    v_lshrrev_b32 v8, 2, v1
    v_lshl_add_u32 v9, v8, 6, s67
    v_lshl_add_u32 v13, v6, 3, v9
    v_lshl_add_u32 v14, v6, 4, v9
    v_lshrrev_b32 v8, 4, v1
    v_lshl_add_u32 v8, v8, 2, v5
    v_mul_u32_u24 v8, 288, v8
    v_lshl_add_u32 v8, v6, 3, v8
    v_add_u32 v8, s67, v8
    v_lshl_add_u32 v15, v4, 5, v8
    v_mul_u32_u24 v9, 9216, v4
    v_add_u32 v12, v9, v8
    v_lshl_add_u32 v16, v1, 4, s67
    s_lshl_b32 s65, {sT}, 8
    s_lshl_b32 s63, {sW}, 6
    s_add_u32 s65, s65, s63
    s_mul_i32 s66, {sT}, 147456
    s_mul_i32 s63, {sW}, 288
    s_add_u32 s66, s66, s63
    ''')
    for j in range(9):
        A(f'''v_add_u32 v8, {64*j}, v1
        v_mul_u32_u24 v9, 3641, v8
        v_lshrrev_b32 v9, 16, v9
        v_mul_u32_u24 v17, 18, v9
        v_sub_u32 v8, v8, v17
        v_mul_u32_u24 v9, 1152, v9
        v_lshl_add_u32 v{24+j}, v8, 4, v9''')
    def dqkv(srd, c):
        def f(o):
            l = []
            for tau in range(4):
                pi, jh = tau & 1, tau >> 1
                row = 144 * (c >> 1) + 64 * (c & 1) + (32 * jh + pi if cfg.x2 else 32 * pi + 8 * jh) if c < 8 else 288 * jh + 128 + 2 * pi
                l += [f's_add_u32 m0, s67, {o+1024*tau}', f's_add_u32 s69, s65, {row*8192}', f'buffer_load_dwordx4 {"v10" if c < 8 else "v11"}, {srd}, s69 offen lds']
            return l
        return f
    units = []
    tra = lambda m, T: ('v13', 32 * T) if m != 'v' else ('v14', 8 * T)
    for c in range(9):
        units.append((dqkv(SWQ, c), lambda o, c=c: [f'ds_read_b64_tr_b16 {r(cwq(T,c)+2*tau,2)}, v13 offset:{o+1024*tau+32*T}' for T in range(2) for tau in range(4)]))
    for (m, c) in resident()[0]:
        units.append((dqkv(SWK if m == 'k' else SWV, c), lambda o, m=m, c=c: [f'ds_read_b64_tr_b16 {r(cwr(m,T,c)+2*tau,2)}, {tra(m,T)[0]} offset:{o+1024*tau+tra(m,T)[1]}' for T in range(2) for tau in range(4)]))
    ranges = [((i % 9) * 4096, 4096) for i in range(18)]
    for u in range(4):
        def d(o, u=u):
            l = [f's_add_u32 s69, s66, {32*u*1152}']
            for j in range(9): l += [f's_add_u32 m0, s67, {9216*u+1024*j}', 's_nop 0', f'buffer_load_dwordx4 v{24+j}, {SWO}, s69 offen lds']
            return l
        def rd_(o, u=u):
            l = [f'ds_read_b64_tr_b16 {r(cwo(2*p+(u>>1),u&1)+2*tau,2)}, v15 offset:{9216*u+(16*(tau>>1)+2*(tau&1))*288+64*p}' for p in range(4) for tau in range(4)]
            if u & 1: l += [f'ds_read_b64_tr_b16 {r(cwo(8,u>>1)+2*tau,2)}, v12 offset:{9216*(u-1)+(16*(tau>>1)+2*(tau&1))*288+256}' for tau in range(4)]
            return l
        units.append((d, rd_)); ranges.append((9216 * u, 9216))
    for i, (m, c) in enumerate(resident()[1]):
        def rv(o, m=m, i=i):
            b = 36 + 16 * (i & 1); pb = 36 + 16 * ((i + 1) & 1)
            l = [f'ds_read_b64_tr_b16 {v(b+8*ch+2*tau,2)}, {tra(m,ch)[0]} offset:{o+1024*tau+tra(m,ch)[1]}' for ch in range(2) for tau in range(4)]
            if i > 0: l += ['s_waitcnt lgkmcnt(8)'] + [f'ds_write_b128 v16, {v(pb+4*q,4)} offset:{o-4096+1024*q}' for q in range(4)]
            if i == 8: l += ['s_waitcnt lgkmcnt(4)'] + [f'ds_write_b128 v16, {v(b+4*q,4)} offset:{o+1024*q}' for q in range(4)]
            return l
        units.append((dqkv(SWK if m == 'k' else SWV, c), rv))
        ranges.append((i * 4096, 4096))
    dep_fix = True
    staged(A, units, 9, 4096, 's67', pre=cfg.chpre, ranges=ranges, hold={18: 19, 20: 21}, mid=(chain_mem0, chain_mem0b))

(vLM, vWV, vIDX, vQW, vQR, vKR, vSM, vOW, vKMS, vPS, vRS, vKP, vSI, vSV, vSC, vZ) = [f'v{64+i}' for i in range(16)]
def role_chain(A):
    A('L_chain:')
    if not enabled('chain'):
        ln0_hook(A, 0); A('s_endpgm'); return
    warm_sweep(A, 's_mov_b32 s63, 0', True, cfg.ch1wait)
    hold_back(A, 'c' in cfg.hold, F_CH, True)
    chain_init(A)
    validate(A)
    lane(A, 'v1')
    A(f'''
    v_and_b32 v2, 15, v1
    v_lshrrev_b32 v3, 4, v1
    v_and_b32 v8, 3, v1
    v_mov_b32 v6, {OOB}
    v_lshlrev_b32 v4, 4, v1
    v_add_u32 {vLM}, {L_MEM}, v4
    s_mul_i32 s63, {sW}, 36864
    v_add_u32 {vWV}, s63, v4
    s_lshl_b32 s63, {sW}, 10
    s_add_u32 s63, s63, {L_QK}
    s_sub_u32 s66, s63, {L_MEM}
    v_lshlrev_b32 v4, 2, v1
    v_add_u32 {vSM}, {L_SM}, v4
    s_lshl_b32 s67, {sW}, 8
    v_and_b32 v4, 2, v1
    v_cmp_eq_u32 vcc, 0, v4
    v_mov_b32 v5, 0x4444
    v_mov_b32 v7, 0xeeee
    v_cndmask_b32 {vIDX}, v7, v5, vcc
    v_lshlrev_b32 v4, 4, v2
    v_lshl_add_u32 v4, v3, 2, v4
    v_add_u32 {vQW}, s63, v4
    v_bfe_u32 v4, v1, 2, 2
    v_lshl_add_u32 v4, v3, 3, v4
    v_lshl_add_u32 v4, v4, 4, s63
    v_and_b32 v5, 1, v1
    v_lshl_add_u32 {vQR}, v5, 3, v4
    v_bfe_u32 v5, v1, 1, 1
    v_lshl_add_u32 {vKR}, v5, 3, v4
    v_lshrrev_b32 v4, 3, v2
    v_lshl_add_u32 v4, v4, 2, v8
    v_lshlrev_b32 v4, 4, v4
    v_lshl_add_u32 v4, v3, 7, v4
    s_lshl_b32 s64, {sW}, 9
    v_add_u32 v4, s64, v4
    v_and_b32 v5, 4, v1
    v_cmp_eq_u32 vcc, 0, v5
    s_add_u32 s68, s64, {2048 - 2*L_SM}
    s_nop 0
    v_cndmask_b32 {vKMS}, v6, v4, vcc
    s_lshr_b32 s63, {sW}, 1
    s_lshl_b32 s63, s63, 10
    s_and_b32 s64, {sW}, 1
    s_lshl_b32 s64, s64, 5
    s_add_u32 s63, s63, s64
    s_add_u32 s63, s63, {L_O}
    v_lshrrev_b32 v4, 1, v2
    v_lshlrev_b32 v4, 6, v4
    v_and_b32 v5, 1, v1
    v_lshl_add_u32 v4, v5, 4, v4
    v_lshl_add_u32 v4, v3, 8, v4
    v_add_u32 {vOW}, s63, v4
    v_lshrrev_b32 v4, {3 if cfg.x2 else 2}, v2
    v_lshrrev_b32 v5, 5, v1
    v_lshl_add_u32 v4, v4, 1, v5
    v_and_b32 v7, 1, v3
    v_and_b32 v9, {7 if cfg.x2 else 3}, v1
    v_lshl_add_u32 v7, v7, {3 if cfg.x2 else 2}, v9
    v_lshlrev_b32 v7, {3 if cfg.x2 else 4}, v7
    v_lshl_add_u32 {vPS}, v4, 12, v7
    v_bfe_u32 v4, v1, 1, 2
    v_lshlrev_b32 v4, 5, v4
    v_and_b32 v7, 1, v1
    v_lshl_add_u32 v4, v7, 3, v4
    v_lshl_add_u32 v4, v5, 4, v4
    v_and_b32 v7, 1, v3
    v_lshl_add_u32 v4, v7, 2, v4
    v_and_b32 v7, 8, v1
    v_cmp_eq_u32 vcc, 0, v7
    v_bfe_u32 v9, v1, 2, 1
    v_lshl_add_u32 {vSI}, v9, 1, v8
    v_cndmask_b32 {vRS}, v6, v4, vcc
    v_mov_b32 v4, 0x3f80
    v_mov_b32 v5, 0x3f800000
    v_cndmask_b32 v4, v5, v4, vcc
    v_and_b32 v7, 2, v1
    v_cmp_eq_u32 vcc, 0, v7
    s_nop 1
    v_cndmask_b32 {vSV}, 0, v4, vcc
    ''')
    l3 = A.lab('Lw3')
    A(f'''
    s_lshl_b32 s63, {sL}, 5
    s_add_u32 s63, s63, {sT}
    s_lshl_b32 s63, s63, 7
    s_add_u32 s64, s63, {F_QKV}
    s_mov_b32 s54, s64
    s_add_u32 s55, s63, {F_CH}
    v_and_b32 v4, {1 if cfg.shq else 0}, v1
    v_lshl_add_u32 {vKP}, v4, 2, s64
    s_cmp_lg_u32 {sW}, 3
    s_cbranch_scc1 {l3}
    v_lshlrev_b32 v4, 8, v8
    v_add_u32 {vSI}, {L_SM}, v4
    s_add_u32 s64, s63, {F_CH}
    v_cmp_eq_u32 vcc, 0, v1
    v_mov_b32 v4, s64
    s_nop 0
    v_cndmask_b32 {vRS}, v6, v4, vcc
    {l3}:
    s_mul_i32 s71, {sL}, {64*32}
    s_add_u32 s71, s71, {sT}
    s_mul_i32 s72, s71, 4096
    s_add_u32 s72, s72, {KVM}
    s_mul_i32 s71, s71, 24576
    s_add_u32 s94, s71, {QKV + 8192}
    s_lshl_b32 s63, {sW}, 11
    s_add_u32 s71, s71, s63
    s_add_u32 s71, s71, {QKV + 8192 - L_MEM}
    s_add_u32 s70, s71, 8192
    s_mul_i32 s73, {sL}, {2*RSLOT}
    s_add_u32 s73, s73, {RING0}
    s_lshl_b32 s74, {sW}, 5
    s_add_u32 s74, s74, {sT}
    s_lshl_b32 s63, {sT}, 7
    s_add_u32 s63, s63, s73
    s_lshl_b32 s64, {sW}, 16
    s_add_u32 s85, s63, s64
    s_add_u32 s86, s85, 32768
    s_lshl_b32 s64, {sW}, 13
    s_add_u32 s87, s63, s64
    s_add_u32 s87, s87, {64*4096}
    s_lshl_b32 s83, s74, 12
    s_add_u32 s83, s83, s73
    s_sub_u32 s83, s83, {L_MEM}
    s_mov_b32 s82, {RSLOT}
    s_mul_i32 s75, {sL}, {3*9216}
    s_add_u32 s75, s75, {MEM0}
    s_lshl_b32 s63, s74, 7
    s_add_u32 s88, s75, s63
    s_add_u32 s89, s88, 9216
    s_add_u32 s90, s88, 18432
    s_mul_i32 s91, {sW}, 3072
    s_sub_u32 s91, s91, s63
    s_sub_u32 s91, s91, {L_MEM}
    s_mov_b32 s77, {f2u(128**-0.5*LOG2E):#x}
    s_mov_b32 s78, 0x00ff00ff
    s_mov_b32 s79, 0x00ff00ff
    s_mov_b32 s92, 0x0000ffff
    s_mov_b32 s93, 0x0000ffff
    s_mov_b32 s84, 1
    s_mov_b32 s4, 0x3f803f80
    s_mov_b32 s5, 0x3f803f80
    s_mov_b32 {sI}, 0
    ''')
    l4 = A.lab('Lnr')
    A(f'v_mov_b32 {vSI}, -1\n s_cmp_lt_u32 s74, 72\n s_cbranch_scc1 {l4}\n v_mov_b32 {vRS}, {OOB}\n {l4}:')
    A(f's_cmp_lg_u32 {sSLOW}, 0\n s_cbranch_scc1 L_chs')
    chain_loop(A, 'L_chf', '')
    A('L_chs:')
    chain_loop(A, 'L_chs', ' sc1')

def chain_loop(A, name, loc):
    KX, AQ, AK, AR, BB, AV = 0, 8, 16, [24, 28], [32, 40, 48], 56
    sm = 'v_smfmac_f32_16x16x64_bf16'
    ACCS = [12, 13, 14, 15, 16, 17, 18, 19, 24, 25, 26, 27]
    NPS = 12
    def pst(k): return f's_memtime s[{28+2*k}:{29+2*k}]' if cfg.timing == True else ''
    def ps(k): A(pst(k))
    if cfg.timing:
        for k in range(NPS): A(f's_mov_b32 s{ACCS[k]}, 0\n s_mov_b32 s{28+2*k}, 0')
        A('s_mov_b32 s52, 0')
    REG, LDS = resident()
    seqA = []
    for c in range(9):
        seqA += [('k', 0, c), ('q', 0, c), ('k', 1, c), ('q', 1, c)] if c in cfg.KL else [('q', 0, c), ('q', 1, c), ('k', 0, c), ('k', 1, c)]
    seqV = [('v', T, c) for c in cfg.VORD for T in range(2)]
    fed = [x for x in seqA + seqV if (x[0], x[2]) in LDS]
    def brd(n):
        m, T, c = fed[n]
        return [f'ds_read_b128 {v(BB[n%3]+4*hb,4)}, {vWV} offset:{LDS.index((m,c))*4096+(2*T+hb)*1024} #b{n}' + ('x' if hb == 0 else '') for hb in range(2)]
    chunks = list(range(9)) + cfg.VORD
    assert cfg.VORD[:2] == [7, 8]
    NF = len(fed)
    xs = {16: BB[(NF - 3) % 3] + 4, 17: BB[(NF - 2) % 3] + 4}
    def aslot(i): return xs[i] if i in xs else AR[i & 1]
    def ard(i): return f'ds_read_b128 {v(aslot(i),4)}, {vLM} offset:{chunks[i]*1024} #a{i}'
    def mm(x, i):
        m, T, c = x
        acc = {'q': AQ, 'k': AK, 'v': AV}[m] + 4 * T
        pre = [f'@lw a{i}']; post = []
        if x in fed:
            n = fed.index(x); b = v(BB[n % 3], 8); pre.append(f'@lw b{n}')
            if n + 3 < len(fed): post = brd(n + 3)
        else: b = r(cwq(T, c) if m == 'q' else cwr(m, T, c), 8)
        return pre, f'{sm} {v(acc,4)}, {v(aslot(i),4)}, {b}, {vIDX}', post
    strip = lambda l: l.split('#')[0]
    def pre_reads():
        for n in range(3):
            for x in brd(n): A(strip(x))
    zero = [f'v_mov_b64 {v(i,2)}, 0' for i in list(range(8, 24, 2)) + list(range(56, 64, 2))]
    pre_reads()
    for x in zero: A(x)
    sel = f's_cmp_lg_u32 s76, 0\n s_cselect_b32 s80, s71, {OOB}\n s_cselect_b32 s81, s70, {OOB}'
    A(f'buffer_load_dword v0, {vKP}, {WS}, 0 offen sc1\n s_add_u32 s63, s83, s82')
    for so in ('s83', 's63'):
        for i in range(4): A(f'buffer_load_dwordx4 v[4:7], {vLM}, {WS}, {so} offen offset:{1024*i} sc1')
    for so in ('s88', 's89', 's90'): A(f's_sub_u32 s63, {so}, {L_SM}\n buffer_load_dword v4, {vSM}, {WS}, s63 offen sc1')
    A(f'''s_waitcnt vmcnt(11)
    v_cmp_eq_u32 vcc, 0, v0
    s_mov_b32 s69, {OOB}
    s_cmp_eq_u64 vcc, 0
    s_cselect_b32 s76, 1, 0
    {sel}''')
    A(f'{name}_top:')
    ps(11)
    A(f's_waitcnt lgkmcnt(0)\n s_barrier')
    if cfg.timing == 2: A('s_memrealtime s[96:97]')
    A(f'{name}_top2:')
    if cfg.timing == True:
        ls = A.lab('Lts')
        A(f's_memtime s[52:53]\n s_waitcnt lgkmcnt(0)\n s_cmp_lt_u32 {sI}, 8\n s_cbranch_scc1 {ls}')
        for k in range(NPS):
            A(f's_sub_u32 s63, s{30+2*k}, s{28+2*k}\n s_add_u32 s{ACCS[k]}, s{ACCS[k]}, s63')
        A(f'{ls}:')
    if cfg.timing != 2: stamp(A, vZ, sI)
    ps(0)
    VX = [20, 8]
    kld = [f'buffer_load_dwordx4 {v(KX+4*q,4)}, {vLM}, {WS}, s71 offen offset:{1024*q} sc1' for q in range(2)]
    vld = [f'buffer_load_dwordx4 {v(VX[q],4)}, {vLM}, {WS}, s70 offen offset:{1024*q} sc1' for q in range(2)]
    pk = lambda d, b: f'v_pk_add_f32 {v(d,2)}, {v(b,2)}, {v(b+2,2)}'
    ad = lambda b: [f'v_add_f32 {v(b)}, {v(b)}, {v(b+2)}', f'v_add_f32 {v(b+1)}, {v(b+1)}, {v(b+3)}']
    cv = lambda d, b: f'v_cvt_pk_bf16_f32 {v(d)}, {v(b)}, {v(b+1)}'
    L = [ard(0), ard(1), kld[0].replace('s71', 's80'), kld[1].replace('s71', 's80'), 's_cmp_eq_u32 s76, 0', f's_cbranch_scc1 {name}_m1', f'{name}_m1r:']
    extra = {cfg.tpos: [f'v_lshlrev_b32 {vSC}, 2, {vLM}', f's_sub_u32 s63, s81, {3*L_MEM}'],
             cfg.tpos + 1: ['s_mov_b32 exec_hi, 0', f'buffer_load_dword {vSC}, {vSC}, {WS}, s63 offen sc1', 's_mov_b32 exec_hi, -1'],
             cfg.midchk: ['s_cmp_eq_u32 s76, 0', f's_cbranch_scc1 {name}_m2', f'{name}_m2r:'],
             34: [f's_cmp_eq_u32 {sI}, {NSEG-1}']}
    if cfg.rstpos: extra[cfg.rstpos] = [f'buffer_store_dword {vSI}, {vRS}, {WS}, s90 offen{loc}']
    pend = []
    for j, x in enumerate(seqA):
        i = j // 4
        pre, m_, post = mm(x, i)
        L += pre + [m_]
        pend += post
        if j % 4 == 3 and i + 2 < 9: pend.append(ard(i + 2))
        if pend: L.append(pend.pop(0))
        if len(pend) > 1: L.append(pend.pop(0))
        L += extra.get(j, [])
    L += pend; pend = []
    L.append(pst(1))
    vq = list(enumerate(seqV))
    def vrun(n, fill=()):
        o = []; fill = list(fill)
        for _ in range(n):
            j, x = vq.pop(0); i = 9 + j // 2
            pre, m_, post = mm(x, i)
            o += pre + [m_] + post
            if j % 2 == 1 and i + 2 < 16: o.append(ard(i + 2))
            if x == fed[NF - 3]: o.append(ard(16))
            if x == fed[NF - 2]: o.append(ard(17))
            if fill: o += fill.pop(0)
        return o
    g = cfg.vgaps
    L += vrun(g[0], [['s_nop 0'], ad(AQ)])
    L += ad(AQ + 4) + [cv(10, AQ), cv(11, AQ + 4), f'ds_write2_b32 {vQW}, v10, v11 offset0:0 offset1:64', pk(AK, AK), pk(AK + 4, AK + 4),
          f'ds_read_b64_tr_b16 v[8:9], {vQR}', cv(18, AK), cv(19, AK + 4), f'ds_write2_b32 {vQW}, v18, v19 offset0:128 offset1:192',
          f'ds_read_b64_tr_b16 v[10:11], {vQR} offset:64 #q', f'ds_read_b64_tr_b16 v[12:13], {vKR} offset:512', f'ds_read_b64_tr_b16 v[14:15], {vKR} offset:576 #k']
    state = Sched(['\n'.join(L)]).emit(A)
    A(f's_cbranch_scc1 {name}_late')
    vsave = list(vq)
    smf = [f'{M16} v[16:19], v[0:3], v[8:11], 0', f'{M16} v[20:23], v[4:7], v[8:11], 0', f'{M16} v[0:3], v[12:15], v[8:11], 0']
    kmst = f'buffer_store_dwordx4 v[12:15], {vKMS}, {WS}, s72 offen sc1'
    def smid(withv, st):
        run = (lambda n, f=(): vrun(n, f)) if withv else (lambda n, f=(): [y for x in f for y in x])
        L = run(g[2], [[f'v_add_u32 v4, s66, {vLM}'], [f'v_add_u32 v5, s67, {vSM}']])
        L += [f's_nop {cfg.snop if withv else 5}'] + [f'v_cndmask_b32 v{16+q}, v{20+q}, v{16+q}, vcc' for q in range(4)]
        L += ['ds_write_b128 v4, v[16:19]', 'v_cndmask_b32 v0, v1, v0, vcc', 'v_cndmask_b32 v2, v3, v2, vcc', 'v_cndmask_b32 v0, v2, v0, s[92:93]', 'ds_write_b32 v5, v0 #sw']
        L += run(g[3], [[vld[0]], [vld[1]]])
        L += ['@lw sw', 's_barrier', pst(4)]
        XR = [0, 4, 40, 16]
        L += [f'ds_read_b128 {v(XR[w],4)}, {vLM} offset:{L_QK-L_MEM+1024*w} #s{w}' for w in range(4)]
        L += [f'ds_read2st64_b32 v[32:33], {vSM} offset0:0 offset1:1', f'ds_read2st64_b32 v[34:35], {vSM} offset0:2 offset1:3 #st']
        L += ([kmst] if cfg.kmpos == 0 else []) + run(g[4])
        L += ['@lw st']
        Sched(['\n'.join(L)]).emit(A, st)
    assert seqV.index(fed[-1]) < sum(g[:4]) and NF % 3 == 0
    L = vrun(g[1], [['s_cmp_lg_u32 s76, 1']]) + [f's_cbranch_scc1 {name}_m3', f'{name}_m3r:', 's_mov_b64 vcc, s[78:79]', pst(2), f's_waitcnt vmcnt({2 if cfg.rstpos else 1})', '@lw q', pst(3), smf[0], smf[1], '@lw k', smf[2]]
    st2 = Sched(['\n'.join(L)]).emit(A, state)
    smid(True, st2)
    assert not vq
    vmst = [pk(36, AV), pk(38, AV + 4), cv(40, 36), cv(41, 38), f'v_lshl_add_u32 v42, {vSM}, 1, s68', f'buffer_store_dwordx2 v[40:41], v42, {WS}, s72 offen sc1']
    A(f'''{name}_join:
    v_pk_add_f32 v[0:1], v[0:1], v[4:5]
    v_pk_add_f32 v[2:3], v[2:3], v[6:7]
    v_pk_add_f32 v[16:17], v[40:41], v[16:17]
    v_pk_add_f32 v[18:19], v[42:43], v[18:19]
    v_pk_add_f32 v[32:33], v[32:33], v[34:35]
    v_pk_add_f32 v[0:1], v[0:1], v[16:17]
    v_pk_add_f32 v[2:3], v[2:3], v[18:19]
    v_add_f32 v4, v32, v33
    v_max3_f32 v24, v0, v1, v2
    v_max3_f32 v24, v24, v3, v4
    {vmst[0]}
    {vmst[1]}
    v_max_f32_dpp v24, v24, v24 row_ror:8 row_mask:0xf bank_mask:0xf
    v_mov_b32 v25, v24
    {vmst[2]}
    {vmst[3]}
    v_permlane16_swap_b32 v24, v25
    v_max_f32 v24, v24, v25
    v_mov_b32 v25, v24
    v_mov_b64 v[44:45], s[96:97]
    v_mov_b64 v[46:47], s[96:97]
    v_permlane32_swap_b32 v24, v25
    v_max_f32 v24, v24, v25
    v_mul_f32 v24, s77, v24'''.replace('s[96:97]', 's[4:5]'))
    X = [4, 0, 1, 2, 3]
    for x in X: A(f'v_fma_f32 v{x}, v{x}, s77, -v24')
    for x in X: A(f'v_exp_f32 v{x}, v{x}')
    kq = cfg.kmpos
    A(f'''v_cvt_pk_bf16_f32 v36, v0, v1
    v_cvt_pk_bf16_f32 v37, v2, v3
    v_mov_b32_dpp v5, v4 row_ror:8 row_mask:0xf bank_mask:0xf
    v_mov_b32_dpp v38, v36 row_ror:8 row_mask:0xf bank_mask:0xf
    v_mov_b32_dpp v39, v37 row_ror:8 row_mask:0xf bank_mask:0xf
    v_cvt_pk_bf16_f32 v16, v4, v5
    {pst(5)}
    s_waitcnt vmcnt({1 if kq == 0 else 0})
    {pst(6)}
    {M16} v[32:35], v[44:47], v[36:39], 0
    v_mov_b32 v17, 0
    {M16} v[24:27], {v(VX[0],4)}, v[36:39], 0
    v_mov_b32 v18, 0
    {M16} v[28:31], {v(VX[1],4)}, v[36:39], 0
    v_mov_b32 v19, v16
    {vmst[4]}
    v_mfma_f32_16x16x16_bf16 v[32:35], v[44:45], v[16:17], v[32:35]
    v_and_b32 v43, 0xffffffdf, {vLM}
    v_mfma_f32_16x16x16_bf16 v[24:27], v[40:41], v[16:17], v[24:27]
    v_mov_b64 v[48:49], 0
    v_mfma_f32_16x16x16_bf16 v[28:31], v[40:41], v[18:19], v[28:31]
    {vmst[5]}
    v_mov_b64 v[50:51], 0
    v_mov_b64 v[52:53], 0
    v_mov_b64 v[54:55], 0
    v_rcp_f32 v32, v32
    v_mov_b64 v[56:57], 0
    v_pk_mul_f32 v[24:25], v[24:25], v[32:33] op_sel_hi:[1,0]
    v_pk_mul_f32 v[26:27], v[26:27], v[32:33] op_sel_hi:[1,0]
    v_pk_mul_f32 v[28:29], v[28:29], v[32:33] op_sel_hi:[1,0]
    v_pk_mul_f32 v[30:31], v[30:31], v[32:33] op_sel_hi:[1,0]''')
    for d in range(4): A(f'v_cvt_pk_bf16_f32 v{36+d}, v{24+2*d}, v{25+2*d}')
    rest = lines(f'''v_mov_b64 v[58:59], 0
    v_mov_b64 v[60:61], 0
    v_mov_b64 v[62:63], 0
    v_mov_b64 v[44:45], 0
    v_mov_b64 v[46:47], 0
    v_and_b32 v34, 0x7c, {vSM}
    v_bfe_u32 v35, {vSM}, 7, 1
    v_lshl_add_u32 v34, v35, 12, v34''')
    A(f's_mov_b64 exec, s[78:79]\n ds_write_b128 {vOW}, v[36:39]\n s_mov_b64 exec, -1')
    if kq == 1: A(kmst)
    else:
        for x in rest: A(x)
    A('s_waitcnt lgkmcnt(0)\n s_barrier')
    if cfg.timing == 2: A(f's_mov_b32 m0, {sI}\n s_nop 0\n v_writelane_b32 {vZ}, s96, m0')
    for u in range(4): A(f'ds_read_b128 {v(4*u,4)}, v43 offset:{L_O-L_MEM+1024*(u>>1)+32*(u&1)}')
    for c2 in range(2): A(f'ds_read_b128 {v(16+4*c2,4)}, {vLM} offset:{L_O-L_MEM+1024*c2}')
    if kq == 1:
        for x in rest: A(x)
    for x in [f's_add_u32 s71, s71, {32*24576}', f's_add_u32 s70, s70, {32*24576}', f's_add_u32 s72, s72, {32*4096}', f's_add_u32 {sI}, {sI}, 1',
              's_add_u32 s95, s89, s91', f's_mov_b32 {sSPIN}, 0', f's_cmp_eq_u32 {sW}, 3']: A(x)
    ps(7)
    pm = lambda p, u: f'{sm} {v(48+4*p,4)}, {v(4*u,4)}, {r(cwo(2*p+(u>>1),u&1),8)}, {vIDX}'
    mains = []
    for u in range(4):
        mains += [f's_waitcnt lgkmcnt({5-u})\n' + pm(0, u), pm(1, u)]
    t8 = [f's_waitcnt lgkmcnt(0)\n {sm} v[44:47], v[16:19], {r(cwo(8,0),8)}, {vIDX}', f'{sm} v[44:47], v[20:23], {r(cwo(8,1),8)}, {vIDX}']
    p23 = [pm(2, u) for u in range(4)] + [pm(3, u) for u in range(4)]
    st0 = f'buffer_store_dwordx4 v[24:27], {vPS}, {WS}, s85 offen{loc}'
    st1 = f'buffer_store_dwordx4 v[28:31], {vPS}, {WS}, s86 offen{loc}'
    st8 = f'buffer_store_dword v33, v34, {WS}, s87 offen{loc}'
    if cfg.x2:
        m2 = [f's_waitcnt lgkmcnt({5-u})\n' + pm(0, u) for u in range(4)] + [pm(p, u) for p in (1, 2, 3) for u in range(4)] + t8
        S = Sched(m2)
        so = ['s85', 's64', 's86', 's65']
        def out(p): return [cv(24 + 2 * p, 48 + 4 * p), cv(25 + 2 * p, 50 + 4 * p), f'v_and_or_b32 v{24+2*p}, v{24+2*p}, -2, s84',
                            f'buffer_store_dwordx2 {v(24+2*p,2)}, {vPS}, {WS}, {so[p]} offen{loc}']
        S.put(3, 's_add_u32 s64, s85, 16384\n s_add_u32 s65, s86, 16384'); S.put(4, 's_nop 0'); S.put(5, 's_nop 0'); S.put(6, f's_cmp_eq_u32 {sW}, 3')
        for p in range(3):
            o = out(p)
            S.put(7 + 4 * p, o[0]); S.put(8 + 4 * p, o[1]); S.put(9 + 4 * p, o[2] + '\n' + o[3])
            if p < 2: S.put(10 + 4 * p, 's_nop 0')
        S.emit(A)
        A('s_nop 0')
        for x in out(3): A(x)
        A(f's_nop 0\n {pk(44, 44)}\n {cv(33, 44)}\n v_and_or_b32 v33, v33, -2, s84\n {st8}')
    elif cfg.woord == 0:
        S = Sched(mains + t8 + p23)
        for q in (7, 8, 9, 10): S.put(q, 's_nop 0')
        S.put(11, cv(24, 48) + '\n' + cv(25, 50)); S.put(12, cv(26, 52) + '\n' + cv(27, 54))
        S.put(13, f'v_and_or_b32 v24, v24, -2, s84\n {st0}')
        S.put(14, '\n'.join(ad(44))); S.put(15, cv(33, 44)); S.put(16, 'v_and_or_b32 v33, v33, -2, s84')
        S.put(17, st8)
        S.emit(A)
        A(f'{cv(28, 56)}\n {cv(29, 58)}\n v_and_or_b32 v28, v28, -2, s84\n s_nop 3\n {cv(30, 60)}\n {cv(31, 62)}\n {st1}')
    elif cfg.woord == 1:
        S = Sched(mains + p23 + t8)
        for q in (7, 8, 9, 10): S.put(q, 's_nop 0')
        S.put(11, cv(24, 48) + '\n' + cv(25, 50)); S.put(12, cv(26, 52) + '\n' + cv(27, 54))
        S.put(13, f'v_and_or_b32 v24, v24, -2, s84\n {st0}')
        S.put(15, cv(28, 56)); S.put(16, cv(29, 58)); S.put(17, 'v_and_or_b32 v28, v28, -2, s84')
        S.emit(A)
        A(f's_nop 1\n {cv(30, 60)}\n {cv(31, 62)}\n {st1}\n s_nop 1\n {pk(44, 44)}\n {cv(33, 44)}\n v_and_or_b32 v33, v33, -2, s84\n {st8}')
    else:
        S = Sched(mains + t8 + p23)
        for q, x in zip(range(7, 18), ['s_nop 0'] * 4 + [cv(24, 48), cv(25, 50), cv(26, 52), cv(27, 54), 'v_and_or_b32 v24, v24, -2, s84'] + ad(44)): S.put(q, x)
        S.emit(A)
        A(f'{st0}\n {cv(28, 56)}\n {cv(29, 58)}\n v_and_or_b32 v28, v28, -2, s84\n {cv(33, 44)}\n v_and_or_b32 v33, v33, -2, s84\n s_nop 0\n {cv(30, 60)}\n {cv(31, 62)}\n {st1}\n {st8}')
    ps(8); ps(9); ps(10)
    rot = lines(f'''s_mov_b32 s63, s88
    s_mov_b32 s88, s89
    s_mov_b32 s89, s90
    s_mov_b32 s90, s63
    s_add_u32 s85, s85, s82
    s_add_u32 s86, s86, s82
    s_add_u32 s87, s87, s82
    s_add_u32 s83, s83, s82
    s_sub_u32 s82, 0, s82
    s_bfe_u32 s84, {sI}, 0x10001
    s_xor_b32 s84, s84, 1''')
    pre_reads()
    A(f'''s_load_dwordx2 s[64:65], s[8:9], s54 glc
    s_cbranch_scc1 {name}_w3
    s_cmp_ge_u32 s74, 72
    s_cbranch_scc1 {name}_nred''')
    rdy = f's_waitcnt lgkmcnt(0)\n {"s_min_u32 s64, s64, s65" if cfg.shq else ""}\n s_cmp_gt_u32 s64, {sI}\n s_cselect_b32 s76, 1, 0\n' + sel
    SEL = 60
    for d, mk_ in enumerate((0x01010101, 0x02020202, 0x10101010, 0x20202020)):
        A(f's_mov_b32 vcc_lo, {mk_:#x}\n s_mov_b32 vcc_hi, {mk_:#x}\n v_cndmask_b32 {v(SEL+d)}, 0, {vSV}, vcc')
    if cfg.w1: A(f's_waitcnt vmcnt({cfg.w1 - 1})')
    for i in range(cfg.d1): A('s_nop 7')
    ps(9)
    GS = [[0, 4, 8, 12], [16, 20, 24, 28]]
    def gissue(k):
        for i in range(4): A(f'buffer_load_dwordx4 {v(GS[k][i],4)}, {vLM}, {WS}, s83 offen offset:{1024*i} sc1')
    def gproc(k):
        G = GS[k]
        A(f'''s_waitcnt vmcnt(6)
        {M16} v[56:59], {v(SEL,4)}, {v(G[0],4)}, 0
        v_xor_b32 {vSC}, s84, v{G[0]}
        {M16} v[56:59], {v(SEL,4)}, {v(G[1],4)}, v[56:59]
        v_bitop3_b32 {vSC}, {vSC}, v{G[1]}, s84 bitop3:0xf6
        s_waitcnt vmcnt(5)
        {M16} v[56:59], {v(SEL,4)}, {v(G[2],4)}, v[56:59]
        v_bitop3_b32 {vSC}, {vSC}, v{G[2]}, s84 bitop3:0xf6
        s_waitcnt vmcnt(4)
        {M16} v[56:59], {v(SEL,4)}, {v(G[3],4)}, v[56:59]
        v_bitop3_b32 {vSC}, {vSC}, v{G[3]}, s84 bitop3:0xf6
        v_and_b32 {vSC}, 1, {vSC}
        v_cmp_ne_u32 vcc, 0, {vSC}
        s_add_u32 {sSPIN}, {sSPIN}, 1
        v_mov_b32 {vSC}, -1
        s_nop 2
        v_add_f32_dpp v56, v56, v56 row_ror:8 row_mask:0xf bank_mask:0xf
        v_add_f32_dpp v57, v57, v57 row_ror:8 row_mask:0xf bank_mask:0xf
        v_cvt_pk_bf16_f32 v58, v56, v57
        v_min_u32 v58, -2, v58
        s_cbranch_vccz {name}_gok
        {'s_addk_i32 s12, 1' if cfg.timing == 6 else ''}''')
    gissue(0)
    if cfg.w2 is not None: A(f's_waitcnt vmcnt({cfg.w2})')
    for i in range(cfg.d2): A('s_nop 7')
    A(f'{name}_g:')
    gissue(1); gproc(0); gissue(0); gproc(1)
    A(f'''s_cmp_lt_u32 {sSPIN}, {cfg.spin_limit}
    s_cbranch_scc1 {name}_g
    s_mov_b32 s63, 41
    s_branch L_abort
    {name}_gok:
    buffer_store_dword v58, {vRS}, {WS}, s89 offen{loc}
    {'' if cfg.rstpos else f'buffer_store_dword {vSC}, {vRS}, {WS}, s88 offen{loc}'}''')
    ps(10)
    lp = A.lab('Lp')
    A(f'{name}_poll:\n s_barrier')
    for x in rot: A(x)
    def pissue():
        for q in range(3): A(f'buffer_load_dwordx4 {vLM}, {WS}, s95 offen offset:{1024*q} sc1 lds')
    A(f'''s_mul_i32 s63, {sW}, 3072
    s_add_u32 m0, s63, {L_MEM}
    s_waitcnt vmcnt({min(cfg.w3, 1) if cfg.rstpos else cfg.w3})
    v_add_u32 {vSC}, s63, {vLM}''')
    for i in range(cfg.d3): A('s_nop 7')
    if cfg.zfirst:
        for x in zero: A(x)
    pissue()
    if not cfg.zfirst:
        for x in zero: A(x)
    A(rdy)
    if cfg.w4 is not None: A(f's_waitcnt vmcnt({cfg.w4})')
    for i in range(cfg.d4): A('s_nop 7')
    A(f'{lp}:')
    pissue()
    A(f'''s_waitcnt vmcnt(3)
    ds_read_b128 v[24:27], {vSC}
    ds_read_b128 v[28:31], {vSC} offset:1024
    ds_read_b128 v[4:7], {vSC} offset:2048
    s_add_u32 {sSPIN}, {sSPIN}, 1
    s_waitcnt lgkmcnt(1)
    v_max3_u32 v0, v24, v25, v26
    v_max3_u32 v1, v27, v28, v29
    v_max3_u32 v0, v0, v30, v31
    s_waitcnt lgkmcnt(0)
    v_max3_u32 v1, v1, v4, v5
    v_max3_u32 v0, v0, v6, v7
    v_max_u32 v0, v0, v1
    v_cmp_eq_u32 vcc, -1, v0
    s_cbranch_vccz {name}_top
    {'s_add_u32 s13, s13, 1' if cfg.timing == 6 else ''}
    s_cmp_lt_u32 {sSPIN}, {cfg.spin_limit}
    s_cbranch_scc1 {lp}
    s_mov_b32 s63, 42
    s_branch L_abort
    {name}_nred:
    s_waitcnt vmcnt({5 if cfg.x2 else 3})
    s_branch {name}_poll
    {name}_w3:
    {rdy}
    s_mov_b32 s69, 1
    s_waitcnt vmcnt({5 if cfg.x2 else 3})
    s_barrier
    s_atomic_add s69, s[8:9], s55''')
    for x in zero + rot: A(x)
    A(f's_barrier\n s_branch {name}_top2')
    touch = f'v_lshlrev_b32 {vSC}, 2, {vLM}\n s_sub_u32 s63, s70, {3*L_MEM}\n s_mov_b32 exec_hi, 0\n buffer_load_dword {vSC}, {vSC}, {WS}, s63 offen sc1\n s_mov_b32 exec_hi, -1'
    A(f'''{name}_m1:
    buffer_load_dword v0, {vKP}, {WS}, 0 offen sc1
    s_branch {name}_m1r
    {name}_m2:
    s_waitcnt vmcnt(0)
    v_cmp_ge_u32 vcc, {sI}, v0
    s_cbranch_vccnz {name}_m2r
    {kld[0]}
    {kld[1]}
    {touch}
    s_mov_b32 s76, 2
    s_branch {name}_m2r
    {name}_m3:
    s_cmp_eq_u32 s76, 2
    s_cbranch_scc1 {name}_m4
    s_add_u32 s64, {sI}, 1''')
    spin(A, 'v0', vKP, 's64', 40)
    A(f'''{kld[0]}
    {kld[1]}
    {touch}
    s_waitcnt vmcnt(1)
    {name}_m4:
    s_branch {name}_m3r''')
    A(f'{name}_late:')
    vq[:] = vsave
    Sched(['\n'.join(vrun(len(vq)) + ['@lw k', kmst, 's_nop 6'] + vmst)]).emit(A, state)
    A(f'''s_waitcnt vmcnt(0) lgkmcnt(0)
    s_barrier
    s_cmp_lg_u32 {sW}, 3
    s_cbranch_scc1 {name}_fin
    s_mov_b32 s69, 1
    s_atomic_add s69, s[8:9], s55
    s_waitcnt lgkmcnt(0)
    {name}_fin:''')
    if cfg.timing:
        for k in range(NPS): A(f'v_writelane_b32 v10, s{ACCS[k]}, {k}')
    dump(A, [vZ, 'v10'])
    A('s_endpgm')

cfg.x_nospin = cfg.x_nopf = cfg.x_latereset = False
cfg.x_drop = []; cfg.nt = False; cfg.x_nost = 0; cfg.x_same = False; cfg.x_nopf = True; cfg.attld = 'sc1'; cfg.attst = 'sc1'; cfg.shq = True; cfg.shu = True; cfg.lowlate = ''; cfg.wts = (0.7, 2.0, 1.3, 1.5, 1.0, 0.6, 1.0); cfg.cap = 2.0; cfg.rgring = (4, 4); cfg.rgra = 3; cfg.rgdma = (25, 4); cfg.upsig = (False, 38, 3, 44, None); cfg.soft = ''; cfg.softq = (12, 6, 2); cfg.qalt = 8; cfg.ktouch = False; cfg.tpos = 8; cfg.rstpos = 0; cfg.w2 = 3; cfg.w4 = 2; cfg.zfirst = False; cfg.x2 = True; cfg.kmpos = 0; cfg.woord = 1; cfg.midchk = 15; cfg.flagpos = 23; cfg.qplan = None; cfg.uplan = (12, 48); cfg.chpre = (2, 2); cfg.hold = ''; cfg.rgpoll = True; cfg.dq = (8, 8, 6, 5, 5); cfg.rp0 = 0; cfg.rp1 = 5
cfg.d1 = 0; cfg.d2 = 0; cfg.d3 = 0; cfg.delay1 = True; cfg.ch1wait = False; cfg.pre0 = 0; cfg.pre1 = 1; cfg.vtouch = True; cfg.lateflag = True; cfg.w1 = 1; cfg.w3 = 2; cfg.w1 = 3; cfg.d1 = 0; cfg.d2 = 0; cfg.d3 = 0; cfg.d4 = 0
cfg.KL = [0, 1, 3, 4, 6, 7]; cfg.VL = [0, 1, 2]; cfg.VORD = [7, 8, 0, 3, 1, 2, 4, 5, 6]; cfg.vgaps = [2, 4, 2, 4, 6]; cfg.snop = 1
def build():
    A = Asm()
    kernel_begin(A, KNAME)
    prologue(A)
    role_chain(A)
    role_qkv(A)
    role_up(A)
    A('L_abort_b:\n s_branch L_abort\n L_rerank_b:\n s_branch L_rerank\n L_att:\n s_branch L_att_b\n L_red:\n s_branch L_red_b')
    n0 = len(A.lines)
    role_rg(A, 'L_wo', 'wo', 16, SWO, OB, 262144, PW, F_WO, 50)
    role_rg(A, 'L_dn', 'dn', 18, SW2, HB, 294912, PD, F_DN, 51)
    role_att(A)
    role_red(A)
    for i in range(n0, len(A.lines)):
        l = A.lines[i]
        if l.endswith(('L_abort', 'L_rerank')): A.lines[i] = l + '_b'
        if l in ('L_att:', 'L_red:'): A.lines[i] = l[:-1] + '_b:'
    A('s_endpgm\n L_code_end:')
    return build_file([(KNAME, 256, 256, LDS_BYTES)], A.text(), [descriptor(KNAME)])

if __name__ == '__main__':
    out = sys.argv[1] if len(sys.argv) > 1 else 'interleave_layers__memory_aug_recurrent_mem_tr__glu_gated_swiglu__prompt.s'
    open(out, 'w').write(build())
```

```python
import sys
from asm import *
from layout import *

KNAME = 'interleave_layers__memory_aug_recurrent_mem_tr__glu_gated_swiglu__prompt_kernel'
WS, SX, SOUT, SDBG, SMEM0, SWQ, SWK, SWV, SWO, SW1, SW3, SW2 = [f's[{8+4*i}:{11+4*i}]' for i in range(12)]
sX, sT, sW, sSLOW, sL, sI, sSPIN = 's56', 's57', 's58', 's59', 's60', 's61', 's62'
OOB = 0x7ffffff0
LOG2E = 1.4426950408889634

class Cfg:
    roles = None
    skip_init = False
    spin_limit = 400000
    lam = 14
    timing = False
    force_slow = False
    force_rank = False
    codepf = True
    sat = 'ar'
    bigk = 'wd'
    bigsh = True
    rplan = (12, 48)
    bigstep = 5
    mix = False
    bigpoll = 30
    xmap = 0x73415260
cfg = Cfg()

def f2u(x):
    import struct
    return struct.unpack('<I', struct.pack('<f', x))[0]

def enabled(n):
    return cfg.roles is None or n in cfg.roles

def pollops(vdst, vaddr):
    if isinstance(vdst, tuple):
        n = vdst[0]
        fix = f'v_min_u32 v{n}, v{n}, v{n+1}\n v_lshrrev_b32 v{n+1}, 6, v{n}\n v_or_b32 v{n+1}, v{n+1}, {vdst[1]}\n v_add3_u32 v{n}, v{n}, v{n+1}, -1\n v_max_i32 v{n}, 0, v{n}'
        return f'buffer_load_dwordx2 v[{n}:{n+1}], {vaddr}, {WS}, 0 offen sc1', fix, f'v{n}'
    return f'buffer_load_dword {vdst}, {vaddr}, {WS}, 0 offen sc1', '', vdst

def spin(A, vdst, vaddr, starget, code):
    l = A.lab('Lspin'); d = A.lab('Lspind')
    ld, fix, vdst = pollops(vdst, vaddr)
    A(f'''
    s_mov_b32 {sSPIN}, 0
    {l}:
    {ld}
    s_waitcnt vmcnt(0)
    {fix}
    v_cmp_gt_u32 vcc, {starget}, {vdst}
    s_cbranch_vccz {d}
    s_add_u32 {sSPIN}, {sSPIN}, 1
    s_cmp_lt_u32 {sSPIN}, {cfg.spin_limit}
    s_cbranch_scc1 {l}
    s_mov_b32 s63, {code}
    s_branch L_abort
    {d}:
    ''')

def validate(A, early=False):
    l = A.lab('Lval'); d = A.lab('Lvald'); ok = A.lab('Lvalok')
    A(f'''
    s_cmp_eq_u32 s7, 1
    s_cbranch_scc1 {ok}
    v_mbcnt_lo_u32_b32 v1, -1, 0
    v_mbcnt_hi_u32_b32 v1, -1, v1
    v_lshlrev_b32 v1, 2, v1
    s_mov_b32 {sSPIN}, 0
    s_mov_b32 s63, 0x80808080
    {'s_cmp_lg_u32 %s, 0' % sW if early else ''}
    {'s_cbranch_scc1 ' + d if early else ''}
    {l}:
    buffer_load_dword v2, v1, {SDBG}, 0 offen sc1
    s_waitcnt vmcnt(0)
    v_and_b32 v3, s63, v2
    v_cmp_ne_u32 vcc, s63, v3
    s_cbranch_vccz {d}
    s_add_u32 {sSPIN}, {sSPIN}, 1
    s_cmp_lt_u32 {sSPIN}, {cfg.spin_limit}
    s_cbranch_scc1 {l}
    {d}:''')
    if early: A(f'''s_barrier
    buffer_load_dword v2, v1, {SDBG}, 0 offen sc1
    s_waitcnt vmcnt(0)
    v_and_b32 v3, s63, v2
    v_cmp_ne_u32 vcc, s63, v3''')
    A(f'''s_mov_b32 s63, 1
    s_cbranch_vccnz L_abort
    v_lshlrev_b32 v3, v2, 1
    v_lshrrev_b32 v4, 8, v2
    v_lshl_or_b32 v3, 1, v4, v3
    v_lshrrev_b32 v4, 16, v2
    v_lshl_or_b32 v3, 1, v4, v3
    v_lshrrev_b32 v4, 24, v2
    v_lshl_or_b32 v3, 1, v4, v3
    s_nop 1
    v_or_b32_dpp v3, v3, v3 quad_perm:[1,0,3,2] row_mask:0xf bank_mask:0xf
    v_cmp_ne_u32 vcc, {0x1ff if (cfg.force_slow or cfg.force_rank) else 0xff}, v3
    s_cbranch_vccnz L_rerank
    s_mov_b32 s7, 1
    {ok}:
    ''')
    stamp_s(A, 's99')
    if cfg.timing: A('s_memtime s[96:97]\n s_waitcnt lgkmcnt(0)\n s_mov_b32 s101, s96')

def ln0_hook(A, younger, finish=True):
    l = A.lab('Lln')
    ACC = 52; T = 20
    def halfsum(x, t):
        for m in ('quad_perm:[1,0,3,2]', 'quad_perm:[2,3,0,1]', 'row_half_mirror', 'row_mirror'):
            A(f's_nop 1\n v_add_f32_dpp {x}, {x}, {x} {m} row_mask:0xf bank_mask:0xf')
        A(f'v_mov_b32 {t}, {x}\n s_nop 1\n v_permlane16_swap_b32 {x}, {t}\n v_add_f32 {x}, {x}, {t}')
    A(f's_cmp_lg_u32 s7, 0\n s_cbranch_scc1 {l}\n s_waitcnt vmcnt({min(63, younger + (0 if cfg.skip_init else 3))})')
    for d in range(12):
        A(f'v_lshlrev_b32 {v(ACC+2*d)}, 16, {v(40+d)}\n v_and_b32 {v(ACC+2*d+1)}, 0xffff0000, {v(40+d)}')
    A(f'v_pk_add_f32 {v(T,2)}, {v(ACC,2)}, {v(ACC+2,2)}')
    for d in range(2, 12): A(f'v_pk_add_f32 {v(T,2)}, {v(T,2)}, {v(ACC+2*d,2)}')
    A(f'v_add_f32 {v(T)}, {v(T)}, {v(T+1)}')
    halfsum(v(T), v(T+1))
    A(f'v_mul_f32 {v(T)}, v78, {v(T)}')
    for d in range(12): A(f'v_pk_add_f32 {v(ACC+2*d,2)}, {v(ACC+2*d,2)}, {v(T,2)} op_sel_hi:[1,0]')
    A(f'v_pk_mul_f32 {v(T+2,2)}, {v(ACC,2)}, {v(ACC,2)}')
    for d in range(1, 12): A(f'v_pk_fma_f32 {v(T+2,2)}, {v(ACC+2*d,2)}, {v(ACC+2*d,2)}, {v(T+2,2)}')
    A(f'v_add_f32 {v(T+2)}, {v(T+2)}, {v(T+3)}')
    halfsum(v(T+2), v(T+3))
    A(f'''v_mov_b32 {v(T+3)}, {f2u(1e-5):#x}
    v_fmac_f32 {v(T+3)}, {f2u(1.0/576):#x}, {v(T+2)}
    v_rsq_f32 {v(T+2)}, {v(T+3)}
    v_sub_f32 {v(T)}, 0, {v(T)}
    v_mul_f32 {v(T+1)}, {v(T+3)}, {v(T+2)}
    v_lshrrev_b32 v76, 2, v0
    v_and_b32 v78, 31, v0
    v_cmp_eq_u32 vcc, 0, v78
    v_mov_b32 v78, {OOB}
    s_lshl_b32 s63, s2, 6
    v_cndmask_b32 v76, v78, v76, vcc
    s_add_u32 s63, s63, {ST}
    buffer_store_dwordx2 {v(T,2)}, v76, {WS}, s63 offen sc1
    s_add_u32 s63, s3, {XNA}''')
    for d in range(12): A(f'v_pk_mul_f32 {v(ACC+2*d,2)}, {v(ACC+2*d,2)}, {v(T+2,2)} op_sel_hi:[1,0]')
    for d in range(12): A(f'v_cvt_pk_bf16_f32 {v(40+d)}, {v(ACC+2*d)}, {v(ACC+2*d+1)}')
    for j in range(3): A(f'buffer_store_dwordx4 {v(40+4*j,4)}, v77, {WS}, s63 offen offset:{384*j} sc1')
    A(f'{l}:')
    if finish:
        A('s_waitcnt vmcnt(0)'); arrive(A)

def arrive(A):
    l = A.lab('Lar')
    A(f'''s_cmp_lg_u32 s7, 0
    s_cbranch_scc1 {l}
    s_or_b32 s63, s6, 0x80
    v_mov_b32 v20, s63
    s_barrier
    buffer_store_byte v20, v79, {SDBG}, 0 offen sc1
    {l}:''')

def lane(A, dst):
    A(f'''v_mbcnt_lo_u32_b32 {dst}, -1, 0
    v_mbcnt_hi_u32_b32 {dst}, -1, {dst}''')

def stamp(A, vreg, sidx):
    if not cfg.timing or cfg.timing >= 3: return
    A(f'''s_memrealtime s[96:97]
    s_and_b32 m0, {sidx}, 63
    s_waitcnt lgkmcnt(0)
    v_writelane_b32 {vreg}, s96, m0''')

def stamp_s(A, sreg):
    if not cfg.timing: return
    A(f's_memrealtime s[96:97]\n s_waitcnt lgkmcnt(0)\n s_mov_b32 {sreg}, s96')

def dump(A, vregs):
    if not cfg.timing: return
    stamp_s(A, 's100')
    A(f'''s_lshl_b32 s63, {sX}, 5
    s_add_u32 s63, s63, {sT}
    s_lshl_b32 s63, s63, 2
    s_add_u32 s63, s63, {sW}
    s_lshl_b32 s63, s63, 11
    s_add_u32 s63, s63, {DBG}
    v_mbcnt_lo_u32_b32 v1, -1, 0
    v_mbcnt_hi_u32_b32 v1, -1, v1
    v_lshlrev_b32 v1, 2, v1
    v_mov_b32 v2, s98
    v_writelane_b32 v2, s99, 1
    v_writelane_b32 v2, s100, 2
    s_memtime s[96:97]
    s_waitcnt lgkmcnt(0)
    s_sub_u32 s101, s96, s101
    v_writelane_b32 v2, s101, 3
    buffer_store_dword v2, v1, {WS}, s63 offen''')
    for i, x in enumerate(vregs):
        A(f'buffer_store_dword {x}, v1, {WS}, s63 offen offset:{256*(i+1)}')
    A('s_waitcnt vmcnt(0)')

def interleave(A, mains, fills, start=0, every=1):
    fi = 0
    for i, m in enumerate(mains):
        A(m)
        if i >= start and (i - start) % every == 0 and fi < len(fills):
            A(fills[fi]); fi += 1
    assert fi == len(fills), (fi, len(fills))

def prologue(A):
    MIX = f'''s_bitcmp1_b32 {sX}, 1
    s_cbranch_scc0 L_nomix
    s_lshr_b32 s63, {sX}, 2
    s_cmp_lt_u32 {sT}, 16
    s_cbranch_scc0 L_mix1
    s_lshl_b32 s63, s63, 4
    s_add_u32 {sT}, {sT}, s63
    s_add_u32 {sX}, {sL}, 2
    s_branch L_nomix
    L_mix1:
    s_add_u32 {sX}, {sL}, 6
    s_cmp_lt_u32 {sT}, 28
    s_cselect_b32 s64, 12, 4
    s_cselect_b32 s65, 16, 4
    s_mul_i32 s63, s63, s64
    s_add_u32 {sT}, {sT}, s63
    s_sub_u32 {sT}, {sT}, s65
    L_nomix:'''
    A(f'''
    s_cmp_ge_u32 s2, 256
    s_cbranch_scc1 L_end
    s_load_dwordx16 s[64:79], s[0:1], 0
    s_load_dwordx8 s[80:87], s[0:1], 64
    s_load_dwordx4 s[88:91], s[0:1], 96
    s_getreg_b32 {sX}, hwreg(HW_REG_XCC_ID)
    v_lshrrev_b32 v1, 6, v0
    s_and_b32 {sX}, {sX}, 15
    v_readfirstlane_b32 {sW}, v1
    s_mov_b32 {sSLOW}, 0
    s_mov_b32 s6, {sX}
    ''')
    if cfg.codepf:
        A('''s_getpc_b64 s[92:93]
        L_pc:
        s_lshr_b32 s63, s2, 3
        s_lshl_b32 s63, s63, 8
        v_add_u32 v2, s63, v0
        v_lshlrev_b32 v2, 5, v2
        v_min_u32 v2, L_code_end-L_pc-4, v2
        v_and_b32 v3, 3, v0
        v_cmp_eq_u32 vcc, 0, v3
        s_and_saveexec_b64 s[94:95], vcc
        global_load_dword v75, v2, s[92:93]
        s_mov_b64 exec, s[94:95]''')
    A('s_waitcnt lgkmcnt(0)')
    stamp_s(A, 's98')
    srds = [(8, 90, WS_BYTES), (12, 64, XB), (16, 86, XB), (20, 88, 256), (24, 66, 9216), (28, 68, 4718592),
            (32, 70, 4718592), (36, 72, 4718592), (40, 74, 4718592), (44, 80, 5308416), (48, 82, 5308416), (52, 84, 5308416)]
    for d, p, n in srds:
        A(f'''s_mov_b32 s{d}, s{p}
        s_mov_b32 s{d+1}, s{p+1}
        s_mov_b32 s{d+2}, {n}
        s_mov_b32 s{d+3}, 0x20000''')
    A(f'''
    v_and_b32 v1, 31, v0
    v_lshrrev_b32 v2, 5, v0
    v_mul_u32_u24 v3, 1152, v2
    v_lshl_add_u32 v76, v1, 4, v3
    s_and_b32 s63, s2, 1
    s_lshl_b32 s63, s63, 2
    s_add_u32 s63, s63, {sW}
    v_xor_b32 v4, s63, v1
    v_lshl_add_u32 v77, v4, 4, v3
    v_cmp_gt_u32 vcc, 24, v1
    v_mov_b32 v3, {OOB}
    v_mov_b32 v4, {f2u(-1.0/576):#x}
    v_cndmask_b32 v76, v3, v76, vcc
    v_cndmask_b32 v77, v3, v77, vcc
    v_cndmask_b32 v78, 0, v4, vcc
    s_mul_i32 s3, s2, 9216
    buffer_load_dwordx4 v[40:43], v76, {SX}, s3 offen
    buffer_load_dwordx4 v[44:47], v76, {SX}, s3 offen offset:384
    buffer_load_dwordx4 v[48:51], v76, {SX}, s3 offen offset:768
    ''')
    if not cfg.skip_init:
        A(f'''
        s_cmp_eq_u32 s2, 0
        s_cselect_b32 s63, {NSEG}, 0
        v_cmp_eq_u32 vcc, 0, v0
        v_mov_b32 v8, s63
        v_mov_b64 v[12:13], 0
        v_cndmask_b32 v4, 0, v8, vcc
        v_mov_b64 v[14:15], 0
        v_mov_b32 v5, v4
        v_mov_b32 v6, v4
        v_mov_b32 v7, v4
        v_mov_b32 v8, -1
        v_lshlrev_b32 v9, 4, v0
        v_lshlrev_b32 v10, 2, v0
        s_lshl_b32 s63, s2, 13
        s_add_u32 s66, s63, 4096
        s_lshl_b32 s67, s2, 10
        s_add_u32 s67, s67, {ONES0}
        buffer_store_dwordx4 v[4:7], v9, {WS}, s63 offen sc1
        buffer_store_dwordx4 v[12:15], v9, {WS}, s66 offen sc1
        buffer_store_dword v8, v10, {WS}, s67 offen sc1
        ''')
    A(f'''
    v_mov_b32 v2, s2
    v_cmp_eq_u32 vcc, 0, v0
    s_lshr_b32 {sT}, s2, 3
    s_mov_b32 s7, 0
    v_cndmask_b32 v79, v3, v2, vcc
    s_cmp_ge_u32 {sX}, 8
    s_cbranch_scc1 L_norole
    L_dispatch:
    s_lshl_b32 s63, {sX}, 2
    s_lshr_b32 {sX}, {cfg.xmap:#x}, s63
    s_and_b32 {sX}, {sX}, 7
    s_and_b32 {sL}, {sX}, 1
    {MIX if cfg.mix else ''}
    s_lshr_b32 s63, {sX}, 1
    s_cmp_eq_u32 s63, 0
    s_cbranch_scc1 L_chain
    s_cmp_eq_u32 s63, 1
    s_cbranch_scc1 L_qkv
    s_cmp_eq_u32 s63, 2
    s_cbranch_scc1 L_j_rg
    s_cmp_lt_u32 {sT}, 24
    s_cbranch_scc1 L_up
    s_branch L_att
    L_j_rg:
    s_cmp_ge_u32 {sT}, 24
    s_cbranch_scc1 L_red
    s_cmp_eq_u32 {sL}, 0
    s_cbranch_scc1 L_wo
    s_branch L_dn
    L_norole:
    ''')
    ln0_hook(A, 0)
    validate(A, True)
    A(f'''
    s_mov_b32 s63, 2
    s_branch L_abort
    L_rerank:
    s_mov_b32 s7, 1
    s_mov_b32 s64, 0
    L_rr1:
    s_mov_b32 s65, 0
    s_mov_b32 s66, 0
    v_bfe_u32 v3, v2, 0, 7
    v_cmp_eq_u32 vcc, s64, v3
    v_add_u32 v4, 0, v1
    v_cmp_gt_u32 s[68:69], s2, v4
    s_bcnt1_i32_b64 s63, vcc
    s_add_u32 s65, s65, s63
    s_and_b64 s[68:69], s[68:69], vcc
    s_bcnt1_i32_b64 s63, s[68:69]
    s_add_u32 s66, s66, s63
    v_bfe_u32 v3, v2, 8, 7
    v_cmp_eq_u32 vcc, s64, v3
    v_add_u32 v4, 1, v1
    v_cmp_gt_u32 s[68:69], s2, v4
    s_bcnt1_i32_b64 s63, vcc
    s_add_u32 s65, s65, s63
    s_and_b64 s[68:69], s[68:69], vcc
    s_bcnt1_i32_b64 s63, s[68:69]
    s_add_u32 s66, s66, s63
    v_bfe_u32 v3, v2, 16, 7
    v_cmp_eq_u32 vcc, s64, v3
    v_add_u32 v4, 2, v1
    v_cmp_gt_u32 s[68:69], s2, v4
    s_bcnt1_i32_b64 s63, vcc
    s_add_u32 s65, s65, s63
    s_and_b64 s[68:69], s[68:69], vcc
    s_bcnt1_i32_b64 s63, s[68:69]
    s_add_u32 s66, s66, s63
    v_bfe_u32 v3, v2, 24, 7
    v_cmp_eq_u32 vcc, s64, v3
    v_add_u32 v4, 3, v1
    v_cmp_gt_u32 s[68:69], s2, v4
    s_bcnt1_i32_b64 s63, vcc
    s_add_u32 s65, s65, s63
    s_and_b64 s[68:69], s[68:69], vcc
    s_bcnt1_i32_b64 s63, s[68:69]
    s_add_u32 s66, s66, s63
    s_cmp_eq_u32 s64, s6
    s_cselect_b32 {sT}, s66, {sT}
    s_cmp_lg_u32 s65, {33 if cfg.force_slow else 32}
    s_cselect_b32 {sSLOW}, 1, {sSLOW}
    s_add_u32 s64, s64, 1
    s_cmp_lt_u32 s64, 8
    s_cbranch_scc1 L_rr1
    s_mov_b32 {sX}, s6
    s_cmp_eq_u32 {sSLOW}, 0
    s_cbranch_scc1 L_rr2
    s_lshr_b32 {sX}, s2, 5
    s_and_b32 {sT}, s2, 31
    L_rr2:
    s_waitcnt vmcnt(0) lgkmcnt(0)
    s_barrier
    s_branch L_dispatch
    L_abort:
    s_lshl_b32 s64, {sX}, 8
    s_or_b32 s63, s63, s64
    s_lshl_b32 s64, {sI}, 16
    s_or_b32 s63, s63, s64
    s_or_b32 s63, s63, 0x80000000
    s_mov_b64 exec, 1
    v_mov_b64 v[4:5], 0
    v_mov_b64 v[6:7], 0
    ds_write_b128 v4, v[4:7]
    ds_write_b32 v4, v4 offset:4096
    v_mov_b32 v1, s63
    s_lshl_b32 s64, {sX}, 2
    s_add_u32 s64, s64, {DBG - 4096}
    v_mov_b32 v2, s64
    buffer_store_dword v1, v2, {WS}, 0 offen
    s_waitcnt vmcnt(0)
    L_end:
    s_endpgm
    ''')

def magic(R):
    M = -(-512 // R)
    assert all((x * M >> 9) == x // R for x in range(70))
    return M
def ringidx(d, s_, R, M=None):
    return f's_mul_i32 {d}, {s_}, {M or magic(R)}\n s_lshr_b32 {d}, {d}, 9\n s_mul_i32 {d}, {d}, {R}\n s_sub_u32 {d}, {s_}, {d}'

def capture(A, fn):
    n0 = len(A.lines); fn(); ls = A.lines[n0:]; del A.lines[n0:]
    return ls

M16 = 'v_mfma_f32_16x16x32_bf16'
def red_stream(A, name, R, pbase, res_base, xn_base, fin, fout, code, fres, fcon):
    stof = lambda base_: ST + (base_ - XNA) // XB * 16384
    vPL, vG, vL, vNW, vCP, vSW, vSR, vMK = 'v1', 'v3', 'v4', 12, 'v17', 'v19', 'v20', 'v21'
    vPA, vP, vFA, vF, vCA = 'v22', 'v10', 'v6', 'v7', 'v9'
    SA, SB = 24, 28
    PL = 32; RS = 104; ACC = 116; PK = 136; T = 148; CO = 168; SH = 164; NX = 192
    IMN, IMR = 16384, 49152
    ln = xn_base is not None
    big = ('w' if name[3] == '1' else 'd') in cfg.bigk
    KH = 1 if big else 2; NL = 9 * KH
    lane(A, vPA)
    A(f'''v_min_u32 {vPA}, {11 if (big and not cfg.bigsh) else 23}, {vPA}
    v_lshlrev_b32 {vPA}, 2, {vPA}
    v_add_u32 {vPA}, {fin}, {vPA}
    s_lshl_b32 s63, s70, 2
    s_add_u32 s64, s63, {fres or 0}
    v_mov_b32 v162, s64
    s_add_u32 s64, s63, {fout or 0}
    v_mov_b32 {vFA}, s64
    s_mov_b32 s83, s64
    s_add_u32 s63, s63, {fcon}
    s_cmp_eq_u32 {sW}, 0
    s_cselect_b32 s63, s63, {OOB}''')
    lane(A, vCA)
    A(f'''v_cmp_eq_u32 vcc, 0, {vCA}
    v_mov_b32 v8, s63
    v_mov_b32 {vCA}, {OOB}
    v_cndmask_b32 {vCA}, {vCA}, v8, vcc
    s_mov_b32 s78, 0
    s_mov_b32 s77, 0''')
    poll = f'buffer_load_dword {vP}, {vPA}, {WS}, 0 offen sc1'
    def flag():
        if fout is None: return
        l = A.lab('Lf')
        A(f'''s_mov_b64 exec, 1
        ds_add_rtn_u32 {vF}, v11, v23
        s_waitcnt lgkmcnt(0)
        v_readfirstlane_b32 s63, {vF}
        v_mov_b32 {vF}, {sI}
        s_and_b32 s63, s63, 3
        s_cmp_lg_u32 s63, 3
        s_cbranch_scc1 {l}
        {f's_mov_b32 s85, {sI}{chr(10)} s_atomic_umax s85, s[8:9], s83' if 'r' in cfg.sat else f'buffer_store_dword {vF}, {vFA}, {WS}, 0 offen sc1'}
        {l}:
        s_mov_b64 exec, -1''')
    def need_res(add):
        if fres is None: return
        l = A.lab('Lr')
        A(f'''s_add_u32 s79, {sI}, {add + 1}
        s_min_u32 s79, s79, {NSEG}
        s_cmp_ge_u32 s78, s79
        s_cbranch_scc1 {l}''')
        spin(A, 'v161', 'v162', 's79', code + 100)
        A(f'v_readfirstlane_b32 s78, v161\n {l}:')
    def resid(add):
        A(f'''s_mul_i32 s67, {sI}, 36864
        s_add_u32 s67, s67, s72
        s_add_u32 s67, s67, {res_base + 36864 * add}
        s_mov_b32 m0, s75
        s_xor_b32 s75, s75, 0x10000
        buffer_load_dwordx4 {vCP}, {WS}, s67 offen sc1 lds
        buffer_load_dwordx4 {vCP}, {WS}, s67 offen offset:1024 sc1 lds
        s_mov_b64 exec, 0xffff
        buffer_load_dwordx4 {vCP}, {WS}, s67 offen offset:2048 sc1 lds
        s_mov_b64 exec, -1
        s_lshl_b32 s67, {sI}, 8
        s_add_u32 s67, s67, {stof(res_base) + 256 * add}
        buffer_load_dwordx2 {v(RS+10,2)}, {vL}, {WS}, s67 offen sc1''')
    def ldlist(sreg):
        pre = ringidx('s67', sreg, R) + f'\n s_mul_i32 s67, s67, {8*36864}\n s_add_u32 s67, s67, {pbase}\n s_add_u32 s68, s67, s74\n s_add_u32 s67, s67, s73'
        o = []
        for a_ in range(9):
            pw, pp = divmod(a_, 3)
            for kh in range(KH):
                o.append(f's_add_u32 s69, {"s67" if pp < 2 else "s68"}, {kh*4*36864 + pw*3072}\n'
                         f'buffer_load_dwordx4 {v(PL+4*(KH*a_+kh),4)}, {vPL}, {WS}, s69 offen offset:{512*pp if pp < 2 else 0} sc1')
        return pre, o
    def rowsum(xs):
        A('s_nop 1' if len(xs) == 1 else 's_nop 0')
        for x, t in xs: A(f'v_add_f32_dpp {x}, {x}, {x} row_ror:8 row_mask:0xf bank_mask:0xf')
        for sw in ('v_permlane16_swap_b32', 'v_permlane32_swap_b32'):
            for x, t in xs: A(f'v_mov_b32 {t}, {x}')
            A('s_nop 1' if len(xs) == 1 else 's_nop 0')
            for x, t in xs: A(f'{sw} {x}, {t}')
            for x, t in xs: A(f'v_add_f32 {x}, {x}, {t}')
    def prep():
        A(f'v_mov_b64 {v(SH,2)}, {v(RS+10,2)}')
        need_res(1); resid(1)
        for j in range(5): A(f'v_add_u32 {v(T+j)}, s77, {v(vNW+j)}')
        A('s_xor_b32 s77, s77, 0x10000')
        for j in range(5): A(f'ds_read_b64 {v(RS+2*j,2)}, {v(T+j)} offset:{IMR}')
        for d in range(10):
            if d % 2 == 0: A(f's_waitcnt lgkmcnt({4 - d // 2})')
            A(f'v_lshlrev_b32 {v(ACC+2*d)}, 16, {v(RS+d)}\n v_and_b32 {v(ACC+2*d+1)}, 0xffff0000, {v(RS+d)}')
            if ln: A(f'v_pk_mul_f32 {v(ACC+2*d,2)}, {v(ACC+2*d,2)}, {v(SH,2)} op_sel:[0,1] op_sel_hi:[1,1]')
            else: A(f'v_pk_fma_f32 {v(ACC+2*d,2)}, {v(ACC+2*d,2)}, {v(SH,2)}, {v(SH,2)} op_sel:[0,1,0] op_sel_hi:[1,1,0]')
        if ln: A(f'v_mov_b64 {v(T,2)}, 0\n v_mov_b64 {v(T+2,2)}, 0')
        else: A('s_nop 0')
    def stat(j):
        if not ln: return
        for h in (0, 2):
            x = v(ACC + 4 * j + h, 2)
            A(f'v_pk_add_f32 {v(T,2)}, {v(T,2)}, {x}\n v_pk_fma_f32 {v(T+2,2)}, {x}, {x}, {v(T+2,2)}')
    def local_store(vd, va, so):
        l1 = A.lab('Lc'); l2 = A.lab('Lc')
        A(f'''s_cmp_lg_u32 {sSLOW}, 0
        s_cbranch_scc1 {l1}
        buffer_store_dword {vd}, {va}, {WS}, {so} offen
        s_branch {l2}
        {l1}:
        buffer_store_dword {vd}, {va}, {WS}, {so} offen sc1
        {l2}:''')
    def st3(srd, va, soff):
        for q in range(3):
            A(f's_waitcnt lgkmcnt({2-q})')
            if q == 2: A('s_mov_b64 exec, 0xffff')
            A(f'buffer_store_dwordx4 {v(CO+4*q,4)}, {va}, {srd}, {soff} offen offset:{1024*q} sc1')
        A('s_mov_b64 exec, -1')
    def tk(k):
        if cfg.timing == 7: A(f's_memtime s[28:29]\n s_waitcnt lgkmcnt(0)\n s_sub_u32 s31, s28, s30\n s_mov_b32 s30, s28\n s_add_u32 s{40+k}, s{40+k}, s31\n s_add_u32 s{48+k}, s{48+k}, 1')
    if cfg.timing == 7:
        for k in range(40, 56): A(f's_mov_b32 s{k}, 0')
        A('s_mov_b32 s30, 0')
    A(f's_mov_b32 {sI}, 0\n s_mov_b32 s65, 1\n s_mov_b32 s66, 0')
    l = A.lab('Lpt')
    A(f'{l}:'); pre, lds_ = ldlist('s66'); A(pre)
    for x in lds_: A(x)
    A(f's_add_u32 s66, s66, 1\n s_cmp_lt_u32 s66, {R}\n s_cbranch_scc1 {l}\n s_mov_b32 s66, 0')
    need_res(0); resid(0)
    A('s_waitcnt vmcnt(0)\n s_barrier')
    prep()
    A(f'{name}_spin:')
    spin(A, vP, vPA, 's65', code)
    tk(7)
    A(f'{name}_ld:')
    stamp(A, 'v220', sI)
    pre, lds_ = ldlist('s65'); A(pre)
    LEAD = 6 if big else 8
    for x in lds_[:LEAD]: A(x)
    if fout is not None:
        l = A.lab('Lnf')
        A(f's_cmp_eq_u32 s66, 0\n s_cbranch_scc1 {l}\n s_waitcnt vmcnt({LEAD + 4})'); flag(); A(f'{l}:')
    tk(0)
    def mf(i):
        a_ = i // KH
        d = v(ACC + 4 * (a_ >> 1), 4)
        A(f'{M16} {d}, {v(SB if a_ & 1 else SA,4)}, {v(PL+4*i,4)}, {d}')
    for i in range(NL):
        if i + LEAD < NL: A(lds_[i + LEAD]); y = LEAD
        else: y = NL - 1 - i
        if i + LEAD == NL - 2: A(poll)
        if i + LEAD >= NL - 2 and i < NL - 1: y += 1
        A(f's_waitcnt vmcnt({y})')
        mf(i)
        if not big and i in (7, 11, 15): stat((i >> 2) - 1)
        if big and i in (5, 7): stat((i - 5) // 2)
    if big: A('s_nop 1'); stat(2)
    tk(1)
    A(f'''{name}_mid:
    s_add_u32 s66, {sI}, 2
    v_cmp_gt_u32 vcc, s66, {vP}
    s_cbranch_vccz {name}_ov''')
    A('s_nop 3')
    n0 = len(A.lines)
    A(f's_mul_i32 s67, {sI}, 36864\n s_add_u32 s67, s67, s72\n v_mov_b32 v8, s65')
    if ln:
        stat(3); stat(4)
        A(f'v_add_f32 {v(T)}, {v(T)}, {v(T+1)}\n v_add_f32 {v(T+1)}, {v(T+2)}, {v(T+3)}')
        rowsum([(v(T), v(T+2)), (v(T+1), v(T+3))])
        A(f'''ds_write_b64 {vSW}, {v(T,2)}
        s_add_u32 s68, s67, {xn_base}
        s_lshl_b32 s67, {sI}, 8
        s_add_u32 s67, s67, {stof(xn_base)}
        s_waitcnt lgkmcnt(0)
        s_barrier
        ds_read_b128 {v(T+4,4)}, {vSR}
        ds_read_b128 {v(T+8,4)}, {vSR} offset:16''')
        local_store('v8', vCA, '0')
        A(f'''s_waitcnt lgkmcnt(0)
        v_pk_add_f32 {v(T+2,2)}, {v(T+4,2)}, {v(T+6,2)}
        v_pk_add_f32 {v(T,2)}, {v(T+8,2)}, {v(T+10,2)}
        v_mov_b32 {v(T+7)}, {f2u(1e-5):#x}
        v_pk_add_f32 {v(T+2,2)}, {v(T+2,2)}, {v(T,2)}
        v_mul_f32 {v(T+2)}, {f2u(1.0/576):#x}, {v(T+2)}
        v_mul_f32 {v(T+3)}, {f2u(1.0/576):#x}, {v(T+3)}
        v_fma_f32 {v(T+3)}, -{v(T+2)}, {v(T+2)}, {v(T+3)}
        v_max_f32 {v(T+3)}, 0, {v(T+3)}
        v_add_f32 {v(T+7)}, {v(T+7)}, {v(T+3)}
        v_rsq_f32 {v(T+4)}, {v(T+7)}
        v_add_f32 {v(T+8)}, {v(T+2)}, {v(SH)}
        v_mul_f32 {v(T+6)}, -{v(T+2)}, {v(T+4)}
        v_mul_f32 {v(T+9)}, {v(T+7)}, {v(T+4)}''')
        for j in range(5):
            for h in (0, 2): A(f'v_pk_fma_f32 {v(ACC+4*j+h,2)}, {v(ACC+4*j+h,2)}, {v(T+4,2)}, {v(T+6,2)} op_sel_hi:[1,0,0]')
            for h in (0, 1): A(f'v_cvt_pk_bf16_f32 {v(ACC+4*j+h)}, {v(ACC+4*j+2*h)}, {v(ACC+4*j+2*h+1)}')
            A(f'ds_write_b64 {v(vNW+j)}, {v(ACC+4*j,2)} offset:{IMN}')
        A('s_waitcnt lgkmcnt(0)\n s_barrier')
        for q in range(3): A(f'ds_read_b128 {v(CO+4*q,4)}, {vCP} offset:{IMN+1024*q}')
        A(poll)
        A(f'buffer_store_dwordx2 {v(T+8,2)}, v5, {WS}, s67 offen sc1')
        st3(WS, vCP, 's68')
        n1, n2 = 4, 0
    else:
        A('s_barrier')
        for j in range(5):
            for h in (0, 1): A(f'v_cvt_pk_bf16_f32 {v(PK+2*j+h)}, {v(ACC+4*j+2*h)}, {v(ACC+4*j+2*h+1)}')
            A(f'ds_write_b64 {v(vNW+j)}, {v(PK+2*j,2)} offset:{IMN}')
        local_store('v8', vCA, '0')
        A('s_waitcnt lgkmcnt(0)\n s_barrier')
        for q in range(3): A(f'ds_read_b128 {v(CO+4*q,4)}, {vCP} offset:{IMN+1024*q}')
        A(poll)
        st3(SOUT, vG, 's67')
        n1, n2 = 3, 0
    post = list(A.lines[n0:])
    tk(2)
    stamp(A, 'v221', sI)
    A(f'''s_add_u32 {sI}, {sI}, 1
    s_add_u32 s65, {sI}, 1
    s_cmp_ge_u32 {sI}, {NSEG}
    s_cbranch_scc1 {name}_done
    s_waitcnt vmcnt({n1 + n2})''')
    prep(); tk(3)
    A(f'''s_mov_b32 s66, 1
    v_cmp_gt_u32 vcc, s65, {vP}
    s_cbranch_vccz {name}_ld
    s_mov_b32 s66, 0
    s_waitcnt vmcnt(4)''')
    flag()
    A(f's_branch {name}_spin')
    A(f'{name}_ov:')
    ren = lambda t: t.replace('s67', 's81').replace('s68', 's82')
    pre, lds_ = ldlist('s66'); A(ren(pre))
    k = 0; since = 99; import re as _re
    for l in post:
        t = l.strip()
        if t.startswith('buffer_load_dword '):
            for x in lds_[k:]: A(ren(x))
            k = len(lds_)
        m = _re.search(r'(Lc_\d+)', l)
        if m: l = l.replace(m.group(1), m.group(1) + 'w')
        A.lines.append(l); since += 1
        if t.startswith('v_') and since >= 4 and k < len(lds_) and not t.startswith('v_rsq'):
            A(ren(lds_[k])); k += 1; since = 0
    stamp(A, 'v221', sI); tk(4)
    A(f's_add_u32 {sI}, {sI}, 1\n s_add_u32 s65, {sI}, 1\n s_waitcnt vmcnt({n1 + n2})')
    prep(); tk(5)
    stamp(A, 'v220', sI)
    for i in range(NL):
        mf(i)
        if not big and i in (11, 15): stat((i >> 2) - 2)
    if big: A('s_nop 0'); stat(0); stat(1)
    A('s_nop 1'); stat(2)
    if fout is not None: A(f's_waitcnt vmcnt(4)'); flag()
    A('s_waitcnt vmcnt(0)')
    tk(6)
    A(f's_branch {name}_mid')
    A(f'{name}_done:\n s_waitcnt vmcnt({n2})')
    flag()
    A('s_waitcnt vmcnt(0) lgkmcnt(0)')
    if cfg.timing == 7:
        for k in range(16): A(f'v_writelane_b32 v220, s{40+k}, {k}')
    dump(A, ['v220', 'v221'])
    A('s_endpgm')

def role_red(A):
    A('L_red:')
    if not enabled('red'):
        ln0_hook(A, 0); A('s_endpgm'); return
    ln0_hook(A, 0)
    validate(A, True)
    A(f'''
    s_sub_u32 s63, {sT}, 24
    s_lshr_b32 s71, s63, 2
    s_and_b32 s70, s63, 3
    s_mul_i32 s72, s70, 9216
    s_lshr_b32 s63, s70, 1
    s_lshl_b32 s73, s63, 10
    s_lshl_b32 s74, s63, 9
    s_add_u32 s74, s74, 2048
    ''')
    lane(A, 'v8')
    A(f'''
    v_and_b32 v9, 7, v8
    v_bfe_u32 v10, v8, 3, 1
    v_lshrrev_b32 v11, 4, v8
    v_mul_u32_u24 v1, 36864, v11
    v_lshl_add_u32 v1, v10, 8, v1
    v_lshl_add_u32 v1, v9, 4, v1
    s_mul_i32 s63, {sW}, 9216
    s_and_b32 s64, s70, 1
    s_lshl_b32 s64, s64, 7
    s_add_u32 s63, s63, s64
    v_add_u32 v1, s63, v1
    v_lshrrev_b32 v22, 5, v8
    v_lshl_add_u32 v23, v22, 1, v10
    s_mul_i32 s63, {sW}, 18
    v_add_u32 v23, s63, v23
    v_mul_u32_u24 v32, 1152, v9
    v_and_b32 v33, 1, v11
    v_lshl_add_u32 v32, v33, 3, v32
    v_cmp_eq_u32 vcc, 0, v22
    v_mov_b32 v34, {OOB}
    v_mov_b32 v35, 12288
    v_mov_b64 v[40:41], 0
    ds_write_b64 v35, v[40:41] offset:49152
    v_add_u32 v38, 0x10000, v35
    ds_write_b64 v38, v[40:41] offset:49152
    v_cndmask_b32 v21, 0, 1.0, vcc
    s_and_b32 s63, s70, 1
    s_lshl_b32 s63, s63, 2
    v_lshrrev_b32 v36, 1, v9
    v_add_u32 v36, s63, v36
    ''')
    for j in range(5):
        A(f'''v_add_u32 v37, {4*j}, v23
        v_xor_b32 v37, v37, v36
        v_lshl_add_u32 v{12+j}, v37, 4, v32''')
    A(f'''
    v_cndmask_b32 v16, v35, v16, vcc
    s_mul_i32 s63, {sW}, 2304
    s_add_u32 s75, s63, 49152
    v_lshl_add_u32 v17, v8, 4, s63
    v_cmp_gt_u32 vcc, 16, v8
    v_lshlrev_b32 v20, 5, v9
    v_add_u32 v20, 32768, v20
    v_cndmask_b32 v18, v34, v17, vcc
    s_and_b32 s63, s70, 1
    s_lshl_b32 s63, s63, 2
    s_add_u32 s63, s63, {sW}
    s_lshl_b32 s63, s63, 4
    v_xor_b32 v3, s63, v17
    s_lshl_b32 s63, s70, 6
    v_lshl_add_u32 v4, v9, 3, s63
    s_cmp_eq_u32 {sW}, 0
    s_cselect_b32 s63, 8, 0
    v_cmp_gt_u32 vcc, s63, v8
    s_nop 1
    v_cndmask_b32 v5, v34, v4, vcc
    s_lshl_b32 s63, {sW}, 3
    v_add_u32 v19, s63, v20
    v_and_b32 v33, 1, v8
    v_cmp_eq_u32 vcc, 0, v33
    v_mov_b32 v34, 0x3f80
    v_mov_b32 v35, 0x3f800000
    v_cndmask_b32 v34, v35, v34, vcc
    v_bfe_u32 v33, v8, 1, 3
    ''')
    for d in range(8):
        A(f'v_cmp_eq_u32 vcc, {d}, v33\n s_nop 1\n v_cndmask_b32 v{24+d}, 0, v34, vcc')
    A(f'''
    v_mov_b32 v11, 36864
    v_mov_b32 v23, 1
    ds_write_b32 v11, v40
    s_waitcnt lgkmcnt(0)
    s_barrier
    s_lshl_b32 s80, {sL}, 1
    s_add_u32 s80, s80, s71
    ''')
    A('''s_cmp_eq_u32 s80, 1
    s_cbranch_scc1 L_red_1
    s_cmp_eq_u32 s80, 2
    s_cbranch_scc1 L_red_2
    s_cmp_eq_u32 s80, 3
    s_cbranch_scc1 L_red_3
    ''')
    red_stream(A, 'L_r10', PR0, PW, XNA, XNF, F_WO, F_XNF, 10, None, F_CON)
    A('L_red_1:')
    red_stream(A, 'L_r11', PR1, PW + PR0 * 294912, XNA + XB, XNF + XB, F_WO + 512, F_XNF + 128, 11, F_XNA + 128, F_CON + 128)
    A('L_red_2:')
    red_stream(A, 'L_r20', PR0, PD, XNF, XNA + XB, F_DN, F_XNA + 128, 12, F_XNF, F_CON + 256)
    A('L_red_3:')
    red_stream(A, 'L_r21', PR1, PD + PR0 * 294912, XNF + XB, None, F_DN + 512, None, 14, F_XNF + 128, F_CON + 384)
```

```python
from base import *
import base

class Sched:
    def __init__(s, mains):
        s.mains = mains; s.gaps = [[] for _ in mains]; s.stmin = 0; s.lastst = 0; s.avoid = False
    def put(s, g, text):
        for l in text.split('\n'):
            if l.strip(): s.gaps[g].append(l.strip())
    @staticmethod
    def wt(l):
        import re
        l = l.strip()
        if not l or l.startswith('@mark') or l.endswith(':'): return 0
        if l.startswith(('@', 's_waitcnt')): return cfg.wts[0]
        if l.startswith(('v_exp', 'v_rcp', 'v_perm')): return cfg.wts[1]
        if l.startswith('v_'): return cfg.wts[2]
        if l.startswith('buffer_'): return cfg.wts[3]
        if l.startswith('ds_'): return cfg.wts[4]
        big = any(abs(int(x, 0)) > 64 for x in re.findall(r'(?<![\w\[:])(-?(?:0x[0-9a-f]+|\d+))(?![\w\]:])', l.split(None, 1)[1] if ' ' in l else ''))
        return cfg.wts[6] if big else cfg.wts[5]
    def load(s, g):
        w = sum(s.wt(x) for x in s.gaps[g])
        if g + 1 < len(s.mains) and s.mains[g + 1].startswith('@'): w += cfg.wts[0]
        return w
    def fit(s, g, items, hi, cap=None):
        cap = cap or cfg.cap
        while True:
            add = {}; q = g; ok = True; last = -99; plan = []
            for it in items:
                w = sum(s.wt(x) for x in it.split('\n'))
                q2 = max(q, last + 8, s.stmin) if it.startswith('buffer_store') else q
                while q2 < hi and s.load(q2) + add.get(q2, 0) + w > cap and (s.load(q2) + add.get(q2, 0)) > 0: q2 += 1
                if q2 >= hi: ok = False; break
                add[q2] = add.get(q2, 0) + w; plan.append((q2, it))
                if it.startswith('buffer_store'): last = q2
                else: q = q2
            if ok: break
            cap += 0.25
        for q2, it in plan:
            s.put(q2, it)
            if it.startswith('buffer_store'): s.lastst = q2
        return q
    def seq(s, g, items, step=1, cap=1, share=False):
        last = -99
        for it in items:
            while len([x for x in s.gaps[g] if (x.startswith('v_') if share else not x.startswith('@mark'))]) >= cap: g += 1
            if it.startswith('buffer_store'):
                gs = max(g, last + 8, s.stmin)
                busy = lambda q: any(x.startswith('buffer_') for y in s.gaps[max(q - 2, 0):q + 3] for x in y)
                while s.avoid and busy(gs): gs += 1
                s.put(gs, it); last = gs; s.lastst = gs
                continue
            s.put(g, it); g += step
        return g
    def emit(s, A, pre=()):
        vm = 0; marks = {'entry': 0}; ds = list(pre)
        for m, gp in zip(s.mains, s.gaps):
            for l in m.split('\n') + gp:
                l = l.strip()
                if not l: continue
                if l.startswith('@mark'): marks[l.split()[1]] = vm; continue
                if l in cfg.x_drop: continue
                if l.startswith('@wait'):
                    w = f's_waitcnt vmcnt({vm - marks[l.split()[1]]})'
                    if cfg.timing == 4:
                        k = 12 + ['poll', 'st', 'entry', 'p1', 'th0'].index(l.split()[1]) % 4
                        w = f's_memtime s[28:29]\n {w}\n s_memtime s[30:31]\n s_waitcnt lgkmcnt(0)\n s_sub_u32 s30, s30, s28\n s_add_u32 s{k}, s{k}, s30'
                    A(w); continue
                if l == 's_barrier' and cfg.timing == 4:
                    A('s_memtime s[28:29]\n s_barrier\n s_memtime s[30:31]\n s_waitcnt lgkmcnt(0)\n s_sub_u32 s30, s30, s28\n s_add_u32 s16, s16, s30'); continue
                if l.startswith('@lw'):
                    t = l.split()[1]
                    if t in ds:
                        k = len(ds) - 1 - ds.index(t); A(f's_waitcnt lgkmcnt({k})'); ds = ds[len(ds) - k:]
                    continue
                tag = None
                if '#' in l: l, tag = [x.strip() for x in l.split('#')]
                if any(k in l for k in cfg.x_drop): continue
                if l.startswith('buffer_'): vm += 1
                if l.startswith('ds_'): ds.append(tag)
                A(l)
        return ds
def lines(t): return [l.strip() for l in t.split('\n') if l.strip()]

def flag_addr(A, dst, sval):
    lane(A, 'v1')
    A(f'''v_cmp_eq_u32 vcc, 0, v1
    v_mov_b32 v2, {sval}
    v_mov_b32 {dst}, {OOB}
    v_cndmask_b32 {dst}, {dst}, v2, vcc''')

M16 = 'v_mfma_f32_16x16x32_bf16'
XPK = 60; XT = 66; XLA = 70; XDV = 72; XSV = 73; XPA = 74; XP = 75; XFV = 76; XFA = 77
XBUF = 36864; XB0 = 8192
def gs_stream(A, name, NCT, NK, wreg, swap, rows, XFR, RING, epi, in_base, in_lstride, in_sstride, out_lstride, out_sstride,
              flag_lstride, stride, code, sig0, sig1, dma0, dstep, poll0, poll1, share, local, prio=0, lowlate=False, plan=None, alt=0, epihi=None, big=False, gap=False):
    RA = min(RING - 1, cfg.rgra) if local else RING - 1
    BUF = 2 * XBUF if big else XBUF; NB = 2 if big else 3
    ND = (2 * NK) // 4
    NH = (NK + 3) // 4
    AW = 4 * NCT
    lane(A, 'v1')
    if rows:
        A(f'''v_and_b32 v2, 15, v1
        v_lshrrev_b32 v3, 4, v1
        v_lshrrev_b32 v4, 1, v2
        v_mul_u32_u24 v5, 1152, v2
        v_add_u32 v5, {XB0 + (NB - 1) * BUF}, v5
        v_xor_b32 v6, v3, v4
        v_lshl_add_u32 {v(XLA)}, v6, 4, v5
        v_xor_b32 v6, 4, v6
        v_lshl_add_u32 {v(XLA+1)}, v6, 4, v5''')
    else:
        A(f'v_lshlrev_b32 {v(XLA)}, 4, v1\n v_add_u32 {v(XLA)}, {XB0 + (NB - 1) * BUF}, {v(XLA)}\n v_add_u32 {v(XLA+1)}, {NK*1024}, {v(XLA)}')
    lw0 = A.lab('Lw0')
    A(f'''s_lshl_b32 s70, {sW}, 10
    v_lshl_add_u32 {v(XDV)}, v1, 4, s70
    s_add_u32 s70, s70, {XB0}
    s_mov_b32 s85, {-(NB - 1) * BUF}
    s_mov_b32 s3, 4096
    s_mov_b32 s84, {0 if gap else 1}
    s_mov_b32 s4, {XBUF}
    s_mov_b32 s5, {XBUF}
    s_mov_b32 {sI}, 0
    s_mov_b32 s77, 0
    s_mov_b32 s78, 0
    s_mov_b32 s79, 0
    s_mov_b32 s92, {OOB if (local or 'x' not in cfg.sat) else 0}
    s_mov_b32 s93, 0
    s_cmp_eq_u32 {sW}, 0
    s_cbranch_scc1 {lw0}
    v_mov_b32 {v(XPA)}, {OOB}
    v_mov_b32 {v(XFA)}, {OOB}
    {lw0}:''')
    def rd(f):
        f %= 2 * NK; th, ks = divmod(f, NK)
        if rows: return f'ds_read_b128 {v(XFR+4*(f%RING),4)}, {v(XLA+(ks&1))} offset:{th*18432 + 128*(ks>>1)}'
        if big: return f'ds_read_b128 {v(XFR+4*(f%RING),4)}, {v(XLA+th)} offset:{ks*1024}'
        return f'ds_read_b128 {v(XFR+4*(f%RING),4)}, {v(XLA)} offset:{f*1024}'
    def pre(f): return [f'f{(f + i) % (2 * NK)}' for i in range(RA)]
    def mains(th, k0, k1, reads=True):
        m = []
        for ks in range(k0, k1):
            f = th * NK + ks
            for ct in range(NCT):
                d = v(AW * th + 4 * ct, 4); w = r(wreg(ks, ct), 4); x = v(XFR + 4 * (f % RING), 4)
                a_, b_ = (x, w) if swap[ct] else (w, x)
                t = f'{M16} {d}, {a_}, {b_}, {"0" if ks == 0 else d}'
                if ct == 0: t = f'@lw f{f}\n' + t
                m.append(t)
        S = Sched(m)
        if reads:
            for ks in range(k0, k1): S.put((ks - k0) * NCT, rd(th * NK + ks + RA) + f' #f{(th * NK + ks + RA) % (2 * NK)}')
        return S
    def dma(q): return ['s_mov_b32 m0, s70\n s_nop 0' if q == 0 else 's_add_u32 m0, m0, s3\n s_add_u32 s73, s73, s3', f'buffer_load_dwordx4 {v(XDV)}, {WS}, s73 offen sc1 lds']
    poll = f'buffer_load_dword {v(XP)}, {v(XPA)}, {WS}, 0 offen sc1'
    def flagst(so):
        if local or 'x' not in cfg.sat: return f'buffer_store_dword {v(XFV)}, {v(XFA)}, {WS}, {so} offen{loc[0]}'
        l = A.lab('Lfa')
        return f's_cmp_lg_u32 {sW}, 0\n s_cbranch_scc1 {l}\n s_add_u32 s65, {so}, s71\n s_atomic_umax s{int(so[1:]) + 1}, s[8:9], s65\n {l}:'
    loc = ['' if local else ' sc1']
    def sig(S, g, mark):
        S.put(g, f'v_mov_b32 {v(XFV)}, s95')
        S.put(g + 1, f'@wait {mark}\n s_barrier\n' + flagst('s94'))
    XQ = 64 if local else XP
    decide = lines(f'''v_cmp_gt_u32 vcc, s74, {v(XQ)}
        v_cmp_gt_u32 s[66:67], s75, {v(XQ)}
        s_cmp_eq_u32 {'s67' if prio == 0 else 'vcc_lo'}, 0
        s_cselect_b32 s72, {'s84' if (alt or gap) else 2 - prio}, 0
        s_cmp_eq_u32 {'vcc_lo' if prio == 0 else 's67'}, 0
        s_cselect_b32 s72, {1 + prio}, s72
        v_mov_b32 {v(XFV)}, s72''')
    if local: decide[0] = f'v_add_u32 v64, v65, {v(XP)}\n' + decide[0]
    soff = lambda site: 4 * site if site < 4 else 4096
    def dwr(site): return f'ds_write_b32 {v(XDV)}, {v(XFV)} offset:{soff(site)}'
    def drd(site): return f'ds_read_b32 {v(XFV)}, {v(XSV)} offset:{soff(site)}'
    dget = [f'v_readfirstlane_b32 s72, {v(XFV)}', 's_cmp_lg_u32 s72, 0']
    if plan:
        pick = ['''s_sub_u32 s68, s72, 1
        s_cmp_eq_u32 s68, 0
        s_cselect_b32 s69, s74, s75''', '''s_cselect_b32 s63, s44, s47
        s_cselect_b32 s64, s45, s48
        s_cselect_b32 s80, s46, s49''', '''s_cmp_lt_u32 s69, s63
        s_cselect_b32 s80, s64, s80
        s_add_u32 s80, s80, s69''', '''s_cmp_eq_u32 s68, 0
        s_cselect_b32 s74, s80, s74
        s_cselect_b32 s75, s75, s80''']
    else:
        pick = lines(f'''s_sub_u32 s68, s72, 1
        s_cmp_eq_u32 s68, 0
        s_cselect_b32 s69, s74, s75
        s_cselect_b32 s63, {stride}, 0
        s_cselect_b32 s64, 0, {stride}
        s_add_u32 s74, s74, s63
        s_add_u32 s75, s75, s64''')
    if alt:
        assert prio == 1
        pick += [f's_add_u32 s63, s75, {alt}\n s_cmp_lt_u32 s74, s63\n s_cselect_b32 s84, 1, s68', 's_cmp_lt_u32 s75, 3\n s_cselect_b32 s84, 1, s84']
    pick += lines(f'''s_mul_i32 s73, s69, {in_sstride}
        s_mul_i32 s63, s68, {in_lstride}
        s_add_u32 s73, s73, s63
        s_add_u32 s73, s73, s90''')
    pickb = list(pick)
    if gap:
        assert prio == 0
        pick = pick + [f's_cmp_gt_u32 s74, {NSEG}\n s_cselect_b32 s84, 2, 0']
        pickb += [f's_xor_b32 s84, s68, 1\n s_lshl_b32 s84, s84, 1\n s_cmp_gt_u32 s74, {NSEG}\n s_cselect_b32 s84, 2, s84']
    tog = [f'v_add_u32 {v(XLA+q)}, s5, {v(XLA+q)}' for q in range(2 if (rows or big) else 1)]
    advance = lines(('s_mov_b32 s5, s85\n s_sub_u32 s85, 0, s85' if big else 's_mov_b32 s63, s85\n s_mov_b32 s85, s4\n s_mov_b32 s4, s5\n s_mov_b32 s5, s63') + f'''
        s_add_u32 s70, s70, s85
        s_mov_b32 s81, s77
        s_mov_b32 s82, s78
        s_mov_b32 s83, s79
        s_mov_b32 s94, s92
        s_mov_b32 s95, s93
        {(f's_mul_i32 s64, s68, {PR1 - PR0}{chr(10)} s_add_u32 s64, s64, {PR0}{chr(10)} s_mul_i32 s63, s68, {magic(PR1) - magic(PR0)}{chr(10)} s_add_u32 s63, s63, {magic(PR0)}{chr(10)}' + ringidx('s63', 's69', 's64', 's63')) if local else 's_mov_b32 s63, s69'}
        s_mul_i32 s63, s63, {out_sstride}
        s_mul_i32 s64, s68, {out_lstride}
        s_add_u32 s63, s63, s64
        s_add_u32 s77, s63, s87
        s_add_u32 s78, s63, s88
        s_add_u32 s79, s63, s89
        s_mul_i32 s92, s68, {flag_lstride}
        {f's_sub_u32 s93, s80, 1{chr(10)} s_min_u32 s93, s93, {NSEG}' if plan else f's_add_u32 s93, s69, {stride - 1}'}
        {'s_mov_b32 s50, s69' if cfg.timing else ''}
        s_add_u32 {sI}, {sI}, 1''')
    A(f's_add_u32 s90, s90, {in_base - in_sstride}')
    if not local:
        for q in range(3): A(f's_sub_u32 s{87+q}, s{87+q}, {out_sstride}')
    GX = (NK - RA) * NCT; GN = NK * NCT
    def put_dma(S, g0, pollmark, first=False):
        g = S.fit(0, pickb if (not first and cfg.gap2) else pick, max(g0 - 1, 5))
        g0 = max(g0, g + 2)
        for q in range(ND):
            d = dma(q); gg = g0 + dstep * q
            if big and first and q >= NH: gg = max(gg, first + 2 + dstep * (q - NH))
            if gg % NCT == 0: gg += 1
            gp = gg - 1 if (gg - 1) % NCT else gg - 2
            S.put(gp, d[0].replace('\n s_nop 0', '')); S.put(gg, d[1])
            if pollmark == 1 and q == NH - 1: S.put(gg + 2, poll + '\n @mark poll')
            if pollmark == 2 and q == ((ND if (cfg.nox0 and not local and not sig0) else NH) - 1): S.put(gg, '@mark th0')
        return gg
    hi_only = decide[:2] + ['s_mov_b32 s72, 0'] + decide[4:] if lowlate else decide
    def put_decide(S, site, o=0, far=False):
        q = (13, 12, 9, 8, 7) if (far or not local or big) else cfg.dq
        S.put(o + GX - q[0], '@wait poll\n' + decide[0]); S.put(o + GX - q[1], decide[1]); S.put(o + GX - q[2], '\n'.join((hi_only if far else decide)[2:-1]))
        S.put(o + GX - q[3], decide[6]); S.put(o + GX - q[4], dwr(site) + ' #dw')
    def tstamp():
        if cfg.timing and cfg.timing < 3:
            l1 = A.lab('Lt'); l2 = A.lab('Lt')
            A(f's_sub_u32 s63, s50, 1\n s_cmp_eq_u32 s92, 0\n s_cbranch_scc0 {l1}')
            stamp(A, 'v78', 's63'); A(f's_branch {l2}\n {l1}:'); stamp(A, 'v79', 's63'); A(f'{l2}:')
    def fill1(S, o, lastdma=None):
        if sig1 is not None:
            S.put(o, '@mark p1'); sig(S, o + sig1, 'p1')
        put_decide(S, 1, o, lastdma is not None)
        if o: S.stmin = lastdma + 4
        S.fit(o + 4, epi(0, 77, loc=loc[0]), o + GX)
        if lastdma is not None:
            g = max(lastdma, S.lastst, o + (sig1 or 0) + 1) + 1
            lim = o + GX - 10
            S.fit(g, advance, o + GX)
        S.put(o + GX - 1, '@lw dw')
    def phase0(E, D):
        S = mains(0, 0, NK)
        if D:
            S1 = mains(1, 0, NK - RA); S.mains += S1.mains; S.gaps += S1.gaps
            ld_ = put_dma(S, dma0 if E else 3, (2 if cfg.rgpoll else 1) if local else 0, sig0 + 1 if (big and E and cfg.nox0) else GX)
            if not local: S.put(GN + poll1, poll + '\n @mark poll')
            elif big: S.put(GX - 3 if cfg.bigpoll is None else GN + cfg.bigpoll, poll + '\n @mark poll')
            elif cfg.rgpoll:
                S.put((dma0 if E else 3) - 3, poll + '\n @mark poll'); S.put(GN + GX - 1, '@wait th0')
        else:
            S.put(poll0, poll + '\n @mark poll'); put_decide(S, 0)
        here = (not E) or sig0
        if big:
            here = False
            if E: S.put(sig0, f'v_mov_b32 {v(XFV)}, s95'); S.put(sig0 + 1, '@wait st\n s_barrier\n' + flagst('s94'))
        if here: S.put(GX - 2, f'v_mov_b32 {v(XFV)}, s95')
        if E:
            S.fit(4, epi(1, 81, loc=loc[0]), (dma0 - 2 if sig0 else epihi or GN - 4))
        if not (cfg.nox0 and E and D and (big or (not local and not sig0))):
            S.put(GX - 1, f'@wait {"st" if (E and sig0 and not big) else "entry"}\n @lw dw\n s_barrier')
        if here: S.put(GX - 1, flagst('s94'))
        if not D:
            S.put(GX - 1, drd(0) + ' #dr')
            S.put(GN - 4, '@lw dr\n' + dget[0]); S.put(GN - 1, dget[1])
        else: fill1(S, GN, ld_)
        tstamp()
        S.emit(A, pre(0))
        if D: A(f's_branch {name}_fe')
        else: A(f's_cbranch_scc1 {name}_p1d\n s_branch {name}_p1n')
    XRD = 68 if local else XFA
    outl = []
    def soft(S, g, off, pre_, val, after):
        a_, r_, c_ = cfg.softq
        l = A.lab('Lsb'); outl.append((l, off))
        S.put(g - a_ - 1, pre_ + f'\n v_mov_b32 {v(XFV)}, {val}')
        S.put(g - a_, f'ds_write_b32 {v(XDV)}, {v(XFV)} offset:{off}')
        S.put(g - r_, f'ds_read_b32 {v(XFV)}, {v(XRD)} offset:{off} #sr')
        S.put(g - c_, f'@lw sr\n v_cmp_gt_u32 vcc, s76, {v(XFV)}')
        S.put(g, f's_cbranch_vccnz {l}o\n {l}:\n' + after)
    def steady():
        S = mains(0, 0, NK)
        S1 = mains(1, 0, NK); S.mains += S1.mains; S.gaps += S1.gaps
        S.gaps[GN + GX] = tog + S.gaps[GN + GX]
        a_ = cfg.softq[0]
        S.put(0, 's_add_u32 s76, s76, 4')
        if sig0: S.fit(4, epi(1, 81, loc=loc[0]), dma0 - 5)
        ld_ = put_dma(S, dma0, 2)
        S.put(dma0 - 3 if local else GN + poll1 - 6, poll + '\n @mark poll')
        fv = f'v_mov_b32 {v(XFV)}, s95\n' if local else ''
        if sig0 and not local: soft(S, GX - 1, 8, '@wait st', 's76', flagst('s94')); gs = 0
        else:
            soft(S, GX - 1, 8, '@wait entry', 's76', '')
            gs = (GX + a_ + 2) if local else GN + sig1 + a_
            soft(S, gs, 4104, '@wait st', 's76', fv + flagst('s94'))
        g1 = GN + GX - 1
        S.put(g1 - a_ - 7, '@wait poll\n' + decide[0]); S.put(g1 - a_ - 6, decide[1]); S.put(g1 - a_ - 3, '\n'.join(hi_only[2:-1]) + '\n s_or_b32 s72, s72, s76')
        soft(S, g1, 4100, '@wait th0', 's72', dget[0])
        S.put(2 * GN - 1, 's_and_b32 s72, s72, 3')
        if not sig0: S.fit(4, epi(1, 81, loc=loc[0]), epihi or GN - 4)
        S.stmin = ld_ + 4
        S.fit(GN + 4, epi(0, 77, loc=loc[0]), GN + GX)
        S.fit(max(ld_, S.lastst, gs) + 1, advance, GN + GX)
        tstamp()
        S.emit(A, pre(0))
        A(f's_cbranch_scc1 {name}_p0ed\n s_branch {name}_p0e')
        for l, off in outl:
            A(f'''{l}o:
            s_mov_b32 {sSPIN}, 0
            {l}s:
            ds_read_b32 {v(XFV)}, {v(XRD)} offset:{off}
            s_waitcnt lgkmcnt(0)
            v_cmp_gt_u32 vcc, s76, {v(XFV)}
            s_cbranch_vccz {l}
            s_add_u32 {sSPIN}, {sSPIN}, 1
            s_cmp_lt_u32 {sSPIN}, {cfg.spin_limit * 4}
            s_cbranch_scc1 {l}s
            s_mov_b32 s63, {code + 30}
            s_branch L_abort''')
    def phase1(D):
        S = mains(1, 0, NK - RA)
        ld_ = None
        if D:
            S.put(0, poll + '\n @mark poll')
            ld_ = put_dma(S, 3, 2)
        else: S.put(poll1, poll + '\n @mark poll')
        fill1(S, 0, ld_)
        if D: S.put(GX - 1, '@wait th0')
        S.emit(A, pre(NK))
    def burst():
        for x in pickb: A(x)
        if cfg.timing and local:
            l1 = A.lab('Lt')
            A(f's_sub_u32 s63, s69, 1\n s_cmp_eq_u32 s68, 0\n s_cbranch_scc0 {l1}'); stamp(A, 'v67', 's63'); A(f'{l1}:')
        for q in range(ND):
            for x in dma(q): A(x)
    def start(nyoung, early=False):
        if early:
            A(f'v_mov_b32 {v(XFV)}, s93\n s_waitcnt vmcnt({ND})\n s_barrier\n {flagst("s92")}'); nyoung += 1
        for x in advance + tog + hi_only + [dwr(3)]: A(x)
        A(f's_waitcnt vmcnt({nyoung}) lgkmcnt(0)\n s_barrier\n {drd(3)}')
        for f in range(RA): A(rd(f))
        A(f's_waitcnt lgkmcnt({RA})')
        for x in dget: A(x)
    def alone():
        A('s_nop 7'); n = 0
        for x in epi(1, 77, True, loc=loc[0]):
            for l in lines(x):
                if not l.startswith('@'): A(l)
                if l.startswith('buffer_'): n += 1
        return n
    def idle():
        l = A.lab('Lsp'); d = A.lab('Lspd')
        A(f'''s_cmp_lg_u32 {sW}, 0
        s_cbranch_scc1 {d}
        s_mov_b32 {sSPIN}, 0
        {l}:
        {poll}
        s_waitcnt vmcnt(0)''')
        for x in decide: A(x)
        A(f'''{dwr(4)}
        s_cmp_lg_u32 s72, 0
        s_cbranch_scc1 {d}
        s_add_u32 {sSPIN}, {sSPIN}, 1
        s_cmp_lt_u32 {sSPIN}, {cfg.spin_limit}
        s_cbranch_scc1 {l}
        {d}:
        s_waitcnt lgkmcnt(0)
        s_barrier
        {drd(4)}
        s_waitcnt lgkmcnt(0)
        {dget[0]}
        s_mov_b32 s63, {code}
        s_cmp_eq_u32 s72, 0
        s_cbranch_scc1 L_abort''')
    def flush():
        A(f'v_mov_b32 {v(XFV)}, s93\n s_waitcnt vmcnt(0)\n s_barrier\n {flagst("s92")}')
        if cfg.timing and local:
            l1 = A.lab('Lt')
            A(f's_sub_u32 s63, s93, 1\n s_cmp_eq_u32 s92, 0\n s_cbranch_scc0 {l1}'); stamp(A, 'v66', 's63'); A(f'{l1}:')
        A(f's_cmp_ge_u32 {sI}, s91\n s_cbranch_scc1 {name}_done')
    if cfg.timing and local: A('v_mov_b32 v66, 0\n v_mov_b32 v67, 0')
    if cfg.timing: A('v_mov_b32 v78, 0\n v_mov_b32 v79, 0')
    if cfg.timing == 4:
        for k in range(12, 28):
            if k not in (20, 21, 22, 23): A(f's_mov_b32 s{k}, 0')
    def cnt(k):
        if cfg.timing == 4: A(f's_addk_i32 s{k}, 1')
    if name[2] in cfg.soft:
        assert local or 'x' in cfg.sat
        A(f'''v_and_b32 v2, 3, v1
        v_lshlrev_b32 {v(XRD)}, 10, v2
        v_mov_b32 v2, 0
        ds_write_b32 {v(XDV)}, v2 offset:8
        ds_write_b32 {v(XDV)}, v2 offset:4100
        ds_write_b32 {v(XDV)}, v2 offset:4104
        s_mov_b32 s76, 0''')
    if local: A(f's_cmp_lg_u32 {sSLOW}, 0\n s_cbranch_scc1 {name}_sl')
    A(f'{name}_idle:')
    idle(); burst(); start(ND - NH)
    A(f'{name}_slow:\n s_cbranch_scc1 {name}_p0d')
    phase0(False, False)
    A(f'{name}_p0d:'); phase0(False, True)
    A(f'{name}_p0e:'); cnt(18); phase0(True, False)
    A(f'{name}_p1d:'); cnt(19); phase1(True)
    A(f's_branch {name}_fe')
    A(f'{name}_p0ed:'); cnt(17)
    if name[2] in cfg.soft: steady()
    else:
        phase0(True, True)
        del A.lines[-1]
    A(f'{name}_fe:')
    A(f'{"" if "febar" in cfg.x_drop else "s_barrier"}\n {drd(1)}')
    S = mains(1, NK - RA, NK)
    S.gaps[0] = tog + S.gaps[0]
    S.put(RA * NCT - 4, '@lw dr\n' + dget[0]); S.put(RA * NCT - 1, dget[1])
    S.emit(A, pre(2 * NK - RA) + ['dr'])
    A(f's_cbranch_scc1 {name}_p0ed\n s_branch {name}_p0e')
    A(f'{name}_p1n:'); cnt(24); phase1(False)
    A(f's_barrier\n {drd(1)}')
    S = mains(1, NK - RA, NK, reads=False)
    S.put(RA * NCT - 4, '@lw dr\n' + dget[0]); S.put(RA * NCT - 1, dget[1])
    S.emit(A, pre(2 * NK - RA) + ['dr'])
    A(f's_cbranch_scc0 {name}_t2')
    if local:
        alone(); burst(); start(ND - NH, True)
    else:
        burst(); n = alone(); start(ND - NH + n)
    A(f's_branch {name}_slow')
    A(f'{name}_t2:'); cnt(25)
    alone(); flush()
    A(f's_branch {name}_idle')
    if local:
        loc[0] = ' sc1'
        A(f'{name}_sl:')
        idle(); burst()
        for x in advance + tog: A(x)
        A('s_waitcnt vmcnt(0)')
        A('s_barrier')
        for f in range(RA): A(rd(f))
        mains(0, 0, NK).emit(A, pre(0))
        S = mains(1, 0, NK - RA); S.seq(4, epi(0, 77, loc=loc[0]), share=share); S.emit(A, pre(NK))
        mains(1, NK - RA, NK, reads=False).emit(A, pre(2 * NK - RA))
        alone(); flush()
        A(f's_branch {name}_sl')
    A(f'{name}_done:\n s_waitcnt vmcnt(0) lgkmcnt(0)')
    if cfg.timing == 4:
        for i, k in enumerate((12, 13, 14, 15, 16, 17, 18, 19, 24, 25)): A(f'v_writelane_b32 v66, s{k}, {i}')
    dump(A, ['v78', 'v79', 'v66', 'v67'])
    A('s_endpgm')

def xw(ks, ct): return 80 + (ks * 6 + ct) * 4

def xs_setup(A, fbase, fin, shared, plan=None):
    if shared:
        A(f'''s_lshl_b32 s63, {sT}, 7
        s_lshl_b32 s64, {sL}, 2
        s_add_u32 s63, s63, s64
        s_add_u32 s74, {sL}, 1
        s_add_u32 s75, {sL}, 1''')
    else:
        A(f'''s_lshl_b32 s63, {sT}, 7
        s_cmp_eq_u32 {sL}, 0
        s_cselect_b32 s74, 1, 1000
        s_cselect_b32 s75, 1000, 1''')
    A(f's_add_u32 s63, s63, {fbase}\n s_mov_b32 s71, s63')
    flag_addr(A, v(XFA), 's63')
    A(f'''v_and_b32 v2, 3, v1
    v_lshrrev_b32 v3, 5, v1
        v_lshlrev_b32 v2, 2, v2
    v_lshl_add_u32 v2, v3, 7, v2
    v_add_u32 {v(XPA)}, {fin}, v2
    {'' if shared else f'v_cmp_eq_u32 vcc, {sL}, v3'}
    v_mov_b32 v2, {OOB}
    s_nop 0
    {'' if shared else f'v_cndmask_b32 {v(XPA)}, v2, {v(XPA)}, vcc'}
    s_mov_b32 s90, 0
    s_mov_b32 s91, {NSEG}''')
    if plan:
        S0, S1 = plan
        assert S0 % 2 == 0 and S1 % 2 == 0
        A(f'''s_cmp_eq_u32 {sL}, 0
        s_mov_b32 s44, {S0}
        s_mov_b32 s45, 2
        s_cselect_b32 s46, 1, 1000
        s_mov_b32 s47, {S1}
        s_mov_b32 s48, 1
        s_mov_b32 s49, 2
        s_cselect_b32 s75, {S1 + 1}, 1
        s_cselect_b32 s91, {S0//2 + NSEG - S0 + (NSEG - S1)//2}, {S0//2 + S1 + (NSEG - S1)//2}''')
    if shared:
        A(f'''s_sub_u32 s64, s75, 1
        v_mov_b32 v2, {sL}
        v_mov_b32 v3, s64
        s_mov_b32 s63, 4096
        buffer_store_dword v2, {v(XFA)}, {WS}, 0 offen sc1
        buffer_store_dword v3, {v(XFA)}, {WS}, s63 offen sc1''')

def warm_sweep(A, grp_s, only_l1=False, then_wait=False):
    if not cfg.delay1: return
    l = A.lab('Ld1')
    if only_l1: A(f's_cmp_eq_u32 {sL}, 0\n s_cbranch_scc1 {l}')
    A(f's_cmp_lg_u32 s7, 0\n s_cbranch_scc1 {l}')
    NW = 128 * 4
    lane(A, 'v1')
    A(grp_s)
    A(f'''s_add_u32 s63, s63, {sT}
    s_lshl_b32 s63, s63, 2
    s_add_u32 s63, s63, {sW}
    s_lshl_b32 s63, s63, 10
    v_lshl_add_u32 v10, v1, 4, s63
    s_lshl_b32 s64, {sW}, 10
    s_mov_b32 m0, s64''')
    def sweep(srds, i0, i1):
        for i in range(i0, i1):
            A(f's_mov_b32 s65, {i*NW*1024}')
            for srd in srds: A(f'buffer_load_dwordx4 v10, {srd}, s65 offen lds')
    sweep([SWK, SWQ], 0, 4)
    ln0_hook(A, 8, False)
    sweep([SWK, SWQ], 4, 7)
    A('s_waitcnt vmcnt(6)'); arrive(A)
    sweep([SWK, SWQ], 7, 9)
    sweep([SWV, SWO], 0, 9)
    A('s_waitcnt vmcnt(0)\n s_mov_b32 s7, 2\n s_barrier')
    if then_wait:
        validate(A)
        A(f's_lshl_b32 s63, {sT}, 7\n s_add_u32 s63, s63, {F_CH}\n v_mov_b32 v1, s63\n s_mov_b32 s64, 1')
        spin(A, 'v2', 'v1', 's64', 60)
    A(f'{l}:')

def hold_back(A, on, fbase, only_l1=False):
    if not on: return
    l = A.lab('Lh')
    if only_l1: A(f's_cmp_eq_u32 {sL}, 0\n s_cbranch_scc1 {l}')
    ln0_hook(A, 0)
    validate(A, True)
    l2 = A.lab('Lh')
    A(f's_cmp_lg_u32 {sW}, 0\n s_cbranch_scc1 {l2}\n s_lshl_b32 s63, {sT}, 7\n s_add_u32 s63, s63, {fbase}\n v_mov_b32 v1, s63\n s_mov_b32 s64, 1')
    spin(A, 'v2', 'v1', 's64', 60)
    A(f'{l2}:\n s_barrier\n {l}:')

def staged(A, units, nslot, slot_bytes, region_s, pre=None, ranges=None, hold={}, mid=None):
    n = len(units)
    if ranges is None: ranges = [((i % nslot) * slot_bytes, slot_bytes) for i in range(n)]
    ov = lambda x, y: x[0] < y[0] + y[1] and y[0] < x[0] + x[1]
    dep = [max([hold.get(j, j) for j in range(i) if ov(ranges[i], ranges[j])], default=-1) for i in range(n)]
    cnt = []
    def issue(i):
        assert i == len(cnt)
        ls = units[i][0](ranges[i][0])
        cnt.append(sum(1 for x in ls if x.startswith('buffer_')))
        for x in ls: A(x)
    def ist(k):
        if cfg.timing == 5: A(f's_memrealtime s[96:97]\n s_waitcnt lgkmcnt(0)\n v_writelane_b32 v19, s96, {k}')
    ist(0)
    n0, n1 = pre or (cfg.pre0, cfg.pre1); n1 += n0
    for i in range(n0): issue(i)
    ln0_hook(A, sum(cnt), False)
    ist(1)
    for i in range(n0, n1): issue(i)
    A(f's_waitcnt vmcnt({sum(cnt[n0:])})')
    arrive(A)
    if mid: mid[0](A)
    ist(2)
    while len(cnt) < n and dep[len(cnt)] < 0: issue(len(cnt))
    ist(3)
    for i in range(n):
        A(f's_waitcnt vmcnt({min(sum(cnt[i + 1:]), 63)})')
        ist(4 + i)
        if mid and i == n1: mid[1](A)
        for x in units[i][1](ranges[i][0]): A(x)
        if len(cnt) < n and dep[len(cnt)] <= i:
            A('s_waitcnt lgkmcnt(0)')
            while len(cnt) < n and dep[len(cnt)] <= i: issue(len(cnt))
    A('s_waitcnt lgkmcnt(0)')
    if cfg.timing == 5:
        ist(60); A('s_mov_b32 s99, 0\n s_mov_b32 s101, 0'); dump(A, ['v19']); A('s_endpgm')

def role_qkv(A):
    A('L_qkv:')
    if not enabled('qkv'):
        ln0_hook(A, 0); A('s_endpgm'); return
    lane(A, 'v1')
    A(f'''
    v_lshrrev_b32 v2, 2, v1
    v_and_b32 v4, 3, v1
    v_lshlrev_b32 v3, 4, v4
    v_lshl_add_u32 v10, v2, 13, v3
    v_lshrrev_b32 v5, 4, v1
    v_and_b32 v2, 3, v2
    v_lshl_add_u32 v5, v5, 3, v2
    s_mul_i32 s67, {sW}, 36864
    v_lshl_add_u32 v5, v5, 6, v3
    v_add_u32 v11, s67, v5
    s_lshl_b32 s65, {sT}, 8
    s_lshl_b32 s63, {sW}, 6
    s_add_u32 s65, s65, s63
    ''')
    units = []
    for mi, srd in enumerate((SWK, SWV, SWQ)):
        for c in range(9):
            def dma(o, srd=srd, c=c):
                l = []
                for q in range(4):
                    l += [f's_add_u32 m0, s67, {o+1024*q}', f's_add_u32 s69, s65, {(64*c+16*q)*8192}', f'buffer_load_dwordx4 v10, {srd}, s69 offen lds']
                return l
            def rdf(o, mi=mi, c=c):
                return [f'ds_read_b64_tr_b16 {r(xw(2*c+kk, 2*mi+ch)+2*i,2)}, v11 offset:{o+kk*2048+i*256+ch*8}' for kk in range(2) for ch in range(2) for i in range(2)]
            units.append((dma, rdf))
    staged(A, units, 9, 4096, 's67')
    A('s_barrier')
    validate(A)
    xs_setup(A, F_QKV, F_XNA, cfg.shq, cfg.qplan)
    A(f'''s_mul_i32 s63, {sT}, 24576
    s_lshl_b32 s64, {sW}, 11
    s_add_u32 s63, s63, s64
    v_lshlrev_b32 {v(XSV)}, 4, v1
    s_add_u32 s87, s63, {QKV}
    s_add_u32 s88, s87, 8192
    s_add_u32 s89, s87, 16384''')
    def epi(th, sb, alone=False, loc=None):
        a_ = 24 * th; f = []
        def piece(b, soff):
            return [f'v_cvt_pk_bf16_f32 {v(b+d)}, {v(b+2*d)}, {v(b+2*d+1)}' for d in range(4)] + \
                   [f'buffer_store_dwordx4 {v(b,4)}, {v(XSV)}, {WS}, {soff} offen offset:{1024*th} sc1']
        f += piece(a_, f's{sb+1}')
        for ch in range(2):
            b = a_ + 8 + 4 * ch
            if th == 0:
                f += [f'v_cvt_pk_bf16_f32 {v(XPK+2*ch+d)}, {v(b+2*d)}, {v(b+2*d+1)}' for d in range(2)]
            else:
                f += [f'v_cvt_pk_bf16_f32 {v(b+3)}, {v(b+2)}, {v(b+3)}', f'v_cvt_pk_bf16_f32 {v(b+2)}, {v(b)}, {v(b+1)}',
                      f'v_mov_b64 {v(b,2)}, {v(XPK+2*ch,2)}',
                      f'buffer_store_dwordx4 {v(b,4)}, {v(XSV)}, {WS}, s{sb+2} offen offset:{1024*ch} sc1']
        f += piece(a_ + 16, f's{sb}')
        f[-1] += '\n @mark st'
        return f
    gs_stream(A, 'L_q', 6, 18, xw, [0, 0, 1, 1, 0, 0], True, 48, 3, epi, XNA, XB, 36864, 64 * 32 * 24576, 32 * 24576,
              4096, 2 if cfg.shq else 1, 20, True, None, 45, 6, 44, 44, False, False, prio=1, lowlate=cfg.shq and 'q' in cfg.lowlate, plan=cfg.qplan, alt=cfg.qalt)

def role_up(A):
    A('L_up:')
    if not enabled('up'):
        ln0_hook(A, 0); A('s_endpgm'); return
    warm_sweep(A, f's_mul_i32 s63, {sL}, 24\n s_add_u32 s63, s63, 32')
    hold_back(A, 'u' in cfg.hold, F_QKV)
    lane(A, 'v1')
    for j in range(3):
        A(f'''v_add_u32 v2, {64*j}, v1
        v_mul_u32_u24 v3, 10923, v2
        v_lshrrev_b32 v3, 16, v3
        v_mul_u32_u24 v4, 6, v3
        v_sub_u32 v4, v2, v4
        v_mul_u32_u24 v3, 9216, v3
        v_lshl_add_u32 v{10+j}, v4, 4, v3''')
    A(f'''
    v_lshrrev_b32 v2, 4, v1
    v_bfe_u32 v3, v1, 2, 2
    v_lshl_add_u32 v2, v2, 3, v3
    v_mul_u32_u24 v2, 96, v2
    v_and_b32 v3, 1, v1
    v_lshl_add_u32 v2, v3, 4, v2
    v_bfe_u32 v3, v1, 1, 1
    v_lshl_add_u32 v2, v3, 3, v2
    s_mul_i32 s67, {sW}, 36864
    v_add_u32 v13, s67, v2
    s_mul_i32 s65, {sT}, 384
    s_mul_i32 s63, {sW}, 96
    s_add_u32 s65, s65, s63
    ''')
    units = []
    for ks in range(18):
        def dma(o, ks=ks):
            l = [f's_add_u32 s69, s65, {32*ks*9216}']
            for mat, srd in enumerate((SW1, SW3)):
                for j in range(3):
                    l += [f's_add_u32 m0, s67, {o+3072*mat+1024*j}', 's_nop 0', f'buffer_load_dwordx4 v{10+j}, {srd}, s69 offen lds']
            return l
        def rdf(o, ks=ks):
            return [f'ds_read_b64_tr_b16 {r(xw(ks, 2*t+mat)+2*i,2)}, v13 offset:{o+3072*mat+i*384+t*32}' for t in range(3) for mat in range(2) for i in range(2)]
        units.append((dma, rdf))
    staged(A, units, 6, 6144, 's67')
    A('s_barrier')
    validate(A)
    xs_setup(A, F_UP, F_XNF, cfg.shu, cfg.uplan)
    A(f'''v_lshrrev_b32 v2, 5, v1
    v_and_b32 v3, 31, v1
    v_lshlrev_b32 v3, 4, v3
    v_mul_u32_u24 v2, {36864 if 'd' in cfg.bigk else 18432}, v2
    v_add_u32 {v(XSV)}, v2, v3
    s_mul_i32 s63, {sT}, 12
    s_mul_i32 s64, {sW}, 3
    s_add_u32 s63, s63, s64
    s_mul_i32 s66, {sT}, 86
    s_lshr_b32 s66, s66, {9 if 'd' in cfg.bigk else 8}
    s_mul_i32 s66, s66, {36864 if 'd' in cfg.bigk else 18432}
    s_add_u32 s66, s66, {HB}
    s_mov_b32 s86, {f2u(-LOG2E):#x}''')
    for t in range(3):
        A(f'''s_add_u32 s64, s63, {t}
        s_lshl_b32 s64, s64, 9
        s_add_u32 s{87+t}, s64, s66''')
    def epi(th, sb, alone=False, loc=None):
        f = []
        if alone:
            B = [24 + 8 * t for t in range(3)]
            for t in range(3): f += [f'v_mul_f32 {v(4*t+j)}, s86, {v(B[t]+j)}' for j in range(4)]
            f += [f'v_exp_f32 {v(j)}, {v(j)}' for j in range(12)]
            for t in range(3): f += [f'v_pk_mul_f32 {v(B[t]+4+j,2)}, {v(B[t]+j,2)}, {v(B[t]+4+j,2)}' for j in (0, 2)]
            f += [f'v_pk_add_f32 {v(j,2)}, {v(j,2)}, 1.0 op_sel_hi:[1,0]' for j in range(0, 12, 2)]
            f += [f'v_rcp_f32 {v(j)}, {v(j)}' for j in range(12)]
            f += [f'v_mov_b64 {v(B[t],2)}, {v(XPK+2*t,2)}' for t in range(3)]
            for t in range(3): f += [f'v_pk_mul_f32 {v(B[t]+4+j,2)}, {v(4*t+j,2)}, {v(B[t]+4+j,2)}' for j in (0, 2)]
            for t in range(3): f += [f'v_cvt_pk_bf16_f32 {v(B[t]+2+d)}, {v(B[t]+4+2*d)}, {v(B[t]+5+2*d)}' for d in range(2)]
            for t in range(3):
                f += [f'v_permlane32_swap_b32 {v(B[t])}, {v(B[t]+2)}', f'v_permlane32_swap_b32 {v(B[t]+1)}, {v(B[t]+3)}',
                      f'buffer_store_dwordx4 {v(B[t],4)}, {v(XSV)}, {WS}, s{sb+t} offen sc1']
            return f
        T = [v(XT + j) for j in range(4)]
        for t in range(3):
            b = 24 * th + 8 * t
            G = [v(b + j) for j in range(4)]; U = [v(b + 4 + j) for j in range(4)]
            op = {'m': lambda j: f'v_mul_f32 {T[j]}, s86, {G[j]}', 'e': lambda j: f'v_exp_f32 {T[j]}, {T[j]}', 'g': lambda j: f'v_mul_f32 {U[j]}, {G[j]}, {U[j]}',
                  'a': lambda j: f'v_add_f32 {T[j]}, 1.0, {T[j]}', 'r': lambda j: f'v_rcp_f32 {T[j]}, {T[j]}', 'f': lambda j: f'v_mul_f32 {U[j]}, {T[j]}, {U[j]}'}
            f += [op[x[0]](int(x[1])) for x in cfg.upord.split()]
            if th == 0:
                f += [f'v_cvt_pk_bf16_f32 {v(XPK+2*t+d)}, {U[2*d]}, {U[2*d+1]}' for d in range(2)]
            else:
                f += [f'v_mov_b64 {v(b,2)}, {v(XPK+2*t,2)}\n v_cvt_pk_bf16_f32 {v(b+2)}, {U[0]}, {U[1]}', f'v_cvt_pk_bf16_f32 {v(b+3)}, {U[2]}, {U[3]}\n s_nop 0',
                      f'v_permlane32_swap_b32 {v(b)}, {v(b+2)}', f'v_permlane32_swap_b32 {v(b+1)}, {v(b+3)}',
                      f'buffer_store_dwordx4 {v(b,4)}, {v(XSV)}, {WS}, s{sb+t} offen sc1']
        if th == 1: f[-1] += '\n @mark st'
        return f
    gs_stream(A, 'L_u', 6, 18, xw, [0] * 6, True, 48, 3, epi, XNF, XB, 36864, 64 * 294912, 294912,
              4096, 2 if cfg.shu else 1, 21, cfg.upsig[0], cfg.upsig[1], cfg.upsig[2], cfg.xstep, cfg.upsig[3], 33, True, False, lowlate=cfg.shu and 'u' in cfg.lowlate, plan=cfg.uplan, epihi=cfg.upsig[4], gap='u' in cfg.gap)

def role_rg(A, name, key, NK, wsrd, in_base, in_sstride, out_base, fout, code):
    A(f'{name}:')
    if not enabled(key):
        ln0_hook(A, 0); A('s_endpgm'); return
    big = key[0] in cfg.bigk
    if big: NK *= 2
    NS = 4 if big else 8
    rplan = cfg.rplan if (big and cfg.bigsh and key[0] not in cfg.gap) else None
    def w_(k, ct): return (80 if big else 256) + (k * 3 + ct) * 4
    warm_sweep(A, f's_mov_b32 s63, {80 if key == "wo" else 104}')
    hold_back(A, key[0] in cfg.hold, F_QKV)
    A(f'''s_mul_i32 s86, {sT}, 86
    s_lshr_b32 s86, s86, 8
    s_mul_i32 s63, s86, 3
    s_sub_u32 s80, {sT}, s63
    s_lshr_b32 s81, s86, 2
    s_and_b32 s86, s86, {NS - 1}''')
    lane(A, 'v1')
    for j in range(3):
        A(f'''v_add_u32 v2, {64*j}, v1
        v_mul_u32_u24 v3, 10923, v2
        v_lshrrev_b32 v3, 16, v3
        v_mul_u32_u24 v4, 6, v3
        v_sub_u32 v4, v2, v4
        v_mul_u32_u24 v3, 1152, v3
        v_lshl_add_u32 v{10+j}, v4, 4, v3''')
    A(f'''
    v_lshrrev_b32 v2, 4, v1
    v_bfe_u32 v3, v1, 2, 2
    v_lshl_add_u32 v2, v2, 3, v3
    v_mul_u32_u24 v2, 96, v2
    s_mul_i32 s67, {sW}, 36864
    v_add_u32 v2, s67, v2
    v_and_b32 v3, 3, v1
    v_lshl_add_u32 v13, v3, 4, v2
    v_and_b32 v3, 1, v1
    v_lshl_add_u32 v2, v3, 4, v2
    v_bfe_u32 v3, v1, 1, 1
    v_lshl_add_u32 v14, v3, 3, v2
    s_mul_i32 s71, s80, 384
    s_mul_i32 s63, {sW}, 96
    s_add_u32 s71, s71, s63
    s_mul_i32 s65, s86, {NK*32*1152}
    s_add_u32 s65, s65, s71
    ''')
    units = []
    for k in range(NK):
        def dma(o, k=k):
            l = [f's_add_u32 s69, s65, {32*k*1152}']
            for j in range(3):
                l += [f's_add_u32 m0, s67, {o+1024*j}', 's_nop 0', f'buffer_load_dwordx4 v{10+j}, {wsrd}, s69 offen lds']
            return l
        def rdf(o, k=k):
            return [f'ds_read_b64_tr_b16 {r(w_(k,ct)+2*i,2)}, {"v13" if ct < 2 else "v14"} offset:{o+i*384+(ct*8 if ct < 2 else 64)}' for ct in range(3) for i in range(2)]
        units.append((dma, rdf))
    staged(A, units, 12, 3072, 's67')
    A('s_barrier')
    validate(A)
    A(f's_mul_i32 s64, s86, 3\n s_add_u32 s64, s64, s80\n s_lshl_b32 s63, {sT if (not big or cfg.bigsh) else "s64"}, 2\n s_add_u32 s63, s63, {fout}')
    flag_addr(A, v(XFA), 's63')
    A(f'''v_lshlrev_b32 {v(XSV)}, 4, v1
    s_lshl_b32 s87, s64, 2
    s_add_u32 s87, s87, {sW}
    s_mul_i32 s87, s87, 3072
    s_add_u32 s87, s87, {out_base}
    s_mov_b32 s88, s87
    s_mov_b32 s89, s87
    s_mul_i32 s90, s86, {NK*2048}
    s_mov_b32 s91, {NSEG if big else 2*NSEG}
    s_mov_b32 s74, 1
    s_mov_b32 s75, 1
    v_lshrrev_b32 v2, 5, v1
    v_and_b32 v3, 31, v1''')
    if big and cfg.bigsh:
        A('s_add_u32 s74, s81, 1\n s_add_u32 s75, s81, 1')
        if rplan:
            S0, S1 = rplan
            A(f'''s_cmp_eq_u32 s81, 0
            s_mov_b32 s44, {S0}
            s_mov_b32 s45, 2
            s_cselect_b32 s46, 1, 1000
            s_mov_b32 s47, {S1}
            s_mov_b32 s48, 1
            s_mov_b32 s49, 2
            s_cselect_b32 s75, {S1 + 1}, 1
            s_cselect_b32 s91, {S0//2 + NSEG - S0 + (NSEG - S1)//2}, {S0//2 + S1 + (NSEG - S1)//2}''')
        A(f'''s_sub_u32 s63, s75, 1
        v_mov_b32 v4, s81
        v_mov_b32 v5, s63
        buffer_store_dword v4, {v(XFA)}, {WS}, 0 offen sc1
        buffer_store_dword v5, {v(XFA)}, {WS}, 0 offen offset:512 sc1''')
    elif big: A('s_cmp_eq_u32 s81, 0\n s_cselect_b32 s74, 1, 1000\n s_cselect_b32 s75, 1000, 1')
    if key == 'wo':
        A(f'''s_lshl_b32 s65, s86, {8 if big else 7}
        v_and_b32 v4, 3, v3
        v_lshl_add_u32 v4, v4, 2, s65
        v_and_b32 v5, {4 if big else 0}, v3
        v_lshl_add_u32 v4, v5, 5, v4
        v_and_b32 v5, {8 if cfg.aplan else 0}, v3
        v_mul_u32_u24 v5, v5, v2
        v_lshl_add_u32 v4, v5, 1, v4
        v_lshl_add_u32 v4, v2, 12, v4
        v_add_u32 {v(XPA)}, {F_ATT}, v4''')
    else:
        A(f'''s_mul_i32 s65, s86, {6 if big else 3}
        v_lshrrev_b32 v5, 1, v3
        v_min_u32 v5, {5 if big else 2}, v5
        v_add_u32 v5, s65, v5
        v_and_b32 v4, {1 if cfg.shu else 0}, v3
        v_lshlrev_b32 v4, 2, v4
        v_lshl_add_u32 v4, v5, 7, v4
        v_lshl_add_u32 v4, v2, 12, v4
        v_add_u32 {v(XPA)}, {F_UP}, v4''')
    A(f'''v_and_b32 v4, 3, v3
    v_lshlrev_b32 v4, 2, v4
    v_lshl_add_u32 v4, v2, 7, v4
    v_add_u32 v4, {F_CON + (0 if key == 'wo' else 256)}, v4
    v_cmp_gt_u32 vcc, 16, v3
    v_mov_b64 v[8:9], 0
    v_mov_b64 v[10:11], 0
    v_cndmask_b32 {v(XPA)}, v4, {v(XPA)}, vcc
    v_mul_i32_i24 v65, {PR1 - PR0}, v2
    v_add_u32 v65, {PR0}, v65
    v_cndmask_b32 v65, v65, 0, vcc''')
    if big and not cfg.bigsh: A(f'v_cmp_eq_u32 vcc, s81, v2\n v_mov_b32 v4, {OOB}\n s_nop 0\n v_cndmask_b32 {v(XPA)}, v4, {v(XPA)}, vcc')
    def epi(th, sb, alone=False, loc=''):
        b = 12 * th; o = 48 + 4 * th
        f = [f'v_cvt_pk_bf16_f32 {v(o+d)}, {v(b+2*d)}, {v(b+2*d+1)}' for d in range(4)]
        f.append(f'buffer_store_dwordx4 {v(o,4)}, {v(XSV)}, {WS}, s{sb} offen offset:{1024*th}{loc}')
        f += [f'v_cvt_pk_bf16_f32 {v(56+2*th+d)}, {v(b+8+2*d)}, {v(b+9+2*d)}' for d in range(2)]
        if th == 1:
            f = f[5:] + f[:5]
            f += ['v_permlane32_swap_b32 v56, v58', 'v_permlane32_swap_b32 v57, v59',
                  f'buffer_store_dwordx4 v[56:59], {v(XSV)}, {WS}, s{sb} offen offset:2048{loc}\n @mark st']
        return f
    if big:
        gs_stream(A, name, 3, NK, w_, [0] * 3, False, 24, 4, epi, in_base, 64 * in_sstride, in_sstride, PR0 * 294912, 294912,
                  512, 2 if cfg.bigsh else 1, code, 40, None, 25, cfg.bigstep, 40, 40, True, True, big=True, plan=rplan, gap=key[0] in cfg.gap)
    else: gs_stream(A, name, 3, NK, w_, [0] * 3, False, 80, cfg.rgring[NK == 18], epi, in_base, 64 * in_sstride, in_sstride, PR0 * 294912, 294912,
              512, 1, code, True, None, cfg.rgdma[0], cfg.rgdma[1], cfg.rp0, cfg.rp1, True, True, lowlate='r' in cfg.lowlate)

def wr_reg(A, i, val):
    A(f'v_mov_b32 {r(i)}, {val}' if i < 256 else f'v_accvgpr_write_b32 {r(i)}, {val}')

def role_att(A):
    A('L_att:')
    if not enabled('att'):
        ln0_hook(A, 0); A('s_endpgm'); return
    ln0_hook(A, 0)
    validate(A, True)
    SET = [256, 384]
    BI, SA, PP, PM, OA, OP, T = 16, 20, 40, 48, 64, 128, 160
    vLD, vKM, vVM, vPA, vP, vFA, vF = 'v4', 'v5', 'v6', 'v7', 'v8', 'v9', 'v10'
    A(f'''s_sub_u32 s70, {sT}, 24
    s_lshl_b32 s70, s70, 2
    s_add_u32 s70, s70, {sW}
    s_lshl_b32 s71, {sL}, 5
    s_add_u32 s71, s71, s70
    s_lshl_b32 s71, s71, 7
    s_sub_u32 s63, {sT}, 24
    s_lshl_b32 s63, s63, 7
    s_lshl_b32 s64, {sL}, 12
    s_add_u32 s63, s63, s64
    s_lshl_b32 s64, {sW}, 2
    s_add_u32 s63, s63, s64
    s_add_u32 s63, s63, {F_ATT}''')
    A('s_mov_b32 s78, s63')
    flag_addr(A, vFA, 's63')
    A(f'''
    v_lshlrev_b32 {vLD}, 4, v1
    v_and_b32 v2, 15, v1
    v_lshrrev_b32 v3, 4, v1
    v_lshrrev_b32 v11, 2, v2
    v_and_b32 v12, 1, v2
    v_lshl_add_u32 v11, v11, 1, v12
    v_lshlrev_b32 v11, 4, v11
    v_lshl_add_u32 {vKM}, v3, 7, v11
    v_lshlrev_b32 {vVM}, 3, v1
    v_and_b32 v11, {1 if cfg.shq else 0}, v1
    v_lshlrev_b32 v11, 2, v11
    s_add_u32 s63, s71, {F_QKV}
    v_add_u32 v11, s63, v11
    s_add_u32 s63, s71, {F_CH}
    v_mov_b32 v12, s63
    v_cmp_gt_u32 vcc, 8, v1
    s_nop 1
    v_cndmask_b32 {vPA}, v12, v11, vcc
    v_lshlrev_b32 v3, 2, v3
    v_sub_u32 v2, v2, v3
    v_mov_b32 v12, {f2u(-1e30):#x}
    s_mul_i32 s72, {sL}, {64*32}
    s_add_u32 s72, s72, s70
    s_mul_i32 s73, s72, 4096
    s_add_u32 s73, s73, {KVM}
    s_mul_i32 s72, s72, 24576
    s_add_u32 s72, s72, {QKV}
    s_mul_i32 s74, {sL}, {64*262144}
    s_lshr_b32 s63, s70, {3 if 'w' in cfg.bigk else 2}
    s_lshl_b32 s63, s63, {16 if 'w' in cfg.bigk else 15}
    s_add_u32 s74, s74, s63
    s_and_b32 s63, s70, {7 if 'w' in cfg.bigk else 3}
    s_lshl_b32 s63, s63, 12
    s_add_u32 s74, s74, s63
    s_add_u32 s74, s74, {OB}
    s_mov_b32 s75, {f2u(128**-0.5*LOG2E):#x}
    ''')
    for rr in range(4):
        A(f'''v_cmp_le_i32 vcc, {rr}, v2
        s_nop 1
        v_cndmask_b32 {v(BI+rr)}, v12, 0, vcc''')
    for i in (PP + 2, PP + 3, PM + 1, PM + 2, PM + 5, PM + 6): A(f'v_mov_b32 {v(i)}, 0')
    def ld_qkv(P):
        b = SET[P]
        A(f's_mul_i32 s67, s64, {32*24576}\n s_add_u32 s67, s67, s72')
        for k in range(24):
            if k % 4 == 0 and k: A('s_add_u32 s67, s67, 4096')
            A(f'buffer_load_dwordx4 {r(b+4*k,4)}, {vLD}, {WS}, s67 offen offset:{1024*(k%4)} {cfg.attld}')
    def ld_m(P, sreg=sI):
        b = SET[P]
        A(f's_mul_i32 s68, {sreg}, {32*4096}\n s_add_u32 s68, s68, s73')
        for u in range(4):
            A(f'buffer_load_dwordx4 {r(b+96+4*u,4)}, {vKM}, {WS}, s68 offen offset:{512*u} sc1')
        for u in range(4):
            A(f'buffer_load_dwordx2 {r(b+112+2*u,2)}, {vVM}, {WS}, s68 offen offset:{2048+512*u} sc1')
    def allred2(op):
        x0, x1, t0, t1 = v(T), v(T+1), v(T+2), v(T+3)
        for sw in ('v_permlane16_swap_b32', 'v_permlane32_swap_b32'):
            A(f'''v_mov_b32 {t0}, {x0}
            v_mov_b32 {t1}, {x1}
            s_nop 0
            {sw} {x0}, {t0}
            {sw} {x1}, {t1}
            {op} {x0}, {x0}, {t0}
            {op} {x1}, {x1}, {t1}''')
    def compute(P):
        b = SET[P]
        Q = lambda u, th: r(b + 4 * (2 * u + th), 4)
        K = lambda u, th: r(b + 32 + 4 * (2 * u + th), 4)
        for u in range(4):
            for ai, (a_, qh, c0) in enumerate(((K(u,0), 0, v(BI,4)), (r(b+96+4*u,4), 0, '0'), (K(u,0), 1, '0'), (K(u,1), 1, v(BI,4)), (r(b+96+4*u,4), 1, '0'))):
                d = v(SA + 4 * ai, 4)
                A(f'{M16} {d}, {a_}, {Q(u,qh)}, {c0 if u == 0 else d}')
        S0 = [SA + i for i in range(4)] + [SA + 4, SA + 5]
        S1 = [SA + 8 + i for i in range(8)] + [SA + 16, SA + 17]
        A('s_nop 4')
        A(f'v_max3_f32 {v(T)}, {v(S0[0])}, {v(S0[1])}, {v(S0[2])}\n v_max3_f32 {v(T)}, {v(T)}, {v(S0[3])}, {v(S0[4])}\n v_max_f32 {v(T)}, {v(T)}, {v(S0[5])}')
        A(f'v_max_f32 {v(T+1)}, {v(S1[0])}, {v(S1[1])}')
        for q in range(2, 10, 2): A(f'v_max3_f32 {v(T+1)}, {v(T+1)}, {v(S1[q])}, {v(S1[q+1])}')
        allred2('v_max_f32')
        A(f'v_mul_f32 {v(T)}, s75, {v(T)}\n v_mul_f32 {v(T+1)}, s75, {v(T+1)}')
        for qh, S in enumerate((S0, S1)):
            for x in S: A(f'v_fma_f32 {v(x)}, {v(x)}, s75, -{v(T+qh)}')
        for x in S0 + S1: A(f'v_exp_f32 {v(x)}, {v(x)}')
        for qh, S in enumerate((S0, S1)):
            A(f'v_add_f32 {v(T+qh)}, {v(S[0])}, {v(S[1])}')
            for x in S[2:]: A(f'v_add_f32 {v(T+qh)}, {v(T+qh)}, {v(x)}')
        allred2('v_add_f32')
        A(f'v_rcp_f32 {v(T)}, {v(T)}\n v_rcp_f32 {v(T+1)}, {v(T+1)}')
        for qh, S in enumerate((S0, S1)):
            for x in S: A(f'v_mul_f32 {v(x)}, {v(x)}, {v(T+qh)}')
        for d in range(2): A(f'v_cvt_pk_bf16_f32 {v(PP+d)}, {v(S0[2*d])}, {v(S0[2*d+1])}')
        for d in range(4): A(f'v_cvt_pk_bf16_f32 {v(PP+4+d)}, {v(S1[2*d])}, {v(S1[2*d+1])}')
        for qh, S in enumerate((S0, S1)):
            for o in (0, 3): A(f'v_cvt_pk_bf16_f32 {v(PM+4*qh+o)}, {v(S[-2])}, {v(S[-1])}')
        od = lambda u, qh, ch: v(OA + 32 * qh + 8 * u + 4 * ch, 4)
        for qh in range(2):
            for u in range(4):
                for ch in range(2):
                    A(f'{M16} {od(u,qh,ch)}, {r(b+64+4*(2*u+ch),4)}, {v(PP+4*qh,4)}, 0')
        for qh in range(2):
            for u in range(4):
                for ch in range(2):
                    A(f'v_mfma_f32_16x16x16_bf16 {od(u,qh,ch)}, {r(b+112+2*u,2)}, {v(PM+4*qh+2*ch,2)}, {od(u,qh,ch)}')
    def pack():
        for d in range(32):
            A(f'v_cvt_pk_bf16_f32 {v(OP+d)}, {v(OA+2*d)}, {v(OA+2*d+1)}')
    def stores():
        A(f's_mul_i32 s67, {sI}, 262144\n s_add_u32 s67, s67, s74')
        for k in range(8):
            A(f'buffer_store_dwordx4 {v(OP+4*k,4)}, {vLD}, {WS}, s67 offen offset:{1024*(k%4)} {cfg.attst}')
            if k == 3: A(f's_add_u32 s67, s67, {32768 if "w" in cfg.bigk else 16384}')
    poll = f'buffer_load_dword {vP}, {vPA}, {WS}, 0 offen sc1'
    def flag():
        if 'a' in cfg.sat:
            l = A.lab('Lfa')
            A(f's_cmp_eq_u32 s79, {sI}\n s_cbranch_scc1 {l}\n s_waitcnt lgkmcnt(0)\n s_mov_b32 s79, {sI}\n s_atomic_umax s79, s[8:9], s78\n {l}:')
        else: A(f'v_mov_b32 {vF}, {sI}\n buffer_store_dword {vF}, {vFA}, {WS}, 0 offen sc1')
    A('s_mov_b32 s79, 0')
    for P in (0, 1):
        for i in range(96, 112): wr_reg(A, SET[P] + i, 0)
    S1 = cfg.aplan
    if S1:
        l = A.lab('La')
        A(f'''s_cmp_eq_u32 {sL}, 0
        s_cselect_b32 s80, 1000, {S1 - 1}
        s_cbranch_scc0 {l}
        s_add_u32 s81, s78, {4096 + 16}
        s_mov_b32 s82, {S1}
        s_atomic_umax s82, s[8:9], s81
        {l}:''')
    else: A('s_mov_b32 s80, 1000')
    A(f's_mov_b32 {sI}, 0\n s_mov_b32 s66, 0\n s_branch L_a_wait0')
    for P in (0, 1):
        l1 = A.lab('La'); l2 = A.lab('La')
        A(f'''L_a_wait{P}:
        s_mov_b32 {sSPIN}, 0
        L_a_spin{P}:
        {poll}
        s_waitcnt vmcnt(0)
        L_a_chk{P}:
        v_cmp_ge_u32 vcc, {sI}, {vP}
        s_bitcmp1_b32 s66, 1
        s_cbranch_scc1 {l1}
        s_cmp_lg_u32 vcc_hi, 0
        s_cbranch_scc1 {l1}''')
        ld_m(P)
        A(f'''s_or_b32 s66, s66, 2
        {l1}:
        s_bitcmp1_b32 s66, 0
        s_cbranch_scc1 {l2}
        s_and_b32 s63, vcc_lo, 0xff
        s_cbranch_scc1 {l2}
        s_mov_b32 s64, {sI}''')
        ld_qkv(P)
        A(f'''s_or_b32 s66, s66, 1
        {l2}:
        s_cmp_eq_u32 s66, 3
        s_cbranch_scc1 L_a_top{P}
        s_add_u32 {sSPIN}, {sSPIN}, 1
        s_cmp_lt_u32 {sSPIN}, {cfg.spin_limit}
        s_cbranch_scc1 L_a_spin{P}
        s_mov_b32 s63, 30
        s_branch L_abort
        L_a_topf{P}:
        s_waitcnt vmcnt(8)''')
        flag()
        A(f'''s_waitcnt vmcnt({0 if 'a' in cfg.sat else 1})
        s_branch L_a_top2{P}
        L_a_top{P}:
        s_waitcnt vmcnt(0)
        L_a_top2{P}:
        s_cmp_ge_u32 {sI}, s80
        s_addc_u32 s64, {sI}, 1
        v_cmp_ge_u32 vcc, s64, {vP}''')
        stamp(A, 'v220', sI)
        def variant(ldf, gapc):
            body = capture(A, lambda: compute(P)); ld = capture(A, ldf)
            groups = []; cur = []
            for l in ld:
                cur.append(l)
                if l.strip().startswith('buffer_'): groups.append(cur); cur = []
            k = 0; cost = 0; tot = 0; fl = False
            for l in body:
                A.lines.append(l); c_ = 16 if 'mfma' in l else 6; cost += c_; tot += c_
                if cost >= gapc and k < len(groups): A.lines += groups[k]; k += 1; cost = 0
                if tot > 700 and not fl and l.strip().startswith('v_add_f32'):
                    A(f's_waitcnt vmcnt({k})'); flag(); fl = True
            assert k == len(groups) and fl, (k, len(groups))
        A(f'''s_and_b32 s63, vcc_lo, 0xff
        s_cbranch_scc0 L_a_w{P}
        s_mov_b32 s66, 0''')
        variant(lambda: None, 1)
        A(f's_branch L_a_e{P}\n L_a_w{P}:\n s_cmp_eq_u32 vcc_hi, 0\n s_cbranch_scc1 L_a_ww{P}\n s_mov_b32 s66, 1')
        variant(lambda: ld_qkv(1 - P), 56)
        A(f's_branch L_a_e{P}\n L_a_ww{P}:\n s_mov_b32 s66, 3')
        variant(lambda: (ld_qkv(1 - P), ld_m(1 - P, 's64')), 42)
        A(f'L_a_e{P}:\n {poll}')
        pack()
        stores()
        stamp(A, 'v221', sI)
        A(f'''s_mov_b32 {sI}, s64
        s_waitcnt vmcnt(8)
        v_cmp_ge_u32 vcc, {sI}, {vP}
        s_cmp_eq_u32 s66, 3
        s_cbranch_scc1 L_a_top2{1-P}
        s_cmp_eq_u32 s66, 0
        s_cbranch_scc1 L_a_idle{P}
        s_cmp_lg_u32 vcc_hi, 0
        s_cbranch_scc1 L_a_idle{P}''')
        ld_m(1 - P)
        A(f'''s_branch L_a_topf{1-P}
        L_a_idle{P}:
        {poll}
        s_waitcnt vmcnt(0)''')
        flag()
        A(f'''s_cmp_ge_u32 {sI}, {NSEG}
        s_cbranch_scc1 L_a_done
        s_mov_b32 {sSPIN}, 0
        s_branch L_a_chk{1-P}''')
    A('L_a_done:\n s_waitcnt vmcnt(0) lgkmcnt(0)')
    if S1:
        if cfg.timing == 2: A(f's_cmp_lg_u32 s80, 1000\n s_cbranch_scc1 L_a_x\n v_mov_b32 v222, v220\n v_mov_b32 v223, v221\n L_a_x:')
        A(f'''s_cmp_lg_u32 s80, 1000
        s_cbranch_scc1 L_a_done2
        s_mov_b32 s80, 0
        s_mov_b32 s78, s81
        s_mov_b32 s79, {S1}
        s_mov_b32 {sI}, {S1}
        s_mov_b32 s66, 0
        s_add_u32 s72, s72, {64*32*24576}
        s_add_u32 s73, s73, {64*32*4096}
        s_add_u32 s74, s74, {64*262144}
        v_add_u32 {vPA}, 4096, {vPA}
        s_branch L_a_wait0
        L_a_done2:''')
    dump(A, ['v220', 'v221', 'v222', 'v223'])
    A('s_endpgm')

L_MEM = 147456; L_QK = L_MEM + 9216; L_O = L_QK + 4096; L_SM = L_O + 2048
def cwq(T, c): return 80 + (T * 9 + c) * 8
def cwo(t, c2): return 80 + 288 + (t * 2 + c2) * 8
def resident():
    reg = [('k', c) for c in range(9) if c not in cfg.KL] + [('v', c) for c in range(9) if c not in cfg.VL]
    lds = [('k', c) for c in cfg.KL] + [('v', c) for c in cfg.VL]
    assert len(reg) == 9 and len(lds) == 9
    return reg, lds
def cwr(m, T, c): return 80 + 144 + (resident()[0].index((m, c)) * 2 + T) * 8

def chain_mem0(A):
    A(f'''
    v_lshrrev_b32 v2, 4, v1
    v_bfe_u32 v3, v1, 2, 1
    v_lshl_add_u32 v2, v2, 1, v3
    v_mul_u32_u24 v2, 1152, v2
    v_bfe_u32 v3, v1, 3, 1
    v_bfe_u32 v4, v1, 1, 1
    v_lshl_add_u32 v3, v3, 1, v4
    v_and_b32 v4, 1, v1
    {f's_lshr_b32 s63, {sW}, 1{chr(10)} s_lshl_b32 s63, s63, 5{chr(10)} s_and_b32 s64, {sW}, 1{chr(10)} s_lshl_b32 s64, s64, 3{chr(10)} s_add_u32 s63, s63, s64{chr(10)} v_lshl_add_u32 v5, v3, 1, s63{chr(10)} v_add_u32 v5, v5, v4' if cfg.x2 else f's_lshl_b32 s63, {sW}, 2{chr(10)} v_add_u32 v5, s63, v3{chr(10)} v_lshl_add_u32 v5, v4, 5, v5'}
    v_lshl_add_u32 v5, v5, 1, v2
    s_mul_i32 s63, {sW}, 144
    s_add_u32 s63, s63, 128
    v_lshl_add_u32 v6, v3, 2, s63
    v_lshl_add_u32 v6, v4, 1, v6
    v_lshl_add_u32 v6, v6, 1, v2
    s_lshl_b32 s63, {sW}, 8
    s_add_u32 s63, s63, {L_MEM}
    v_lshl_add_u32 v7, v1, 2, s63
    ''')
    for c in range(8):
        o = (144 * (c >> 1) + 64 * (c & 1)) * 2
        A(f'buffer_load_ushort v{40+c}, v5, {SMEM0}, 0 offen offset:{o}')
        A(f'buffer_load_ushort v{50+c}, v5, {SMEM0}, 0 offen offset:{o+32}')
    A(f'buffer_load_dword v48, v6, {SMEM0}, 0 offen')
    return

def chain_mem0b(A):
    for c in range(8): A(f'v_lshl_or_b32 v{40+c}, v{50+c}, 16, v{40+c}')
    for c in range(9): A(f'ds_write_b32 v7, v{40+c} offset:{c*1024}')
    A('s_waitcnt lgkmcnt(0)')


def chain_init(A):
    lane(A, 'v1')
    A(f'''
    v_lshrrev_b32 v2, 5, v1
    v_bfe_u32 v3, v1, 4, 1
    v_bfe_u32 v4, v1, 3, 1
    v_bfe_u32 v5, v1, 2, 1
    v_and_b32 v6, 3, v1
    v_lshlrev_b32 v7, 4, v6
    v_lshl_add_u32 v8, v2, 2, v3
    v_lshl_add_u32 v8, v4, 1, v8
    v_lshlrev_b32 v8, {1 if cfg.x2 else 0}, v8
    v_lshl_add_u32 v8, v5, 4, v8
    v_lshl_add_u32 v10, v8, 13, v7
    v_mul_u32_u24 v8, 144, v2
    v_lshl_add_u32 v8, v3, 2, v8
    v_lshl_add_u32 v8, v4, 3, v8
    v_add_u32 v8, v8, v5
    v_lshl_add_u32 v11, v8, 13, v7
    s_mul_i32 s67, {sW}, 36864
    v_lshrrev_b32 v8, 2, v1
    v_lshl_add_u32 v9, v8, 6, s67
    v_lshl_add_u32 v13, v6, 3, v9
    v_lshl_add_u32 v14, v6, 4, v9
    v_lshrrev_b32 v8, 4, v1
    v_lshl_add_u32 v8, v8, 2, v5
    v_mul_u32_u24 v8, 288, v8
    v_lshl_add_u32 v8, v6, 3, v8
    v_add_u32 v8, s67, v8
    v_lshl_add_u32 v15, v4, 5, v8
    v_mul_u32_u24 v9, 9216, v4
    v_add_u32 v12, v9, v8
    v_lshl_add_u32 v16, v1, 4, s67
    s_lshl_b32 s65, {sT}, 8
    s_lshl_b32 s63, {sW}, 6
    s_add_u32 s65, s65, s63
    s_mul_i32 s66, {sT}, 147456
    s_mul_i32 s63, {sW}, 288
    s_add_u32 s66, s66, s63
    ''')
    for j in range(9):
        A(f'''v_add_u32 v8, {64*j}, v1
        v_mul_u32_u24 v9, 3641, v8
        v_lshrrev_b32 v9, 16, v9
        v_mul_u32_u24 v17, 18, v9
        v_sub_u32 v8, v8, v17
        v_mul_u32_u24 v9, 1152, v9
        v_lshl_add_u32 v{24+j}, v8, 4, v9''')
    def dqkv(srd, c):
        def f(o):
            l = []
            for tau in range(4):
                pi, jh = tau & 1, tau >> 1
                row = 144 * (c >> 1) + 64 * (c & 1) + (32 * jh + pi if cfg.x2 else 32 * pi + 8 * jh) if c < 8 else 288 * jh + 128 + 2 * pi
                l += [f's_add_u32 m0, s67, {o+1024*tau}', f's_add_u32 s69, s65, {row*8192}', f'buffer_load_dwordx4 {"v10" if c < 8 else "v11"}, {srd}, s69 offen lds']
            return l
        return f
    units = []
    tra = lambda m, T: ('v13', 32 * T) if m != 'v' else ('v14', 8 * T)
    for c in range(9):
        units.append((dqkv(SWQ, c), lambda o, c=c: [f'ds_read_b64_tr_b16 {r(cwq(T,c)+2*tau,2)}, v13 offset:{o+1024*tau+32*T}' for T in range(2) for tau in range(4)]))
    for (m, c) in resident()[0]:
        units.append((dqkv(SWK if m == 'k' else SWV, c), lambda o, m=m, c=c: [f'ds_read_b64_tr_b16 {r(cwr(m,T,c)+2*tau,2)}, {tra(m,T)[0]} offset:{o+1024*tau+tra(m,T)[1]}' for T in range(2) for tau in range(4)]))
    ranges = [((i % 9) * 4096, 4096) for i in range(18)]
    for u in range(4):
        def d(o, u=u):
            l = [f's_add_u32 s69, s66, {32*u*1152}']
            for j in range(9): l += [f's_add_u32 m0, s67, {9216*u+1024*j}', 's_nop 0', f'buffer_load_dwordx4 v{24+j}, {SWO}, s69 offen lds']
            return l
        def rd_(o, u=u):
            l = [f'ds_read_b64_tr_b16 {r(cwo(2*p+(u>>1),u&1)+2*tau,2)}, v15 offset:{9216*u+(16*(tau>>1)+2*(tau&1))*288+64*p}' for p in range(4) for tau in range(4)]
            if u & 1: l += [f'ds_read_b64_tr_b16 {r(cwo(8,u>>1)+2*tau,2)}, v12 offset:{9216*(u-1)+(16*(tau>>1)+2*(tau&1))*288+256}' for tau in range(4)]
            return l
        units.append((d, rd_)); ranges.append((9216 * u, 9216))
    for i, (m, c) in enumerate(resident()[1]):
        def rv(o, m=m, i=i):
            b = 36 + 16 * (i & 1); pb = 36 + 16 * ((i + 1) & 1)
            l = [f'ds_read_b64_tr_b16 {v(b+8*ch+2*tau,2)}, {tra(m,ch)[0]} offset:{o+1024*tau+tra(m,ch)[1]}' for ch in range(2) for tau in range(4)]
            if i > 0: l += ['s_waitcnt lgkmcnt(8)'] + [f'ds_write_b128 v16, {v(pb+4*q,4)} offset:{o-4096+1024*q}' for q in range(4)]
            if i == 8: l += ['s_waitcnt lgkmcnt(4)'] + [f'ds_write_b128 v16, {v(b+4*q,4)} offset:{o+1024*q}' for q in range(4)]
            return l
        units.append((dqkv(SWK if m == 'k' else SWV, c), rv))
        ranges.append((i * 4096, 4096))
    dep_fix = True
    staged(A, units, 9, 4096, 's67', pre=cfg.chpre, ranges=ranges, hold={18: 19, 20: 21}, mid=(chain_mem0, chain_mem0b))

(vLM, vWV, vIDX, vQW, vQR, vKR, vSM, vOW, vKMS, vPS, vRS, vKP, vSI, vSV, vSC, vZ) = [f'v{64+i}' for i in range(16)]
def role_chain(A):
    A('L_chain:')
    if not enabled('chain'):
        ln0_hook(A, 0); A('s_endpgm'); return
    warm_sweep(A, 's_mov_b32 s63, 0', True, cfg.ch1wait)
    hold_back(A, 'c' in cfg.hold, F_CH, True)
    chain_init(A)
    validate(A)
    lane(A, 'v1')
    A(f'''
    v_and_b32 v2, 15, v1
    v_lshrrev_b32 v3, 4, v1
    v_and_b32 v8, 3, v1
    v_mov_b32 v6, {OOB}
    v_lshlrev_b32 v4, 4, v1
    v_add_u32 {vLM}, {L_MEM}, v4
    s_mul_i32 s63, {sW}, 36864
    v_add_u32 {vWV}, s63, v4
    s_lshl_b32 s63, {sW}, 10
    s_add_u32 s63, s63, {L_QK}
    s_sub_u32 s66, s63, {L_MEM}
    v_lshlrev_b32 v4, 2, v1
    v_add_u32 {vSM}, {L_SM}, v4
    s_lshl_b32 s67, {sW}, 8
    v_and_b32 v4, 2, v1
    v_cmp_eq_u32 vcc, 0, v4
    v_mov_b32 v5, 0x4444
    v_mov_b32 v7, 0xeeee
    v_cndmask_b32 {vIDX}, v7, v5, vcc
    v_lshlrev_b32 v4, 4, v2
    v_lshl_add_u32 v4, v3, 2, v4
    v_add_u32 {vQW}, s63, v4
    v_bfe_u32 v4, v1, 2, 2
    v_lshl_add_u32 v4, v3, 3, v4
    v_lshl_add_u32 v4, v4, 4, s63
    v_and_b32 v5, 1, v1
    v_lshl_add_u32 {vQR}, v5, 3, v4
    v_bfe_u32 v5, v1, 1, 1
    v_lshl_add_u32 {vKR}, v5, 3, v4
    v_lshrrev_b32 v4, 3, v2
    v_lshl_add_u32 v4, v4, 2, v8
    v_lshlrev_b32 v4, 4, v4
    v_lshl_add_u32 v4, v3, 7, v4
    s_lshl_b32 s64, {sW}, 9
    v_add_u32 v4, s64, v4
    v_and_b32 v5, 4, v1
    v_cmp_eq_u32 vcc, 0, v5
    s_add_u32 s68, s64, {2048 - 2*L_SM}
    s_nop 0
    v_cndmask_b32 {vKMS}, v6, v4, vcc
    s_lshr_b32 s63, {sW}, 1
    s_lshl_b32 s63, s63, 10
    s_and_b32 s64, {sW}, 1
    s_lshl_b32 s64, s64, 5
    s_add_u32 s63, s63, s64
    s_add_u32 s63, s63, {L_O}
    v_lshrrev_b32 v4, 1, v2
    v_lshlrev_b32 v4, 6, v4
    v_and_b32 v5, 1, v1
    v_lshl_add_u32 v4, v5, 4, v4
    v_lshl_add_u32 v4, v3, 8, v4
    v_add_u32 {vOW}, s63, v4
    v_lshrrev_b32 v4, {3 if cfg.x2 else 2}, v2
    v_lshrrev_b32 v5, 5, v1
    v_lshl_add_u32 v4, v4, 1, v5
    v_and_b32 v7, 1, v3
    v_and_b32 v9, {7 if cfg.x2 else 3}, v1
    v_lshl_add_u32 v7, v7, {3 if cfg.x2 else 2}, v9
    v_lshlrev_b32 v7, {3 if cfg.x2 else 4}, v7
    v_lshl_add_u32 {vPS}, v4, 12, v7
    v_bfe_u32 v4, v1, 1, 2
    v_lshlrev_b32 v4, 5, v4
    v_and_b32 v7, 1, v1
    v_lshl_add_u32 v4, v7, 3, v4
    v_lshl_add_u32 v4, v5, 4, v4
    v_and_b32 v7, 1, v3
    v_lshl_add_u32 v4, v7, 2, v4
    v_and_b32 v7, 8, v1
    v_cmp_eq_u32 vcc, 0, v7
    v_bfe_u32 v9, v1, 2, 1
    v_lshl_add_u32 {vSI}, v9, 1, v8
    v_cndmask_b32 {vRS}, v6, v4, vcc
    v_mov_b32 v4, 0x3f80
    v_mov_b32 v5, 0x3f800000
    v_cndmask_b32 v4, v5, v4, vcc
    v_and_b32 v7, 2, v1
    v_cmp_eq_u32 vcc, 0, v7
    s_nop 1
    v_cndmask_b32 {vSV}, 0, v4, vcc
    ''')
    l3 = A.lab('Lw3')
    A(f'''
    s_lshl_b32 s63, {sL}, 5
    s_add_u32 s63, s63, {sT}
    s_lshl_b32 s63, s63, 7
    s_add_u32 s64, s63, {F_QKV}
    s_mov_b32 s54, s64
    s_add_u32 s55, s63, {F_CH}
    v_and_b32 v4, {1 if cfg.shq else 0}, v1
    v_lshl_add_u32 {vKP}, v4, 2, s64
    s_cmp_lg_u32 {sW}, 3
    s_cbranch_scc1 {l3}
    v_lshlrev_b32 v4, 8, v8
    v_add_u32 {vSI}, {L_SM}, v4
    s_add_u32 s64, s63, {F_CH}
    v_cmp_eq_u32 vcc, 0, v1
    v_mov_b32 v4, s64
    s_nop 0
    v_cndmask_b32 {vRS}, v6, v4, vcc
    {l3}:
    s_mul_i32 s71, {sL}, {64*32}
    s_add_u32 s71, s71, {sT}
    s_mul_i32 s72, s71, 4096
    s_add_u32 s72, s72, {KVM}
    s_mul_i32 s71, s71, 24576
    s_add_u32 s94, s71, {QKV + 8192}
    s_lshl_b32 s63, {sW}, 11
    s_add_u32 s71, s71, s63
    s_add_u32 s71, s71, {QKV + 8192 - L_MEM}
    s_add_u32 s70, s71, 8192
    s_mul_i32 s73, {sL}, {2*RSLOT}
    s_add_u32 s73, s73, {RING0}
    s_lshl_b32 s74, {sW}, 5
    s_add_u32 s74, s74, {sT}
    s_lshl_b32 s63, {sT}, 7
    s_add_u32 s63, s63, s73
    s_lshl_b32 s64, {sW}, 16
    s_add_u32 s85, s63, s64
    s_add_u32 s86, s85, 32768
    s_lshl_b32 s64, {sW}, 13
    s_add_u32 s87, s63, s64
    s_add_u32 s87, s87, {64*4096}
    s_lshl_b32 s83, s74, 12
    s_add_u32 s83, s83, s73
    s_sub_u32 s83, s83, {L_MEM}
    s_mov_b32 s82, {RSLOT}
    s_mul_i32 s75, {sL}, {3*9216}
    s_add_u32 s75, s75, {MEM0}
    s_lshl_b32 s63, s74, 7
    s_add_u32 s88, s75, s63
    s_add_u32 s89, s88, 9216
    s_add_u32 s90, s88, 18432
    s_mul_i32 s91, {sW}, 3072
    s_sub_u32 s91, s91, s63
    s_sub_u32 s91, s91, {L_MEM}
    s_mov_b32 s77, {f2u(128**-0.5*LOG2E):#x}
    s_mov_b32 s78, 0x00ff00ff
    s_mov_b32 s79, 0x00ff00ff
    s_mov_b32 s92, 0x0000ffff
    s_mov_b32 s93, 0x0000ffff
    s_mov_b32 s84, 1
    s_mov_b32 s4, 0x3f803f80
    s_mov_b32 s5, 0x3f803f80
    s_mov_b32 {sI}, 0
    ''')
    l4 = A.lab('Lnr')
    A(f'v_mov_b32 {vSI}, -1\n s_cmp_lt_u32 s74, 72\n s_cbranch_scc1 {l4}\n v_mov_b32 {vRS}, {OOB}\n {l4}:')
    A(f's_cmp_lg_u32 {sSLOW}, 0\n s_cbranch_scc1 L_chs')
    chain_loop(A, 'L_chf', '')
    A('L_chs:')
    chain_loop(A, 'L_chs', ' sc1')

def chain_loop(A, name, loc):
    KX, AQ, AK, AR, BB, AV = 0, 8, 16, [24, 28], [32, 40, 48], 56
    sm = 'v_smfmac_f32_16x16x64_bf16'
    ACCS = [12, 13, 14, 15, 16, 17, 18, 19, 24, 25, 26, 27]
    NPS = 12
    def pst(k): return f's_memtime s[{28+2*k}:{29+2*k}]' if cfg.timing == True else ''
    def ps(k): A(pst(k))
    if cfg.timing:
        for k in range(NPS): A(f's_mov_b32 s{ACCS[k]}, 0\n s_mov_b32 s{28+2*k}, 0')
        A('s_mov_b32 s52, 0')
    REG, LDS = resident()
    seqA = []
    for c in range(9):
        seqA += [('k', 0, c), ('q', 0, c), ('k', 1, c), ('q', 1, c)] if c in cfg.KL else [('q', 0, c), ('q', 1, c), ('k', 0, c), ('k', 1, c)]
    seqV = [('v', T, c) for c in cfg.VORD for T in range(2)]
    fed = [x for x in seqA + seqV if (x[0], x[2]) in LDS]
    def brd(n):
        m, T, c = fed[n]
        return [f'ds_read_b128 {v(BB[n%3]+4*hb,4)}, {vWV} offset:{LDS.index((m,c))*4096+(2*T+hb)*1024} #b{n}' + ('x' if hb == 0 else '') for hb in range(2)]
    chunks = list(range(9)) + cfg.VORD
    assert cfg.VORD[:2] == [7, 8]
    NF = len(fed)
    xs = {16: BB[(NF - 3) % 3] + 4, 17: BB[(NF - 2) % 3] + 4}
    def aslot(i): return xs[i] if i in xs else AR[i & 1]
    def ard(i): return f'ds_read_b128 {v(aslot(i),4)}, {vLM} offset:{chunks[i]*1024} #a{i}'
    def mm(x, i):
        m, T, c = x
        acc = {'q': AQ, 'k': AK, 'v': AV}[m] + 4 * T
        pre = [f'@lw a{i}']; post = []
        if x in fed:
            n = fed.index(x); b = v(BB[n % 3], 8); pre.append(f'@lw b{n}')
            if n + 3 < len(fed): post = brd(n + 3)
        else: b = r(cwq(T, c) if m == 'q' else cwr(m, T, c), 8)
        return pre, f'{sm} {v(acc,4)}, {v(aslot(i),4)}, {b}, {vIDX}', post
    strip = lambda l: l.split('#')[0]
    def pre_reads():
        for n in range(3):
            for x in brd(n): A(strip(x))
    zero = [f'v_mov_b64 {v(i,2)}, 0' for i in list(range(8, 24, 2)) + list(range(56, 64, 2))]
    pre_reads()
    for x in zero: A(x)
    sel = f's_cmp_lg_u32 s76, 0\n s_cselect_b32 s80, s71, {OOB}\n s_cselect_b32 s81, s70, {OOB}'
    A(f's_load_dwordx2 s[64:65], s[8:9], s54 glc\n s_add_u32 s63, s83, s82')
    for so in ('s83', 's63'):
        for i in range(4): A(f'buffer_load_dwordx4 v[4:7], {vLM}, {WS}, {so} offen offset:{1024*i} sc1')
    for so in ('s88', 's89', 's90'): A(f's_sub_u32 s63, {so}, {L_SM}\n buffer_load_dword v4, {vSM}, {WS}, s63 offen sc1')
    A(f's_mov_b32 s76, 0\n s_mov_b32 s80, {OOB}')
    A(f'{name}_top:')
    ps(11)
    A(f's_waitcnt lgkmcnt(0)\n s_barrier')
    if cfg.timing == 2: A('s_memrealtime s[96:97]')
    A(f'{name}_top2:')
    if cfg.timing == True:
        ls = A.lab('Lts')
        A(f's_memtime s[52:53]\n s_waitcnt lgkmcnt(0)\n s_cmp_lt_u32 {sI}, 8\n s_cbranch_scc1 {ls}')
        for k in range(NPS):
            A(f's_sub_u32 s63, s{30+2*k}, s{28+2*k}\n s_add_u32 s{ACCS[k]}, s{ACCS[k]}, s63')
        A(f'{ls}:')
    if cfg.timing != 2: stamp(A, vZ, sI)
    ps(0)
    VX = [20, 8]
    kld = [f'buffer_load_dwordx4 {v(KX+4*q,4)}, {vLM}, {WS}, s71 offen offset:{1024*q} sc1' for q in range(2)]
    vld = [f'buffer_load_dwordx4 {v(VX[q],4)}, {vLM}, {WS}, s70 offen offset:{1024*q} sc1' for q in range(2)]
    pk = lambda d, b: f'v_pk_add_f32 {v(d,2)}, {v(b,2)}, {v(b+2,2)}'
    ad = lambda b: [f'v_add_f32 {v(b)}, {v(b)}, {v(b+2)}', f'v_add_f32 {v(b+1)}, {v(b+1)}, {v(b+3)}']
    cv = lambda d, b: f'v_cvt_pk_bf16_f32 {v(d)}, {v(b)}, {v(b+1)}'
    ev = f'{"s_min_u32 s63, s64, s65" if cfg.shq else "s_mov_b32 s63, s64"}\n s_cmp_gt_u32 s63, {sI}'
    ev += f'\n s_cselect_b32 s76, 1, 0\n s_cselect_b32 s80, s71, {OOB}\n s_cselect_b32 s81, s70, {OOB}'
    L = [ard(0), ard(1), kld[0].replace('s71', 's80'), kld[1].replace('s71', 's80'), 's_cmp_eq_u32 s76, 0', f's_cbranch_scc1 {name}_m1', f'{name}_m1r:']
    extra = {cfg.tpos: [f'v_lshlrev_b32 {vSC}, 2, {vLM}', f's_sub_u32 s63, s81, {3*L_MEM}'],
             cfg.tpos + 1: ['s_mov_b32 exec_hi, 0', f'buffer_load_dword {vSC}, {vSC}, {WS}, s63 offen sc1', 's_mov_b32 exec_hi, -1'],
             cfg.midchk: ['s_cmp_eq_u32 s76, 0', f's_cbranch_scc1 {name}_m2', f'{name}_m2r:'],
             34: [f's_cmp_eq_u32 {sI}, {NSEG-1}']}
    if cfg.rstpos: extra[cfg.rstpos] = [f'buffer_store_dword {vSI}, {vRS}, {WS}, s90 offen{loc}']
    pend = []
    for j, x in enumerate(seqA):
        i = j // 4
        pre, m_, post = mm(x, i)
        L += pre + [m_]
        pend += post
        if j % 4 == 3 and i + 2 < 9: pend.append(ard(i + 2))
        if pend: L.append(pend.pop(0))
        if len(pend) > 1: L.append(pend.pop(0))
        L += extra.get(j, [])
    L += pend; pend = []
    L.append(pst(1))
    vq = list(enumerate(seqV))
    def vrun(n, fill=()):
        o = []; fill = list(fill)
        for _ in range(n):
            j, x = vq.pop(0); i = 9 + j // 2
            pre, m_, post = mm(x, i)
            o += pre + [m_] + post
            if j % 2 == 1 and i + 2 < 16: o.append(ard(i + 2))
            if x == fed[NF - 3]: o.append(ard(16))
            if x == fed[NF - 2]: o.append(ard(17))
            if fill: o += fill.pop(0)
        return o
    g = cfg.vgaps
    L += vrun(g[0], [['s_nop 0'], ad(AQ)])
    L += ad(AQ + 4) + [cv(10, AQ), cv(11, AQ + 4), f'ds_write2_b32 {vQW}, v10, v11 offset0:0 offset1:64', pk(AK, AK), pk(AK + 4, AK + 4),
          f'ds_read_b64_tr_b16 v[8:9], {vQR}', cv(18, AK), cv(19, AK + 4), f'ds_write2_b32 {vQW}, v18, v19 offset0:128 offset1:192',
          f'ds_read_b64_tr_b16 v[10:11], {vQR} offset:64 #q', f'ds_read_b64_tr_b16 v[12:13], {vKR} offset:512', f'ds_read_b64_tr_b16 v[14:15], {vKR} offset:576 #k']
    state = Sched(['\n'.join(L)]).emit(A)
    A(f's_cbranch_scc1 {name}_late')
    vsave = list(vq)
    smf = [f'{M16} v[16:19], v[0:3], v[8:11], 0', f'{M16} v[20:23], v[4:7], v[8:11], 0', f'{M16} v[0:3], v[12:15], v[8:11], 0']
    kmst = f'buffer_store_dwordx4 v[12:15], {vKMS}, {WS}, s72 offen sc1'
    def smid(withv, st):
        run = (lambda n, f=(): vrun(n, f)) if withv else (lambda n, f=(): [y for x in f for y in x])
        L = run(g[2], [[f'v_add_u32 v4, s66, {vLM}'], [f'v_add_u32 v5, s67, {vSM}']])
        L += [f's_nop {cfg.snop if withv else 5}'] + [f'v_cndmask_b32 v{16+q}, v{20+q}, v{16+q}, vcc' for q in range(4)]
        L += ['ds_write_b128 v4, v[16:19]', 'v_cndmask_b32 v0, v1, v0, vcc', 'v_cndmask_b32 v2, v3, v2, vcc', 'v_cndmask_b32 v0, v2, v0, s[92:93]', 'ds_write_b32 v5, v0 #sw']
        L += run(g[3], [[vld[0]], [vld[1]]])
        L += ['@lw sw', 's_barrier', pst(4)]
        XR = [0, 4, 40, 16]
        L += [f'ds_read_b128 {v(XR[w],4)}, {vLM} offset:{L_QK-L_MEM+1024*w} #s{w}' for w in range(4)]
        L += [f'ds_read2st64_b32 v[32:33], {vSM} offset0:0 offset1:1', f'ds_read2st64_b32 v[34:35], {vSM} offset0:2 offset1:3 #st']
        L += ([kmst] if cfg.kmpos == 0 else []) + run(g[4])
        L += ['@lw st']
        Sched(['\n'.join(L)]).emit(A, st)
    assert seqV.index(fed[-1]) < sum(g[:4]) and NF % 3 == 0
    L = vrun(g[1], [['s_cmp_lg_u32 s76, 1']]) + [f's_cbranch_scc1 {name}_m3', f'{name}_m3r:', 's_mov_b64 vcc, s[78:79]', pst(2), f's_waitcnt vmcnt({2 if cfg.rstpos else 1})', '@lw q', pst(3), smf[0], smf[1], '@lw k', smf[2]]
    st2 = Sched(['\n'.join(L)]).emit(A, state)
    smid(True, st2)
    assert not vq
    vmst = [pk(36, AV), pk(38, AV + 4), cv(40, 36), cv(41, 38), f'v_lshl_add_u32 v42, {vSM}, 1, s68', f'buffer_store_dwordx2 v[40:41], v42, {WS}, s72 offen sc1']
    A(f'''{name}_join:
    v_pk_add_f32 v[0:1], v[0:1], v[4:5]
    v_pk_add_f32 v[2:3], v[2:3], v[6:7]
    v_pk_add_f32 v[16:17], v[40:41], v[16:17]
    v_pk_add_f32 v[18:19], v[42:43], v[18:19]
    v_pk_add_f32 v[32:33], v[32:33], v[34:35]
    v_pk_add_f32 v[0:1], v[0:1], v[16:17]
    v_pk_add_f32 v[2:3], v[2:3], v[18:19]
    v_add_f32 v4, v32, v33
    v_max3_f32 v24, v0, v1, v2
    v_max3_f32 v24, v24, v3, v4
    {vmst[0]}
    {vmst[1]}
    v_max_f32_dpp v24, v24, v24 row_ror:8 row_mask:0xf bank_mask:0xf
    v_mov_b32 v25, v24
    {vmst[2]}
    {vmst[3]}
    v_permlane16_swap_b32 v24, v25
    v_max_f32 v24, v24, v25
    v_mov_b32 v25, v24
    v_mov_b64 v[44:45], s[96:97]
    v_mov_b64 v[46:47], s[96:97]
    v_permlane32_swap_b32 v24, v25
    v_max_f32 v24, v24, v25
    v_mul_f32 v24, s77, v24'''.replace('s[96:97]', 's[4:5]'))
    X = [4, 0, 1, 2, 3]
    for x in X: A(f'v_fma_f32 v{x}, v{x}, s77, -v24')
    for x in X: A(f'v_exp_f32 v{x}, v{x}')
    kq = cfg.kmpos
    A(f'''v_cvt_pk_bf16_f32 v36, v0, v1
    v_cvt_pk_bf16_f32 v37, v2, v3
    v_mov_b32_dpp v5, v4 row_ror:8 row_mask:0xf bank_mask:0xf
    v_mov_b32_dpp v38, v36 row_ror:8 row_mask:0xf bank_mask:0xf
    v_mov_b32_dpp v39, v37 row_ror:8 row_mask:0xf bank_mask:0xf
    v_cvt_pk_bf16_f32 v16, v4, v5
    {pst(5)}
    s_waitcnt vmcnt({1 if kq == 0 else 0})
    {pst(6)}
    {M16} v[32:35], v[44:47], v[36:39], 0
    v_mov_b32 v17, 0
    {M16} v[24:27], {v(VX[0],4)}, v[36:39], 0
    v_mov_b32 v18, 0
    {M16} v[28:31], {v(VX[1],4)}, v[36:39], 0
    v_mov_b32 v19, v16
    {vmst[4]}
    v_mfma_f32_16x16x16_bf16 v[32:35], v[44:45], v[16:17], v[32:35]
    v_and_b32 v43, 0xffffffdf, {vLM}
    v_mfma_f32_16x16x16_bf16 v[24:27], v[40:41], v[16:17], v[24:27]
    v_mov_b64 v[48:49], 0
    v_mfma_f32_16x16x16_bf16 v[28:31], v[40:41], v[18:19], v[28:31]
    {vmst[5]}
    v_mov_b64 v[50:51], 0
    v_mov_b64 v[52:53], 0
    v_mov_b64 v[54:55], 0
    v_rcp_f32 v32, v32
    v_mov_b64 v[56:57], 0
    v_pk_mul_f32 v[24:25], v[24:25], v[32:33] op_sel_hi:[1,0]
    v_pk_mul_f32 v[26:27], v[26:27], v[32:33] op_sel_hi:[1,0]
    v_pk_mul_f32 v[28:29], v[28:29], v[32:33] op_sel_hi:[1,0]
    v_pk_mul_f32 v[30:31], v[30:31], v[32:33] op_sel_hi:[1,0]''')
    for d in range(4): A(f'v_cvt_pk_bf16_f32 v{36+d}, v{24+2*d}, v{25+2*d}')
    rest = lines(f'''v_mov_b64 v[58:59], 0
    v_mov_b64 v[60:61], 0
    v_mov_b64 v[62:63], 0
    v_mov_b64 v[44:45], 0
    v_mov_b64 v[46:47], 0
    v_and_b32 v34, 0x7c, {vSM}
    v_bfe_u32 v35, {vSM}, 7, 1
    v_lshl_add_u32 v34, v35, 12, v34''')
    A(f's_mov_b64 exec, s[78:79]\n ds_write_b128 {vOW}, v[36:39]\n s_mov_b64 exec, -1')
    if kq == 1: A(kmst)
    else:
        for x in rest: A(x)
    A('s_waitcnt lgkmcnt(0)\n s_barrier')
    if cfg.timing == 2: A(f's_mov_b32 m0, {sI}\n s_nop 0\n v_writelane_b32 {vZ}, s96, m0')
    for u in range(4): A(f'ds_read_b128 {v(4*u,4)}, v43 offset:{L_O-L_MEM+1024*(u>>1)+32*(u&1)}')
    for c2 in range(2): A(f'ds_read_b128 {v(16+4*c2,4)}, {vLM} offset:{L_O-L_MEM+1024*c2}')
    if kq == 1:
        for x in rest: A(x)
    for x in [f's_add_u32 s71, s71, {32*24576}', f's_add_u32 s70, s70, {32*24576}', f's_add_u32 s72, s72, {32*4096}', f's_add_u32 {sI}, {sI}, 1',
              's_add_u32 s95, s89, s91', f's_mov_b32 {sSPIN}, 0', f's_cmp_eq_u32 {sW}, 3']: A(x)
    ps(7)
    pm = lambda p, u: f'{sm} {v(48+4*p,4)}, {v(4*u,4)}, {r(cwo(2*p+(u>>1),u&1),8)}, {vIDX}'
    mains = []
    for u in range(4):
        mains += [f's_waitcnt lgkmcnt({5-u})\n' + pm(0, u), pm(1, u)]
    t8 = [f's_waitcnt lgkmcnt(0)\n {sm} v[44:47], v[16:19], {r(cwo(8,0),8)}, {vIDX}', f'{sm} v[44:47], v[20:23], {r(cwo(8,1),8)}, {vIDX}']
    p23 = [pm(2, u) for u in range(4)] + [pm(3, u) for u in range(4)]
    st0 = f'buffer_store_dwordx4 v[24:27], {vPS}, {WS}, s85 offen{loc}'
    st1 = f'buffer_store_dwordx4 v[28:31], {vPS}, {WS}, s86 offen{loc}'
    st8 = f'buffer_store_dword v33, v34, {WS}, s87 offen{loc}'
    if cfg.x2:
        m2 = [f's_waitcnt lgkmcnt({5-u})\n' + pm(0, u) for u in range(4)] + [pm(p, u) for p in (1, 2, 3) for u in range(4)] + t8
        S = Sched(m2)
        so = ['s85', 's64', 's86', 's65']
        def out(p): return [cv(24 + 2 * p, 48 + 4 * p), cv(25 + 2 * p, 50 + 4 * p), f'v_and_or_b32 v{24+2*p}, v{24+2*p}, -2, s84',
                            f'buffer_store_dwordx2 {v(24+2*p,2)}, {vPS}, {WS}, {so[p]} offen{loc}']
        S.put(3, 's_add_u32 s64, s85, 16384\n s_add_u32 s65, s86, 16384'); S.put(4, 's_nop 0'); S.put(5, 's_nop 0'); S.put(6, f's_cmp_eq_u32 {sW}, 3')
        for p in range(3):
            o = out(p)
            S.put(7 + 4 * p, o[0]); S.put(8 + 4 * p, o[1]); S.put(9 + 4 * p, o[2] + '\n' + o[3])
            if p < 2: S.put(10 + 4 * p, 's_nop 0')
        S.emit(A)
        A('s_nop 0')
        for x in out(3): A(x)
        A(f's_nop 0\n {pk(44, 44)}\n {cv(33, 44)}\n v_and_or_b32 v33, v33, -2, s84\n {st8}')
    elif cfg.woord == 0:
        S = Sched(mains + t8 + p23)
        for q in (7, 8, 9, 10): S.put(q, 's_nop 0')
        S.put(11, cv(24, 48) + '\n' + cv(25, 50)); S.put(12, cv(26, 52) + '\n' + cv(27, 54))
        S.put(13, f'v_and_or_b32 v24, v24, -2, s84\n {st0}')
        S.put(14, '\n'.join(ad(44))); S.put(15, cv(33, 44)); S.put(16, 'v_and_or_b32 v33, v33, -2, s84')
        S.put(17, st8)
        S.emit(A)
        A(f'{cv(28, 56)}\n {cv(29, 58)}\n v_and_or_b32 v28, v28, -2, s84\n s_nop 3\n {cv(30, 60)}\n {cv(31, 62)}\n {st1}')
    elif cfg.woord == 1:
        S = Sched(mains + p23 + t8)
        for q in (7, 8, 9, 10): S.put(q, 's_nop 0')
        S.put(11, cv(24, 48) + '\n' + cv(25, 50)); S.put(12, cv(26, 52) + '\n' + cv(27, 54))
        S.put(13, f'v_and_or_b32 v24, v24, -2, s84\n {st0}')
        S.put(15, cv(28, 56)); S.put(16, cv(29, 58)); S.put(17, 'v_and_or_b32 v28, v28, -2, s84')
        S.emit(A)
        A(f's_nop 1\n {cv(30, 60)}\n {cv(31, 62)}\n {st1}\n s_nop 1\n {pk(44, 44)}\n {cv(33, 44)}\n v_and_or_b32 v33, v33, -2, s84\n {st8}')
    else:
        S = Sched(mains + t8 + p23)
        for q, x in zip(range(7, 18), ['s_nop 0'] * 4 + [cv(24, 48), cv(25, 50), cv(26, 52), cv(27, 54), 'v_and_or_b32 v24, v24, -2, s84'] + ad(44)): S.put(q, x)
        S.emit(A)
        A(f'{st0}\n {cv(28, 56)}\n {cv(29, 58)}\n v_and_or_b32 v28, v28, -2, s84\n {cv(33, 44)}\n v_and_or_b32 v33, v33, -2, s84\n s_nop 0\n {cv(30, 60)}\n {cv(31, 62)}\n {st1}\n {st8}')
    ps(8); ps(9); ps(10)
    rot = lines(f'''s_mov_b32 s63, s88
    s_mov_b32 s88, s89
    s_mov_b32 s89, s90
    s_mov_b32 s90, s63
    s_add_u32 s85, s85, s82
    s_add_u32 s86, s86, s82
    s_add_u32 s87, s87, s82
    s_add_u32 s83, s83, s82
    s_sub_u32 s82, 0, s82
    s_bfe_u32 s84, {sI}, 0x10001
    s_xor_b32 s84, s84, 1''')
    pre_reads()
    A(f'''s_load_dwordx2 s[64:65], s[8:9], s54 glc
    s_cbranch_scc1 {name}_w3
    s_cmp_ge_u32 s74, 72
    s_cbranch_scc1 {name}_nred''')
    def rdy_():
        l = A.lab('Lrd')
        return f's_waitcnt lgkmcnt(0)\n {ev}\n s_cbranch_scc1 {l}\n s_load_dwordx2 s[64:65], s[8:9], s54 glc\n {l}:'
    SEL = 60
    for d, mk_ in enumerate((0x01010101, 0x02020202, 0x10101010, 0x20202020)):
        A(f's_mov_b32 vcc_lo, {mk_:#x}\n s_mov_b32 vcc_hi, {mk_:#x}\n v_cndmask_b32 {v(SEL+d)}, 0, {vSV}, vcc')
    if cfg.w1: A(f's_waitcnt vmcnt({cfg.w1 - 1})')
    for i in range(cfg.d1): A('s_nop 7')
    ps(9)
    GS = [[0, 4, 8, 12], [16, 20, 24, 28]]
    def gissue(k):
        for i in range(4): A(f'buffer_load_dwordx4 {v(GS[k][i],4)}, {vLM}, {WS}, s83 offen offset:{1024*i} sc1')
    def gproc(k):
        G = GS[k]
        A(f'''s_waitcnt vmcnt(6)
        {M16} v[56:59], {v(SEL,4)}, {v(G[0],4)}, 0
        v_xor_b32 {vSC}, s84, v{G[0]}
        {M16} v[56:59], {v(SEL,4)}, {v(G[1],4)}, v[56:59]
        v_bitop3_b32 {vSC}, {vSC}, v{G[1]}, s84 bitop3:0xf6
        s_waitcnt vmcnt(5)
        {M16} v[56:59], {v(SEL,4)}, {v(G[2],4)}, v[56:59]
        v_bitop3_b32 {vSC}, {vSC}, v{G[2]}, s84 bitop3:0xf6
        s_waitcnt vmcnt(4)
        {M16} v[56:59], {v(SEL,4)}, {v(G[3],4)}, v[56:59]
        v_bitop3_b32 {vSC}, {vSC}, v{G[3]}, s84 bitop3:0xf6
        v_and_b32 {vSC}, 1, {vSC}
        v_cmp_ne_u32 vcc, 0, {vSC}
        s_add_u32 {sSPIN}, {sSPIN}, 1
        v_mov_b32 {vSC}, -1
        s_nop 2
        v_add_f32_dpp v56, v56, v56 row_ror:8 row_mask:0xf bank_mask:0xf
        v_add_f32_dpp v57, v57, v57 row_ror:8 row_mask:0xf bank_mask:0xf
        v_cvt_pk_bf16_f32 v58, v56, v57
        v_min_u32 v58, -2, v58
        s_cbranch_vccz {name}_gok
        {'s_addk_i32 s12, 1' if cfg.timing == 6 else ''}''')
    gissue(0)
    if cfg.w2 is not None: A(f's_waitcnt vmcnt({cfg.w2})')
    for i in range(cfg.d2): A('s_nop 7')
    A(f'{name}_g:')
    gissue(1); gproc(0); gissue(0); gproc(1)
    A(f'''s_cmp_lt_u32 {sSPIN}, {cfg.spin_limit}
    s_cbranch_scc1 {name}_g
    s_mov_b32 s63, 41
    s_branch L_abort
    {name}_gok:
    buffer_store_dword v58, {vRS}, {WS}, s89 offen{loc}
    {'' if cfg.rstpos else f'buffer_store_dword {vSC}, {vRS}, {WS}, s88 offen{loc}'}''')
    ps(10)
    lp = A.lab('Lp')
    A(f'{name}_poll:\n s_barrier')
    for x in rot: A(x)
    def pissue():
        for q in range(3): A(f'buffer_load_dwordx4 {vLM}, {WS}, s95 offen offset:{1024*q} sc1 lds')
    A(f'''s_mul_i32 s63, {sW}, 3072
    s_add_u32 m0, s63, {L_MEM}
    s_waitcnt vmcnt({min(cfg.w3, 1) if cfg.rstpos else cfg.w3})
    v_add_u32 {vSC}, s63, {vLM}''')
    for i in range(cfg.d3): A('s_nop 7')
    if cfg.zfirst:
        for x in zero: A(x)
    pissue()
    if not cfg.zfirst:
        for x in zero: A(x)
    A(rdy_())
    if cfg.w4 is not None: A(f's_waitcnt vmcnt({cfg.w4})')
    for i in range(cfg.d4): A('s_nop 7')
    A(f'{lp}:')
    pissue()
    A(f'''s_waitcnt vmcnt(3)
    ds_read_b128 v[24:27], {vSC}
    ds_read_b128 v[28:31], {vSC} offset:1024
    ds_read_b128 v[4:7], {vSC} offset:2048
    s_add_u32 {sSPIN}, {sSPIN}, 1
    s_waitcnt lgkmcnt(1)
    v_max3_u32 v0, v24, v25, v26
    v_max3_u32 v1, v27, v28, v29
    v_max3_u32 v0, v0, v30, v31
    s_waitcnt lgkmcnt(0)
    v_max3_u32 v1, v1, v4, v5
    v_max3_u32 v0, v0, v6, v7
    v_max_u32 v0, v0, v1
    v_cmp_eq_u32 vcc, -1, v0
    s_cbranch_vccz {name}_top
    {'s_add_u32 s13, s13, 1' if cfg.timing == 6 else ''}
    s_cmp_lt_u32 {sSPIN}, {cfg.spin_limit}
    s_cbranch_scc1 {lp}
    s_mov_b32 s63, 42
    s_branch L_abort
    {name}_nred:
    s_waitcnt vmcnt({5 if cfg.x2 else 3})
    s_branch {name}_poll
    {name}_w3:
    s_mov_b32 s69, 1
    s_waitcnt vmcnt({5 if cfg.x2 else 3}) lgkmcnt(0)
    {ev}
    s_barrier
    s_atomic_add s69, s[8:9], s55
    s_cbranch_scc1 {name}_w3b
    s_load_dwordx2 s[64:65], s[8:9], s54 glc
    s_waitcnt lgkmcnt(0)
    {name}_w3b:''')
    for x in zero + rot: A(x)
    A(f's_barrier\n s_branch {name}_top2')
    touch = f'v_lshlrev_b32 {vSC}, 2, {vLM}\n s_sub_u32 s63, s70, {3*L_MEM}\n s_mov_b32 exec_hi, 0\n buffer_load_dword {vSC}, {vSC}, {WS}, s63 offen sc1\n s_mov_b32 exec_hi, -1'
    A(f'''{name}_m1:
    {ev}
    s_cbranch_scc0 {name}_m1b
    {kld[0]}
    {kld[1]}
    s_branch {name}_m1r
    {name}_m1b:
    buffer_load_dword v0, {vKP}, {WS}, 0 offen sc1
    s_branch {name}_m1r
    {name}_m2:
    s_waitcnt vmcnt(0)
    v_cmp_ge_u32 vcc, {sI}, v0
    s_cbranch_vccnz {name}_m2r
    {kld[0]}
    {kld[1]}
    {touch}
    s_mov_b32 s76, 2
    s_branch {name}_m2r
    {name}_m3:
    s_cmp_eq_u32 s76, 2
    s_cbranch_scc1 {name}_m4
    s_add_u32 s64, {sI}, 1''')
    spin(A, 'v0', vKP, 's64', 40)
    A(f'''{kld[0]}
    {kld[1]}
    {touch}
    s_waitcnt vmcnt(1)
    {name}_m4:
    s_branch {name}_m3r''')
    A(f'{name}_late:')
    vq[:] = vsave
    Sched(['\n'.join(vrun(len(vq)) + ['@lw k', kmst, 's_nop 6'] + vmst)]).emit(A, state)
    A(f'''s_waitcnt vmcnt(0) lgkmcnt(0)
    s_barrier
    s_cmp_lg_u32 {sW}, 3
    s_cbranch_scc1 {name}_fin
    s_mov_b32 s69, 1
    s_atomic_add s69, s[8:9], s55
    s_waitcnt lgkmcnt(0)
    {name}_fin:''')
    if cfg.timing:
        for k in range(NPS): A(f'v_writelane_b32 v10, s{ACCS[k]}, {k}')
    dump(A, [vZ, 'v10'])
    A('s_endpgm')

cfg.x_nospin = cfg.x_nopf = cfg.x_latereset = False
cfg.x_drop = []; cfg.nt = False; cfg.x_nost = 0; cfg.x_same = False; cfg.x_nopf = True; cfg.attld = 'sc1'; cfg.attst = 'sc1'; cfg.shq = True; cfg.shu = True; cfg.lowlate = ''; cfg.wts = (0.7, 1.6, 1.0, 1.5, 1.0, 0.6, 1.0); cfg.cap = 2.0; cfg.rgring = (4, 4); cfg.rgra = 3; cfg.rgdma = (25, 4); cfg.upsig = (False, 38, 3, 44, None); cfg.soft = ''; cfg.softq = (12, 6, 2); cfg.upord = 'm0 m1 e0 m2 g0 e1 m3 a0 e2 g1 a1 r0 g2 a2 e3 g3 f0 r1 a3 r2 f1 r3 f2 f3'; cfg.gap2 = True; cfg.gap = ''; cfg.aplan = 46; cfg.nox0 = True; cfg.xstep = 6; cfg.qalt = 8; cfg.ktouch = False; cfg.tpos = 8; cfg.rstpos = 0; cfg.w2 = 3; cfg.w4 = 2; cfg.zfirst = False; cfg.x2 = True; cfg.kmpos = 0; cfg.woord = 1; cfg.midchk = 15; cfg.flagpos = 23; cfg.qplan = None; cfg.uplan = (12, 48); cfg.chpre = (2, 2); cfg.hold = ''; cfg.rgpoll = True; cfg.dq = (8, 8, 6, 5, 5); cfg.rp0 = 0; cfg.rp1 = 5
cfg.d1 = 0; cfg.d2 = 0; cfg.d3 = 0; cfg.delay1 = True; cfg.ch1wait = False; cfg.pre0 = 0; cfg.pre1 = 1; cfg.vtouch = True; cfg.lateflag = True; cfg.w1 = 1; cfg.w3 = 2; cfg.w1 = 3; cfg.d1 = 0; cfg.d2 = 0; cfg.d3 = 0; cfg.d4 = 0
cfg.KL = [0, 1, 3, 4, 6, 7]; cfg.VL = [0, 1, 2]; cfg.VORD = [7, 8, 0, 3, 1, 2, 4, 5, 6]; cfg.vgaps = [2, 4, 2, 4, 6]; cfg.snop = 1
def build():
    A = Asm()
    kernel_begin(A, KNAME)
    prologue(A)
    role_chain(A)
    role_qkv(A)
    role_up(A)
    A('L_abort_b:\n s_branch L_abort\n L_rerank_b:\n s_branch L_rerank\n L_att:\n s_branch L_att_b\n L_red:\n s_branch L_red_b')
    n0 = len(A.lines)
    role_rg(A, 'L_wo', 'wo', 16, SWO, OB, 262144, PW, F_WO, 50)
    role_rg(A, 'L_dn', 'dn', 18, SW2, HB, 294912, PD, F_DN, 51)
    role_att(A)
    role_red(A)
    for i in range(n0, len(A.lines)):
        l = A.lines[i]
        if l.endswith(('L_abort', 'L_rerank')): A.lines[i] = l + '_b'
        if l in ('L_att:', 'L_red:'): A.lines[i] = l[:-1] + '_b:'
    A('s_endpgm\n L_code_end:')
    return build_file([(KNAME, 256, 256, LDS_BYTES)], A.text(), [descriptor(KNAME)])

if __name__ == '__main__':
    out = sys.argv[1] if len(sys.argv) > 1 else 'interleave_layers__memory_aug_recurrent_mem_tr__glu_gated_swiglu__prompt.s'
    open(out, 'w').write(build())
```

```python
import sys
from asm import *
from layout import *

KNAME = 'interleave_layers__memory_aug_recurrent_mem_tr__glu_gated_swiglu__prompt_kernel'
WS, SX, SOUT, SDBG, SMEM0, SWQ, SWK, SWV, SWO, SW1, SW3, SW2 = [f's[{8+4*i}:{11+4*i}]' for i in range(12)]
sX, sT, sW, sSLOW, sL, sI, sSPIN = 's56', 's57', 's58', 's59', 's60', 's61', 's62'
OOB = 0x7ffffff0
LOG2E = 1.4426950408889634

class Cfg:
    roles = None
    skip_init = False
    spin_limit = 2000000
    lam = 14
    timing = False
    force_slow = False
    force_rank = False
    codepf = True
    sat = 'ar'
    bigk = 'wd'
    bigsh = True
    rplan = (16, 48)
    bigstep = 5
    mix = False
    tperm = [0, 1, 2, 3, 4, 5, 6, 7]
    bigpoll = 30
    xmap = 0x73415260
cfg = Cfg()

def f2u(x):
    import struct
    return struct.unpack('<I', struct.pack('<f', x))[0]

def enabled(n):
    return cfg.roles is None or n in cfg.roles

def pollops(vdst, vaddr):
    if isinstance(vdst, tuple):
        n = vdst[0]
        fix = f'v_min_u32 v{n}, v{n}, v{n+1}\n v_lshrrev_b32 v{n+1}, 6, v{n}\n v_or_b32 v{n+1}, v{n+1}, {vdst[1]}\n v_add3_u32 v{n}, v{n}, v{n+1}, -1\n v_max_i32 v{n}, 0, v{n}'
        return f'buffer_load_dwordx2 v[{n}:{n+1}], {vaddr}, {WS}, 0 offen sc1', fix, f'v{n}'
    return f'buffer_load_dword {vdst}, {vaddr}, {WS}, 0 offen sc1', '', vdst

def spin(A, vdst, vaddr, starget, code):
    l = A.lab('Lspin'); d = A.lab('Lspind')
    ld, fix, vdst = pollops(vdst, vaddr)
    A(f'''
    s_mov_b32 {sSPIN}, 0
    {l}:
    {ld}
    s_waitcnt vmcnt(0)
    {fix}
    v_cmp_gt_u32 vcc, {starget}, {vdst}
    s_cbranch_vccz {d}
    s_add_u32 {sSPIN}, {sSPIN}, 1
    s_cmp_lt_u32 {sSPIN}, {cfg.spin_limit}
    s_cbranch_scc1 {l}
    s_mov_b32 s63, {code}
    s_branch L_abort
    {d}:
    ''')

def validate(A, early=False):
    l = A.lab('Lval'); d = A.lab('Lvald'); ok = A.lab('Lvalok')
    A(f'''
    s_cmp_eq_u32 s7, 1
    s_cbranch_scc1 {ok}
    v_mbcnt_lo_u32_b32 v1, -1, 0
    v_mbcnt_hi_u32_b32 v1, -1, v1
    v_lshlrev_b32 v1, 2, v1
    s_mov_b32 {sSPIN}, 0
    s_mov_b32 s63, 0x80808080
    {'s_cmp_lg_u32 %s, 0' % sW if early else ''}
    {'s_cbranch_scc1 ' + d if early else ''}
    {l}:
    buffer_load_dword v2, v1, {SDBG}, 0 offen sc1
    s_waitcnt vmcnt(0)
    v_and_b32 v3, s63, v2
    v_cmp_ne_u32 vcc, s63, v3
    s_cbranch_vccz {d}
    s_add_u32 {sSPIN}, {sSPIN}, 1
    s_cmp_lt_u32 {sSPIN}, {cfg.spin_limit}
    s_cbranch_scc1 {l}
    {d}:''')
    if early: A(f'''s_barrier
    buffer_load_dword v2, v1, {SDBG}, 0 offen sc1
    s_waitcnt vmcnt(0)
    v_and_b32 v3, s63, v2
    v_cmp_ne_u32 vcc, s63, v3''')
    A(f'''s_mov_b32 s63, 1
    s_cbranch_vccnz L_abort
    v_lshlrev_b32 v3, v2, 1
    v_lshrrev_b32 v4, 8, v2
    v_lshl_or_b32 v3, 1, v4, v3
    v_lshrrev_b32 v4, 16, v2
    v_lshl_or_b32 v3, 1, v4, v3
    v_lshrrev_b32 v4, 24, v2
    v_lshl_or_b32 v3, 1, v4, v3
    s_nop 1
    v_or_b32_dpp v3, v3, v3 quad_perm:[1,0,3,2] row_mask:0xf bank_mask:0xf
    v_cmp_ne_u32 vcc, {0x1ff if (cfg.force_slow or cfg.force_rank) else 0xff}, v3
    s_cbranch_vccnz L_rerank
    s_mov_b32 s7, 1
    {ok}:
    ''')
    stamp_s(A, 's99')
    if cfg.timing: A('s_memtime s[96:97]\n s_waitcnt lgkmcnt(0)\n s_mov_b32 s101, s96')

def ln0_hook(A, younger, finish=True):
    l = A.lab('Lln')
    ACC = 52; T = 20
    def halfsum(x, t):
        for m in ('quad_perm:[1,0,3,2]', 'quad_perm:[2,3,0,1]', 'row_half_mirror', 'row_mirror'):
            A(f's_nop 1\n v_add_f32_dpp {x}, {x}, {x} {m} row_mask:0xf bank_mask:0xf')
        A(f'v_mov_b32 {t}, {x}\n s_nop 1\n v_permlane16_swap_b32 {x}, {t}\n v_add_f32 {x}, {x}, {t}')
    A(f's_cmp_lg_u32 s7, 0\n s_cbranch_scc1 {l}\n s_waitcnt vmcnt({min(63, younger + (0 if cfg.skip_init else 3))})')
    for d in range(12):
        A(f'v_lshlrev_b32 {v(ACC+2*d)}, 16, {v(40+d)}\n v_and_b32 {v(ACC+2*d+1)}, 0xffff0000, {v(40+d)}')
    A(f'v_pk_add_f32 {v(T,2)}, {v(ACC,2)}, {v(ACC+2,2)}')
    for d in range(2, 12): A(f'v_pk_add_f32 {v(T,2)}, {v(T,2)}, {v(ACC+2*d,2)}')
    A(f'v_add_f32 {v(T)}, {v(T)}, {v(T+1)}')
    halfsum(v(T), v(T+1))
    A(f'v_mul_f32 {v(T)}, v78, {v(T)}')
    for d in range(12): A(f'v_pk_add_f32 {v(ACC+2*d,2)}, {v(ACC+2*d,2)}, {v(T,2)} op_sel_hi:[1,0]')
    A(f'v_pk_mul_f32 {v(T+2,2)}, {v(ACC,2)}, {v(ACC,2)}')
    for d in range(1, 12): A(f'v_pk_fma_f32 {v(T+2,2)}, {v(ACC+2*d,2)}, {v(ACC+2*d,2)}, {v(T+2,2)}')
    A(f'v_add_f32 {v(T+2)}, {v(T+2)}, {v(T+3)}')
    halfsum(v(T+2), v(T+3))
    A(f'''v_mov_b32 {v(T+3)}, {f2u(1e-5):#x}
    v_fmac_f32 {v(T+3)}, {f2u(1.0/576):#x}, {v(T+2)}
    v_rsq_f32 {v(T+2)}, {v(T+3)}
    v_sub_f32 {v(T)}, 0, {v(T)}
    v_mul_f32 {v(T+1)}, {v(T+3)}, {v(T+2)}
    v_lshrrev_b32 v76, 2, v0
    v_and_b32 v78, 31, v0
    v_cmp_eq_u32 vcc, 0, v78
    v_mov_b32 v78, {OOB}
    s_lshl_b32 s63, s2, 6
    v_cndmask_b32 v76, v78, v76, vcc
    s_add_u32 s63, s63, {ST}
    buffer_store_dwordx2 {v(T,2)}, v76, {WS}, s63 offen sc1
    s_add_u32 s63, s3, {XNA}''')
    for d in range(12): A(f'v_pk_mul_f32 {v(ACC+2*d,2)}, {v(ACC+2*d,2)}, {v(T+2,2)} op_sel_hi:[1,0]')
    for d in range(12): A(f'v_cvt_pk_bf16_f32 {v(40+d)}, {v(ACC+2*d)}, {v(ACC+2*d+1)}')
    for j in range(3): A(f'buffer_store_dwordx4 {v(40+4*j,4)}, v77, {WS}, s63 offen offset:{384*j} sc1')
    A(f'{l}:')
    if finish:
        A('s_waitcnt vmcnt(0)'); arrive(A)

def arrive(A):
    l = A.lab('Lar')
    A(f'''s_cmp_lg_u32 s7, 0
    s_cbranch_scc1 {l}
    s_or_b32 s63, s6, 0x80
    v_mov_b32 v20, s63
    s_barrier
    buffer_store_byte v20, v79, {SDBG}, 0 offen sc1
    {l}:''')

def lane(A, dst):
    A(f'''v_mbcnt_lo_u32_b32 {dst}, -1, 0
    v_mbcnt_hi_u32_b32 {dst}, -1, {dst}''')

def stamp(A, vreg, sidx):
    if not cfg.timing or cfg.timing >= 3: return
    A(f'''s_memrealtime s[96:97]
    s_and_b32 m0, {sidx}, 63
    s_waitcnt lgkmcnt(0)
    v_writelane_b32 {vreg}, s96, m0''')

def stamp_s(A, sreg):
    if not cfg.timing: return
    A(f's_memrealtime s[96:97]\n s_waitcnt lgkmcnt(0)\n s_mov_b32 {sreg}, s96')

def dump(A, vregs):
    if not cfg.timing: return
    stamp_s(A, 's100')
    A(f'''s_lshl_b32 s63, {sX}, 5
    s_add_u32 s63, s63, {sT}
    s_lshl_b32 s63, s63, 2
    s_add_u32 s63, s63, {sW}
    s_lshl_b32 s63, s63, 11
    s_add_u32 s63, s63, {DBG}
    v_mbcnt_lo_u32_b32 v1, -1, 0
    v_mbcnt_hi_u32_b32 v1, -1, v1
    v_lshlrev_b32 v1, 2, v1
    v_mov_b32 v2, s98
    v_writelane_b32 v2, s99, 1
    v_writelane_b32 v2, s100, 2
    s_memtime s[96:97]
    s_waitcnt lgkmcnt(0)
    s_sub_u32 s101, s96, s101
    v_writelane_b32 v2, s101, 3
    buffer_store_dword v2, v1, {WS}, s63 offen''')
    for i, x in enumerate(vregs):
        A(f'buffer_store_dword {x}, v1, {WS}, s63 offen offset:{256*(i+1)}')
    A('s_waitcnt vmcnt(0)')

def interleave(A, mains, fills, start=0, every=1):
    fi = 0
    for i, m in enumerate(mains):
        A(m)
        if i >= start and (i - start) % every == 0 and fi < len(fills):
            A(fills[fi]); fi += 1
    assert fi == len(fills), (fi, len(fills))

def prologue(A):
    TP = ''
    if cfg.tperm:
        light = cfg.tperm; rest = [t for t in range(32) if t not in light]
        m = {t: i for i, t in enumerate(rest)}; m.update({t: 24 + i for i, t in enumerate(light)})
        TP = f's_cmp_lt_u32 {sX}, 4\n s_cbranch_scc1 L_notp\n s_lshr_b32 s63, {sT}, 2\n s_and_b32 s64, {sT}, 3\n s_lshl_b32 s64, s64, 3\n'
        for q in range(8):
            w = sum(m[4 * q + i] << (8 * i) for i in range(4))
            TP += f's_cmp_eq_u32 s63, {q}\n s_cselect_b32 s65, {w:#x}, s65\n'
        TP += f's_lshr_b32 s65, s65, s64\n s_and_b32 {sT}, s65, 31\n L_notp:'
    MIX = f'''s_bitcmp1_b32 {sX}, 1
    s_cbranch_scc0 L_nomix
    s_lshr_b32 s63, {sX}, 2
    s_cmp_lt_u32 {sT}, 16
    s_cbranch_scc0 L_mix1
    s_lshl_b32 s63, s63, 4
    s_add_u32 {sT}, {sT}, s63
    s_add_u32 {sX}, {sL}, 2
    s_branch L_nomix
    L_mix1:
    s_add_u32 {sX}, {sL}, 6
    s_cmp_lt_u32 {sT}, 28
    s_cselect_b32 s64, 12, 4
    s_cselect_b32 s65, 16, 4
    s_mul_i32 s63, s63, s64
    s_add_u32 {sT}, {sT}, s63
    s_sub_u32 {sT}, {sT}, s65
    L_nomix:'''
    A(f'''
    s_cmp_ge_u32 s2, 256
    s_cbranch_scc1 L_end
    s_load_dwordx16 s[64:79], s[0:1], 0
    s_load_dwordx8 s[80:87], s[0:1], 64
    s_load_dwordx4 s[88:91], s[0:1], 96
    s_getreg_b32 {sX}, hwreg(HW_REG_XCC_ID)
    v_lshrrev_b32 v1, 6, v0
    s_and_b32 {sX}, {sX}, 15
    v_readfirstlane_b32 {sW}, v1
    s_mov_b32 {sSLOW}, 0
    s_mov_b32 s6, {sX}
    ''')
    if cfg.codepf:
        A('''s_getpc_b64 s[92:93]
        L_pc:
        s_lshr_b32 s63, s2, 3
        s_lshl_b32 s63, s63, 8
        v_add_u32 v2, s63, v0
        v_lshlrev_b32 v2, 5, v2
        v_min_u32 v2, L_code_end-L_pc-4, v2
        v_and_b32 v3, 3, v0
        v_cmp_eq_u32 vcc, 0, v3
        s_and_saveexec_b64 s[94:95], vcc
        global_load_dword v75, v2, s[92:93]
        s_mov_b64 exec, s[94:95]''')
    A('s_waitcnt lgkmcnt(0)')
    stamp_s(A, 's98')
    srds = [(8, 90, WS_BYTES), (12, 64, XB), (16, 86, XB), (20, 88, 256), (24, 66, 9216), (28, 68, 4718592),
            (32, 70, 4718592), (36, 72, 4718592), (40, 74, 4718592), (44, 80, 5308416), (48, 82, 5308416), (52, 84, 5308416)]
    for d, p, n in srds:
        A(f'''s_mov_b32 s{d}, s{p}
        s_mov_b32 s{d+1}, s{p+1}
        s_mov_b32 s{d+2}, {n}
        s_mov_b32 s{d+3}, 0x20000''')
    A(f'''
    v_and_b32 v1, 31, v0
    v_lshrrev_b32 v2, 5, v0
    v_mul_u32_u24 v3, 1152, v2
    v_lshl_add_u32 v76, v1, 4, v3
    s_and_b32 s63, s2, 1
    s_lshl_b32 s63, s63, 2
    s_add_u32 s63, s63, {sW}
    v_xor_b32 v4, s63, v1
    v_lshl_add_u32 v77, v4, 4, v3
    v_cmp_gt_u32 vcc, 24, v1
    v_mov_b32 v3, {OOB}
    v_mov_b32 v4, {f2u(-1.0/576):#x}
    v_cndmask_b32 v76, v3, v76, vcc
    v_cndmask_b32 v77, v3, v77, vcc
    v_cndmask_b32 v78, 0, v4, vcc
    s_mul_i32 s3, s2, 9216
    buffer_load_dwordx4 v[40:43], v76, {SX}, s3 offen
    buffer_load_dwordx4 v[44:47], v76, {SX}, s3 offen offset:384
    buffer_load_dwordx4 v[48:51], v76, {SX}, s3 offen offset:768
    ''')
    if not cfg.skip_init:
        A(f'''
        s_cmp_eq_u32 s2, 0
        s_cselect_b32 s63, {NSEG}, 0
        v_cmp_eq_u32 vcc, 0, v0
        v_mov_b32 v8, s63
        v_mov_b64 v[12:13], 0
        v_cndmask_b32 v4, 0, v8, vcc
        v_mov_b64 v[14:15], 0
        v_mov_b32 v5, v4
        v_mov_b32 v6, v4
        v_mov_b32 v7, v4
        v_mov_b32 v8, -1
        v_lshlrev_b32 v9, 4, v0
        v_lshlrev_b32 v10, 2, v0
        s_lshl_b32 s63, s2, 13
        s_add_u32 s66, s63, 4096
        s_lshl_b32 s67, s2, 10
        s_add_u32 s67, s67, {ONES0}
        buffer_store_dwordx4 v[4:7], v9, {WS}, s63 offen sc1
        buffer_store_dwordx4 v[12:15], v9, {WS}, s66 offen sc1
        buffer_store_dword v8, v10, {WS}, s67 offen sc1
        ''')
    A(f'''
    v_mov_b32 v2, s2
    v_cmp_eq_u32 vcc, 0, v0
    s_lshr_b32 {sT}, s2, 3
    s_mov_b32 s7, 0
    v_cndmask_b32 v79, v3, v2, vcc
    s_cmp_ge_u32 {sX}, 8
    s_cbranch_scc1 L_norole
    L_dispatch:
    s_lshl_b32 s63, {sX}, 2
    s_lshr_b32 {sX}, {cfg.xmap:#x}, s63
    s_and_b32 {sX}, {sX}, 7
    s_and_b32 {sL}, {sX}, 1
    {MIX if cfg.mix else ''}
    {TP}
    s_lshr_b32 s63, {sX}, 1
    s_cmp_eq_u32 s63, 0
    s_cbranch_scc1 L_chain
    s_cmp_eq_u32 s63, 1
    s_cbranch_scc1 L_qkv
    s_cmp_eq_u32 s63, 2
    s_cbranch_scc1 L_j_rg
    s_cmp_lt_u32 {sT}, 24
    s_cbranch_scc1 L_up
    s_branch L_att
    L_j_rg:
    s_cmp_ge_u32 {sT}, 24
    s_cbranch_scc1 L_red
    s_cmp_eq_u32 {sL}, 0
    s_cbranch_scc1 L_wo
    s_branch L_dn
    L_norole:
    ''')
    ln0_hook(A, 0)
    validate(A, True)
    A(f'''
    s_mov_b32 s63, 2
    s_branch L_abort
    L_rerank:
    s_mov_b32 s7, 1
    s_mov_b32 s64, 0
    L_rr1:
    s_mov_b32 s65, 0
    s_mov_b32 s66, 0
    v_bfe_u32 v3, v2, 0, 7
    v_cmp_eq_u32 vcc, s64, v3
    v_add_u32 v4, 0, v1
    v_cmp_gt_u32 s[68:69], s2, v4
    s_bcnt1_i32_b64 s63, vcc
    s_add_u32 s65, s65, s63
    s_and_b64 s[68:69], s[68:69], vcc
    s_bcnt1_i32_b64 s63, s[68:69]
    s_add_u32 s66, s66, s63
    v_bfe_u32 v3, v2, 8, 7
    v_cmp_eq_u32 vcc, s64, v3
    v_add_u32 v4, 1, v1
    v_cmp_gt_u32 s[68:69], s2, v4
    s_bcnt1_i32_b64 s63, vcc
    s_add_u32 s65, s65, s63
    s_and_b64 s[68:69], s[68:69], vcc
    s_bcnt1_i32_b64 s63, s[68:69]
    s_add_u32 s66, s66, s63
    v_bfe_u32 v3, v2, 16, 7
    v_cmp_eq_u32 vcc, s64, v3
    v_add_u32 v4, 2, v1
    v_cmp_gt_u32 s[68:69], s2, v4
    s_bcnt1_i32_b64 s63, vcc
    s_add_u32 s65, s65, s63
    s_and_b64 s[68:69], s[68:69], vcc
    s_bcnt1_i32_b64 s63, s[68:69]
    s_add_u32 s66, s66, s63
    v_bfe_u32 v3, v2, 24, 7
    v_cmp_eq_u32 vcc, s64, v3
    v_add_u32 v4, 3, v1
    v_cmp_gt_u32 s[68:69], s2, v4
    s_bcnt1_i32_b64 s63, vcc
    s_add_u32 s65, s65, s63
    s_and_b64 s[68:69], s[68:69], vcc
    s_bcnt1_i32_b64 s63, s[68:69]
    s_add_u32 s66, s66, s63
    s_cmp_eq_u32 s64, s6
    s_cselect_b32 {sT}, s66, {sT}
    s_cmp_lg_u32 s65, {33 if cfg.force_slow else 32}
    s_cselect_b32 {sSLOW}, 1, {sSLOW}
    s_add_u32 s64, s64, 1
    s_cmp_lt_u32 s64, 8
    s_cbranch_scc1 L_rr1
    s_mov_b32 {sX}, s6
    s_cmp_eq_u32 {sSLOW}, 0
    s_cbranch_scc1 L_rr2
    s_lshr_b32 {sX}, s2, 5
    s_and_b32 {sT}, s2, 31
    L_rr2:
    s_waitcnt vmcnt(0) lgkmcnt(0)
    s_barrier
    s_branch L_dispatch
    L_abort:
    s_lshl_b32 s64, {sX}, 8
    s_or_b32 s63, s63, s64
    s_lshl_b32 s64, {sI}, 16
    s_or_b32 s63, s63, s64
    s_or_b32 s63, s63, 0x80000000
    s_mov_b64 exec, 1
    v_mov_b64 v[4:5], 0
    v_mov_b64 v[6:7], 0
    ds_write_b128 v4, v[4:7]
    ds_write_b32 v4, v4 offset:4096
    v_mov_b32 v1, s63
    s_lshl_b32 s64, {sX}, 2
    s_add_u32 s64, s64, {DBG - 4096}
    v_mov_b32 v2, s64
    buffer_store_dword v1, v2, {WS}, 0 offen
    s_waitcnt vmcnt(0)
    L_end:
    s_endpgm
    ''')

def magic(R):
    M = -(-512 // R)
    assert all((x * M >> 9) == x // R for x in range(70))
    return M
def ringidx(d, s_, R, M=None):
    return f's_mul_i32 {d}, {s_}, {M or magic(R)}\n s_lshr_b32 {d}, {d}, 9\n s_mul_i32 {d}, {d}, {R}\n s_sub_u32 {d}, {s_}, {d}'

def capture(A, fn):
    n0 = len(A.lines); fn(); ls = A.lines[n0:]; del A.lines[n0:]
    return ls

M16 = 'v_mfma_f32_16x16x32_bf16'
def red_stream(A, name, R, pbase, res_base, xn_base, fin, fout, code, fres, fcon):
    stof = lambda base_: ST + (base_ - XNA) // XB * 16384
    vPL, vG, vL, vNW, vCP, vSW, vSR, vMK = 'v1', 'v3', 'v4', 12, 'v17', 'v19', 'v20', 'v21'
    vPA, vP, vFA, vF, vCA = 'v22', 'v10', 'v6', 'v7', 'v9'
    SA, SB = 24, 28
    PL = 32; RS = 104; ACC = 116; PK = 136; T = 148; CO = 168; SH = 164; NX = 192
    IMN, IMR = 16384, 49152
    ln = xn_base is not None
    big = ('w' if name[3] == '1' else 'd') in cfg.bigk
    KH = 1 if big else 2; NL = 9 * KH
    lane(A, vPA)
    A(f'''v_min_u32 {vPA}, {11 if (big and not cfg.bigsh) else 23}, {vPA}
    v_lshlrev_b32 {vPA}, 2, {vPA}
    v_add_u32 {vPA}, {fin}, {vPA}
    s_lshl_b32 s63, s70, 2
    s_add_u32 s64, s63, {fres or 0}
    v_mov_b32 v162, s64
    s_add_u32 s64, s63, {fout or 0}
    v_mov_b32 {vFA}, s64
    s_mov_b32 s83, s64
    s_add_u32 s63, s63, {fcon}
    s_cmp_eq_u32 {sW}, 0
    s_cselect_b32 s63, s63, {OOB}''')
    lane(A, vCA)
    A(f'''v_cmp_eq_u32 vcc, 0, {vCA}
    v_mov_b32 v8, s63
    v_mov_b32 {vCA}, {OOB}
    v_cndmask_b32 {vCA}, {vCA}, v8, vcc
    s_mov_b32 s78, 0
    s_mov_b32 s77, 0''')
    poll = f'buffer_load_dword {vP}, {vPA}, {WS}, 0 offen sc1'
    def flag():
        if fout is None: return
        l = A.lab('Lf')
        A(f'''s_mov_b64 exec, 1
        ds_add_rtn_u32 {vF}, v11, v23
        s_waitcnt lgkmcnt(0)
        v_readfirstlane_b32 s63, {vF}
        v_mov_b32 {vF}, {sI}
        s_and_b32 s63, s63, 3
        s_cmp_lg_u32 s63, 3
        s_cbranch_scc1 {l}
        {f's_mov_b32 s85, 1{chr(10)} s_atomic_add s85, s[8:9], s83' if 'r' in cfg.sat else f'buffer_store_dword {vF}, {vFA}, {WS}, 0 offen sc1'}
        {l}:
        s_mov_b64 exec, -1''')
    def need_res(add):
        if fres is None: return
        l = A.lab('Lr')
        A(f'''s_add_u32 s79, {sI}, {add + 1}
        s_min_u32 s79, s79, {NSEG}
        s_cmp_ge_u32 s78, s79
        s_cbranch_scc1 {l}''')
        spin(A, 'v161', 'v162', 's79', code + 100)
        A(f'v_readfirstlane_b32 s78, v161\n {l}:')
    def resid(add):
        A(f'''s_mul_i32 s67, {sI}, 36864
        s_add_u32 s67, s67, s72
        s_add_u32 s67, s67, {res_base + 36864 * add}
        s_mov_b32 m0, s75
        s_xor_b32 s75, s75, 0x10000
        buffer_load_dwordx4 {vCP}, {WS}, s67 offen sc1 lds
        buffer_load_dwordx4 {vCP}, {WS}, s67 offen offset:1024 sc1 lds
        s_mov_b64 exec, 0xffff
        buffer_load_dwordx4 {vCP}, {WS}, s67 offen offset:2048 sc1 lds
        s_mov_b64 exec, -1
        s_lshl_b32 s67, {sI}, 8
        s_add_u32 s67, s67, {stof(res_base) + 256 * add}
        buffer_load_dwordx2 {v(RS+10,2)}, {vL}, {WS}, s67 offen sc1''')
    def ldlist(sreg):
        pre = ringidx('s67', sreg, R) + f'\n s_mul_i32 s67, s67, {8*36864}\n s_add_u32 s67, s67, {pbase}\n s_add_u32 s68, s67, s74\n s_add_u32 s67, s67, s73'
        o = []
        for a_ in range(9):
            pw, pp = divmod(a_, 3)
            for kh in range(KH):
                o.append(f's_add_u32 s69, {"s67" if pp < 2 else "s68"}, {kh*4*36864 + pw*3072}\n'
                         f'buffer_load_dwordx4 {v(PL+4*(KH*a_+kh),4)}, {vPL}, {WS}, s69 offen offset:{512*pp if pp < 2 else 0} sc1')
        return pre, o
    def rowsum(xs):
        A('s_nop 1' if len(xs) == 1 else 's_nop 0')
        for x, t in xs: A(f'v_add_f32_dpp {x}, {x}, {x} row_ror:8 row_mask:0xf bank_mask:0xf')
        for sw in ('v_permlane16_swap_b32', 'v_permlane32_swap_b32'):
            for x, t in xs: A(f'v_mov_b32 {t}, {x}')
            A('s_nop 1' if len(xs) == 1 else 's_nop 0')
            for x, t in xs: A(f'{sw} {x}, {t}')
            for x, t in xs: A(f'v_add_f32 {x}, {x}, {t}')
    def prep():
        A(f'v_mov_b64 {v(SH,2)}, {v(RS+10,2)}')
        need_res(1); resid(1)
        for j in range(5): A(f'v_add_u32 {v(T+j)}, s77, {v(vNW+j)}')
        A('s_xor_b32 s77, s77, 0x10000')
        for j in range(5): A(f'ds_read_b64 {v(RS+2*j,2)}, {v(T+j)} offset:{IMR}')
        for d in range(10):
            if d % 2 == 0: A(f's_waitcnt lgkmcnt({4 - d // 2})')
            A(f'v_lshlrev_b32 {v(ACC+2*d)}, 16, {v(RS+d)}\n v_and_b32 {v(ACC+2*d+1)}, 0xffff0000, {v(RS+d)}')
            if ln: A(f'v_pk_mul_f32 {v(ACC+2*d,2)}, {v(ACC+2*d,2)}, {v(SH,2)} op_sel:[0,1] op_sel_hi:[1,1]')
            else: A(f'v_pk_fma_f32 {v(ACC+2*d,2)}, {v(ACC+2*d,2)}, {v(SH,2)}, {v(SH,2)} op_sel:[0,1,0] op_sel_hi:[1,1,0]')
        if ln: A(f'v_mov_b64 {v(T,2)}, 0\n v_mov_b64 {v(T+2,2)}, 0')
        else: A('s_nop 0')
    def stat(j):
        if not ln: return
        for h in (0, 2):
            x = v(ACC + 4 * j + h, 2)
            A(f'v_pk_add_f32 {v(T,2)}, {v(T,2)}, {x}\n v_pk_fma_f32 {v(T+2,2)}, {x}, {x}, {v(T+2,2)}')
    def local_store(vd, va, so):
        l1 = A.lab('Lc'); l2 = A.lab('Lc')
        A(f'''s_cmp_lg_u32 {sSLOW}, 0
        s_cbranch_scc1 {l1}
        buffer_store_dword {vd}, {va}, {WS}, {so} offen
        s_branch {l2}
        {l1}:
        buffer_store_dword {vd}, {va}, {WS}, {so} offen sc1
        {l2}:''')
    def st3(srd, va, soff):
        for q in range(3):
            A(f's_waitcnt lgkmcnt({2-q})')
            if q == 2: A('s_mov_b64 exec, 0xffff')
            A(f'buffer_store_dwordx4 {v(CO+4*q,4)}, {va}, {srd}, {soff} offen offset:{1024*q} sc1')
        A('s_mov_b64 exec, -1')
    def tk(k):
        if cfg.timing == 7: A(f's_memtime s[28:29]\n s_waitcnt lgkmcnt(0)\n s_sub_u32 s31, s28, s30\n s_mov_b32 s30, s28\n s_add_u32 s{40+k}, s{40+k}, s31\n s_add_u32 s{48+k}, s{48+k}, 1')
    if cfg.timing == 7:
        for k in range(40, 56): A(f's_mov_b32 s{k}, 0')
        A('s_mov_b32 s30, 0')
    A(f's_mov_b32 {sI}, 0\n s_mov_b32 s65, 1\n s_mov_b32 s66, 0')
    l = A.lab('Lpt')
    A(f'{l}:'); pre, lds_ = ldlist('s66'); A(pre)
    for x in lds_: A(x)
    A(f's_add_u32 s66, s66, 1\n s_cmp_lt_u32 s66, {R}\n s_cbranch_scc1 {l}\n s_mov_b32 s66, 0')
    need_res(0); resid(0)
    A('s_waitcnt vmcnt(0)\n s_barrier')
    prep()
    A(f'{name}_spin:')
    spin(A, vP, vPA, 's65', code)
    tk(7)
    A(f'{name}_ld:')
    stamp(A, 'v220', sI)
    pre, lds_ = ldlist('s65'); A(pre)
    LEAD = 6 if big else 8
    for x in lds_[:LEAD]: A(x)
    if fout is not None:
        l = A.lab('Lnf')
        A(f's_cmp_eq_u32 s66, 0\n s_cbranch_scc1 {l}\n s_waitcnt vmcnt({LEAD + 4})'); flag(); A(f'{l}:')
    tk(0)
    def mf(i):
        a_ = i // KH
        d = v(ACC + 4 * (a_ >> 1), 4)
        A(f'{M16} {d}, {v(SB if a_ & 1 else SA,4)}, {v(PL+4*i,4)}, {d}')
    for i in range(NL):
        if i + LEAD < NL: A(lds_[i + LEAD]); y = LEAD
        else: y = NL - 1 - i
        if i + LEAD == NL - 2: A(poll)
        if i + LEAD >= NL - 2 and i < NL - 1: y += 1
        A(f's_waitcnt vmcnt({y})')
        mf(i)
        if not big and i in (7, 11, 15): stat((i >> 2) - 1)
        if big and i in (5, 7): stat((i - 5) // 2)
    if big: A('s_nop 1'); stat(2)
    tk(1)
    A(f'''{name}_mid:
    s_add_u32 s66, {sI}, 2
    v_cmp_gt_u32 vcc, s66, {vP}
    s_cbranch_vccz {name}_ov''')
    A('s_nop 3')
    n0 = len(A.lines)
    A(f's_mul_i32 s67, {sI}, 36864\n s_add_u32 s67, s67, s72\n v_mov_b32 v8, s65')
    if ln:
        stat(3); stat(4)
        A(f'v_add_f32 {v(T)}, {v(T)}, {v(T+1)}\n v_add_f32 {v(T+1)}, {v(T+2)}, {v(T+3)}')
        rowsum([(v(T), v(T+2)), (v(T+1), v(T+3))])
        A(f'''ds_write_b64 {vSW}, {v(T,2)}
        s_add_u32 s68, s67, {xn_base}
        s_lshl_b32 s67, {sI}, 8
        s_add_u32 s67, s67, {stof(xn_base)}
        s_waitcnt lgkmcnt(0)
        s_barrier
        ds_read_b128 {v(T+4,4)}, {vSR}
        ds_read_b128 {v(T+8,4)}, {vSR} offset:16''')
        local_store('v8', vCA, '0')
        A(f'''s_waitcnt lgkmcnt(0)
        v_pk_add_f32 {v(T+2,2)}, {v(T+4,2)}, {v(T+6,2)}
        v_pk_add_f32 {v(T,2)}, {v(T+8,2)}, {v(T+10,2)}
        v_mov_b32 {v(T+7)}, {f2u(1e-5):#x}
        v_pk_add_f32 {v(T+2,2)}, {v(T+2,2)}, {v(T,2)}
        v_mul_f32 {v(T+2)}, {f2u(1.0/576):#x}, {v(T+2)}
        v_mul_f32 {v(T+3)}, {f2u(1.0/576):#x}, {v(T+3)}
        v_fma_f32 {v(T+3)}, -{v(T+2)}, {v(T+2)}, {v(T+3)}
        v_max_f32 {v(T+3)}, 0, {v(T+3)}
        v_add_f32 {v(T+7)}, {v(T+7)}, {v(T+3)}
        v_rsq_f32 {v(T+4)}, {v(T+7)}
        v_add_f32 {v(T+8)}, {v(T+2)}, {v(SH)}
        v_mul_f32 {v(T+6)}, -{v(T+2)}, {v(T+4)}
        v_mul_f32 {v(T+9)}, {v(T+7)}, {v(T+4)}''')
        for j in range(5):
            for h in (0, 2): A(f'v_pk_fma_f32 {v(ACC+4*j+h,2)}, {v(ACC+4*j+h,2)}, {v(T+4,2)}, {v(T+6,2)} op_sel_hi:[1,0,0]')
            for h in (0, 1): A(f'v_cvt_pk_bf16_f32 {v(ACC+4*j+h)}, {v(ACC+4*j+2*h)}, {v(ACC+4*j+2*h+1)}')
            A(f'ds_write_b64 {v(vNW+j)}, {v(ACC+4*j,2)} offset:{IMN}')
        A('s_waitcnt lgkmcnt(0)\n s_barrier')
        for q in range(3): A(f'ds_read_b128 {v(CO+4*q,4)}, {vCP} offset:{IMN+1024*q}')
        A(poll)
        A(f'buffer_store_dwordx2 {v(T+8,2)}, v5, {WS}, s67 offen sc1')
        st3(WS, vCP, 's68')
        n1, n2 = 4, 0
    else:
        A('s_barrier')
        for j in range(5):
            for h in (0, 1): A(f'v_cvt_pk_bf16_f32 {v(PK+2*j+h)}, {v(ACC+4*j+2*h)}, {v(ACC+4*j+2*h+1)}')
            A(f'ds_write_b64 {v(vNW+j)}, {v(PK+2*j,2)} offset:{IMN}')
        local_store('v8', vCA, '0')
        A('s_waitcnt lgkmcnt(0)\n s_barrier')
        for q in range(3): A(f'ds_read_b128 {v(CO+4*q,4)}, {vCP} offset:{IMN+1024*q}')
        A(poll)
        st3(SOUT, vG, 's67')
        n1, n2 = 3, 0
    post = list(A.lines[n0:])
    tk(2)
    stamp(A, 'v221', sI)
    A(f'''s_add_u32 {sI}, {sI}, 1
    s_add_u32 s65, {sI}, 1
    s_cmp_ge_u32 {sI}, {NSEG}
    s_cbranch_scc1 {name}_done
    s_waitcnt vmcnt({n1 + n2})''')
    prep(); tk(3)
    A(f'''s_mov_b32 s66, 1
    v_cmp_gt_u32 vcc, s65, {vP}
    s_cbranch_vccz {name}_ld
    s_mov_b32 s66, 0
    s_waitcnt vmcnt(4)''')
    flag()
    A(f's_branch {name}_spin')
    A(f'{name}_ov:')
    ren = lambda t: t.replace('s67', 's81').replace('s68', 's82')
    pre, lds_ = ldlist('s66'); A(ren(pre))
    k = 0; since = 99; import re as _re
    for l in post:
        t = l.strip()
        if t.startswith('buffer_load_dword '):
            for x in lds_[k:]: A(ren(x))
            k = len(lds_)
        m = _re.search(r'(Lc_\d+)', l)
        if m: l = l.replace(m.group(1), m.group(1) + 'w')
        A.lines.append(l); since += 1
        if t.startswith('v_') and since >= 4 and k < len(lds_) and not t.startswith('v_rsq'):
            A(ren(lds_[k])); k += 1; since = 0
    stamp(A, 'v221', sI); tk(4)
    A(f's_add_u32 {sI}, {sI}, 1\n s_add_u32 s65, {sI}, 1\n s_waitcnt vmcnt({n1 + n2})')
    prep(); tk(5)
    stamp(A, 'v220', sI)
    for i in range(NL):
        mf(i)
        if not big and i in (11, 15): stat((i >> 2) - 2)
    if big: A('s_nop 0'); stat(0); stat(1)
    A('s_nop 1'); stat(2)
    if fout is not None: A(f's_waitcnt vmcnt(4)'); flag()
    A('s_waitcnt vmcnt(0)')
    tk(6)
    A(f's_branch {name}_mid')
    A(f'{name}_done:\n s_waitcnt vmcnt({n2})')
    flag()
    A('s_waitcnt vmcnt(0) lgkmcnt(0)')
    if cfg.timing == 7:
        for k in range(16): A(f'v_writelane_b32 v220, s{40+k}, {k}')
    dump(A, ['v220', 'v221'])
    A('s_endpgm')

def role_red(A):
    A('L_red:')
    if not enabled('red'):
        ln0_hook(A, 0); A('s_endpgm'); return
    warm_sweep(A, f's_lshl_b32 s63, {sL}, 5\n s_add_u32 s63, s63, 32', False, f's_lshl_b32 s63, {sL}, 3\n s_add_u32 s63, s63, 8')
    ln0_hook(A, 0)
    validate(A, True)
    A(f'''
    s_sub_u32 s63, {sT}, 24
    s_lshr_b32 s71, s63, 2
    s_and_b32 s70, s63, 3
    s_mul_i32 s72, s70, 9216
    s_lshr_b32 s63, s70, 1
    s_lshl_b32 s73, s63, 10
    s_lshl_b32 s74, s63, 9
    s_add_u32 s74, s74, 2048
    ''')
    lane(A, 'v8')
    A(f'''
    v_and_b32 v9, 7, v8
    v_bfe_u32 v10, v8, 3, 1
    v_lshrrev_b32 v11, 4, v8
    v_mul_u32_u24 v1, 36864, v11
    v_lshl_add_u32 v1, v10, 8, v1
    v_lshl_add_u32 v1, v9, 4, v1
    s_mul_i32 s63, {sW}, 9216
    s_and_b32 s64, s70, 1
    s_lshl_b32 s64, s64, 7
    s_add_u32 s63, s63, s64
    v_add_u32 v1, s63, v1
    v_lshrrev_b32 v22, 5, v8
    v_lshl_add_u32 v23, v22, 1, v10
    s_mul_i32 s63, {sW}, 18
    v_add_u32 v23, s63, v23
    v_mul_u32_u24 v32, 1152, v9
    v_and_b32 v33, 1, v11
    v_lshl_add_u32 v32, v33, 3, v32
    v_cmp_eq_u32 vcc, 0, v22
    v_mov_b32 v34, {OOB}
    v_mov_b32 v35, 12288
    v_mov_b64 v[40:41], 0
    ds_write_b64 v35, v[40:41] offset:49152
    v_add_u32 v38, 0x10000, v35
    ds_write_b64 v38, v[40:41] offset:49152
    v_cndmask_b32 v21, 0, 1.0, vcc
    s_and_b32 s63, s70, 1
    s_lshl_b32 s63, s63, 2
    v_lshrrev_b32 v36, 1, v9
    v_add_u32 v36, s63, v36
    ''')
    for j in range(5):
        A(f'''v_add_u32 v37, {4*j}, v23
        v_xor_b32 v37, v37, v36
        v_lshl_add_u32 v{12+j}, v37, 4, v32''')
    A(f'''
    v_cndmask_b32 v16, v35, v16, vcc
    s_mul_i32 s63, {sW}, 2304
    s_add_u32 s75, s63, 49152
    v_lshl_add_u32 v17, v8, 4, s63
    v_cmp_gt_u32 vcc, 16, v8
    v_lshlrev_b32 v20, 5, v9
    v_add_u32 v20, 32768, v20
    v_cndmask_b32 v18, v34, v17, vcc
    s_and_b32 s63, s70, 1
    s_lshl_b32 s63, s63, 2
    s_add_u32 s63, s63, {sW}
    s_lshl_b32 s63, s63, 4
    v_xor_b32 v3, s63, v17
    s_lshl_b32 s63, s70, 6
    v_lshl_add_u32 v4, v9, 3, s63
    s_cmp_eq_u32 {sW}, 0
    s_cselect_b32 s63, 8, 0
    v_cmp_gt_u32 vcc, s63, v8
    s_nop 1
    v_cndmask_b32 v5, v34, v4, vcc
    s_lshl_b32 s63, {sW}, 3
    v_add_u32 v19, s63, v20
    v_and_b32 v33, 1, v8
    v_cmp_eq_u32 vcc, 0, v33
    v_mov_b32 v34, 0x3f80
    v_mov_b32 v35, 0x3f800000
    v_cndmask_b32 v34, v35, v34, vcc
    v_bfe_u32 v33, v8, 1, 3
    ''')
    for d in range(8):
        A(f'v_cmp_eq_u32 vcc, {d}, v33\n s_nop 1\n v_cndmask_b32 v{24+d}, 0, v34, vcc')
    A(f'''
    v_mov_b32 v11, 36864
    v_mov_b32 v23, 1
    ds_write_b32 v11, v40
    s_waitcnt lgkmcnt(0)
    s_barrier
    s_lshl_b32 s80, {sL}, 1
    s_add_u32 s80, s80, s71
    ''')
    A('''s_cmp_eq_u32 s80, 1
    s_cbranch_scc1 L_red_1
    s_cmp_eq_u32 s80, 2
    s_cbranch_scc1 L_red_2
    s_cmp_eq_u32 s80, 3
    s_cbranch_scc1 L_red_3
    ''')
    red_stream(A, 'L_r10', PR0, PW, XNA, XNF, F_WO, F_XNF, 10, None, F_CON)
    A('L_red_1:')
    red_stream(A, 'L_r11', PR1, PW + PR0 * 294912, XNA + XB, XNF + XB, F_WO + 512, F_XNF + 128, 11, F_XNA + 128, F_CON + 128)
    A('L_red_2:')
    red_stream(A, 'L_r20', PR0, PD, XNF, XNA + XB, F_DN, F_XNA + 128, 12, F_XNF, F_CON + 256)
    A('L_red_3:')
    red_stream(A, 'L_r21', PR1, PD + PR0 * 294912, XNF + XB, None, F_DN + 512, None, 14, F_XNF + 128, F_CON + 384)
```

```python
from base import *
import base

class Sched:
    def __init__(s, mains):
        s.mains = mains; s.gaps = [[] for _ in mains]; s.stmin = 0; s.lastst = 0; s.avoid = False
    def put(s, g, text):
        for l in text.split('\n'):
            if l.strip(): s.gaps[g].append(l.strip())
    @staticmethod
    def wt(l):
        import re
        l = l.strip()
        if not l or l.startswith('@mark') or l.endswith(':'): return 0
        if l.startswith(('@', 's_waitcnt')): return cfg.wts[0]
        if l.startswith(('v_exp', 'v_rcp', 'v_perm')): return cfg.wts[1]
        if l.startswith('v_'): return cfg.wts[2]
        if l.startswith('buffer_'): return cfg.wts[3]
        if l.startswith('ds_'): return cfg.wts[4]
        big = any(abs(int(x, 0)) > 64 for x in re.findall(r'(?<![\w\[:])(-?(?:0x[0-9a-f]+|\d+))(?![\w\]:])', l.split(None, 1)[1] if ' ' in l else ''))
        return cfg.wts[6] if big else cfg.wts[5]
    def load(s, g):
        w = sum(s.wt(x) for x in s.gaps[g])
        if g + 1 < len(s.mains) and s.mains[g + 1].startswith('@'): w += cfg.wts[0]
        return w
    def fit(s, g, items, hi, cap=None):
        cap = cap or cfg.cap
        while True:
            add = {}; q = g; ok = True; last = -99; plan = []
            for it in items:
                w = sum(s.wt(x) for x in it.split('\n'))
                q2 = max(q, last + 8, s.stmin) if it.startswith('buffer_store') else q
                while q2 < hi and s.load(q2) + add.get(q2, 0) + w > cap and (s.load(q2) + add.get(q2, 0)) > 0: q2 += 1
                if q2 >= hi: ok = False; break
                add[q2] = add.get(q2, 0) + w; plan.append((q2, it))
                if it.startswith('buffer_store'): last = q2
                else: q = q2
            if ok: break
            cap += 0.25
        for q2, it in plan:
            s.put(q2, it)
            if it.startswith('buffer_store'): s.lastst = q2
        return q
    def seq(s, g, items, step=1, cap=1, share=False):
        last = -99
        for it in items:
            while len([x for x in s.gaps[g] if (x.startswith('v_') if share else not x.startswith('@mark'))]) >= cap: g += 1
            if it.startswith('buffer_store'):
                gs = max(g, last + 8, s.stmin)
                busy = lambda q: any(x.startswith('buffer_') for y in s.gaps[max(q - 2, 0):q + 3] for x in y)
                while s.avoid and busy(gs): gs += 1
                s.put(gs, it); last = gs; s.lastst = gs
                continue
            s.put(g, it); g += step
        return g
    def emit(s, A, pre=()):
        vm = 0; marks = {'entry': 0}; ds = list(pre)
        for m, gp in zip(s.mains, s.gaps):
            for l in m.split('\n') + gp:
                l = l.strip()
                if not l: continue
                if l.startswith('@mark'): marks[l.split()[1]] = vm; continue
                if l in cfg.x_drop: continue
                if l.startswith('@wait'):
                    w = f's_waitcnt vmcnt({vm - marks[l.split()[1]]})'
                    if cfg.timing == 4:
                        k = 12 + ['poll', 'st', 'entry', 'p1', 'th0', 'h0', 'rest'].index(l.split()[1]) % 4
                        w = f's_memtime s[28:29]\n {w}\n s_memtime s[30:31]\n s_waitcnt lgkmcnt(0)\n s_sub_u32 s30, s30, s28\n s_add_u32 s{k}, s{k}, s30'
                    A(w); continue
                if l == 's_barrier' and cfg.timing == 4:
                    A('s_memtime s[28:29]\n s_barrier\n s_memtime s[30:31]\n s_waitcnt lgkmcnt(0)\n s_sub_u32 s30, s30, s28\n s_add_u32 s16, s16, s30'); continue
                if l.startswith('@lw'):
                    t = l.split()[1]
                    if t in ds:
                        k = len(ds) - 1 - ds.index(t); A(f's_waitcnt lgkmcnt({k})'); ds = ds[len(ds) - k:]
                    continue
                tag = None
                if '#' in l: l, tag = [x.strip() for x in l.split('#')]
                if any(k in l for k in cfg.x_drop): continue
                if l.startswith('buffer_'): vm += 1
                if l.startswith('ds_'): ds.append(tag)
                A(l)
        return ds
def lines(t): return [l.strip() for l in t.split('\n') if l.strip()]

def flag_addr(A, dst, sval):
    lane(A, 'v1')
    A(f'''v_cmp_eq_u32 vcc, 0, v1
    v_mov_b32 v2, {sval}
    v_mov_b32 {dst}, {OOB}
    v_cndmask_b32 {dst}, {dst}, v2, vcc''')

M16 = 'v_mfma_f32_16x16x32_bf16'
XPK = 60; XT = 66; XLA = 70; XDV = 72; XSV = 73; XPA = 74; XP = 75; XFV = 76; XFA = 77
XBUF = 36864; XB0 = 8192
def gs_stream(A, name, NCT, NK, wreg, swap, rows, XFR, RING, epi, in_base, in_lstride, in_sstride, out_lstride, out_sstride,
              flag_lstride, stride, code, sig0, sig1, dma0, dstep, poll0, poll1, share, local, prio=0, lowlate=False, plan=None, alt=0, epihi=None, big=False, gap=False):
    RA = min(RING - 1, cfg.rgra) if local else RING - 1
    BUF = 2 * XBUF if big else XBUF; NB = 2 if big else 3
    ND = (2 * NK) // 4
    NH = (NK + 3) // 4
    AW = 4 * NCT
    NB0 = (cfg.nb0 if big else NH) if cfg.nb0 else ND
    NW0 = min(NB0, NH)
    lane(A, 'v1')
    if rows:
        A(f'''v_and_b32 v2, 15, v1
        v_lshrrev_b32 v3, 4, v1
        v_lshrrev_b32 v4, 1, v2
        v_mul_u32_u24 v5, 1152, v2
        v_add_u32 v5, {XB0 + (NB - 1) * BUF}, v5
        v_xor_b32 v6, v3, v4
        v_lshl_add_u32 {v(XLA)}, v6, 4, v5
        v_xor_b32 v6, 4, v6
        v_lshl_add_u32 {v(XLA+1)}, v6, 4, v5''')
    else:
        A(f'v_lshlrev_b32 {v(XLA)}, 4, v1\n v_add_u32 {v(XLA)}, {XB0 + (NB - 1) * BUF}, {v(XLA)}\n v_add_u32 {v(XLA+1)}, {NK*1024}, {v(XLA)}')
    lw0 = A.lab('Lw0')
    A(f'''s_lshl_b32 s70, {sW}, 10
    v_lshl_add_u32 {v(XDV)}, v1, 4, s70
    s_add_u32 s70, s70, {XB0}
    s_mov_b32 s85, {-(NB - 1) * BUF}
    s_mov_b32 s3, 4096
    s_mov_b32 s84, {0 if gap else 1}
    s_mov_b32 s4, {XBUF}
    s_mov_b32 s5, {XBUF}
    s_mov_b32 {sI}, 0
    s_mov_b32 s77, 0
    s_mov_b32 s78, 0
    s_mov_b32 s79, 0
    s_mov_b32 s92, {OOB if (local or 'x' not in cfg.sat) else 0}
    s_mov_b32 s93, 0
    s_cmp_eq_u32 {sW}, 0
    s_cbranch_scc1 {lw0}
    v_mov_b32 {v(XPA)}, {OOB}
    v_mov_b32 {v(XFA)}, {OOB}
    {lw0}:''')
    def rd(f):
        f %= 2 * NK; th, ks = divmod(f, NK)
        if rows: return f'ds_read_b128 {v(XFR+4*(f%RING),4)}, {v(XLA+(ks&1))} offset:{th*18432 + 128*(ks>>1)}'
        if big: return f'ds_read_b128 {v(XFR+4*(f%RING),4)}, {v(XLA+th)} offset:{ks*1024}'
        return f'ds_read_b128 {v(XFR+4*(f%RING),4)}, {v(XLA)} offset:{f*1024}'
    def pre(f): return [f'f{(f + i) % (2 * NK)}' for i in range(RA)]
    def mains(th, k0, k1, reads=True):
        m = []
        for ks in range(k0, k1):
            f = th * NK + ks
            for ct in range(NCT):
                d = v(AW * th + 4 * ct, 4); w = r(wreg(ks, ct), 4); x = v(XFR + 4 * (f % RING), 4)
                a_, b_ = (x, w) if swap[ct] else (w, x)
                t = f'{M16} {d}, {a_}, {b_}, {"0" if ks == 0 else d}'
                if ct == 0: t = f'@lw f{f}\n' + t
                m.append(t)
        S = Sched(m)
        if reads:
            for ks in range(k0, k1): S.put((ks - k0) * NCT, rd(th * NK + ks + RA) + f' #f{(th * NK + ks + RA) % (2 * NK)}')
        return S
    def dma(q): return ['s_mov_b32 m0, s70\n s_nop 0' if q == 0 else 's_add_u32 m0, m0, s3\n s_add_u32 s73, s73, s3', f'buffer_load_dwordx4 {v(XDV)}, {WS}, s73 offen sc1 lds']
    poll = f'buffer_load_dword {v(XP)}, {v(XPA)}, {WS}, 0 offen sc1'
    def flagst(so):
        if local or 'x' not in cfg.sat: return f'buffer_store_dword {v(XFV)}, {v(XFA)}, {WS}, {so} offen{loc[0]}'
        l = A.lab('Lfa')
        return f's_cmp_lg_u32 {sW}, 0\n s_cbranch_scc1 {l}\n s_add_u32 s65, {so}, s71\n s_atomic_umax s{int(so[1:]) + 1}, s[8:9], s65\n {l}:'
    loc = ['' if local else ' sc1']
    def sig(S, g, mark):
        S.put(g, f'v_mov_b32 {v(XFV)}, s95')
        S.put(g + 1, f'@wait {mark}\n s_barrier\n' + flagst('s94'))
    XQ = 64 if local else XP
    decide = lines(f'''v_cmp_gt_u32 vcc, s74, {v(XQ)}
        v_cmp_gt_u32 s[66:67], s75, {v(XQ)}
        s_cmp_eq_u32 {'s67' if prio == 0 else 'vcc_lo'}, 0
        s_cselect_b32 s72, {'s84' if (alt or gap) else 2 - prio}, 0
        s_cmp_eq_u32 {'vcc_lo' if prio == 0 else 's67'}, 0
        s_cselect_b32 s72, {1 + prio}, s72
        v_mov_b32 {v(XFV)}, s72''')
    if local: decide[0] = f'v_add_u32 v64, v65, {v(XP)}\n' + decide[0]
    soff = lambda site: 4 * site if site < 4 else 4096
    def dwr(site): return f'ds_write_b32 {v(XDV)}, {v(XFV)} offset:{soff(site)}'
    def drd(site): return f'ds_read_b32 {v(XFV)}, {v(XSV)} offset:{soff(site)}'
    dget = [f'v_readfirstlane_b32 s72, {v(XFV)}', 's_cmp_lg_u32 s72, 0']
    if plan:
        pick = ['''s_sub_u32 s68, s72, 1
        s_cmp_eq_u32 s68, 0
        s_cselect_b32 s69, s74, s75''', '''s_cselect_b32 s63, s44, s47
        s_cselect_b32 s64, s45, s48
        s_cselect_b32 s80, s46, s49''', '''s_cmp_lt_u32 s69, s63
        s_cselect_b32 s80, s64, s80
        s_add_u32 s80, s80, s69''', '''s_cmp_eq_u32 s68, 0
        s_cselect_b32 s74, s80, s74
        s_cselect_b32 s75, s75, s80''']
    else:
        pick = lines(f'''s_sub_u32 s68, s72, 1
        s_cmp_eq_u32 s68, 0
        s_cselect_b32 s69, s74, s75
        s_cselect_b32 s63, {stride}, 0
        s_cselect_b32 s64, 0, {stride}
        s_add_u32 s74, s74, s63
        s_add_u32 s75, s75, s64''')
    if alt:
        assert prio == 1
        pick += [f's_add_u32 s63, s75, {alt}\n s_cmp_lt_u32 s74, s63\n s_cselect_b32 s84, 1, s68', 's_cmp_lt_u32 s75, 3\n s_cselect_b32 s84, 1, s84']
    pick += lines(f'''s_mul_i32 s73, s69, {in_sstride}
        s_mul_i32 s63, s68, {in_lstride}
        s_add_u32 s73, s73, s63
        s_add_u32 s73, s73, s90''')
    pickb = list(pick)
    if gap:
        assert prio == 0
        pick = pick + [f's_cmp_gt_u32 s74, {NSEG}\n s_cselect_b32 s84, 2, 0']
        pickb += [f's_xor_b32 s84, s68, 1\n s_lshl_b32 s84, s84, 1\n s_cmp_gt_u32 s74, {NSEG}\n s_cselect_b32 s84, 2, s84']
    tog = [f'v_add_u32 {v(XLA+q)}, s5, {v(XLA+q)}' for q in range(2 if (rows or big) else 1)]
    advance = lines(('s_mov_b32 s5, s85\n s_sub_u32 s85, 0, s85' if big else 's_mov_b32 s63, s85\n s_mov_b32 s85, s4\n s_mov_b32 s4, s5\n s_mov_b32 s5, s63') + f'''
        s_add_u32 s70, s70, s85
        s_mov_b32 s81, s77
        s_mov_b32 s82, s78
        s_mov_b32 s83, s79
        s_mov_b32 s94, s92
        s_mov_b32 s95, s93
        {(f's_mul_i32 s64, s68, {PR1 - PR0}{chr(10)} s_add_u32 s64, s64, {PR0}{chr(10)} s_mul_i32 s63, s68, {magic(PR1) - magic(PR0)}{chr(10)} s_add_u32 s63, s63, {magic(PR0)}{chr(10)}' + ringidx('s63', 's69', 's64', 's63')) if local else 's_mov_b32 s63, s69'}
        s_mul_i32 s63, s63, {out_sstride}
        s_mul_i32 s64, s68, {out_lstride}
        s_add_u32 s63, s63, s64
        s_add_u32 s77, s63, s87
        s_add_u32 s78, s63, s88
        s_add_u32 s79, s63, s89
        s_mul_i32 s92, s68, {flag_lstride}
        {f's_sub_u32 s93, s80, 1{chr(10)} s_min_u32 s93, s93, {NSEG}' if plan else f's_add_u32 s93, s69, {stride - 1}'}
        {'s_mov_b32 s50, s69' if cfg.timing else ''}
        s_add_u32 {sI}, {sI}, 1''')
    A(f's_add_u32 s90, s90, {in_base - in_sstride}')
    if not local:
        for q in range(3): A(f's_sub_u32 s{87+q}, s{87+q}, {out_sstride}')
    GX = (NK - RA) * NCT; GN = NK * NCT
    def put_rest(S):
        gg = 0
        for i, q in enumerate(range(NB0, ND)):
            gg = 2 + 4 * i
            if gg % NCT == 0: gg += 1
            d = dma(q); S.put(gg - 1, d[0]); S.put(gg, d[1])
            if q == NH - 1: S.put(gg, '@mark h0')
        S.put(gg, '@mark rest')
        if NB0 < NH: S.put((4 * NB0 - RA) * NCT - 1, '@wait h0\n s_barrier')
        return gg + 1
    def put_dma(S, g0, pollmark, first=False, lo=0):
        g0 = max(g0, lo + 6)
        g = S.fit(lo, pickb if (not first and cfg.gap2) else pick, max(g0 - 1, 5))
        g0 = max(g0, g + 2)
        for q in range(ND):
            d = dma(q); gg = g0 + dstep * q
            if big and first and q >= NH: gg = max(gg, first + 2 + dstep * (q - NH))
            if gg % NCT == 0: gg += 1
            gp = gg - 1 if (gg - 1) % NCT else gg - 2
            S.put(gp, d[0].replace('\n s_nop 0', '')); S.put(gg, d[1])
            if pollmark == 1 and q == NH - 1: S.put(gg + 2, poll + '\n @mark poll')
            if pollmark == 2 and q == ((ND if (cfg.nox0 and not local and not sig0) else NH) - 1): S.put(gg, '@mark th0')
        return gg
    hi_only = decide[:2] + ['s_mov_b32 s72, 0'] + decide[4:] if lowlate else decide
    def put_decide(S, site, o=0, far=False):
        q = (13, 12, 9, 8, 7) if (far or not local or big) else cfg.dq
        S.put(o + GX - q[0], '@wait poll\n' + decide[0]); S.put(o + GX - q[1], decide[1]); S.put(o + GX - q[2], '\n'.join((hi_only if far else decide)[2:-1]))
        S.put(o + GX - q[3], decide[6]); S.put(o + GX - q[4], dwr(site) + ' #dw')
    def tstamp():
        if cfg.timing and cfg.timing < 3:
            l1 = A.lab('Lt'); l2 = A.lab('Lt')
            A(f's_sub_u32 s63, s50, 1\n s_cmp_eq_u32 s92, 0\n s_cbranch_scc0 {l1}')
            A('s_mov_b32 s51, m0'); stamp(A, 'v78', 's63'); A(f's_branch {l2}\n {l1}:\n s_mov_b32 s51, m0'); stamp(A, 'v79', 's63'); A(f'{l2}:\n s_mov_b32 m0, s51')
    def fill1(S, o, lastdma=None):
        if sig1 is not None:
            S.put(o, '@mark p1'); sig(S, o + sig1, 'p1')
        put_decide(S, 1, o, lastdma is not None)
        if o: S.stmin = lastdma + 4
        S.fit(o + 4, epi(0, 77, loc=loc[0]), o + GX)
        if lastdma is not None:
            g = max(lastdma, S.lastst, o + (sig1 or 0) + 1) + 1
            lim = o + GX - 10
            S.fit(g, advance, o + GX)
        S.put(o + GX - 1, '@lw dw')
    def phase0(E, D):
        S = mains(0, 0, NK)
        lo = 0 if (E or NB0 == ND) else put_rest(S)
        if D:
            S1 = mains(1, 0, NK - RA); S.mains += S1.mains; S.gaps += S1.gaps
            ld_ = put_dma(S, dma0 if E else 3, (2 if cfg.rgpoll else 1) if local else 0, sig0 + 1 if (big and E and cfg.nox0) else GX, lo)
            if not local: S.put(GN + poll1, poll + '\n @mark poll')
            elif big: S.put(GX - 3 if cfg.bigpoll is None else GN + cfg.bigpoll, poll + '\n @mark poll')
            elif cfg.rgpoll:
                S.put((dma0 if E else 3) - 3, poll + '\n @mark poll'); S.put(GN + GX - 1, '@wait th0')
        else:
            S.put(poll0, poll + '\n @mark poll'); put_decide(S, 0)
        here = (not E) or sig0
        if big:
            here = False
            if E: S.put(sig0, f'v_mov_b32 {v(XFV)}, s95'); S.put(sig0 + 1, '@wait st\n s_barrier\n' + flagst('s94'))
        if here: S.put(GX - 2, f'v_mov_b32 {v(XFV)}, s95')
        if E:
            S.fit(4, epi(1, 81, loc=loc[0]), (dma0 - 2 if sig0 else epihi or GN - 4))
        if not (cfg.nox0 and E and D and (big or (not local and not sig0))):
            S.put(GX - 1, f'@wait {"st" if (E and sig0 and not big) else "rest" if lo else "entry"}\n @lw dw\n s_barrier')
        if here: S.put(GX - 1, flagst('s94'))
        if not D:
            S.put(GX - 1, drd(0) + ' #dr')
            S.put(GN - 4, '@lw dr\n' + dget[0]); S.put(GN - 1, dget[1])
        else: fill1(S, GN, ld_)
        tstamp()
        S.emit(A, pre(0))
        if D: A(f's_branch {name}_fe')
        else: A(f's_cbranch_scc1 {name}_p1d\n s_branch {name}_p1n')
    XRD = 68 if local else XFA
    outl = []
    def soft(S, g, off, pre_, val, after):
        a_, r_, c_ = cfg.softq
        l = A.lab('Lsb'); outl.append((l, off))
        S.put(g - a_ - 1, pre_ + f'\n v_mov_b32 {v(XFV)}, {val}')
        S.put(g - a_, f'ds_write_b32 {v(XDV)}, {v(XFV)} offset:{off}')
        S.put(g - r_, f'ds_read_b32 {v(XFV)}, {v(XRD)} offset:{off} #sr')
        S.put(g - c_, f'@lw sr\n v_cmp_gt_u32 vcc, s76, {v(XFV)}')
        S.put(g, f's_cbranch_vccnz {l}o\n {l}:\n' + after)
    def steady():
        S = mains(0, 0, NK)
        S1 = mains(1, 0, NK); S.mains += S1.mains; S.gaps += S1.gaps
        S.gaps[GN + GX] = tog + S.gaps[GN + GX]
        a_ = cfg.softq[0]
        S.put(0, 's_add_u32 s76, s76, 4')
        if sig0: S.fit(4, epi(1, 81, loc=loc[0]), dma0 - 5)
        ld_ = put_dma(S, dma0, 2)
        S.put(dma0 - 3 if local else GN + poll1 - 6, poll + '\n @mark poll')
        fv = f'v_mov_b32 {v(XFV)}, s95\n' if local else ''
        if sig0 and not local: soft(S, GX - 1, 8, '@wait st', 's76', flagst('s94')); gs = 0
        else:
            soft(S, GX - 1, 8, '@wait entry', 's76', '')
            gs = (GX + a_ + 2) if local else GN + sig1 + a_
            soft(S, gs, 4104, '@wait st', 's76', fv + flagst('s94'))
        g1 = GN + GX - 1
        S.put(g1 - a_ - 7, '@wait poll\n' + decide[0]); S.put(g1 - a_ - 6, decide[1]); S.put(g1 - a_ - 3, '\n'.join(hi_only[2:-1]) + '\n s_or_b32 s72, s72, s76')
        soft(S, g1, 4100, '@wait th0', 's72', dget[0])
        S.put(2 * GN - 1, 's_and_b32 s72, s72, 3')
        if not sig0: S.fit(4, epi(1, 81, loc=loc[0]), epihi or GN - 4)
        S.stmin = ld_ + 4
        S.fit(GN + 4, epi(0, 77, loc=loc[0]), GN + GX)
        S.fit(max(ld_, S.lastst, gs) + 1, advance, GN + GX)
        tstamp()
        S.emit(A, pre(0))
        A(f's_cbranch_scc1 {name}_p0ed\n s_branch {name}_p0e')
        for l, off in outl:
            A(f'''{l}o:
            s_mov_b32 {sSPIN}, 0
            {l}s:
            ds_read_b32 {v(XFV)}, {v(XRD)} offset:{off}
            s_waitcnt lgkmcnt(0)
            v_cmp_gt_u32 vcc, s76, {v(XFV)}
            s_cbranch_vccz {l}
            s_add_u32 {sSPIN}, {sSPIN}, 1
            s_cmp_lt_u32 {sSPIN}, {cfg.spin_limit * 4}
            s_cbranch_scc1 {l}s
            s_mov_b32 s63, {code + 30}
            s_branch L_abort''')
    def phase1(D):
        S = mains(1, 0, NK - RA)
        ld_ = None
        if D:
            S.put(0, poll + '\n @mark poll')
            ld_ = put_dma(S, 3, 2)
        else: S.put(poll1, poll + '\n @mark poll')
        fill1(S, 0, ld_)
        if D: S.put(GX - 1, '@wait th0')
        S.emit(A, pre(NK))
    def burst(nq=None):
        for x in pickb: A(x)
        if cfg.timing and local:
            l1 = A.lab('Lt')
            A(f's_sub_u32 s63, s69, 1\n s_cmp_eq_u32 s68, 0\n s_cbranch_scc0 {l1}'); stamp(A, 'v67', 's63'); A(f'{l1}:')
        for q in range(nq or NB0):
            for x in dma(q): A(x)
    def start(nyoung, early=False):
        if early:
            A(f'v_mov_b32 {v(XFV)}, s93\n s_waitcnt vmcnt({NB0})\n s_barrier\n {flagst("s92")}'); nyoung += 1
        for x in advance + tog + hi_only + [dwr(3)]: A(x)
        A(f's_waitcnt vmcnt({nyoung}) lgkmcnt(0)\n s_barrier\n {drd(3)}')
        for f in range(RA): A(rd(f))
        A(f's_waitcnt lgkmcnt({RA})')
        for x in dget: A(x)
    def alone():
        A('s_nop 7'); n = 0
        for x in epi(1, 77, True, loc=loc[0]):
            for l in lines(x):
                if not l.startswith('@'): A(l)
                if l.startswith('buffer_'): n += 1
        return n
    def idle():
        l = A.lab('Lsp'); d = A.lab('Lspd')
        A(f'''s_cmp_lg_u32 {sW}, 0
        s_cbranch_scc1 {d}
        s_mov_b32 {sSPIN}, 0
        {l}:
        {poll}
        s_waitcnt vmcnt(0)''')
        for x in decide: A(x)
        A(f'''{dwr(4)}
        s_cmp_lg_u32 s72, 0
        s_cbranch_scc1 {d}
        s_add_u32 {sSPIN}, {sSPIN}, 1
        s_cmp_lt_u32 {sSPIN}, {cfg.spin_limit}
        s_cbranch_scc1 {l}
        {d}:
        s_waitcnt lgkmcnt(0)
        s_barrier
        {drd(4)}
        s_waitcnt lgkmcnt(0)
        {dget[0]}
        s_mov_b32 s63, {code}
        s_cmp_eq_u32 s72, 0
        s_cbranch_scc1 L_abort''')
    def flush():
        A(f'v_mov_b32 {v(XFV)}, s93\n s_waitcnt vmcnt(0)\n s_barrier\n {flagst("s92")}')
        if cfg.timing and local:
            l1 = A.lab('Lt')
            A(f's_sub_u32 s63, s93, 1\n s_cmp_eq_u32 s92, 0\n s_cbranch_scc0 {l1}'); stamp(A, 'v66', 's63'); A(f'{l1}:')
        A(f's_cmp_ge_u32 {sI}, s91\n s_cbranch_scc1 {name}_done')
    if cfg.timing and local: A('v_mov_b32 v66, 0\n v_mov_b32 v67, 0')
    if cfg.timing: A('v_mov_b32 v78, 0\n v_mov_b32 v79, 0')
    if cfg.timing == 4:
        for k in range(12, 28):
            if k not in (20, 21, 22, 23): A(f's_mov_b32 s{k}, 0')
    def cnt(k):
        if cfg.timing == 4: A(f's_addk_i32 s{k}, 1')
    if name[2] in cfg.soft:
        assert local or 'x' in cfg.sat
        A(f'''v_and_b32 v2, 3, v1
        v_lshlrev_b32 {v(XRD)}, 10, v2
        v_mov_b32 v2, 0
        ds_write_b32 {v(XDV)}, v2 offset:8
        ds_write_b32 {v(XDV)}, v2 offset:4100
        ds_write_b32 {v(XDV)}, v2 offset:4104
        s_mov_b32 s76, 0''')
    if local: A(f's_cmp_lg_u32 {sSLOW}, 0\n s_cbranch_scc1 {name}_sl')
    A(f'{name}_idle:')
    idle(); burst(); start(NB0 - NW0)
    A(f'{name}_slow:\n s_cbranch_scc1 {name}_p0d')
    phase0(False, False)
    A(f'{name}_p0d:'); phase0(False, True)
    A(f'{name}_p0e:'); cnt(18); phase0(True, False)
    A(f'{name}_p1d:'); cnt(19); phase1(True)
    A(f's_branch {name}_fe')
    A(f'{name}_p0ed:'); cnt(17)
    if name[2] in cfg.soft: steady()
    else:
        phase0(True, True)
        del A.lines[-1]
    A(f'{name}_fe:')
    A(f'{"" if "febar" in cfg.x_drop else "s_barrier"}\n {drd(1)}')
    S = mains(1, NK - RA, NK)
    S.gaps[0] = tog + S.gaps[0]
    S.put(RA * NCT - 4, '@lw dr\n' + dget[0]); S.put(RA * NCT - 1, dget[1])
    S.emit(A, pre(2 * NK - RA) + ['dr'])
    A(f's_cbranch_scc1 {name}_p0ed\n s_branch {name}_p0e')
    A(f'{name}_p1n:'); cnt(24); phase1(False)
    A(f's_barrier\n {drd(1)}')
    S = mains(1, NK - RA, NK, reads=False)
    S.put(RA * NCT - 4, '@lw dr\n' + dget[0]); S.put(RA * NCT - 1, dget[1])
    S.emit(A, pre(2 * NK - RA) + ['dr'])
    A(f's_cbranch_scc0 {name}_t2')
    if local:
        alone(); burst(); start(NB0 - NW0, True)
    else:
        burst(); n = alone(); start(NB0 - NW0 + n)
    A(f's_branch {name}_slow')
    A(f'{name}_t2:'); cnt(25)
    if name[2] in cfg.chance4:
        A(poll)
        n = alone()
        A(f's_waitcnt vmcnt({n})')
        for x in decide + [dwr(2)]: A(x)
        A(f's_waitcnt lgkmcnt(0)\n s_barrier\n {drd(2)}\n s_waitcnt lgkmcnt(0)')
        for x in dget: A(x)
        A(f's_cbranch_scc0 {name}_t3')
        burst(); start(NB0 - NW0, True)
        A(f's_branch {name}_slow\n {name}_t3:')
    else: alone()
    flush()
    A(f's_branch {name}_idle')
    if local:
        loc[0] = ' sc1'
        A(f'{name}_sl:')
        idle(); burst(ND)
        for x in advance + tog: A(x)
        A('s_waitcnt vmcnt(0)')
        A('s_barrier')
        for f in range(RA): A(rd(f))
        mains(0, 0, NK).emit(A, pre(0))
        S = mains(1, 0, NK - RA); S.seq(4, epi(0, 77, loc=loc[0]), share=share); S.emit(A, pre(NK))
        mains(1, NK - RA, NK, reads=False).emit(A, pre(2 * NK - RA))
        alone(); flush()
        A(f's_branch {name}_sl')
    A(f'{name}_done:\n s_waitcnt vmcnt(0) lgkmcnt(0)')
    if cfg.timing == 4:
        for i, k in enumerate((12, 13, 14, 15, 16, 17, 18, 19, 24, 25)): A(f'v_writelane_b32 v66, s{k}, {i}')
    dump(A, ['v78', 'v79', 'v66', 'v67'])
    A('s_endpgm')

def xw(ks, ct): return 80 + (ks * 6 + ct) * 4

def xs_setup(A, fbase, fin, shared, plan=None):
    if shared:
        A(f'''s_lshl_b32 s63, {sT}, 7
        s_lshl_b32 s64, {sL}, 2
        s_add_u32 s63, s63, s64
        s_add_u32 s74, {sL}, 1
        s_add_u32 s75, {sL}, 1''')
    else:
        A(f'''s_lshl_b32 s63, {sT}, 7
        s_cmp_eq_u32 {sL}, 0
        s_cselect_b32 s74, 1, 1000
        s_cselect_b32 s75, 1000, 1''')
    A(f's_add_u32 s63, s63, {fbase}\n s_mov_b32 s71, s63')
    flag_addr(A, v(XFA), 's63')
    A(f'''v_and_b32 v2, 3, v1
    v_lshrrev_b32 v3, 5, v1
        v_lshlrev_b32 v2, 2, v2
    v_lshl_add_u32 v2, v3, 7, v2
    v_add_u32 {v(XPA)}, {fin}, v2
    {'' if shared else f'v_cmp_eq_u32 vcc, {sL}, v3'}
    v_mov_b32 v2, {OOB}
    s_nop 0
    {'' if shared else f'v_cndmask_b32 {v(XPA)}, v2, {v(XPA)}, vcc'}
    s_mov_b32 s90, 0
    s_mov_b32 s91, {NSEG}''')
    if plan:
        S0, S1 = plan
        assert S0 % 2 == 0 and S1 % 2 == 0
        A(f'''s_cmp_eq_u32 {sL}, 0
        s_mov_b32 s44, {S0}
        s_mov_b32 s45, 2
        s_cselect_b32 s46, 1, 1000
        s_mov_b32 s47, {S1}
        s_mov_b32 s48, 1
        s_mov_b32 s49, 2
        s_cselect_b32 s75, {S1 + 1}, 1
        s_cselect_b32 s91, {S0//2 + NSEG - S0 + (NSEG - S1)//2}, {S0//2 + S1 + (NSEG - S1)//2}''')
    if shared:
        A(f'''s_sub_u32 s64, s75, 1
        v_mov_b32 v2, {sL}
        v_mov_b32 v3, s64
        s_mov_b32 s63, 4096
        buffer_store_dword v2, {v(XFA)}, {WS}, 0 offen sc1
        buffer_store_dword v3, {v(XFA)}, {WS}, s63 offen sc1''')

def warm_sweep(A, grp_s, only_l1=False, ffn=None):
    if not cfg.delay1: return
    l = A.lab('Ld1')
    if only_l1: A(f's_cmp_eq_u32 {sL}, 0\n s_cbranch_scc1 {l}')
    A(f's_cmp_lg_u32 s7, 0\n s_cbranch_scc1 {l}')
    lane(A, 'v1')
    def idx(code):
        A(code)
        A(f'''s_add_u32 s63, s63, {sT}
        s_lshl_b32 s63, s63, 2
        s_add_u32 s63, s63, {sW}
        s_lshl_b32 s63, s63, 10
        v_lshl_add_u32 v10, v1, 4, s63''')
    idx(grp_s)
    A(f's_lshl_b32 s64, {sW}, 10\n s_mov_b32 m0, s64')
    def sweep(srds, i0, i1, NW):
        lp = A.lab('Lsw')
        A(f's_mov_b32 s65, {i0*NW*1024}\n {lp}:')
        for srd in srds: A(f'buffer_load_dwordx4 v10, {srd}, s65 offen lds')
        A(f's_add_u32 s65, s65, {NW*1024}\n s_cmp_lt_u32 s65, {i1*NW*1024}\n s_cbranch_scc1 {lp}')
    NW = cfg.nsweep * 4; n = -(-4608 // NW)
    sweep([SWK, SWQ], 0, 4, NW)
    ln0_hook(A, 8, False)
    sweep([SWK, SWQ], 4, 7, NW)
    A('s_waitcnt vmcnt(6)'); arrive(A)
    sweep([SWK, SWQ], 7, n, NW)
    sweep([SWV, SWO], 0, n, NW)
    if ffn and cfg.ffnsweep:
        idx(ffn)
        sweep([SW1, SW3], 0, -(-5184 // 256), 256)
    A('s_waitcnt vmcnt(0)\n s_mov_b32 s7, 2\n s_barrier')
    A(f'{l}:')
base.warm_sweep = warm_sweep

def hold_back(A, on, fbase, only_l1=False):
    if not on: return
    l = A.lab('Lh')
    if only_l1: A(f's_cmp_eq_u32 {sL}, 0\n s_cbranch_scc1 {l}')
    ln0_hook(A, 0)
    validate(A, True)
    l2 = A.lab('Lh')
    A(f's_cmp_lg_u32 {sW}, 0\n s_cbranch_scc1 {l2}\n s_lshl_b32 s63, {sT}, 7\n s_add_u32 s63, s63, {fbase}\n v_mov_b32 v1, s63\n s_mov_b32 s64, 1')
    spin(A, 'v2', 'v1', 's64', 60)
    A(f'{l2}:\n s_barrier\n {l}:')

def staged(A, units, nslot, slot_bytes, region_s, pre=None, ranges=None, hold={}, mid=None):
    n = len(units)
    if ranges is None: ranges = [((i % nslot) * slot_bytes, slot_bytes) for i in range(n)]
    ov = lambda x, y: x[0] < y[0] + y[1] and y[0] < x[0] + x[1]
    dep = [max([hold.get(j, j) for j in range(i) if ov(ranges[i], ranges[j])], default=-1) for i in range(n)]
    cnt = []
    def issue(i):
        assert i == len(cnt)
        ls = units[i][0](ranges[i][0])
        cnt.append(sum(1 for x in ls if x.startswith('buffer_')))
        for x in ls: A(x)
    def ist(k):
        if cfg.timing == 5: A(f's_memrealtime s[96:97]\n s_waitcnt lgkmcnt(0)\n v_writelane_b32 v19, s96, {k}')
    ist(0)
    n0, n1 = pre or (cfg.pre0, cfg.pre1); n1 += n0
    for i in range(n0): issue(i)
    ln0_hook(A, sum(cnt), False)
    ist(1)
    for i in range(n0, n1): issue(i)
    A(f's_waitcnt vmcnt({sum(cnt[n0:])})')
    arrive(A)
    if mid: mid[0](A)
    ist(2)
    while len(cnt) < n and dep[len(cnt)] < 0: issue(len(cnt))
    ist(3)
    for i in range(n):
        A(f's_waitcnt vmcnt({min(sum(cnt[i + 1:]), 63)})')
        ist(4 + i)
        if mid and i == n1: mid[1](A)
        for x in units[i][1](ranges[i][0]): A(x)
        if len(cnt) < n and dep[len(cnt)] <= i:
            A('s_waitcnt lgkmcnt(0)')
            while len(cnt) < n and dep[len(cnt)] <= i: issue(len(cnt))
    A('s_waitcnt lgkmcnt(0)')
    if cfg.timing == 5:
        ist(60); A('s_mov_b32 s99, 0\n s_mov_b32 s101, 0'); dump(A, ['v19']); A('s_endpgm')

def role_qkv(A):
    A('L_qkv:')
    if not enabled('qkv'):
        ln0_hook(A, 0); A('s_endpgm'); return
    lane(A, 'v1')
    A(f'''
    v_lshrrev_b32 v2, 2, v1
    v_and_b32 v4, 3, v1
    v_lshlrev_b32 v3, 4, v4
    v_lshl_add_u32 v10, v2, 13, v3
    v_lshrrev_b32 v5, 4, v1
    v_and_b32 v2, 3, v2
    v_lshl_add_u32 v5, v5, 3, v2
    s_mul_i32 s67, {sW}, 36864
    v_lshl_add_u32 v5, v5, 6, v3
    v_add_u32 v11, s67, v5
    s_lshl_b32 s65, {sT}, 8
    s_lshl_b32 s63, {sW}, 6
    s_add_u32 s65, s65, s63
    ''')
    units = []
    for mi, srd in enumerate((SWK, SWV, SWQ)):
        for c in range(9):
            def dma(o, srd=srd, c=c):
                l = []
                for q in range(4):
                    l += [f's_add_u32 m0, s67, {o+1024*q}', f's_add_u32 s69, s65, {(64*c+16*q)*8192}', f'buffer_load_dwordx4 v10, {srd}, s69 offen lds']
                return l
            def rdf(o, mi=mi, c=c):
                return [f'ds_read_b64_tr_b16 {r(xw(2*c+kk, 2*mi+ch)+2*i,2)}, v11 offset:{o+kk*2048+i*256+ch*8}' for kk in range(2) for ch in range(2) for i in range(2)]
            units.append((dma, rdf))
    staged(A, units, 9, 4096, 's67', pre=cfg.qpre)
    A('s_barrier')
    validate(A)
    xs_setup(A, F_QKV, F_XNA, cfg.shq, cfg.qplan)
    A(f'''s_mul_i32 s63, {sT}, 24576
    s_lshl_b32 s64, {sW}, 11
    s_add_u32 s63, s63, s64
    v_lshlrev_b32 {v(XSV)}, 4, v1
    s_add_u32 s87, s63, {QKV}
    s_add_u32 s88, s87, 8192
    s_add_u32 s89, s87, 16384''')
    def epi(th, sb, alone=False, loc=None):
        a_ = 24 * th; f = []
        def piece(b, soff):
            return [f'v_cvt_pk_bf16_f32 {v(b+d)}, {v(b+2*d)}, {v(b+2*d+1)}' for d in range(4)] + \
                   [f'buffer_store_dwordx4 {v(b,4)}, {v(XSV)}, {WS}, {soff} offen offset:{1024*th} sc1']
        f += piece(a_, f's{sb+1}')
        for ch in range(2):
            b = a_ + 8 + 4 * ch
            if th == 0:
                f += [f'v_cvt_pk_bf16_f32 {v(XPK+2*ch+d)}, {v(b+2*d)}, {v(b+2*d+1)}' for d in range(2)]
            else:
                f += [f'v_cvt_pk_bf16_f32 {v(b+3)}, {v(b+2)}, {v(b+3)}', f'v_cvt_pk_bf16_f32 {v(b+2)}, {v(b)}, {v(b+1)}',
                      f'v_mov_b64 {v(b,2)}, {v(XPK+2*ch,2)}',
                      f'buffer_store_dwordx4 {v(b,4)}, {v(XSV)}, {WS}, s{sb+2} offen offset:{1024*ch} sc1']
        f += piece(a_ + 16, f's{sb}')
        f[-1] += '\n @mark st'
        return f
    gs_stream(A, 'L_q', 6, 18, xw, [0, 0, 1, 1, 0, 0], True, 48, 3, epi, XNA, XB, 36864, 64 * 32 * 24576, 32 * 24576,
              4096, 2 if cfg.shq else 1, 20, True, None, cfg.qp[0], 6, cfg.qp[1], cfg.qp[2], False, False, prio=1, lowlate=cfg.shq and 'q' in cfg.lowlate, plan=cfg.qplan, alt=cfg.qalt)

def role_up(A):
    A('L_up:')
    if not enabled('up'):
        ln0_hook(A, 0); A('s_endpgm'); return
    if cfg.nsweep == 160: warm_sweep(A, f's_mul_i32 s63, {sL}, 24\n s_add_u32 s63, s63, 112')
    hold_back(A, 'u' in cfg.hold, F_QKV)
    lane(A, 'v1')
    for j in range(3):
        A(f'''v_add_u32 v2, {64*j}, v1
        v_mul_u32_u24 v3, 10923, v2
        v_lshrrev_b32 v3, 16, v3
        v_mul_u32_u24 v4, 6, v3
        v_sub_u32 v4, v2, v4
        v_mul_u32_u24 v3, 9216, v3
        v_lshl_add_u32 v{10+j}, v4, 4, v3''')
    A(f'''
    v_lshrrev_b32 v2, 4, v1
    v_bfe_u32 v3, v1, 2, 2
    v_lshl_add_u32 v2, v2, 3, v3
    v_mul_u32_u24 v2, 96, v2
    v_and_b32 v3, 1, v1
    v_lshl_add_u32 v2, v3, 4, v2
    v_bfe_u32 v3, v1, 1, 1
    v_lshl_add_u32 v2, v3, 3, v2
    s_mul_i32 s67, {sW}, 36864
    v_add_u32 v13, s67, v2
    s_mul_i32 s65, {sT}, 384
    s_mul_i32 s63, {sW}, 96
    s_add_u32 s65, s65, s63
    ''')
    units = []
    for ks in range(18):
        def dma(o, ks=ks):
            l = [f's_add_u32 s69, s65, {32*ks*9216}']
            for mat, srd in enumerate((SW1, SW3)):
                for j in range(3):
                    l += [f's_add_u32 m0, s67, {o+3072*mat+1024*j}', 's_nop 0', f'buffer_load_dwordx4 v{10+j}, {srd}, s69 offen lds']
            return l
        def rdf(o, ks=ks):
            return [f'ds_read_b64_tr_b16 {r(xw(ks, 2*t+mat)+2*i,2)}, v13 offset:{o+3072*mat+i*384+t*32}' for t in range(3) for mat in range(2) for i in range(2)]
        units.append((dma, rdf))
    staged(A, units, 6, 6144, 's67')
    A('s_barrier')
    validate(A)
    xs_setup(A, F_UP, F_XNF, cfg.shu, cfg.uplan)
    A(f'''v_lshrrev_b32 v2, 5, v1
    v_and_b32 v3, 31, v1
    v_lshlrev_b32 v3, 4, v3
    v_mul_u32_u24 v2, {36864 if 'd' in cfg.bigk else 18432}, v2
    v_add_u32 {v(XSV)}, v2, v3
    s_mul_i32 s63, {sT}, 12
    s_mul_i32 s64, {sW}, 3
    s_add_u32 s63, s63, s64
    s_mul_i32 s66, {sT}, 86
    s_lshr_b32 s66, s66, {9 if 'd' in cfg.bigk else 8}
    s_mul_i32 s66, s66, {36864 if 'd' in cfg.bigk else 18432}
    s_add_u32 s66, s66, {HB}
    s_mov_b32 s86, {f2u(-LOG2E):#x}''')
    for t in range(3):
        A(f'''s_add_u32 s64, s63, {t}
        s_lshl_b32 s64, s64, 9
        s_add_u32 s{87+t}, s64, s66''')
    def epi(th, sb, alone=False, loc=None):
        f = []
        if alone:
            B = [24 + 8 * t for t in range(3)]
            for t in range(3): f += [f'v_mul_f32 {v(4*t+j)}, s86, {v(B[t]+j)}' for j in range(4)]
            f += [f'v_exp_f32 {v(j)}, {v(j)}' for j in range(12)]
            for t in range(3): f += [f'v_pk_mul_f32 {v(B[t]+4+j,2)}, {v(B[t]+j,2)}, {v(B[t]+4+j,2)}' for j in (0, 2)]
            f += [f'v_pk_add_f32 {v(j,2)}, {v(j,2)}, 1.0 op_sel_hi:[1,0]' for j in range(0, 12, 2)]
            f += [f'v_rcp_f32 {v(j)}, {v(j)}' for j in range(12)]
            f += [f'v_mov_b64 {v(B[t],2)}, {v(XPK+2*t,2)}' for t in range(3)]
            for t in range(3): f += [f'v_pk_mul_f32 {v(B[t]+4+j,2)}, {v(4*t+j,2)}, {v(B[t]+4+j,2)}' for j in (0, 2)]
            for t in range(3): f += [f'v_cvt_pk_bf16_f32 {v(B[t]+2+d)}, {v(B[t]+4+2*d)}, {v(B[t]+5+2*d)}' for d in range(2)]
            for t in range(3):
                f += [f'v_permlane32_swap_b32 {v(B[t])}, {v(B[t]+2)}', f'v_permlane32_swap_b32 {v(B[t]+1)}, {v(B[t]+3)}',
                      f'buffer_store_dwordx4 {v(B[t],4)}, {v(XSV)}, {WS}, s{sb+t} offen sc1']
            return f
        T = [v(XT + j) for j in range(4)]
        for t in range(3):
            b = 24 * th + 8 * t
            G = [v(b + j) for j in range(4)]; U = [v(b + 4 + j) for j in range(4)]
            op = {'m': lambda j: f'v_mul_f32 {T[j]}, s86, {G[j]}', 'e': lambda j: f'v_exp_f32 {T[j]}, {T[j]}', 'g': lambda j: f'v_mul_f32 {U[j]}, {G[j]}, {U[j]}',
                  'a': lambda j: f'v_add_f32 {T[j]}, 1.0, {T[j]}', 'r': lambda j: f'v_rcp_f32 {T[j]}, {T[j]}', 'f': lambda j: f'v_mul_f32 {U[j]}, {T[j]}, {U[j]}'}
            f += [op[x[0]](int(x[1])) for x in cfg.upord.split()]
            if th == 0:
                f += [f'v_cvt_pk_bf16_f32 {v(XPK+2*t+d)}, {U[2*d]}, {U[2*d+1]}' for d in range(2)]
            else:
                f += [f'v_mov_b64 {v(b,2)}, {v(XPK+2*t,2)}\n v_cvt_pk_bf16_f32 {v(b+2)}, {U[0]}, {U[1]}', f'v_cvt_pk_bf16_f32 {v(b+3)}, {U[2]}, {U[3]}\n s_nop 0',
                      f'v_permlane32_swap_b32 {v(b)}, {v(b+2)}', f'v_permlane32_swap_b32 {v(b+1)}, {v(b+3)}',
                      f'buffer_store_dwordx4 {v(b,4)}, {v(XSV)}, {WS}, s{sb+t} offen sc1']
        if th == 1: f[-1] += '\n @mark st'
        return f
    gs_stream(A, 'L_u', 6, 18, xw, [0] * 6, True, 48, 3, epi, XNF, XB, 36864, 64 * 294912, 294912,
              4096, 2 if cfg.shu else 1, 21, cfg.upsig[0], cfg.upsig[1], cfg.upsig[2], cfg.xstep, cfg.upsig[3], cfg.up1, True, False, lowlate=cfg.shu and 'u' in cfg.lowlate, plan=cfg.uplan, epihi=cfg.upsig[4], gap='u' in cfg.gap)

def role_rg(A, name, key, NK, wsrd, in_base, in_sstride, out_base, fout, code):
    A(f'{name}:')
    if not enabled(key):
        ln0_hook(A, 0); A('s_endpgm'); return
    big = key[0] in cfg.bigk
    if big: NK *= 2
    NS = 4 if big else 8
    rplan = cfg.rplan if (big and cfg.bigsh and key[0] not in cfg.gap) else None
    def w_(k, ct): return (80 if big else 256) + (k * 3 + ct) * 4
    warm_sweep(A, f's_mov_b32 s63, {32 if key == "wo" else 64}')
    hold_back(A, key[0] in cfg.hold, F_QKV)
    A(f'''s_mul_i32 s86, {sT}, 86
    s_lshr_b32 s86, s86, 8
    s_mul_i32 s63, s86, 3
    s_sub_u32 s80, {sT}, s63
    s_lshr_b32 s81, s86, 2
    s_and_b32 s86, s86, {NS - 1}''')
    lane(A, 'v1')
    for j in range(3):
        A(f'''v_add_u32 v2, {64*j}, v1
        v_mul_u32_u24 v3, 10923, v2
        v_lshrrev_b32 v3, 16, v3
        v_mul_u32_u24 v4, 6, v3
        v_sub_u32 v4, v2, v4
        v_mul_u32_u24 v3, 1152, v3
        v_lshl_add_u32 v{10+j}, v4, 4, v3''')
    A(f'''
    v_lshrrev_b32 v2, 4, v1
    v_bfe_u32 v3, v1, 2, 2
    v_lshl_add_u32 v2, v2, 3, v3
    v_mul_u32_u24 v2, 96, v2
    s_mul_i32 s67, {sW}, 36864
    v_add_u32 v2, s67, v2
    v_and_b32 v3, 3, v1
    v_lshl_add_u32 v13, v3, 4, v2
    v_and_b32 v3, 1, v1
    v_lshl_add_u32 v2, v3, 4, v2
    v_bfe_u32 v3, v1, 1, 1
    v_lshl_add_u32 v14, v3, 3, v2
    s_mul_i32 s71, s80, 384
    s_mul_i32 s63, {sW}, 96
    s_add_u32 s71, s71, s63
    s_mul_i32 s65, s86, {NK*32*1152}
    s_add_u32 s65, s65, s71
    ''')
    units = []
    for k in range(NK):
        def dma(o, k=k):
            l = [f's_add_u32 s69, s65, {32*k*1152}']
            for j in range(3):
                l += [f's_add_u32 m0, s67, {o+1024*j}', 's_nop 0', f'buffer_load_dwordx4 v{10+j}, {wsrd}, s69 offen lds']
            return l
        def rdf(o, k=k):
            return [f'ds_read_b64_tr_b16 {r(w_(k,ct)+2*i,2)}, {"v13" if ct < 2 else "v14"} offset:{o+i*384+(ct*8 if ct < 2 else 64)}' for ct in range(3) for i in range(2)]
        units.append((dma, rdf))
    staged(A, units, 12, 3072, 's67')
    A('s_barrier')
    validate(A)
    A(f's_mul_i32 s64, s86, 3\n s_add_u32 s64, s64, s80\n s_lshl_b32 s63, {sT if (not big or cfg.bigsh) else "s64"}, 2\n s_add_u32 s63, s63, {fout}')
    flag_addr(A, v(XFA), 's63')
    A(f'''v_lshlrev_b32 {v(XSV)}, 4, v1
    s_lshl_b32 s87, s64, 2
    s_add_u32 s87, s87, {sW}
    s_mul_i32 s87, s87, 3072
    s_add_u32 s87, s87, {out_base}
    s_mov_b32 s88, s87
    s_mov_b32 s89, s87
    s_mul_i32 s90, s86, {NK*2048}
    s_mov_b32 s91, {NSEG if big else 2*NSEG}
    s_mov_b32 s74, 1
    s_mov_b32 s75, 1
    v_lshrrev_b32 v2, 5, v1
    v_and_b32 v3, 31, v1''')
    if big and cfg.bigsh:
        A('s_add_u32 s74, s81, 1\n s_add_u32 s75, s81, 1')
        if rplan:
            S0, S1 = rplan
            A(f'''s_cmp_eq_u32 s81, 0
            s_mov_b32 s44, {S0}
            s_mov_b32 s45, 2
            s_cselect_b32 s46, 1, 1000
            s_mov_b32 s47, {S1}
            s_mov_b32 s48, 1
            s_mov_b32 s49, 2
            s_cselect_b32 s75, {S1 + 1}, 1
            s_cselect_b32 s91, {S0//2 + NSEG - S0 + (NSEG - S1)//2}, {S0//2 + S1 + (NSEG - S1)//2}''')
        A(f'''s_sub_u32 s63, s75, 1
        v_mov_b32 v4, s81
        v_mov_b32 v5, s63
        buffer_store_dword v4, {v(XFA)}, {WS}, 0 offen sc1
        buffer_store_dword v5, {v(XFA)}, {WS}, 0 offen offset:512 sc1''')
    elif big: A('s_cmp_eq_u32 s81, 0\n s_cselect_b32 s74, 1, 1000\n s_cselect_b32 s75, 1000, 1')
    if key == 'wo':
        A(f'''s_lshl_b32 s65, s86, {8 if big else 7}
        v_and_b32 v4, 3, v3
        v_lshl_add_u32 v4, v4, 2, s65
        v_and_b32 v5, {4 if big else 0}, v3
        v_lshl_add_u32 v4, v5, 5, v4
        v_and_b32 v5, {8 if cfg.aplan else 0}, v3
        v_mul_u32_u24 v5, v5, v2
        v_lshl_add_u32 v4, v5, 1, v4
        v_lshl_add_u32 v4, v2, 12, v4
        v_add_u32 {v(XPA)}, {F_ATT}, v4''')
    else:
        A(f'''s_mul_i32 s65, s86, {6 if big else 3}
        v_lshrrev_b32 v5, 1, v3
        v_min_u32 v5, {5 if big else 2}, v5
        v_add_u32 v5, s65, v5
        v_and_b32 v4, {1 if cfg.shu else 0}, v3
        v_lshlrev_b32 v4, 2, v4
        v_lshl_add_u32 v4, v5, 7, v4
        v_lshl_add_u32 v4, v2, 12, v4
        v_add_u32 {v(XPA)}, {F_UP}, v4''')
    A(f'''v_and_b32 v4, 3, v3
    v_lshlrev_b32 v4, 2, v4
    v_lshl_add_u32 v4, v2, 7, v4
    v_add_u32 v4, {F_CON + (0 if key == 'wo' else 256)}, v4
    v_cmp_gt_u32 vcc, 16, v3
    v_mov_b64 v[8:9], 0
    v_mov_b64 v[10:11], 0
    v_cndmask_b32 {v(XPA)}, v4, {v(XPA)}, vcc
    v_mul_i32_i24 v65, {PR1 - PR0}, v2
    v_add_u32 v65, {PR0}, v65
    v_cndmask_b32 v65, v65, 0, vcc''')
    if big and not cfg.bigsh: A(f'v_cmp_eq_u32 vcc, s81, v2\n v_mov_b32 v4, {OOB}\n s_nop 0\n v_cndmask_b32 {v(XPA)}, v4, {v(XPA)}, vcc')
    def epi(th, sb, alone=False, loc=''):
        b = 12 * th; o = 48 + 4 * th
        f = [f'v_cvt_pk_bf16_f32 {v(o+d)}, {v(b+2*d)}, {v(b+2*d+1)}' for d in range(4)]
        f.append(f'buffer_store_dwordx4 {v(o,4)}, {v(XSV)}, {WS}, s{sb} offen offset:{1024*th}{loc}')
        f += [f'v_cvt_pk_bf16_f32 {v(56+2*th+d)}, {v(b+8+2*d)}, {v(b+9+2*d)}' for d in range(2)]
        if th == 1:
            f = f[5:] + f[:5]
            f += ['v_permlane32_swap_b32 v56, v58', 'v_permlane32_swap_b32 v57, v59',
                  f'buffer_store_dwordx4 v[56:59], {v(XSV)}, {WS}, s{sb} offen offset:2048{loc}\n @mark st']
        return f
    if big:
        gs_stream(A, name, 3, NK, w_, [0] * 3, False, 24, 4, epi, in_base, 64 * in_sstride, in_sstride, PR0 * 294912, 294912,
                  512, 2 if cfg.bigsh else 1, code, cfg.bigp[0], None, cfg.bigp[1], cfg.bigstep, cfg.bigp[2], cfg.bigp[3], True, True, big=True, plan=rplan, gap=key[0] in cfg.gap)
    else: gs_stream(A, name, 3, NK, w_, [0] * 3, False, 80, cfg.rgring[NK == 18], epi, in_base, 64 * in_sstride, in_sstride, PR0 * 294912, 294912,
              512, 1, code, True, None, cfg.rgdma[0], cfg.rgdma[1], cfg.rp0, cfg.rp1, True, True, lowlate='r' in cfg.lowlate)

def wr_reg(A, i, val):
    A(f'v_mov_b32 {r(i)}, {val}' if i < 256 else f'v_accvgpr_write_b32 {r(i)}, {val}')

def role_att(A):
    A('L_att:')
    if not enabled('att'):
        ln0_hook(A, 0); A('s_endpgm'); return
    warm_sweep(A, f's_lshl_b32 s63, {sL}, 3\n s_add_u32 s63, s63, 72', False, f's_lshl_b32 s63, {sL}, 3\n s_add_u32 s63, s63, 24')
    ln0_hook(A, 0)
    validate(A, True)
    SET = [256, 384]
    BI, SA, PP, PM, OA, OP, T = 16, 20, 40, 48, 64, 128, 160
    vLD, vKM, vVM, vPA, vP, vFA, vF = 'v4', 'v5', 'v6', 'v7', 'v8', 'v9', 'v10'
    A(f'''s_sub_u32 s70, {sT}, 24
    s_lshl_b32 s70, s70, 2
    s_add_u32 s70, s70, {sW}
    s_lshl_b32 s71, {sL}, 5
    s_add_u32 s71, s71, s70
    s_lshl_b32 s71, s71, 7
    s_sub_u32 s63, {sT}, 24
    s_lshl_b32 s63, s63, 7
    s_lshl_b32 s64, {sL}, 12
    s_add_u32 s63, s63, s64
    s_lshl_b32 s64, {sW}, 2
    s_add_u32 s63, s63, s64
    s_add_u32 s63, s63, {F_ATT}''')
    A('s_mov_b32 s78, s63')
    flag_addr(A, vFA, 's63')
    A(f'''
    v_lshlrev_b32 {vLD}, 4, v1
    v_and_b32 v2, 15, v1
    v_lshrrev_b32 v3, 4, v1
    v_lshrrev_b32 v11, 2, v2
    v_and_b32 v12, 1, v2
    v_lshl_add_u32 v11, v11, 1, v12
    v_lshlrev_b32 v11, 4, v11
    v_lshl_add_u32 {vKM}, v3, 7, v11
    v_lshlrev_b32 {vVM}, 3, v1
    v_and_b32 v11, {1 if cfg.shq else 0}, v1
    v_lshlrev_b32 v11, 2, v11
    s_add_u32 s63, s71, {F_QKV}
    v_add_u32 v11, s63, v11
    s_add_u32 s63, s71, {F_CH}
    v_mov_b32 v12, s63
    v_cmp_gt_u32 vcc, 8, v1
    s_nop 1
    v_cndmask_b32 {vPA}, v12, v11, vcc
    v_lshlrev_b32 v3, 2, v3
    v_sub_u32 v2, v2, v3
    v_mov_b32 v12, {f2u(-1e30):#x}
    s_mul_i32 s72, {sL}, {64*32}
    s_add_u32 s72, s72, s70
    s_mul_i32 s73, s72, 4096
    s_add_u32 s73, s73, {KVM}
    s_mul_i32 s72, s72, 24576
    s_add_u32 s72, s72, {QKV}
    s_mul_i32 s74, {sL}, {64*262144}
    s_lshr_b32 s63, s70, {3 if 'w' in cfg.bigk else 2}
    s_lshl_b32 s63, s63, {16 if 'w' in cfg.bigk else 15}
    s_add_u32 s74, s74, s63
    s_and_b32 s63, s70, {7 if 'w' in cfg.bigk else 3}
    s_lshl_b32 s63, s63, 12
    s_add_u32 s74, s74, s63
    s_add_u32 s74, s74, {OB}
    s_mov_b32 s75, {f2u(128**-0.5*LOG2E):#x}
    ''')
    for rr in range(4):
        A(f'''v_cmp_le_i32 vcc, {rr}, v2
        s_nop 1
        v_cndmask_b32 {v(BI+rr)}, v12, 0, vcc''')
    for i in (PP + 2, PP + 3, PM + 1, PM + 2, PM + 5, PM + 6): A(f'v_mov_b32 {v(i)}, 0')
    def ld_qkv(P):
        b = SET[P]
        A(f's_mul_i32 s67, s64, {32*24576}\n s_add_u32 s67, s67, s72')
        for k in range(24):
            if k % 4 == 0 and k: A('s_add_u32 s67, s67, 4096')
            A(f'buffer_load_dwordx4 {r(b+4*k,4)}, {vLD}, {WS}, s67 offen offset:{1024*(k%4)} {cfg.attld}')
    def ld_m(P, sreg=sI):
        b = SET[P]
        A(f's_mul_i32 s68, {sreg}, {32*4096}\n s_add_u32 s68, s68, s73')
        for u in range(4):
            A(f'buffer_load_dwordx4 {r(b+96+4*u,4)}, {vKM}, {WS}, s68 offen offset:{512*u} sc1')
        for u in range(4):
            A(f'buffer_load_dwordx2 {r(b+112+2*u,2)}, {vVM}, {WS}, s68 offen offset:{2048+512*u} sc1')
    def allred2(op):
        x0, x1, t0, t1 = v(T), v(T+1), v(T+2), v(T+3)
        for sw in ('v_permlane16_swap_b32', 'v_permlane32_swap_b32'):
            A(f'''v_mov_b32 {t0}, {x0}
            v_mov_b32 {t1}, {x1}
            s_nop 0
            {sw} {x0}, {t0}
            {sw} {x1}, {t1}
            {op} {x0}, {x0}, {t0}
            {op} {x1}, {x1}, {t1}''')
    def compute(P):
        b = SET[P]
        Q = lambda u, th: r(b + 4 * (2 * u + th), 4)
        K = lambda u, th: r(b + 32 + 4 * (2 * u + th), 4)
        for u in range(4):
            for ai, (a_, qh, c0) in enumerate(((K(u,0), 0, v(BI,4)), (r(b+96+4*u,4), 0, '0'), (K(u,0), 1, '0'), (K(u,1), 1, v(BI,4)), (r(b+96+4*u,4), 1, '0'))):
                d = v(SA + 4 * ai, 4)
                A(f'{M16} {d}, {a_}, {Q(u,qh)}, {c0 if u == 0 else d}')
        S0 = [SA + i for i in range(4)] + [SA + 4, SA + 5]
        S1 = [SA + 8 + i for i in range(8)] + [SA + 16, SA + 17]
        A('s_nop 4')
        A(f'v_max3_f32 {v(T)}, {v(S0[0])}, {v(S0[1])}, {v(S0[2])}\n v_max3_f32 {v(T)}, {v(T)}, {v(S0[3])}, {v(S0[4])}\n v_max_f32 {v(T)}, {v(T)}, {v(S0[5])}')
        A(f'v_max_f32 {v(T+1)}, {v(S1[0])}, {v(S1[1])}')
        for q in range(2, 10, 2): A(f'v_max3_f32 {v(T+1)}, {v(T+1)}, {v(S1[q])}, {v(S1[q+1])}')
        allred2('v_max_f32')
        A(f'v_mul_f32 {v(T)}, s75, {v(T)}\n v_mul_f32 {v(T+1)}, s75, {v(T+1)}')
        for qh, S in enumerate((S0, S1)):
            for x in S: A(f'v_fma_f32 {v(x)}, {v(x)}, s75, -{v(T+qh)}')
        for x in S0 + S1: A(f'v_exp_f32 {v(x)}, {v(x)}')
        for qh, S in enumerate((S0, S1)):
            A(f'v_add_f32 {v(T+qh)}, {v(S[0])}, {v(S[1])}')
            for x in S[2:]: A(f'v_add_f32 {v(T+qh)}, {v(T+qh)}, {v(x)}')
        allred2('v_add_f32')
        A(f'v_rcp_f32 {v(T)}, {v(T)}\n v_rcp_f32 {v(T+1)}, {v(T+1)}')
        for qh, S in enumerate((S0, S1)):
            for x in S: A(f'v_mul_f32 {v(x)}, {v(x)}, {v(T+qh)}')
        for d in range(2): A(f'v_cvt_pk_bf16_f32 {v(PP+d)}, {v(S0[2*d])}, {v(S0[2*d+1])}')
        for d in range(4): A(f'v_cvt_pk_bf16_f32 {v(PP+4+d)}, {v(S1[2*d])}, {v(S1[2*d+1])}')
        for qh, S in enumerate((S0, S1)):
            for o in (0, 3): A(f'v_cvt_pk_bf16_f32 {v(PM+4*qh+o)}, {v(S[-2])}, {v(S[-1])}')
        od = lambda u, qh, ch: v(OA + 32 * qh + 8 * u + 4 * ch, 4)
        for qh in range(2):
            for u in range(4):
                for ch in range(2):
                    A(f'{M16} {od(u,qh,ch)}, {r(b+64+4*(2*u+ch),4)}, {v(PP+4*qh,4)}, 0')
        for qh in range(2):
            for u in range(4):
                for ch in range(2):
                    A(f'v_mfma_f32_16x16x16_bf16 {od(u,qh,ch)}, {r(b+112+2*u,2)}, {v(PM+4*qh+2*ch,2)}, {od(u,qh,ch)}')
    def pack():
        for d in range(32):
            A(f'v_cvt_pk_bf16_f32 {v(OP+d)}, {v(OA+2*d)}, {v(OA+2*d+1)}')
    def stores():
        A(f's_mul_i32 s67, {sI}, 262144\n s_add_u32 s67, s67, s74')
        for k in range(8):
            A(f'buffer_store_dwordx4 {v(OP+4*k,4)}, {vLD}, {WS}, s67 offen offset:{1024*(k%4)} {cfg.attst}')
            if k == 3: A(f's_add_u32 s67, s67, {32768 if "w" in cfg.bigk else 16384}')
    poll = f'buffer_load_dword {vP}, {vPA}, {WS}, 0 offen sc1'
    def flag():
        if 'a' in cfg.sat:
            l = A.lab('Lfa')
            A(f's_cmp_eq_u32 s79, {sI}\n s_cbranch_scc1 {l}\n s_waitcnt lgkmcnt(0)\n s_sub_u32 s83, {sI}, s79\n s_mov_b32 s79, {sI}\n s_atomic_add s83, s[8:9], s78\n {l}:')
        else: A(f'v_mov_b32 {vF}, {sI}\n buffer_store_dword {vF}, {vFA}, {WS}, 0 offen sc1')
    A('s_mov_b32 s79, 0')
    for P in (0, 1):
        for i in range(96, 112): wr_reg(A, SET[P] + i, 0)
    S1 = cfg.aplan
    if S1:
        l = A.lab('La')
        A(f'''s_cmp_eq_u32 {sL}, 0
        s_cselect_b32 s80, 1000, {S1 - 1}
        s_cbranch_scc0 {l}
        s_add_u32 s81, s78, {4096 + 16}
        s_mov_b32 s82, {S1}
        s_atomic_add s82, s[8:9], s81
        {l}:''')
    else: A('s_mov_b32 s80, 1000')
    A(f's_mov_b32 {sI}, 0\n s_mov_b32 s66, 0\n s_branch L_a_wait0')
    for P in (0, 1):
        l1 = A.lab('La'); l2 = A.lab('La')
        A(f'''L_a_wait{P}:
        s_mov_b32 {sSPIN}, 0
        L_a_spin{P}:
        {poll}
        s_waitcnt vmcnt(0)
        L_a_chk{P}:
        v_cmp_ge_u32 vcc, {sI}, {vP}
        s_bitcmp1_b32 s66, 1
        s_cbranch_scc1 {l1}
        s_cmp_lg_u32 vcc_hi, 0
        s_cbranch_scc1 {l1}''')
        ld_m(P)
        A(f'''s_or_b32 s66, s66, 2
        {l1}:
        s_bitcmp1_b32 s66, 0
        s_cbranch_scc1 {l2}
        s_and_b32 s63, vcc_lo, 0xff
        s_cbranch_scc1 {l2}
        s_mov_b32 s64, {sI}''')
        ld_qkv(P)
        A(f'''s_or_b32 s66, s66, 1
        {l2}:
        s_cmp_eq_u32 s66, 3
        s_cbranch_scc1 L_a_top{P}
        s_add_u32 {sSPIN}, {sSPIN}, 1
        s_cmp_lt_u32 {sSPIN}, {cfg.spin_limit}
        s_cbranch_scc1 L_a_spin{P}
        s_mov_b32 s63, 30
        s_branch L_abort
        L_a_topf{P}:
        s_waitcnt vmcnt(8)''')
        flag()
        A(f'''s_waitcnt vmcnt({0 if 'a' in cfg.sat else 1})
        s_branch L_a_top2{P}
        L_a_top{P}:
        s_waitcnt vmcnt(0)
        L_a_top2{P}:
        s_cmp_ge_u32 {sI}, s80
        s_addc_u32 s64, {sI}, 1
        v_cmp_ge_u32 vcc, s64, {vP}''')
        stamp(A, 'v220', sI)
        def variant(ldf, gapc):
            body = capture(A, lambda: compute(P)); ld = capture(A, ldf)
            groups = []; cur = []
            for l in ld:
                cur.append(l)
                if l.strip().startswith('buffer_'): groups.append(cur); cur = []
            k = 0; cost = 0; tot = 0; fl = False
            for l in body:
                A.lines.append(l); c_ = 16 if 'mfma' in l else 6; cost += c_; tot += c_
                if cost >= gapc and k < len(groups): A.lines += groups[k]; k += 1; cost = 0
                if tot > 700 and not fl and l.strip().startswith('v_add_f32'):
                    A(f's_waitcnt vmcnt({k})'); flag(); fl = True
            assert k == len(groups) and fl, (k, len(groups))
        A(f'''s_and_b32 s63, vcc_lo, 0xff
        s_cbranch_scc0 L_a_w{P}
        s_mov_b32 s66, 0''')
        variant(lambda: None, 1)
        A(f's_branch L_a_e{P}\n L_a_w{P}:\n s_cmp_eq_u32 vcc_hi, 0\n s_cbranch_scc1 L_a_ww{P}\n s_mov_b32 s66, 1')
        variant(lambda: ld_qkv(1 - P), 56)
        A(f's_branch L_a_e{P}\n L_a_ww{P}:\n s_mov_b32 s66, 3')
        variant(lambda: (ld_qkv(1 - P), ld_m(1 - P, 's64')), 42)
        A(f'L_a_e{P}:\n {poll}')
        pack()
        stores()
        stamp(A, 'v221', sI)
        A(f'''s_mov_b32 {sI}, s64
        s_waitcnt vmcnt(8)
        v_cmp_ge_u32 vcc, {sI}, {vP}
        s_cmp_eq_u32 s66, 3
        s_cbranch_scc1 L_a_top2{1-P}
        s_cmp_eq_u32 s66, 0
        s_cbranch_scc1 L_a_idle{P}
        s_cmp_lg_u32 vcc_hi, 0
        s_cbranch_scc1 L_a_idle{P}''')
        ld_m(1 - P)
        A(f'''s_branch L_a_topf{1-P}
        L_a_idle{P}:
        {poll}
        s_waitcnt vmcnt(0)''')
        flag()
        A(f'''s_cmp_ge_u32 {sI}, {NSEG}
        s_cbranch_scc1 L_a_done
        s_mov_b32 {sSPIN}, 0
        s_branch L_a_chk{1-P}''')
    A('L_a_done:\n s_waitcnt vmcnt(0) lgkmcnt(0)')
    if S1:
        if cfg.timing == 2: A(f's_cmp_lg_u32 s80, 1000\n s_cbranch_scc1 L_a_x\n v_mov_b32 v222, v220\n v_mov_b32 v223, v221\n L_a_x:')
        A(f'''s_cmp_lg_u32 s80, 1000
        s_cbranch_scc1 L_a_done2
        s_mov_b32 s80, 0
        s_mov_b32 s78, s81
        s_mov_b32 s79, {S1}
        s_mov_b32 {sI}, {S1}
        s_mov_b32 s66, 0
        s_add_u32 s72, s72, {64*32*24576}
        s_add_u32 s73, s73, {64*32*4096}
        s_add_u32 s74, s74, {64*262144}
        v_add_u32 {vPA}, 4096, {vPA}
        s_branch L_a_wait0
        L_a_done2:''')
    dump(A, ['v220', 'v221', 'v222', 'v223'])
    A('s_endpgm')

L_MEM = 147456; L_QK = L_MEM + 9216; L_O = L_QK + 4096; L_SM = L_O + 2048
def cwq(T, c): return 80 + (T * 9 + c) * 8
def cwo(t, c2): return 80 + 288 + (t * 2 + c2) * 8
def resident():
    reg = [('k', c) for c in range(9) if c not in cfg.KL] + [('v', c) for c in range(9) if c not in cfg.VL]
    lds = [('k', c) for c in cfg.KL] + [('v', c) for c in cfg.VL]
    assert len(reg) == 9 and len(lds) == 9
    return reg, lds
def cwr(m, T, c): return 80 + 144 + (resident()[0].index((m, c)) * 2 + T) * 8

def chain_mem0(A):
    A(f'''
    v_lshrrev_b32 v2, 4, v1
    v_bfe_u32 v3, v1, 2, 1
    v_lshl_add_u32 v2, v2, 1, v3
    v_mul_u32_u24 v2, 1152, v2
    v_bfe_u32 v3, v1, 3, 1
    v_bfe_u32 v4, v1, 1, 1
    v_lshl_add_u32 v3, v3, 1, v4
    v_and_b32 v4, 1, v1
    {f's_lshr_b32 s63, {sW}, 1{chr(10)} s_lshl_b32 s63, s63, 5{chr(10)} s_and_b32 s64, {sW}, 1{chr(10)} s_lshl_b32 s64, s64, 3{chr(10)} s_add_u32 s63, s63, s64{chr(10)} v_lshl_add_u32 v5, v3, 1, s63{chr(10)} v_add_u32 v5, v5, v4' if cfg.x2 else f's_lshl_b32 s63, {sW}, 2{chr(10)} v_add_u32 v5, s63, v3{chr(10)} v_lshl_add_u32 v5, v4, 5, v5'}
    v_lshl_add_u32 v5, v5, 1, v2
    s_mul_i32 s63, {sW}, 144
    s_add_u32 s63, s63, 128
    v_lshl_add_u32 v6, v3, 2, s63
    v_lshl_add_u32 v6, v4, 1, v6
    v_lshl_add_u32 v6, v6, 1, v2
    s_lshl_b32 s63, {sW}, 8
    s_add_u32 s63, s63, {L_MEM}
    v_lshl_add_u32 v7, v1, 2, s63
    ''')
    for c in range(8):
        o = (144 * (c >> 1) + 64 * (c & 1)) * 2
        A(f'buffer_load_ushort v{40+c}, v5, {SMEM0}, 0 offen offset:{o}')
        A(f'buffer_load_ushort v{50+c}, v5, {SMEM0}, 0 offen offset:{o+32}')
    A(f'buffer_load_dword v48, v6, {SMEM0}, 0 offen')
    return

def chain_mem0b(A):
    for c in range(8): A(f'v_lshl_or_b32 v{40+c}, v{50+c}, 16, v{40+c}')
    for c in range(9): A(f'ds_write_b32 v7, v{40+c} offset:{c*1024}')
    A('s_waitcnt lgkmcnt(0)')


def chain_init(A):
    lane(A, 'v1')
    A(f'''
    v_lshrrev_b32 v2, 5, v1
    v_bfe_u32 v3, v1, 4, 1
    v_bfe_u32 v4, v1, 3, 1
    v_bfe_u32 v5, v1, 2, 1
    v_and_b32 v6, 3, v1
    v_lshlrev_b32 v7, 4, v6
    v_lshl_add_u32 v8, v2, 2, v3
    v_lshl_add_u32 v8, v4, 1, v8
    v_lshlrev_b32 v8, {1 if cfg.x2 else 0}, v8
    v_lshl_add_u32 v8, v5, 4, v8
    v_lshl_add_u32 v10, v8, 13, v7
    v_mul_u32_u24 v8, 144, v2
    v_lshl_add_u32 v8, v3, 2, v8
    v_lshl_add_u32 v8, v4, 3, v8
    v_add_u32 v8, v8, v5
    v_lshl_add_u32 v11, v8, 13, v7
    s_mul_i32 s67, {sW}, 36864
    v_lshrrev_b32 v8, 2, v1
    v_lshl_add_u32 v9, v8, 6, s67
    v_lshl_add_u32 v13, v6, 3, v9
    v_lshl_add_u32 v14, v6, 4, v9
    v_lshrrev_b32 v8, 4, v1
    v_lshl_add_u32 v8, v8, 2, v5
    v_mul_u32_u24 v8, 288, v8
    v_lshl_add_u32 v8, v6, 3, v8
    v_add_u32 v8, s67, v8
    v_lshl_add_u32 v15, v4, 5, v8
    v_mul_u32_u24 v9, 9216, v4
    v_add_u32 v12, v9, v8
    v_lshl_add_u32 v16, v1, 4, s67
    s_lshl_b32 s65, {sT}, 8
    s_lshl_b32 s63, {sW}, 6
    s_add_u32 s65, s65, s63
    s_mul_i32 s66, {sT}, 147456
    s_mul_i32 s63, {sW}, 288
    s_add_u32 s66, s66, s63
    ''')
    for j in range(9):
        A(f'''v_add_u32 v8, {64*j}, v1
        v_mul_u32_u24 v9, 3641, v8
        v_lshrrev_b32 v9, 16, v9
        v_mul_u32_u24 v17, 18, v9
        v_sub_u32 v8, v8, v17
        v_mul_u32_u24 v9, 1152, v9
        v_lshl_add_u32 v{24+j}, v8, 4, v9''')
    def dqkv(srd, c):
        def f(o):
            l = []
            for tau in range(4):
                pi, jh = tau & 1, tau >> 1
                row = 144 * (c >> 1) + 64 * (c & 1) + (32 * jh + pi if cfg.x2 else 32 * pi + 8 * jh) if c < 8 else 288 * jh + 128 + 2 * pi
                l += [f's_add_u32 m0, s67, {o+1024*tau}', f's_add_u32 s69, s65, {row*8192}', f'buffer_load_dwordx4 {"v10" if c < 8 else "v11"}, {srd}, s69 offen lds']
            return l
        return f
    units = []
    tra = lambda m, T: ('v13', 32 * T) if m != 'v' else ('v14', 8 * T)
    for c in range(9):
        units.append((dqkv(SWQ, c), lambda o, c=c: [f'ds_read_b64_tr_b16 {r(cwq(T,c)+2*tau,2)}, v13 offset:{o+1024*tau+32*T}' for T in range(2) for tau in range(4)]))
    for (m, c) in resident()[0]:
        units.append((dqkv(SWK if m == 'k' else SWV, c), lambda o, m=m, c=c: [f'ds_read_b64_tr_b16 {r(cwr(m,T,c)+2*tau,2)}, {tra(m,T)[0]} offset:{o+1024*tau+tra(m,T)[1]}' for T in range(2) for tau in range(4)]))
    ranges = [((i % 9) * 4096, 4096) for i in range(18)]
    for u in range(4):
        def d(o, u=u):
            l = [f's_add_u32 s69, s66, {32*u*1152}']
            for j in range(9): l += [f's_add_u32 m0, s67, {9216*u+1024*j}', 's_nop 0', f'buffer_load_dwordx4 v{24+j}, {SWO}, s69 offen lds']
            return l
        def rd_(o, u=u):
            l = [f'ds_read_b64_tr_b16 {r(cwo(2*p+(u>>1),u&1)+2*tau,2)}, v15 offset:{9216*u+(16*(tau>>1)+2*(tau&1))*288+64*p}' for p in range(4) for tau in range(4)]
            if u & 1: l += [f'ds_read_b64_tr_b16 {r(cwo(8,u>>1)+2*tau,2)}, v12 offset:{9216*(u-1)+(16*(tau>>1)+2*(tau&1))*288+256}' for tau in range(4)]
            return l
        units.append((d, rd_)); ranges.append((9216 * u, 9216))
    for i, (m, c) in enumerate(resident()[1]):
        def rv(o, m=m, i=i):
            b = 36 + 16 * (i & 1); pb = 36 + 16 * ((i + 1) & 1)
            l = [f'ds_read_b64_tr_b16 {v(b+8*ch+2*tau,2)}, {tra(m,ch)[0]} offset:{o+1024*tau+tra(m,ch)[1]}' for ch in range(2) for tau in range(4)]
            if i > 0: l += ['s_waitcnt lgkmcnt(8)'] + [f'ds_write_b128 v16, {v(pb+4*q,4)} offset:{o-4096+1024*q}' for q in range(4)]
            if i == 8: l += ['s_waitcnt lgkmcnt(4)'] + [f'ds_write_b128 v16, {v(b+4*q,4)} offset:{o+1024*q}' for q in range(4)]
            return l
        units.append((dqkv(SWK if m == 'k' else SWV, c), rv))
        ranges.append((i * 4096, 4096))
    hold = {18: 19, 20: 21}
    if cfg.wo2:
        o = list(range(9)) + list(range(18, 22)) + list(range(9, 18)) + list(range(22, 31))
        units = [units[i] for i in o]; ranges = [ranges[i] for i in o]; hold = {9: 10, 11: 12}
    staged(A, units, 9, 4096, 's67', pre=cfg.chpre, ranges=ranges, hold=hold, mid=(chain_mem0, chain_mem0b))

(vLM, vWV, vIDX, vQW, vQR, vKR, vSM, vOW, vKMS, vPS, vRS, vKP, vSI, vSV, vSC, vZ) = [f'v{64+i}' for i in range(16)]
def role_chain(A):
    A('L_chain:')
    if not enabled('chain'):
        ln0_hook(A, 0); A('s_endpgm'); return
    warm_sweep(A, 's_mov_b32 s63, 0', True, 's_mov_b32 s63, 0')
    hold_back(A, 'c' in cfg.hold, F_CH, True)
    chain_init(A)
    validate(A)
    lane(A, 'v1')
    A(f'''
    v_and_b32 v2, 15, v1
    v_lshrrev_b32 v3, 4, v1
    v_and_b32 v8, 3, v1
    v_mov_b32 v6, {OOB}
    v_lshlrev_b32 v4, 4, v1
    v_add_u32 {vLM}, {L_MEM}, v4
    s_mul_i32 s63, {sW}, 36864
    v_add_u32 {vWV}, s63, v4
    s_lshl_b32 s63, {sW}, 10
    s_add_u32 s63, s63, {L_QK}
    s_sub_u32 s66, s63, {L_MEM}
    v_lshlrev_b32 v4, 2, v1
    v_add_u32 {vSM}, {L_SM}, v4
    s_lshl_b32 s67, {sW}, 8
    v_and_b32 v4, 2, v1
    v_cmp_eq_u32 vcc, 0, v4
    v_mov_b32 v5, 0x4444
    v_mov_b32 v7, 0xeeee
    v_cndmask_b32 {vIDX}, v7, v5, vcc
    v_lshlrev_b32 v4, 4, v2
    v_lshl_add_u32 v4, v3, 2, v4
    v_add_u32 {vQW}, s63, v4
    v_bfe_u32 v4, v1, 2, 2
    v_lshl_add_u32 v4, v3, 3, v4
    v_lshl_add_u32 v4, v4, 4, s63
    v_and_b32 v5, 1, v1
    v_lshl_add_u32 {vQR}, v5, 3, v4
    v_bfe_u32 v5, v1, 1, 1
    v_lshl_add_u32 {vKR}, v5, 3, v4
    v_lshrrev_b32 v4, 3, v2
    v_lshl_add_u32 v4, v4, 2, v8
    v_lshlrev_b32 v4, 4, v4
    v_lshl_add_u32 v4, v3, 7, v4
    s_lshl_b32 s64, {sW}, 9
    v_add_u32 v4, s64, v4
    v_and_b32 v5, 4, v1
    v_cmp_eq_u32 vcc, 0, v5
    s_add_u32 s68, s64, {2048 - 2*L_SM}
    s_nop 0
    v_cndmask_b32 {vKMS}, v6, v4, vcc
    s_lshr_b32 s63, {sW}, 1
    s_lshl_b32 s63, s63, 10
    s_and_b32 s64, {sW}, 1
    s_lshl_b32 s64, s64, 5
    s_add_u32 s63, s63, s64
    s_add_u32 s63, s63, {L_O}
    v_lshrrev_b32 v4, 1, v2
    v_lshlrev_b32 v4, 6, v4
    v_and_b32 v5, 1, v1
    v_lshl_add_u32 v4, v5, 4, v4
    v_lshl_add_u32 v4, v3, 8, v4
    v_add_u32 {vOW}, s63, v4
    v_lshrrev_b32 v4, {3 if cfg.x2 else 2}, v2
    v_lshrrev_b32 v5, 5, v1
    v_lshl_add_u32 v4, v4, 1, v5
    v_and_b32 v7, 1, v3
    v_and_b32 v9, {7 if cfg.x2 else 3}, v1
    v_lshl_add_u32 v7, v7, {3 if cfg.x2 else 2}, v9
    v_lshlrev_b32 v7, {3 if cfg.x2 else 4}, v7
    v_lshl_add_u32 {vPS}, v4, 12, v7
    v_bfe_u32 v4, v1, 1, 2
    v_lshlrev_b32 v4, 5, v4
    v_and_b32 v7, 1, v1
    v_lshl_add_u32 v4, v7, 3, v4
    v_lshl_add_u32 v4, v5, 4, v4
    v_and_b32 v7, 1, v3
    v_lshl_add_u32 v4, v7, 2, v4
    v_and_b32 v7, 8, v1
    v_cmp_eq_u32 vcc, 0, v7
    v_bfe_u32 v9, v1, 2, 1
    v_lshl_add_u32 {vSI}, v9, 1, v8
    v_cndmask_b32 {vRS}, v6, v4, vcc
    v_mov_b32 v4, 0x3f80
    v_mov_b32 v5, 0x3f800000
    v_cndmask_b32 v4, v5, v4, vcc
    v_and_b32 v7, 2, v1
    v_cmp_eq_u32 vcc, 0, v7
    s_nop 1
    v_cndmask_b32 {vSV}, 0, v4, vcc
    ''')
    l3 = A.lab('Lw3')
    A(f'''
    s_lshl_b32 s63, {sL}, 5
    s_add_u32 s63, s63, {sT}
    s_lshl_b32 s63, s63, 7
    s_add_u32 s64, s63, {F_QKV}
    s_mov_b32 s54, s64
    s_add_u32 s55, s63, {F_CH}
    v_and_b32 v4, {1 if cfg.shq else 0}, v1
    v_lshl_add_u32 {vKP}, v4, 2, s64
    s_cmp_lg_u32 {sW}, 3
    s_cbranch_scc1 {l3}
    v_lshlrev_b32 v4, 8, v8
    v_add_u32 {vSI}, {L_SM}, v4
    s_add_u32 s64, s63, {F_CH}
    v_cmp_eq_u32 vcc, 0, v1
    v_mov_b32 v4, s64
    s_nop 0
    v_cndmask_b32 {vRS}, v6, v4, vcc
    {l3}:
    s_mul_i32 s71, {sL}, {64*32}
    s_add_u32 s71, s71, {sT}
    s_mul_i32 s72, s71, 4096
    s_add_u32 s72, s72, {KVM}
    s_mul_i32 s71, s71, 24576
    s_add_u32 s94, s71, {QKV + 8192}
    s_lshl_b32 s63, {sW}, 11
    s_add_u32 s71, s71, s63
    s_add_u32 s71, s71, {QKV + 8192 - L_MEM}
    s_add_u32 s70, s71, 8192
    s_mul_i32 s73, {sL}, {2*RSLOT}
    s_add_u32 s73, s73, {RING0}
    s_lshl_b32 s74, {sW}, 5
    s_add_u32 s74, s74, {sT}
    s_lshl_b32 s63, {sT}, 7
    s_add_u32 s63, s63, s73
    s_lshl_b32 s64, {sW}, 16
    s_add_u32 s85, s63, s64
    s_add_u32 s86, s85, 32768
    s_lshl_b32 s64, {sW}, 13
    s_add_u32 s87, s63, s64
    s_add_u32 s87, s87, {64*4096}
    s_lshl_b32 s83, s74, 12
    s_add_u32 s83, s83, s73
    s_sub_u32 s83, s83, {L_MEM}
    s_mov_b32 s82, {RSLOT}
    s_mul_i32 s75, {sL}, {3*9216}
    s_add_u32 s75, s75, {MEM0}
    s_lshl_b32 s63, s74, 7
    s_add_u32 s88, s75, s63
    s_add_u32 s89, s88, 9216
    s_add_u32 s90, s88, 18432
    s_mul_i32 s91, {sW}, 3072
    s_sub_u32 s91, s91, s63
    s_sub_u32 s91, s91, {L_MEM}
    s_mov_b32 s77, {f2u(128**-0.5*LOG2E):#x}
    s_mov_b32 s78, 0x00ff00ff
    s_mov_b32 s79, 0x00ff00ff
    s_mov_b32 s92, 0x0000ffff
    s_mov_b32 s93, 0x0000ffff
    s_mov_b32 s84, 1
    s_mov_b32 s4, 0x3f803f80
    s_mov_b32 s5, 0x3f803f80
    s_mov_b32 {sI}, 0
    ''')
    l4 = A.lab('Lnr')
    A(f'v_mov_b32 {vSI}, -1\n s_cmp_lt_u32 s74, 72\n s_cbranch_scc1 {l4}\n v_mov_b32 {vRS}, {OOB}\n {l4}:')
    A(f's_cmp_lg_u32 {sSLOW}, 0\n s_cbranch_scc1 L_chs')
    chain_loop(A, 'L_chf', '')
    A('L_chs:')
    chain_loop(A, 'L_chs', ' sc1')

def chain_loop(A, name, loc):
    KX, AQ, AK, AR, BB, AV = 0, 8, 16, [24, 28], [32, 40, 48], 56
    sm = 'v_smfmac_f32_16x16x64_bf16'
    ACCS = [12, 13, 14, 15, 16, 17, 18, 19, 24, 25, 26, 27]
    NPS = 12
    def pst(k): return f's_memtime s[{28+2*k}:{29+2*k}]' if cfg.timing == True else ''
    def ps(k): A(pst(k))
    if cfg.timing:
        for k in range(NPS): A(f's_mov_b32 s{ACCS[k]}, 0\n s_mov_b32 s{28+2*k}, 0')
        A('s_mov_b32 s52, 0')
    REG, LDS = resident()
    seqA = []
    for c in range(9):
        seqA += [('k', 0, c), ('q', 0, c), ('k', 1, c), ('q', 1, c)] if c in cfg.KL else [('q', 0, c), ('q', 1, c), ('k', 0, c), ('k', 1, c)]
    seqV = [('v', T, c) for c in cfg.VORD for T in range(2)]
    fed = [x for x in seqA + seqV if (x[0], x[2]) in LDS]
    def brd(n):
        m, T, c = fed[n]
        return [f'ds_read_b128 {v(BB[n%3]+4*hb,4)}, {vWV} offset:{LDS.index((m,c))*4096+(2*T+hb)*1024} #b{n}' + ('x' if hb == 0 else '') for hb in range(2)]
    chunks = list(range(9)) + cfg.VORD
    assert cfg.VORD[:2] == [7, 8]
    NF = len(fed)
    xs = {16: BB[(NF - 3) % 3] + 4, 17: BB[(NF - 2) % 3] + 4}
    def aslot(i): return xs[i] if i in xs else AR[i & 1]
    def ard(i): return f'ds_read_b128 {v(aslot(i),4)}, {vLM} offset:{chunks[i]*1024} #a{i}'
    def mm(x, i):
        m, T, c = x
        acc = {'q': AQ, 'k': AK, 'v': AV}[m] + 4 * T
        pre = [f'@lw a{i}']; post = []
        if x in fed:
            n = fed.index(x); b = v(BB[n % 3], 8); pre.append(f'@lw b{n}')
            if n + 3 < len(fed): post = brd(n + 3)
        else: b = r(cwq(T, c) if m == 'q' else cwr(m, T, c), 8)
        return pre, f'{sm} {v(acc,4)}, {v(aslot(i),4)}, {b}, {vIDX}', post
    strip = lambda l: l.split('#')[0]
    def pre_reads():
        for n in range(3):
            for x in brd(n): A(strip(x))
    zero = [f'v_mov_b64 {v(i,2)}, 0' for i in list(range(8, 24, 2)) + list(range(56, 64, 2))]
    pre_reads()
    for x in zero: A(x)
    sel = f's_cmp_lg_u32 s76, 0\n s_cselect_b32 s80, s71, {OOB}\n s_cselect_b32 s81, s70, {OOB}'
    A(f's_load_dwordx2 s[64:65], s[8:9], s54 glc\n s_add_u32 s63, s83, s82')
    for so in ('s83', 's63'):
        for i in range(4): A(f'buffer_load_dwordx4 v[4:7], {vLM}, {WS}, {so} offen offset:{1024*i} sc1')
    for so in ('s88', 's89', 's90'): A(f's_sub_u32 s63, {so}, {L_SM}\n buffer_load_dword v4, {vSM}, {WS}, s63 offen sc1')
    A(f's_mov_b32 s76, 0\n s_mov_b32 s80, {OOB}')
    A(f'{name}_top:')
    ps(11)
    A(f's_waitcnt lgkmcnt(0)\n s_barrier')
    if cfg.timing == 2: A('s_memrealtime s[96:97]')
    A(f'{name}_top2:')
    if cfg.timing == True:
        ls = A.lab('Lts')
        A(f's_memtime s[52:53]\n s_waitcnt lgkmcnt(0)\n s_cmp_lt_u32 {sI}, 8\n s_cbranch_scc1 {ls}')
        for k in range(NPS):
            A(f's_sub_u32 s63, s{30+2*k}, s{28+2*k}\n s_add_u32 s{ACCS[k]}, s{ACCS[k]}, s63')
        A(f'{ls}:')
    if cfg.timing != 2: stamp(A, vZ, sI)
    ps(0)
    VX = [20, 8]
    kld = [f'buffer_load_dwordx4 {v(KX+4*q,4)}, {vLM}, {WS}, s71 offen offset:{1024*q} sc1' for q in range(2)]
    vld = [f'buffer_load_dwordx4 {v(VX[q],4)}, {vLM}, {WS}, s70 offen offset:{1024*q} sc1' for q in range(2)]
    pk = lambda d, b: f'v_pk_add_f32 {v(d,2)}, {v(b,2)}, {v(b+2,2)}'
    ad = lambda b: [f'v_add_f32 {v(b)}, {v(b)}, {v(b+2)}', f'v_add_f32 {v(b+1)}, {v(b+1)}, {v(b+3)}']
    cv = lambda d, b: f'v_cvt_pk_bf16_f32 {v(d)}, {v(b)}, {v(b+1)}'
    ev = f'{"s_min_u32 s63, s64, s65" if cfg.shq else "s_mov_b32 s63, s64"}\n s_cmp_gt_u32 s63, {sI}'
    ev += f'\n s_cselect_b32 s76, 1, 0\n s_cselect_b32 s80, s71, {OOB}\n s_cselect_b32 s81, s70, {OOB}'
    L = [ard(0), ard(1), kld[0].replace('s71', 's80'), kld[1].replace('s71', 's80'), 's_cmp_eq_u32 s76, 0', f's_cbranch_scc1 {name}_m1', f'{name}_m1r:']
    extra = {cfg.tpos: [f'v_lshlrev_b32 {vSC}, 2, {vLM}', f's_sub_u32 s63, s81, {3*L_MEM}'],
             cfg.tpos + 1: ['s_mov_b32 exec_hi, 0', f'buffer_load_dword {vSC}, {vSC}, {WS}, s63 offen sc1', 's_mov_b32 exec_hi, -1'],
             cfg.midchk: ['s_cmp_eq_u32 s76, 0', f's_cbranch_scc1 {name}_m2', f'{name}_m2r:'],
             34: [f's_cmp_eq_u32 {sI}, {NSEG-1}']}
    if cfg.rstpos: extra[cfg.rstpos] = [f'buffer_store_dword {vSI}, {vRS}, {WS}, s90 offen{loc}']
    pend = []
    for j, x in enumerate(seqA):
        i = j // 4
        pre, m_, post = mm(x, i)
        L += pre + [m_]
        pend += post
        if j % 4 == 3 and i + 2 < 9: pend.append(ard(i + 2))
        if pend: L.append(pend.pop(0))
        if len(pend) > 1: L.append(pend.pop(0))
        L += extra.get(j, [])
    L += pend; pend = []
    L.append(pst(1))
    vq = list(enumerate(seqV))
    def vrun(n, fill=()):
        o = []; fill = list(fill)
        for _ in range(n):
            j, x = vq.pop(0); i = 9 + j // 2
            pre, m_, post = mm(x, i)
            o += pre + [m_] + post
            if j % 2 == 1 and i + 2 < 16: o.append(ard(i + 2))
            if x == fed[NF - 3]: o.append(ard(16))
            if x == fed[NF - 2]: o.append(ard(17))
            if fill: o += fill.pop(0)
        return o
    g = cfg.vgaps
    L += vrun(g[0], [['s_nop 0'], ad(AQ)])
    L += ad(AQ + 4) + [cv(10, AQ), cv(11, AQ + 4), f'ds_write2_b32 {vQW}, v10, v11 offset0:0 offset1:64', pk(AK, AK), pk(AK + 4, AK + 4),
          f'ds_read_b64_tr_b16 v[8:9], {vQR}', cv(18, AK), cv(19, AK + 4), f'ds_write2_b32 {vQW}, v18, v19 offset0:128 offset1:192',
          f'ds_read_b64_tr_b16 v[10:11], {vQR} offset:64 #q', f'ds_read_b64_tr_b16 v[12:13], {vKR} offset:512', f'ds_read_b64_tr_b16 v[14:15], {vKR} offset:576 #k']
    state = Sched(['\n'.join(L)]).emit(A)
    A(f's_cbranch_scc1 {name}_late')
    vsave = list(vq)
    smf = [f'{M16} v[16:19], v[0:3], v[8:11], 0', f'{M16} v[20:23], v[4:7], v[8:11], 0', f'{M16} v[0:3], v[12:15], v[8:11], 0']
    kmst = f'buffer_store_dwordx4 v[12:15], {vKMS}, {WS}, s72 offen sc1'
    def smid(withv, st):
        run = (lambda n, f=(): vrun(n, f)) if withv else (lambda n, f=(): [y for x in f for y in x])
        L = run(g[2], [[f'v_add_u32 v4, s66, {vLM}'], [f'v_add_u32 v5, s67, {vSM}']])
        L += [f's_nop {cfg.snop if withv else 5}'] + [f'v_cndmask_b32 v{16+q}, v{20+q}, v{16+q}, vcc' for q in range(4)]
        L += ['ds_write_b128 v4, v[16:19]', 'v_cndmask_b32 v0, v1, v0, vcc', 'v_cndmask_b32 v2, v3, v2, vcc', 'v_cndmask_b32 v0, v2, v0, s[92:93]', 'ds_write_b32 v5, v0 #sw']
        L += run(g[3], [[vld[0]], [vld[1]]])
        L += ['@lw sw', 's_barrier', pst(4)]
        XR = [0, 4, 40, 16]
        L += [f'ds_read_b128 {v(XR[w],4)}, {vLM} offset:{L_QK-L_MEM+1024*w} #s{w}' for w in range(4)]
        L += [f'ds_read2st64_b32 v[32:33], {vSM} offset0:0 offset1:1', f'ds_read2st64_b32 v[34:35], {vSM} offset0:2 offset1:3 #st']
        L += ([kmst] if cfg.kmpos == 0 else []) + run(g[4])
        L += ['@lw st']
        Sched(['\n'.join(L)]).emit(A, st)
    assert seqV.index(fed[-1]) < sum(g[:4]) and NF % 3 == 0
    L = vrun(g[1], [['s_cmp_lg_u32 s76, 1']]) + [f's_cbranch_scc1 {name}_m3', f'{name}_m3r:', 's_mov_b64 vcc, s[78:79]', pst(2), f's_waitcnt vmcnt({2 if cfg.rstpos else 1})', '@lw q', pst(3), smf[0], smf[1], '@lw k', smf[2]]
    st2 = Sched(['\n'.join(L)]).emit(A, state)
    smid(True, st2)
    assert not vq
    vmst = [pk(36, AV), pk(38, AV + 4), cv(40, 36), cv(41, 38), f'v_lshl_add_u32 v42, {vSM}, 1, s68', f'buffer_store_dwordx2 v[40:41], v42, {WS}, s72 offen sc1']
    A(f'''{name}_join:
    v_pk_add_f32 v[0:1], v[0:1], v[4:5]
    v_pk_add_f32 v[2:3], v[2:3], v[6:7]
    v_pk_add_f32 v[16:17], v[40:41], v[16:17]
    v_pk_add_f32 v[18:19], v[42:43], v[18:19]
    v_pk_add_f32 v[32:33], v[32:33], v[34:35]
    v_pk_add_f32 v[0:1], v[0:1], v[16:17]
    v_pk_add_f32 v[2:3], v[2:3], v[18:19]
    v_add_f32 v4, v32, v33
    v_max3_f32 v24, v0, v1, v2
    v_max3_f32 v24, v24, v3, v4
    {vmst[0]}
    {vmst[1]}
    v_max_f32_dpp v24, v24, v24 row_ror:8 row_mask:0xf bank_mask:0xf
    v_mov_b32 v25, v24
    {vmst[2]}
    {vmst[3]}
    v_permlane16_swap_b32 v24, v25
    v_max_f32 v24, v24, v25
    v_mov_b32 v25, v24
    v_mov_b64 v[44:45], s[96:97]
    v_mov_b64 v[46:47], s[96:97]
    v_permlane32_swap_b32 v24, v25
    v_max_f32 v24, v24, v25
    v_mul_f32 v24, s77, v24'''.replace('s[96:97]', 's[4:5]'))
    X = [4, 0, 1, 2, 3]
    for x in X: A(f'v_fma_f32 v{x}, v{x}, s77, -v24')
    for x in X: A(f'v_exp_f32 v{x}, v{x}')
    kq = cfg.kmpos
    A(f'''v_cvt_pk_bf16_f32 v36, v0, v1
    v_cvt_pk_bf16_f32 v37, v2, v3
    v_mov_b32_dpp v5, v4 row_ror:8 row_mask:0xf bank_mask:0xf
    v_mov_b32_dpp v38, v36 row_ror:8 row_mask:0xf bank_mask:0xf
    v_mov_b32_dpp v39, v37 row_ror:8 row_mask:0xf bank_mask:0xf
    v_cvt_pk_bf16_f32 v16, v4, v5
    {pst(5)}
    s_waitcnt vmcnt({1 if kq == 0 else 0})
    {pst(6)}
    {M16} v[32:35], v[44:47], v[36:39], 0
    v_mov_b32 v17, 0
    {M16} v[24:27], {v(VX[0],4)}, v[36:39], 0
    v_mov_b32 v18, 0
    {M16} v[28:31], {v(VX[1],4)}, v[36:39], 0
    v_mov_b32 v19, v16
    {vmst[4]}
    v_mfma_f32_16x16x16_bf16 v[32:35], v[44:45], v[16:17], v[32:35]
    v_and_b32 v43, 0xffffffdf, {vLM}
    v_mfma_f32_16x16x16_bf16 v[24:27], v[40:41], v[16:17], v[24:27]
    v_mov_b64 v[48:49], 0
    v_mfma_f32_16x16x16_bf16 v[28:31], v[40:41], v[18:19], v[28:31]
    {vmst[5]}
    v_mov_b64 v[50:51], 0
    v_mov_b64 v[52:53], 0
    v_mov_b64 v[54:55], 0
    v_rcp_f32 v32, v32
    v_mov_b64 v[56:57], 0
    v_pk_mul_f32 v[24:25], v[24:25], v[32:33] op_sel_hi:[1,0]
    v_pk_mul_f32 v[26:27], v[26:27], v[32:33] op_sel_hi:[1,0]
    v_pk_mul_f32 v[28:29], v[28:29], v[32:33] op_sel_hi:[1,0]
    v_pk_mul_f32 v[30:31], v[30:31], v[32:33] op_sel_hi:[1,0]''')
    for d in range(4): A(f'v_cvt_pk_bf16_f32 v{36+d}, v{24+2*d}, v{25+2*d}')
    rest = lines(f'''v_mov_b64 v[58:59], 0
    v_mov_b64 v[60:61], 0
    v_mov_b64 v[62:63], 0
    v_mov_b64 v[44:45], 0
    v_mov_b64 v[46:47], 0
    v_and_b32 v34, 0x7c, {vSM}
    v_bfe_u32 v35, {vSM}, 7, 1
    v_lshl_add_u32 v34, v35, 12, v34''')
    A(f's_mov_b64 exec, s[78:79]\n ds_write_b128 {vOW}, v[36:39]\n s_mov_b64 exec, -1')
    if kq == 1: A(kmst)
    else:
        for x in rest: A(x)
    A('s_waitcnt lgkmcnt(0)\n s_barrier')
    if cfg.timing == 2: A(f's_mov_b32 m0, {sI}\n s_nop 0\n v_writelane_b32 {vZ}, s96, m0')
    for u in range(4): A(f'ds_read_b128 {v(4*u,4)}, v43 offset:{L_O-L_MEM+1024*(u>>1)+32*(u&1)}')
    for c2 in range(2): A(f'ds_read_b128 {v(16+4*c2,4)}, {vLM} offset:{L_O-L_MEM+1024*c2}')
    if kq == 1:
        for x in rest: A(x)
    for x in [f's_add_u32 s71, s71, {32*24576}', f's_add_u32 s70, s70, {32*24576}', f's_add_u32 s72, s72, {32*4096}', f's_add_u32 {sI}, {sI}, 1',
              's_add_u32 s95, s89, s91', f's_mov_b32 {sSPIN}, 0', f's_cmp_eq_u32 {sW}, 3']: A(x)
    ps(7)
    pm = lambda p, u: f'{sm} {v(48+4*p,4)}, {v(4*u,4)}, {r(cwo(2*p+(u>>1),u&1),8)}, {vIDX}'
    mains = []
    for u in range(4):
        mains += [f's_waitcnt lgkmcnt({5-u})\n' + pm(0, u), pm(1, u)]
    t8 = [f's_waitcnt lgkmcnt(0)\n {sm} v[44:47], v[16:19], {r(cwo(8,0),8)}, {vIDX}', f'{sm} v[44:47], v[20:23], {r(cwo(8,1),8)}, {vIDX}']
    p23 = [pm(2, u) for u in range(4)] + [pm(3, u) for u in range(4)]
    st0 = f'buffer_store_dwordx4 v[24:27], {vPS}, {WS}, s85 offen{loc}'
    st1 = f'buffer_store_dwordx4 v[28:31], {vPS}, {WS}, s86 offen{loc}'
    st8 = f'buffer_store_dword v33, v34, {WS}, s87 offen{loc}'
    if cfg.x2:
        m2 = [f's_waitcnt lgkmcnt({5-u})\n' + pm(0, u) for u in range(4)] + [pm(p, u) for p in (1, 2, 3) for u in range(4)] + t8
        S = Sched(m2)
        so = ['s85', 's64', 's86', 's65']
        def out(p): return [cv(24 + 2 * p, 48 + 4 * p), cv(25 + 2 * p, 50 + 4 * p), f'v_and_or_b32 v{24+2*p}, v{24+2*p}, -2, s84',
                            f'buffer_store_dwordx2 {v(24+2*p,2)}, {vPS}, {WS}, {so[p]} offen{loc}']
        S.put(3, 's_add_u32 s64, s85, 16384\n s_add_u32 s65, s86, 16384'); S.put(4, 's_nop 0'); S.put(5, 's_nop 0'); S.put(6, f's_cmp_eq_u32 {sW}, 3')
        for p in range(3):
            o = out(p)
            S.put(7 + 4 * p, o[0]); S.put(8 + 4 * p, o[1]); S.put(9 + 4 * p, o[2] + '\n' + o[3])
            if p < 2: S.put(10 + 4 * p, 's_nop 0')
        S.emit(A)
        A('s_nop 0')
        for x in out(3): A(x)
        A(f's_nop 0\n {pk(44, 44)}\n {cv(33, 44)}\n v_and_or_b32 v33, v33, -2, s84\n {st8}')
    elif cfg.woord == 0:
        S = Sched(mains + t8 + p23)
        for q in (7, 8, 9, 10): S.put(q, 's_nop 0')
        S.put(11, cv(24, 48) + '\n' + cv(25, 50)); S.put(12, cv(26, 52) + '\n' + cv(27, 54))
        S.put(13, f'v_and_or_b32 v24, v24, -2, s84\n {st0}')
        S.put(14, '\n'.join(ad(44))); S.put(15, cv(33, 44)); S.put(16, 'v_and_or_b32 v33, v33, -2, s84')
        S.put(17, st8)
        S.emit(A)
        A(f'{cv(28, 56)}\n {cv(29, 58)}\n v_and_or_b32 v28, v28, -2, s84\n s_nop 3\n {cv(30, 60)}\n {cv(31, 62)}\n {st1}')
    elif cfg.woord == 1:
        S = Sched(mains + p23 + t8)
        for q in (7, 8, 9, 10): S.put(q, 's_nop 0')
        S.put(11, cv(24, 48) + '\n' + cv(25, 50)); S.put(12, cv(26, 52) + '\n' + cv(27, 54))
        S.put(13, f'v_and_or_b32 v24, v24, -2, s84\n {st0}')
        S.put(15, cv(28, 56)); S.put(16, cv(29, 58)); S.put(17, 'v_and_or_b32 v28, v28, -2, s84')
        S.emit(A)
        A(f's_nop 1\n {cv(30, 60)}\n {cv(31, 62)}\n {st1}\n s_nop 1\n {pk(44, 44)}\n {cv(33, 44)}\n v_and_or_b32 v33, v33, -2, s84\n {st8}')
    else:
        S = Sched(mains + t8 + p23)
        for q, x in zip(range(7, 18), ['s_nop 0'] * 4 + [cv(24, 48), cv(25, 50), cv(26, 52), cv(27, 54), 'v_and_or_b32 v24, v24, -2, s84'] + ad(44)): S.put(q, x)
        S.emit(A)
        A(f'{st0}\n {cv(28, 56)}\n {cv(29, 58)}\n v_and_or_b32 v28, v28, -2, s84\n {cv(33, 44)}\n v_and_or_b32 v33, v33, -2, s84\n s_nop 0\n {cv(30, 60)}\n {cv(31, 62)}\n {st1}\n {st8}')
    ps(8); ps(9); ps(10)
    rot = lines(f'''s_mov_b32 s63, s88
    s_mov_b32 s88, s89
    s_mov_b32 s89, s90
    s_mov_b32 s90, s63
    s_add_u32 s85, s85, s82
    s_add_u32 s86, s86, s82
    s_add_u32 s87, s87, s82
    s_add_u32 s83, s83, s82
    s_sub_u32 s82, 0, s82
    s_bfe_u32 s84, {sI}, 0x10001
    s_xor_b32 s84, s84, 1''')
    pre_reads()
    A(f'''s_load_dwordx2 s[64:65], s[8:9], s54 glc
    s_cbranch_scc1 {name}_w3
    s_cmp_ge_u32 s74, 72
    s_cbranch_scc1 {name}_nred''')
    def rdy_():
        l = A.lab('Lrd')
        return f's_waitcnt lgkmcnt(0)\n {ev}\n s_cbranch_scc1 {l}\n s_load_dwordx2 s[64:65], s[8:9], s54 glc\n {l}:'
    SEL = 60
    for d, mk_ in enumerate((0x01010101, 0x02020202, 0x10101010, 0x20202020)):
        A(f's_mov_b32 vcc_lo, {mk_:#x}\n s_mov_b32 vcc_hi, {mk_:#x}\n v_cndmask_b32 {v(SEL+d)}, 0, {vSV}, vcc')
    if cfg.w1: A(f's_waitcnt vmcnt({cfg.w1 - 1})')
    for i in range(cfg.d1): A('s_nop 7')
    ps(9)
    GS = [[0, 4, 8, 12], [16, 20, 24, 28]]
    def gissue(k):
        for i in range(4): A(f'buffer_load_dwordx4 {v(GS[k][i],4)}, {vLM}, {WS}, s83 offen offset:{1024*i} sc1')
    def gproc(k):
        G = GS[k]
        A(f'''s_waitcnt vmcnt(6)
        {M16} v[56:59], {v(SEL,4)}, {v(G[0],4)}, 0
        v_xor_b32 {vSC}, s84, v{G[0]}
        {M16} v[56:59], {v(SEL,4)}, {v(G[1],4)}, v[56:59]
        v_bitop3_b32 {vSC}, {vSC}, v{G[1]}, s84 bitop3:0xf6
        s_waitcnt vmcnt(5)
        {M16} v[56:59], {v(SEL,4)}, {v(G[2],4)}, v[56:59]
        v_bitop3_b32 {vSC}, {vSC}, v{G[2]}, s84 bitop3:0xf6
        s_waitcnt vmcnt(4)
        {M16} v[56:59], {v(SEL,4)}, {v(G[3],4)}, v[56:59]
        v_bitop3_b32 {vSC}, {vSC}, v{G[3]}, s84 bitop3:0xf6
        v_and_b32 {vSC}, 1, {vSC}
        v_cmp_ne_u32 vcc, 0, {vSC}
        s_add_u32 {sSPIN}, {sSPIN}, 1
        v_mov_b32 {vSC}, -1
        s_nop 2
        v_add_f32_dpp v56, v56, v56 row_ror:8 row_mask:0xf bank_mask:0xf
        v_add_f32_dpp v57, v57, v57 row_ror:8 row_mask:0xf bank_mask:0xf
        v_cvt_pk_bf16_f32 v58, v56, v57
        v_min_u32 v58, -2, v58
        s_cbranch_vccz {name}_gok
        {'s_addk_i32 s12, 1' if cfg.timing == 6 else ''}''')
    gissue(0)
    if cfg.w2 is not None: A(f's_waitcnt vmcnt({cfg.w2})')
    for i in range(cfg.d2): A('s_nop 7')
    A(f'{name}_g:')
    gissue(1); gproc(0); gissue(0); gproc(1)
    A(f'''s_cmp_lt_u32 {sSPIN}, {cfg.spin_limit}
    s_cbranch_scc1 {name}_g
    s_mov_b32 s63, 41
    s_branch L_abort
    {name}_gok:
    buffer_store_dword v58, {vRS}, {WS}, s89 offen{loc}
    {'' if cfg.rstpos else f'buffer_store_dword {vSC}, {vRS}, {WS}, s88 offen{loc}'}''')
    ps(10)
    lp = A.lab('Lp')
    A(f'{name}_poll:\n s_barrier')
    for x in rot: A(x)
    def pissue():
        for q in range(3): A(f'buffer_load_dwordx4 {vLM}, {WS}, s95 offen offset:{1024*q} sc1 lds')
    A(f'''s_mul_i32 s63, {sW}, 3072
    s_add_u32 m0, s63, {L_MEM}
    s_waitcnt vmcnt({min(cfg.w3, 1) if cfg.rstpos else cfg.w3})
    v_add_u32 {vSC}, s63, {vLM}''')
    for i in range(cfg.d3): A('s_nop 7')
    if cfg.zfirst:
        for x in zero: A(x)
    pissue()
    if not cfg.zfirst:
        for x in zero: A(x)
    A(rdy_())
    if cfg.w4 is not None: A(f's_waitcnt vmcnt({cfg.w4})')
    for i in range(cfg.d4): A('s_nop 7')
    A(f'{lp}:')
    pissue()
    A(f'''s_waitcnt vmcnt(3)
    ds_read_b128 v[24:27], {vSC}
    ds_read_b128 v[28:31], {vSC} offset:1024
    ds_read_b128 v[4:7], {vSC} offset:2048
    s_add_u32 {sSPIN}, {sSPIN}, 1
    s_waitcnt lgkmcnt(1)
    v_max3_u32 v0, v24, v25, v26
    v_max3_u32 v1, v27, v28, v29
    v_max3_u32 v0, v0, v30, v31
    s_waitcnt lgkmcnt(0)
    v_max3_u32 v1, v1, v4, v5
    v_max3_u32 v0, v0, v6, v7
    v_max_u32 v0, v0, v1
    v_cmp_eq_u32 vcc, -1, v0
    s_cbranch_vccz {name}_top
    {'s_add_u32 s13, s13, 1' if cfg.timing == 6 else ''}
    s_cmp_lt_u32 {sSPIN}, {cfg.spin_limit}
    s_cbranch_scc1 {lp}
    s_mov_b32 s63, 42
    s_branch L_abort
    {name}_nred:
    s_waitcnt vmcnt({5 if cfg.x2 else 3})
    s_branch {name}_poll
    {name}_w3:
    s_mov_b32 s69, 1
    s_waitcnt vmcnt({5 if cfg.x2 else 3}) lgkmcnt(0)
    {ev}
    s_barrier
    s_atomic_add s69, s[8:9], s55
    s_cbranch_scc1 {name}_w3b
    s_load_dwordx2 s[64:65], s[8:9], s54 glc
    s_waitcnt lgkmcnt(0)
    {name}_w3b:''')
    for x in zero + rot: A(x)
    A(f's_barrier\n s_branch {name}_top2')
    touch = f'v_lshlrev_b32 {vSC}, 2, {vLM}\n s_sub_u32 s63, s70, {3*L_MEM}\n s_mov_b32 exec_hi, 0\n buffer_load_dword {vSC}, {vSC}, {WS}, s63 offen sc1\n s_mov_b32 exec_hi, -1'
    A(f'''{name}_m1:
    {ev}
    s_cbranch_scc0 {name}_m1b
    {kld[0]}
    {kld[1]}
    s_branch {name}_m1r
    {name}_m1b:
    buffer_load_dword v0, {vKP}, {WS}, 0 offen sc1
    s_branch {name}_m1r
    {name}_m2:
    s_waitcnt vmcnt(0)
    v_cmp_ge_u32 vcc, {sI}, v0
    s_cbranch_vccnz {name}_m2r
    {kld[0]}
    {kld[1]}
    {touch}
    s_mov_b32 s76, 2
    s_branch {name}_m2r
    {name}_m3:
    s_cmp_eq_u32 s76, 2
    s_cbranch_scc1 {name}_m4
    s_add_u32 s64, {sI}, 1''')
    spin(A, 'v0', vKP, 's64', 40)
    A(f'''{kld[0]}
    {kld[1]}
    {touch}
    s_waitcnt vmcnt(1)
    {name}_m4:
    s_branch {name}_m3r''')
    A(f'{name}_late:')
    vq[:] = vsave
    Sched(['\n'.join(vrun(len(vq)) + ['@lw k', kmst, 's_nop 6'] + vmst)]).emit(A, state)
    A(f'''s_waitcnt vmcnt(0) lgkmcnt(0)
    s_barrier
    s_cmp_lg_u32 {sW}, 3
    s_cbranch_scc1 {name}_fin
    s_mov_b32 s69, 1
    s_atomic_add s69, s[8:9], s55
    s_waitcnt lgkmcnt(0)
    {name}_fin:''')
    if cfg.timing:
        for k in range(NPS): A(f'v_writelane_b32 v10, s{ACCS[k]}, {k}')
    dump(A, [vZ, 'v10'])
    A('s_endpgm')

cfg.x_nospin = cfg.x_nopf = cfg.x_latereset = False
cfg.x_drop = []; cfg.nt = False; cfg.x_nost = 0; cfg.x_same = False; cfg.x_nopf = True; cfg.attld = 'sc1'; cfg.attst = 'sc1'; cfg.shq = True; cfg.shu = True; cfg.lowlate = ''; cfg.wts = (0.7, 1.6, 1.0, 1.5, 1.0, 0.6, 1.0); cfg.cap = 2.0; cfg.rgring = (4, 4); cfg.rgra = 3; cfg.rgdma = (25, 4); cfg.upsig = (False, 38, 3, 44, None); cfg.soft = ''; cfg.softq = (12, 6, 2); cfg.upord = 'm0 m1 e0 m2 g0 e1 m3 a0 e2 g1 a1 r0 g2 a2 e3 g3 f0 r1 a3 r2 f1 r3 f2 f3'; cfg.nsweep = 160; cfg.ffnsweep = False; cfg.chance4 = 'u'; cfg.bigp = (40, 25, 40, 40); cfg.qp = (45, 44, 44); cfg.up1 = 33; cfg.nb0 = 4; cfg.gap2 = True; cfg.gap = ''; cfg.aplan = 46; cfg.nox0 = True; cfg.xstep = 6; cfg.qalt = 8; cfg.ktouch = False; cfg.tpos = 8; cfg.rstpos = 0; cfg.w2 = 3; cfg.w4 = 2; cfg.zfirst = False; cfg.x2 = True; cfg.kmpos = 0; cfg.woord = 1; cfg.midchk = 15; cfg.flagpos = 23; cfg.qplan = None; cfg.uplan = (16, 48); cfg.wo2 = True; cfg.qpre = (0, 1); cfg.chpre = (2, 7); cfg.hold = ''; cfg.rgpoll = True; cfg.dq = (8, 8, 6, 5, 5); cfg.rp0 = 0; cfg.rp1 = 5
cfg.d1 = 0; cfg.d2 = 0; cfg.d3 = 0; cfg.delay1 = True; cfg.ch1wait = False; cfg.pre0 = 0; cfg.pre1 = 1; cfg.vtouch = True; cfg.lateflag = True; cfg.w1 = 1; cfg.w3 = 2; cfg.w1 = 3; cfg.d1 = 0; cfg.d2 = 0; cfg.d3 = 0; cfg.d4 = 0
cfg.KL = [0, 2, 3, 5, 6, 7]; cfg.VL = [0, 1, 2]; cfg.VORD = [7, 8, 0, 3, 1, 2, 4, 5, 6]; cfg.vgaps = [2, 4, 2, 4, 6]; cfg.snop = 1
def build():
    A = Asm()
    kernel_begin(A, KNAME)
    prologue(A)
    role_chain(A)
    role_qkv(A)
    role_up(A)
    A('L_abort_b:\n s_branch L_abort\n L_rerank_b:\n s_branch L_rerank\n L_att:\n s_branch L_att_b\n L_red:\n s_branch L_red_b')
    n0 = len(A.lines)
    role_rg(A, 'L_wo', 'wo', 16, SWO, OB, 262144, PW, F_WO, 50)
    role_rg(A, 'L_dn', 'dn', 18, SW2, HB, 294912, PD, F_DN, 51)
    role_att(A)
    role_red(A)
    for i in range(n0, len(A.lines)):
        l = A.lines[i]
        if l.endswith(('L_abort', 'L_rerank')): A.lines[i] = l + '_b'
        if l in ('L_att:', 'L_red:'): A.lines[i] = l[:-1] + '_b:'
    A('s_endpgm\n L_code_end:')
    return build_file([(KNAME, 256, 256, LDS_BYTES)], A.text(), [descriptor(KNAME)])

if __name__ == '__main__':
    out = sys.argv[1] if len(sys.argv) > 1 else 'interleave_layers__memory_aug_recurrent_mem_tr__glu_gated_swiglu__prompt.s'
    open(out, 'w').write(build())
```
